```python
import torch

def _softmax(x, axis=-1):
    return torch.softmax(x, dim=axis)
def _gelu(x):
    return torch.nn.functional.gelu(x, approximate="tanh")
def _silu(x):
    return torch.nn.functional.silu(x)
def _sigmoid(x):
    return torch.sigmoid(x)
def _layernorm(x, axis=-1, eps=1e-5):
    m = x.mean(dim=axis, keepdim=True)
    v = x.var(dim=axis, keepdim=True, unbiased=False)
    return (x - m) / torch.sqrt(v + eps)
def _scatter_add(tgt, idx, src, axis=0):
    return tgt.clone().index_add_(axis, idx, src)
def _segment_sum(src, seg, n):
    out = torch.zeros((n,) + src.shape[1:], dtype=src.dtype)
    return out.index_add_(0, seg, src)
def _pad(x, pw):
    flat = tuple(v for pair in reversed(pw) for v in pair)
    return torch.nn.functional.pad(x, flat)

kernel_name = 'sequential_preLN__spectral_fnet__moe_arch_mod__prompt'

def setup_inputs():

    _w = (lambda a: (lambda t: t.to(torch.bfloat16) if t.is_floating_point() else t)(torch.as_tensor(a)))
    def _A_setup():
        B, S, D = 1, 2048, 512
        ns = torch.arange(S)[:, None] * torch.arange(S)[None, :]
        nd = torch.arange(D)[:, None] * torch.arange(D)[None, :]
        Ws_re = torch.cos(-2.0 * torch.pi * ns / S).to(float)
        Ws_im = torch.sin(-2.0 * torch.pi * ns / S).to(float)
        Wd_re = torch.cos(-2.0 * torch.pi * nd / D).to(float)
        Wd_im = torch.sin(-2.0 * torch.pi * nd / D).to(float)
        return {
            "x": _w((lambda *s: torch.randn(*s, dtype=torch.bfloat16) * 0.05)(B, S, D)),
            "dft_seq_re": _w(Ws_re),
            "dft_seq_im": _w(Ws_im),
            "dft_hid_re": _w(Wd_re),
            "dft_hid_im": _w(Wd_im),
        }
    _A_in = _A_setup()

    def _B_setup():
        B, S, D, F, C = 1, 2048, 512, 1792, 1
        return {
            "x": _w((lambda *s: torch.randn(*s, dtype=torch.bfloat16) * 0.05)(B, S, D)),
            "w_r": _w((lambda *s: torch.randn(*s, dtype=torch.bfloat16) * 1.6)(D)),
            "w_gate": _w((lambda *s: torch.randn(*s, dtype=torch.bfloat16) * 0.4)(D, F)),
            "w_up": _w((lambda *s: torch.randn(*s, dtype=torch.bfloat16) * 0.4)(D, F)),
            "w_down": _w((lambda *s: torch.randn(*s, dtype=torch.bfloat16) * 0.4)(F, D)),
        }
    _B_in = _B_setup()

    return {
        "A_x": _A_in["x"],
        "A_dft_seq_re": _A_in["dft_seq_re"],
        "A_dft_seq_im": _A_in["dft_seq_im"],
        "A_dft_hid_re": _A_in["dft_hid_re"],
        "A_dft_hid_im": _A_in["dft_hid_im"],
        "B_x": _B_in["x"],
        "B_w_r": _B_in["w_r"],
        "B_w_gate": _B_in["w_gate"],
        "B_w_up": _B_in["w_up"],
        "B_w_down": _B_in["w_down"],
    }

def reference(A_x, A_dft_seq_re, A_dft_seq_im, A_dft_hid_re, A_dft_hid_im, B_x, B_w_r, B_w_gate, B_w_up, B_w_down):
    def _A_ref(x, dft_seq_re, dft_seq_im, dft_hid_re, dft_hid_im):
        a = torch.einsum("bsd,ed->bse", x, dft_hid_re)
        b = torch.einsum("bsd,ed->bse", x, dft_hid_im)
        y = torch.einsum("ts,bse->bte", dft_seq_re, a) - torch.einsum("ts,bse->bte", dft_seq_im, b)
        return y

    def _B_ref(x, w_r, w_gate, w_up, w_down):
        B, S, D = x.shape
        C = 1
        r = x @ w_r
        idx = torch.argsort(-r, axis=-1)[:, :C]
        idx_e = (lambda x, n, axis: torch.repeat_interleave(x, n, dim=axis))(idx.reshape(B, C, 1), D, axis=2)
        x_sel = (lambda x, i, axis: torch.take_along_dim(x, i, dim=axis))(x, idx_e, axis=1)
        g = _silu(x_sel @ w_gate)
        u = x_sel @ w_up
        y = (g * u) @ w_down
        r_sel = _sigmoid((lambda x, i, axis: torch.take_along_dim(x, i, dim=axis))(r, idx, axis=1))
        y = y * r_sel.reshape(B, C, 1)
        b_off = (torch.arange(B) * S).reshape(B, 1)
        flat_idx = (idx + b_off).reshape(B * C)
        zero = (x * 0.0).reshape(B * S, D)
        upd = _scatter_add(zero, flat_idx, y.reshape(B * C, D), axis=0)
        return x + upd.reshape(B, S, D)

    x = A_x
    h = x + _A_ref(_layernorm(x, axis=-1), A_dft_seq_re, A_dft_seq_im, A_dft_hid_re, A_dft_hid_im)
    h2 = h + _B_ref(_layernorm(h, axis=-1), B_w_r, B_w_gate, B_w_up, B_w_down)
    return h2
```

```python
import sys

NAME = "sequential_preLN__spectral_fnet__moe_arch_mod__prompt"

ABT_OFF = 0
PART_OFF = 4 << 20
H_OFF = 12 << 20
STATS_OFF = 14 << 20
KEYS_OFF = (14 << 20) + 65536
SEL_OFF = (14 << 20) + 131072
YP_OFF = 15 << 20

KA_X, KA_CR, KA_CI, KA_WRE, KA_WIM, KA_BX, KA_WR, KA_WG, KA_WU, KA_WD, KA_OUT, KA_DBG, KA_WS = [8 * i for i in range(13)]

SLOT = 32768
NSLOT = 5


class A:
    def __init__(self):
        self.l = []

    def __call__(self, s):
        for line in s.strip("\n").split("\n"):
            line = line.strip()
            if line:
                self.l.append("    " + line)

    def label(self, s):
        self.l.append(s + ":")

    def raw(self, s):
        self.l.append(s)

    def text(self):
        return "\n".join(self.l) + "\n"


def kernel_head(a, name):
    a.raw(".text")
    a.raw(".globl %s" % name)
    a.raw(".p2align 8")
    a.raw(".type %s,@function" % name)
    a.label(name)


def kernel_desc(a, name, vgpr, sgpr=64):
    acc = (vgpr + 3) // 4 * 4
    a.raw('.section .rodata,"a"')
    a.raw(".p2align 6")
    a.raw(".amdhsa_kernel %s" % name)
    a.raw("  .amdhsa_next_free_vgpr %d" % vgpr)
    a.raw("  .amdhsa_next_free_sgpr %d" % sgpr)
    a.raw("  .amdhsa_accum_offset %d" % acc)
    a.raw("  .amdhsa_group_segment_fixed_size 0")
    a.raw("  .amdhsa_kernarg_size 104")
    a.raw("  .amdhsa_user_sgpr_count 2")
    a.raw("  .amdhsa_user_sgpr_kernarg_segment_ptr 1")
    a.raw("  .amdhsa_system_sgpr_workgroup_id_x 1")
    a.raw("  .amdhsa_float_denorm_mode_32 3")
    a.raw(".end_amdhsa_kernel")


def srd(a, d, lo, hi, nrec):
    a("s_mov_b32 s%d, s%d" % (d, lo))
    a("s_and_b32 s%d, s%d, 0xffff" % (d + 1, hi))
    a("s_mov_b32 s%d, %d" % (d + 2, nrec))
    a("s_mov_b32 s%d, 0x00020000" % (d + 3))


def add64(a, lo, hi, off):
    a("s_add_u32 s%d, s%d, %s" % (lo, lo, off))
    a("s_addc_u32 s%d, s%d, 0" % (hi, hi))


def bf16r(a, dst, src, tmp=None):
    a("v_cvt_pk_bf16_f32 v%d, v%d, v%d" % (dst, src, src))
    a("v_and_b32 v%d, 0xffff0000, v%d" % (dst, dst))


def allreduce64(a, op, v, t):
    for r in (8, 4, 2, 1):
        a("s_nop 1")
        a("v_%s_dpp v%d, v%d, v%d row_ror:%d row_mask:0xf bank_mask:0xf" % (op, v, v, v, r))
    a("v_mov_b32 v%d, v%d" % (t, v))
    a("s_nop 1")
    a("v_permlane16_swap_b32 v%d, v%d" % (v, t))
    a("s_nop 1")
    a("v_%s v%d, v%d, v%d" % (op, v, v, t))
    a("v_mov_b32 v%d, v%d" % (t, v))
    a("s_nop 1")
    a("v_permlane32_swap_b32 v%d, v%d" % (v, t))
    a("s_nop 1")
    a("v_%s v%d, v%d, v%d" % (op, v, v, t))


ACC = 64
FR = 128
AP = 8
AQ = 12


def gemm_loader(a, pfx, ns, stride, tail_hook=None):
    a("s_sub_u32 s17, s16, 4")
    a("v_lshrrev_b32 v1, 3, v0")
    a("v_lshrrev_b32 v2, 4, v0")
    a("v_and_b32 v3, 7, v0")
    a("s_lshl_b32 s18, s17, 5")
    a("v_add_u32 v1, s18, v1")
    sh = {1024: 10, 4096: 12}[stride]
    for j in range(4):
        a("v_add_u32 v4, %d, v1" % (8 * j))
        a("v_lshlrev_b32 v4, %d, v4" % sh)
        a("v_add_u32 v5, %d, v2" % (4 * j))
        a("v_and_b32 v5, 7, v5")
        a("v_xor_b32 v5, v5, v3")
        a("v_lshlrev_b32 v5, 4, v5")
        a("v_add_u32 v4, v4, v5")
        a("v_subrev_u32 v%d, %d, v4" % (8 + j, 1024 * j))
    a("s_lshl_b32 s21, s17, 12")
    a("s_mov_b32 s20, 0")
    a("s_mov_b32 s25, 0")

    def issue():
        a("s_mov_b32 m0, s21")
        a("s_add_u32 s19, s21, 16384")
        for j in range(4):
            a("buffer_load_dwordx4 v%d, s[4:7], s20 offen offset:%d lds" % (8 + j, 1024 * j))
        a("s_mov_b32 m0, s19")
        a("s_add_u32 s25, s25, 1")
        for j in range(4):
            a("buffer_load_dwordx4 v%d, s[8:11], s20 offen offset:%d lds" % (8 + j, 1024 * j))
        a("s_add_u32 s20, s20, 128")
        a("s_add_u32 s21, s21, %d" % SLOT)
        a("s_cmp_eq_u32 s25, %d" % NSLOT)
        a("s_cselect_b32 s19, %d, 0" % (SLOT * NSLOT))
        a("s_cselect_b32 s26, %d, 0" % NSLOT)
        a("s_sub_u32 s21, s21, s19")
        a("s_sub_u32 s25, s25, s26")

    for st in range(4):
        issue()
    a("s_waitcnt vmcnt(16)")
    a("s_barrier")
    a("s_mov_b32 s22, %d" % (ns - 4))
    a.label(pfx + "_lloop")
    issue()
    a("s_waitcnt vmcnt(16)")
    a("s_barrier")
    a("s_sub_u32 s22, s22, 1")
    a("s_cmp_lg_u32 s22, 0")
    a("s_cbranch_scc1 %s_lloop" % pfx)
    a("s_waitcnt vmcnt(8)")
    a("s_barrier")
    a("s_waitcnt vmcnt(0)")
    a("s_barrier")
    if tail_hook:
        tail_hook()
    a("s_barrier")
    a("s_barrier")
    a("s_endpgm")


def gemm_consumer_loop(a, pfx, ns, stats):
    a("s_lshr_b32 s17, s16, 1")
    a("s_and_b32 s18, s16, 1")
    a("v_and_b32 v1, 31, v0")
    a("v_lshrrev_b32 v2, 5, v0")
    a("v_lshrrev_b32 v3, 1, v0")
    a("v_and_b32 v3, 7, v3")
    a("v_lshlrev_b32 v4, 7, v1")
    a("s_lshl_b32 s19, s17, 13")
    a("s_lshl_b32 s20, s18, 13")
    a("s_add_u32 s20, s20, 16384")
    for j in range(4):
        a("v_add_u32 v5, %d, v2" % (2 * j))
        a("v_xor_b32 v5, v5, v3")
        a("v_lshlrev_b32 v5, 4, v5")
        a("v_add_u32 v5, v5, v4")
        a("v_add_u32 v%d, s19, v5" % (AP + j))
        a("v_add_u32 v%d, s20, v5" % (AQ + j))
    for r in range(64):
        a("v_mov_b32 v%d, 0" % (ACC + r))
    if stats:
        for r in range(12):
            a("v_mov_b32 v%d, 0" % (16 + r))
        a("s_mov_b32 s30, 0x3f803f80")
    a("s_mov_b32 s23, %d" % SLOT)
    a("s_mov_b32 s24, %d" % SLOT)
    a("s_mov_b32 s25, 1")
    a("s_mov_b32 s22, %d" % ns)
    a("s_mov_b32 s27, %d" % (-(NSLOT - 1) * SLOT))
    a("s_mov_b32 s28, %d" % SLOT)

    def reads(j):
        f = FR + 16 * j
        a("ds_read_b128 v[%d:%d], v%d" % (f, f + 3, AP + j))
        a("ds_read_b128 v[%d:%d], v%d offset:4096" % (f + 4, f + 7, AP + j))
        a("ds_read_b128 v[%d:%d], v%d" % (f + 8, f + 11, AQ + j))
        a("ds_read_b128 v[%d:%d], v%d offset:4096" % (f + 12, f + 15, AQ + j))

    def adv(j, s):
        a("v_add_u32 v%d, s%d, v%d" % (AP + j, s, AP + j))
        a("v_add_u32 v%d, s%d, v%d" % (AQ + j, s, AQ + j))

    def mfmas(j):
        f = FR + 16 * j
        k = 0
        for ti in range(2):
            for tj in range(2):
                c = ACC + 16 * (2 * ti + tj)
                a("v_mfma_f32_32x32x16_bf16 v[%d:%d], v[%d:%d], v[%d:%d], v[%d:%d]" % (
                    c, c + 15, f + 4 * ti, f + 4 * ti + 3, f + 8 + 4 * tj, f + 8 + 4 * tj + 3, c, c + 15))
                if stats:
                    ops = []
                    for t in range(2):
                        for d in range(4):
                            p = f + 4 * t + d
                            ops.append("v_dot2_f32_bf16 v%d, v%d, s30, v%d" % (16 + 2 * t + (d & 1), p, 16 + 2 * t + (d & 1)))
                            ops.append("v_dot2_f32_bf16 v%d, v%d, v%d, v%d" % (20 + 2 * t + (d & 1), p, p, 20 + 2 * t + (d & 1)))
                    for t in range(2):
                        for d in range(4):
                            q = f + 8 + 4 * t + d
                            ops.append("v_dot2_f32_bf16 v%d, v%d, s30, v%d" % (24 + 2 * t + (d & 1), q, 24 + 2 * t + (d & 1)))
                    for o in ops[6 * k:6 * k + 6]:
                        a(o)
                k += 1

    a("s_barrier")
    reads(0)
    adv(0, 23)
    reads(1)
    adv(1, 23)
    a.label(pfx + "_cloop")
    reads(2)
    adv(2, 23)
    a("s_waitcnt lgkmcnt(8)")
    mfmas(0)
    reads(3)
    adv(3, 23)
    a("s_waitcnt lgkmcnt(8)")
    mfmas(1)
    reads(0)
    adv(0, 24)
    a("s_waitcnt lgkmcnt(8)")
    mfmas(2)
    reads(1)
    adv(1, 24)
    a("s_mov_b32 s23, s24")
    a("s_add_u32 s25, s25, 1")
    a("s_cmp_eq_u32 s25, %d" % NSLOT)
    a("s_cselect_b32 s26, %d, 0" % NSLOT)
    a("s_sub_u32 s25, s25, s26")
    a("s_cmp_eq_u32 s25, %d" % (NSLOT - 1))
    a("s_cselect_b32 s24, s27, s28")
    a("s_sub_u32 s22, s22, 1")
    a("s_cmp_lg_u32 s22, 0")
    a("s_waitcnt lgkmcnt(8)")
    mfmas(3)
    a("s_barrier")
    a("s_cbranch_scc1 %s_cloop" % pfx)
    a("s_waitcnt lgkmcnt(0)")
    a("s_nop 15")


def gemm_store(a, ostride_sh, pre=None):
    a("v_lshlrev_b32 v4, %d, v1" % ostride_sh)
    a("v_lshlrev_b32 v5, 4, v2")
    a("v_add_u32 v4, v4, v5")
    a("s_lshl_b32 s19, s18, %d" % (6 + ostride_sh))
    a("s_lshl_b32 s20, s17, 7")
    a("s_add_u32 s19, s19, s20")
    a("v_add_u32 v4, s19, v4")
    a("s_mov_b32 s20, 0")
    a("s_mov_b32 s21, %d" % (32 << ostride_sh))
    t = FR
    n = 0
    for ti in range(2):
        for g in (0, 2):
            if pre:
                pre(ti, g)
            for tj in range(2):
                c = ACC + 16 * (2 * ti + tj) + 4 * g
                d = t + 4 * (n % 8)
                n += 1
                a("v_cvt_pk_bf16_f32 v%d, v%d, v%d" % (d, c, c + 1))
                a("v_cvt_pk_bf16_f32 v%d, v%d, v%d" % (d + 1, c + 2, c + 3))
                a("v_cvt_pk_bf16_f32 v%d, v%d, v%d" % (d + 2, c + 4, c + 5))
                a("v_cvt_pk_bf16_f32 v%d, v%d, v%d" % (d + 3, c + 6, c + 7))
                a("s_nop 1")
                a("v_permlane32_swap_b32 v%d, v%d" % (d, d + 2))
                a("v_permlane32_swap_b32 v%d, v%d" % (d + 1, d + 3))
                a("s_nop 1")
                a("buffer_store_dwordx4 v[%d:%d], v4, s[12:15], s%d offen offset:%d" % (d, d + 3, 20 + tj, ti * 64 + g * 16))


def wave_split(a):
    a("v_lshrrev_b32 v1, 6, v0")
    a("v_and_b32 v0, 63, v0")
    a("s_nop 0")
    a("v_readfirstlane_b32 s16, v1")


def k1(a):
    name = "k1_kernel"
    kernel_head(a, name)
    a("s_cmp_ge_u32 s2, 256")
    a("s_cbranch_scc1 k1_exit")
    a("s_load_dwordx2 s[32:33], s[0:1], %d" % KA_X)
    a("s_load_dwordx4 s[36:39], s[0:1], %d" % KA_CR)
    a("s_load_dwordx4 s[40:43], s[0:1], %d" % KA_WRE)
    a("s_load_dwordx2 s[44:45], s[0:1], %d" % KA_WS)
    wave_split(a)
    a("s_and_b32 s46, s2, 7")
    a("s_lshr_b32 s47, s2, 3")
    a("s_and_b32 s48, s46, 1")
    a("s_lshr_b32 s49, s46, 1")
    a("s_and_b32 s50, s49, 1")
    a("s_lshr_b32 s51, s49, 1")
    a("s_cmp_ge_u32 s47, 16")
    a("s_cbranch_scc1 k1_pref")
    a("s_lshl_b32 s52, s50, 3")
    a("s_lshl_b32 s53, s48, 2")
    a("s_add_u32 s52, s52, s53")
    a("s_and_b32 s53, s47, 3")
    a("s_add_u32 s52, s52, s53")
    a("s_lshr_b32 s53, s47, 2")
    a("s_lshl_b32 s54, s51, 2")
    a("s_add_u32 s54, s54, s53")
    a("s_waitcnt lgkmcnt(0)")
    a("s_lshl_b32 s55, s52, 17")
    add64(a, 32, 33, "s55")
    srd(a, 4, 32, 33, 131072)
    a("s_cmp_eq_u32 s51, 0")
    a("s_cselect_b32 s40, s40, s42")
    a("s_cselect_b32 s41, s41, s43")
    a("s_lshl_b32 s55, s53, 17")
    add64(a, 40, 41, "s55")
    srd(a, 8, 40, 41, 131072)
    a("s_lshl_b32 s55, s54, 19")
    a("s_lshl_b32 s56, s52, 8")
    a("s_add_u32 s55, s55, s56")
    add64(a, 44, 45, "s55")
    srd(a, 12, 44, 45, 127 * 4096 + 256)
    a("s_cmp_ge_u32 s16, 4")
    a("s_cbranch_scc1 k1_loader")

    gemm_consumer_loop(a, "k1", 8, True)
    for i in range(6):
        a("v_add_f32 v%d, v%d, v%d" % (16 + 2 * i, 16 + 2 * i, 17 + 2 * i))
    for i in range(6):
        a("v_mov_b32 v%d, v%d" % (17 + 2 * i, 16 + 2 * i))
    a("s_nop 1")
    for i in range(6):
        a("v_permlane32_swap_b32 v%d, v%d" % (16 + 2 * i, 17 + 2 * i))
    a("s_nop 1")
    for i in range(6):
        a("v_add_f32 v%d, v%d, v%d" % (16 + 2 * i, 16 + 2 * i, 17 + 2 * i))
    a("s_lshl_b32 s19, s16, 9")
    a("v_lshlrev_b32 v6, 3, v1")
    a("v_add_u32 v6, s19, v6")
    a("v_lshlrev_b32 v7, 5, v2")
    a("v_add_u32 v7, s19, v7")
    for ti in range(2):
        sx, sq = 16 + 2 * ti, 20 + 2 * ti
        a("v_mul_f32 v28, 0x3b000000, v%d" % sx)
        a("v_mul_f32 v29, 0x3b000000, v%d" % sq)
        a("v_fma_f32 v29, -v28, v28, v29")
        a("v_max_f32 v29, 0, v29")
        bf16r(a, 30, 28)
        bf16r(a, 29, 29)
        a("v_add_f32 v29, 0x3727c5ac, v29")
        bf16r(a, 29, 29)
        a("v_sqrt_f32 v29, v29")
        a("s_nop 0")
        bf16r(a, 29, 29)
        a("v_rcp_f32 v31, v29")
        a("s_nop 0")
        a("ds_write_b64 v6, v[30:31] offset:%d" % (ti * 256))
    a("s_waitcnt lgkmcnt(0)")

    def pre(ti, g):
        for gg in range(2):
            a("ds_read_b128 v[%d:%d], v7 offset:%d" % (32 + 8 * gg, 35 + 8 * gg, ti * 256 + (g + gg) * 64))
            a("ds_read_b128 v[%d:%d], v7 offset:%d" % (36 + 8 * gg, 39 + 8 * gg, ti * 256 + (g + gg) * 64 + 16))
        a("s_waitcnt lgkmcnt(0)")
        for tj in range(2):
            c = ACC + 16 * (2 * ti + tj) + 4 * g
            for r in range(8):
                a("v_fma_f32 v%d, -v%d, v%d, v%d" % (c + r, 32 + 2 * r, 24 + 2 * tj, c + r))
                a("v_mul_f32 v%d, v%d, v%d" % (c + r, c + r, 33 + 2 * r))

    gemm_store(a, 12, pre)
    a("s_endpgm")

    a.label("k1_loader")
    gemm_loader(a, "k1", 8, 1024)

    a.label("k1_pref")
    a("s_sub_u32 s47, s47, 16")
    a("s_waitcnt lgkmcnt(0)")
    a("s_cmp_eq_u32 s51, 0")
    a("s_cselect_b32 s36, s36, s38")
    a("s_cselect_b32 s37, s37, s39")
    a("s_lshl_b32 s55, s48, 22")
    a("s_lshl_b32 s56, s47, 18")
    a("s_add_u32 s55, s55, s56")
    a("s_lshl_b32 s56, s50, 11")
    a("s_add_u32 s55, s55, s56")
    add64(a, 36, 37, "s55")
    srd(a, 4, 36, 37, 63 * 4096 + 2048)
    a("s_lshl_b32 s17, s16, 6")
    a("v_add_u32 v1, s17, v0")
    a("v_lshrrev_b32 v2, 4, v1")
    a("v_and_b32 v3, 15, v1")
    a("v_lshlrev_b32 v2, 12, v2")
    a("v_lshlrev_b32 v3, 7, v3")
    a("v_add_u32 v2, v2, v3")
    a("s_mov_b32 s17, %d" % (32 * 4096))
    a("buffer_load_dword v4, v2, s[4:7], 0 offen")
    a("buffer_load_dword v5, v2, s[4:7], s17 offen")
    a("s_waitcnt vmcnt(0)")
    a.label("k1_exit")
    a("s_endpgm")
    return name, 192


def k2(a):
    name = "k2_kernel"
    kernel_head(a, name)
    a("s_cmp_ge_u32 s2, 256")
    a("s_cbranch_scc1 k2_exit")
    a("s_load_dwordx4 s[36:39], s[0:1], %d" % KA_CR)
    a("s_load_dwordx2 s[44:45], s[0:1], %d" % KA_WS)
    wave_split(a)
    a("s_and_b32 s46, s2, 7")
    a("s_lshr_b32 s47, s2, 3")
    a("s_and_b32 s48, s46, 1")
    a("s_lshr_b32 s49, s46, 1")
    a("s_and_b32 s50, s49, 1")
    a("s_lshr_b32 s51, s49, 1")
    a("s_and_b32 s52, s47, 3")
    a("s_lshr_b32 s53, s47, 2")
    a("s_lshl_b32 s54, s48, 3")
    a("s_add_u32 s53, s53, s54")
    a("s_waitcnt lgkmcnt(0)")
    a("s_lshl_b32 s55, s51, 21")
    a("s_lshl_b32 s56, s52, 19")
    a("s_add_u32 s55, s55, s56")
    a("s_lshl_b32 s57, s50, 11")
    a("s_add_u32 s55, s55, s57")
    a("s_add_u32 s32, s44, s55")
    a("s_addc_u32 s33, s45, 0")
    srd(a, 4, 32, 33, 127 * 4096 + 2048)
    a("s_cmp_eq_u32 s51, 0")
    a("s_cselect_b32 s36, s36, s38")
    a("s_cselect_b32 s37, s37, s39")
    a("s_lshl_b32 s55, s53, 19")
    a("s_add_u32 s55, s55, s57")
    add64(a, 36, 37, "s55")
    srd(a, 8, 36, 37, 127 * 4096 + 2048)
    a("s_lshl_b32 s55, s49, 21")
    a("s_lshl_b32 s56, s53, 17")
    a("s_add_u32 s55, s55, s56")
    a("s_lshl_b32 s56, s52, 8")
    a("s_add_u32 s55, s55, s56")
    a("s_add_u32 s55, s55, %d" % PART_OFF)
    add64(a, 44, 45, "s55")
    srd(a, 12, 44, 45, 127 * 1024 + 256)
    a("s_cmp_ge_u32 s16, 4")
    a("s_cbranch_scc1 k2_loader")
    gemm_consumer_loop(a, "k2", 16, False)
    gemm_store(a, 10)
    a.label("k2_exit")
    a("s_endpgm")
    a.label("k2_loader")
    gemm_loader(a, "k2", 16, 4096)
    return name, 192


def unpack(a, lo, hi, src):
    a("v_lshlrev_b32 v%d, 16, v%d" % (lo, src))
    a("v_and_b32 v%d, 0xffff0000, v%d" % (hi, src))


def k3(a):
    name = "k3_kernel"
    kernel_head(a, name)
    a("s_cmp_ge_u32 s2, 512")
    a("s_cbranch_scc1 k3_exit")
    a("s_load_dwordx2 s[32:33], s[0:1], %d" % KA_X)
    a("s_load_dwordx2 s[34:35], s[0:1], %d" % KA_WR)
    a("s_load_dwordx2 s[36:37], s[0:1], %d" % KA_OUT)
    a("s_load_dwordx2 s[44:45], s[0:1], %d" % KA_WS)
    a("v_lshrrev_b32 v1, 6, v0")
    a("v_and_b32 v0, 63, v0")
    a("s_lshl_b32 s3, s2, 2")
    a("v_add_u32 v1, s3, v1")
    a("v_lshlrev_b32 v2, 4, v0")
    a("v_lshlrev_b32 v3, 10, v1")
    a("v_add_u32 v3, v3, v2")
    a("s_mov_b32 s20, 0")
    a("s_mov_b32 s21, %d" % (2 << 20))
    a("s_mov_b32 s22, %d" % (4 << 20))
    a("s_mov_b32 s23, %d" % (6 << 20))
    a("s_waitcnt lgkmcnt(0)")
    srd(a, 4, 32, 33, 2 << 20)
    srd(a, 8, 34, 35, 1024)
    srd(a, 12, 36, 37, 2 << 20)
    a("s_add_u32 s46, s44, %d" % PART_OFF)
    a("s_addc_u32 s47, s45, 0")
    srd(a, 16, 46, 47, 8 << 20)
    a("s_add_u32 s46, s44, %d" % H_OFF)
    a("s_addc_u32 s47, s45, 0")
    srd(a, 24, 46, 47, (2 << 20) + 65536 + 8192)
    for ks in range(4):
        a("buffer_load_dwordx4 v[%d:%d], v3, s[16:19], s%d offen" % (8 + 4 * ks, 11 + 4 * ks, 20 + ks))
    a("buffer_load_dwordx4 v[24:27], v3, s[4:7], 0 offen")
    a("buffer_load_dwordx4 v[28:31], v2, s[8:11], 0 offen")
    a("s_waitcnt vmcnt(1)")
    for i in range(4):
        unpack(a, 48, 49, 8 + i)
        unpack(a, 50, 51, 12 + i)
        unpack(a, 52, 53, 16 + i)
        unpack(a, 54, 55, 20 + i)
        unpack(a, 56, 57, 24 + i)
        a("v_pk_add_f32 v[48:49], v[48:49], v[50:51]")
        a("v_pk_add_f32 v[52:53], v[52:53], v[54:55]")
        a("v_pk_add_f32 v[48:49], v[48:49], v[52:53] neg_lo:[0,1] neg_hi:[0,1]")
        a("v_pk_add_f32 v[48:49], v[48:49], v[56:57]")
        a("v_cvt_pk_bf16_f32 v%d, v48, v49" % (32 + i))
        unpack(a, 40 + 2 * i, 41 + 2 * i, 32 + i)
    a("buffer_store_dwordx4 v[32:35], v3, s[24:27], 0 offen")
    a("v_pk_add_f32 v[48:49], v[40:41], v[42:43]")
    a("v_pk_add_f32 v[50:51], v[44:45], v[46:47]")
    a("v_pk_add_f32 v[48:49], v[48:49], v[50:51]")
    a("v_add_f32 v48, v48, v49")
    allreduce64(a, "add_f32", 48, 49)
    a("v_mul_f32 v58, 0x3b000000, v48")
    for i in range(4):
        a("v_pk_add_f32 v[%d:%d], v[%d:%d], v[58:59] op_sel_hi:[1,0] neg_lo:[0,1] neg_hi:[0,1]" % (
            50 + 2 * i, 51 + 2 * i, 40 + 2 * i, 41 + 2 * i))
    a("v_pk_mul_f32 v[48:49], v[50:51], v[50:51]")
    for i in range(1, 4):
        a("v_pk_fma_f32 v[48:49], v[%d:%d], v[%d:%d], v[48:49]" % (50 + 2 * i, 51 + 2 * i, 50 + 2 * i, 51 + 2 * i))
    a("v_add_f32 v48, v48, v49")
    allreduce64(a, "add_f32", 48, 49)
    a("v_mul_f32 v48, 0x3b000000, v48")
    bf16r(a, 60, 58)
    bf16r(a, 48, 48)
    a("v_add_f32 v48, 0x3727c5ac, v48")
    bf16r(a, 48, 48)
    a("v_sqrt_f32 v48, v48")
    a("s_nop 0")
    bf16r(a, 48, 48)
    a("v_rcp_f32 v61, v48")
    a("s_nop 0")
    a("v_mul_f32 v62, v60, v61")
    a("v_sub_f32 v62, 0, v62")
    a("v_mov_b32 v58, v61")
    a("s_waitcnt vmcnt(1)")
    for i in range(4):
        a("v_pk_fma_f32 v[48:49], v[%d:%d], v[58:59], v[62:63] op_sel_hi:[1,0,0]" % (40 + 2 * i, 41 + 2 * i))
        a("v_cvt_pk_bf16_f32 v%d, v48, v49" % (36 + i))
        unpack(a, 50 + 2 * i, 51 + 2 * i, 36 + i)
        unpack(a, 8 + 2 * i, 9 + 2 * i, 28 + i)
    a("v_pk_mul_f32 v[48:49], v[50:51], v[8:9]")
    for i in range(1, 4):
        a("v_pk_fma_f32 v[48:49], v[%d:%d], v[%d:%d], v[48:49]" % (50 + 2 * i, 51 + 2 * i, 8 + 2 * i, 9 + 2 * i))
    a("v_add_f32 v48, v48, v49")
    for i in range(4):
        a("v_pk_add_f32 v[%d:%d], v[%d:%d], v[%d:%d]" % (16 + 2 * i, 17 + 2 * i, 40 + 2 * i, 41 + 2 * i, 50 + 2 * i, 51 + 2 * i))
        a("v_cvt_pk_bf16_f32 v%d, v%d, v%d" % (24 + i, 16 + 2 * i, 17 + 2 * i))
    a("buffer_store_dwordx4 v[24:27], v3, s[12:15], 0 offen")
    allreduce64(a, "add_f32", 48, 49)
    a("v_cvt_pk_bf16_f32 v48, v48, v48")
    a("v_and_b32 v48, 0xffff0000, v48")
    a("v_ashrrev_i32 v49, 31, v48")
    a("v_and_b32 v49, 0x7fff0000, v49")
    a("v_or_b32 v49, 0x80000000, v49")
    a("v_xor_b32 v48, v48, v49")
    a("v_sub_u32 v49, 0xffff, v1")
    a("v_or_b32 v48, v48, v49")
    a("v_lshlrev_b32 v4, 3, v1")
    a("v_add_u32 v4, %d, v4" % (2 << 20))
    a("v_lshlrev_b32 v5, 2, v1")
    a("v_add_u32 v5, %d, v5" % ((2 << 20) + 65536))
    a("v_cmp_eq_u32 vcc, 0, v0")
    a("s_and_saveexec_b64 s[30:31], vcc")
    a("buffer_store_dwordx2 v[60:61], v4, s[24:27], 0 offen")
    a("buffer_store_dword v48, v5, s[24:27], 0 offen")
    a.label("k3_exit")
    a("s_endpgm")
    return name, 64


def k4(a):
    name = "k4_kernel"
    kernel_head(a, name)
    a("s_cmp_ge_u32 s2, 256")
    a("s_cbranch_scc1 k4_exit")
    a("s_and_b32 s46, s2, 7")
    a("s_lshr_b32 s47, s2, 3")
    a("s_lshr_b32 s48, s47, 3")
    a("s_lshl_b32 s48, s48, 3")
    a("s_add_u32 s48, s48, s46")
    a("s_cmp_ge_u32 s48, 28")
    a("s_cbranch_scc1 k4_exit")
    a("s_and_b32 s49, s47, 7")
    a("s_lshl_b32 s48, s48, 3")
    a("s_add_u32 s48, s48, s49")
    a("s_load_dwordx4 s[32:35], s[0:1], %d" % KA_WG)
    a("s_load_dwordx2 s[36:37], s[0:1], %d" % KA_WD)
    a("s_load_dwordx2 s[44:45], s[0:1], %d" % KA_WS)
    a("v_and_b32 v1, 63, v0")
    a("v_lshrrev_b32 v2, 6, v0")
    a("s_movk_i32 s50, 7168")
    a("v_mul_lo_u32 v3, v0, s50")
    a("s_lshl_b32 s51, s48, 4")
    a("v_add_u32 v3, s51, v3")
    a("v_lshlrev_b32 v4, 2, v0")
    a("s_lshl_b32 s52, s48, 13")
    a("s_add_u32 s53, s52, 4096")
    a("v_lshlrev_b32 v5, 4, v1")
    a("s_movk_i32 s54, 4096")
    a("s_waitcnt lgkmcnt(0)")
    a("s_add_u32 s46, s44, %d" % H_OFF)
    a("s_addc_u32 s47, s45, 0")
    srd(a, 24, 46, 47, (2 << 20) + 65536 + 8192)
    a("s_add_u32 s46, s44, %d" % KEYS_OFF)
    a("s_addc_u32 s47, s45, 0")
    srd(a, 16, 46, 47, 8192)
    srd(a, 4, 32, 33, 512 * 3584)
    srd(a, 8, 34, 35, 512 * 3584)
    srd(a, 12, 36, 37, 1792 * 1024)
    for i in range(4):
        a("buffer_load_dwordx4 v[%d:%d], v5, s[16:19], 0 offen offset:%d" % (32 + 4 * i, 35 + 4 * i, 1024 * i))
    for i in range(4):
        a("buffer_load_dwordx4 v[%d:%d], v5, s[16:19], s54 offen offset:%d" % (48 + 4 * i, 51 + 4 * i, 1024 * i))
    a("buffer_load_dwordx4 v[8:11], v3, s[4:7], 0 offen")
    a("buffer_load_dwordx4 v[12:15], v3, s[4:7], 0 offen offset:3584")
    a("buffer_load_dwordx4 v[16:19], v3, s[8:11], 0 offen")
    a("buffer_load_dwordx4 v[20:23], v3, s[8:11], 0 offen offset:3584")
    for j in range(4):
        a("buffer_load_dword v%d, v4, s[12:15], s52 offen offset:%d" % (24 + j, 1024 * j))
    for j in range(4):
        a("buffer_load_dword v%d, v4, s[12:15], s53 offen offset:%d" % (28 + j, 1024 * j))
    a("s_waitcnt vmcnt(12)")
    a("v_max3_u32 v64, v32, v33, v34")
    for i in range(35, 63, 2):
        a("v_max3_u32 v64, v64, v%d, v%d" % (i, i + 1))
    a("v_max_u32 v64, v64, v63")
    allreduce64(a, "max_u32", 64, 65)
    a("v_and_b32 v66, 0xffff, v64")
    a("v_sub_u32 v66, 0xffff, v66")
    a("v_lshlrev_b32 v67, 10, v66")
    a("v_add_u32 v67, v67, v4")
    a("v_lshlrev_b32 v68, 3, v66")
    a("v_add_u32 v68, %d, v68" % (2 << 20))
    a("buffer_load_dword v69, v67, s[24:27], 0 offen")
    a("buffer_load_dwordx2 v[70:71], v68, s[24:27], 0 offen")
    a("s_mov_b32 s55, 0x05040100")
    a("s_mov_b32 s56, 0x07060302")
    a("s_waitcnt vmcnt(10)")
    for m in range(2):
        for i in range(4):
            a("v_perm_b32 v%d, v%d, v%d, s55" % (32 + 8 * m + 2 * i, 12 + 8 * m + i, 8 + 8 * m + i))
            a("v_perm_b32 v%d, v%d, v%d, s56" % (33 + 8 * m + 2 * i, 12 + 8 * m + i, 8 + 8 * m + i))
    a("s_waitcnt vmcnt(0)")
    unpack(a, 72, 73, 69)
    a("v_mul_f32 v74, v70, v71")
    a("v_sub_f32 v74, 0, v74")
    a("v_fma_f32 v76, v72, v71, v74")
    a("v_fma_f32 v77, v73, v71, v74")
    a("v_cvt_pk_bf16_f32 v75, v76, v77")
    for i in range(16):
        a("v_dot2_f32_bf16 v%d, v%d, v75, 0" % (48 + i, 32 + i))
    a("s_nop 2")
    for i in range(8):
        a("v_permlane32_swap_b32 v%d, v%d" % (48 + i, 56 + i))
    a("s_nop 1")
    for i in range(8):
        a("v_add_f32 v%d, v%d, v%d" % (48 + i, 48 + i, 56 + i))
    a("s_nop 1")
    for i in range(4):
        a("v_permlane16_swap_b32 v%d, v%d" % (48 + i, 52 + i))
    a("s_nop 1")
    for i in range(4):
        a("v_add_f32 v%d, v%d, v%d" % (48 + i, 48 + i, 52 + i))
    for r in (8, 4, 2, 1):
        a("s_nop 0")
        for i in range(4):
            a("v_add_f32_dpp v%d, v%d, v%d row_ror:%d row_mask:0xf bank_mask:0xf" % (48 + i, 48 + i, 48 + i, r))
    a("v_lshlrev_b32 v6, 6, v2")
    a("v_lshrrev_b32 v7, 4, v1")
    a("v_lshlrev_b32 v7, 4, v7")
    a("v_add_u32 v6, v6, v7")
    a("ds_write_b128 v6, v[48:51]")
    a("v_and_b32 v7, 7, v1")
    a("v_lshlrev_b32 v7, 2, v7")
    a("s_waitcnt lgkmcnt(0)")
    a("s_barrier")
    for w in range(4):
        a("ds_read_b32 v%d, v7 offset:%d" % (48 + w, 64 * w))
        a("ds_read_b32 v%d, v7 offset:%d" % (52 + w, 64 * w + 32))
    a("s_waitcnt lgkmcnt(0)")
    a("v_add_f32 v48, v48, v49")
    a("v_add_f32 v50, v50, v51")
    a("v_add_f32 v52, v52, v53")
    a("v_add_f32 v54, v54, v55")
    a("v_add_f32 v48, v48, v50")
    a("v_add_f32 v52, v52, v54")
    bf16r(a, 48, 48)
    bf16r(a, 52, 52)
    a("v_mul_f32 v49, 0xbfb8aa3b, v48")
    a("v_exp_f32 v49, v49")
    a("s_nop 0")
    a("v_add_f32 v49, 1.0, v49")
    a("v_rcp_f32 v49, v49")
    a("s_nop 0")
    a("v_mul_f32 v48, v48, v49")
    bf16r(a, 48, 48)
    a("v_mul_f32 v48, v48, v52")
    bf16r(a, 48, 48)
    a("s_nop 0")
    for j in range(8):
        a("v_readlane_b32 s%d, v48, %d" % (56 + j, j))
    a("v_mov_b32 v50, 0")
    a("v_mov_b32 v51, 0")
    for j in range(8):
        unpack(a, 52, 53, 24 + j)
        a("v_fmac_f32 v50, s%d, v52" % (56 + j))
        a("v_fmac_f32 v51, s%d, v53" % (56 + j))
    a("s_add_u32 s46, s44, %d" % YP_OFF)
    a("s_addc_u32 s47, s45, 0")
    srd(a, 16, 46, 47, 224 * 2048)
    a("v_lshlrev_b32 v6, 3, v0")
    a("s_lshl_b32 s52, s48, 11")
    a("buffer_store_dwordx2 v[50:51], v6, s[16:19], s52 offen")
    a("s_cmp_lg_u32 s48, 0")
    a("s_cbranch_scc1 k4_exit")
    a("s_add_u32 s46, s44, %d" % SEL_OFF)
    a("s_addc_u32 s47, s45, 0")
    srd(a, 16, 46, 47, 4096 + 16)
    unpack(a, 76, 77, 75)
    a("buffer_store_dwordx2 v[72:73], v6, s[16:19], 0 offen")
    a("buffer_store_dwordx2 v[76:77], v6, s[16:19], 0 offen offset:2048")
    a("v_and_b32 v52, 0xffff0000, v64")
    a("v_ashrrev_i32 v53, 31, v52")
    a("v_not_b32 v53, v53")
    a("v_and_b32 v53, 0x7fff0000, v53")
    a("v_or_b32 v53, 0x80000000, v53")
    a("v_xor_b32 v52, v52, v53")
    a("v_mul_f32 v53, 0xbfb8aa3b, v52")
    a("v_exp_f32 v53, v53")
    a("s_nop 0")
    a("v_add_f32 v53, 1.0, v53")
    a("v_rcp_f32 v53, v53")
    a("s_nop 0")
    bf16r(a, 54, 53)
    a("v_mov_b32 v55, v66")
    a("v_mov_b32 v7, 4096")
    a("v_cmp_eq_u32 vcc, 0, v0")
    a("s_and_saveexec_b64 s[30:31], vcc")
    a("s_cbranch_execz k4_exit")
    a("buffer_store_dwordx2 v[54:55], v7, s[16:19], 0 offen")
    a.label("k4_exit")
    a("s_endpgm")
    return name, 80


def k5(a):
    name = "k5_kernel"
    kernel_head(a, name)
    a("s_cmp_ge_u32 s2, 64")
    a("s_cbranch_scc1 k5_exit")
    a("s_load_dwordx2 s[36:37], s[0:1], %d" % KA_OUT)
    a("s_load_dwordx2 s[44:45], s[0:1], %d" % KA_WS)
    a("v_lshlrev_b32 v1, 11, v0")
    a("s_lshl_b32 s3, s2, 5")
    a("v_add_u32 v1, s3, v1")
    a("v_lshrrev_b32 v2, 4, v0")
    a("v_lshlrev_b32 v3, 3, v2")
    a("v_add_u32 v3, s3, v3")
    a("v_mov_b32 v4, 4096")
    for i in range(4):
        a("s_mov_b32 s%d, %d" % (20 + i, 131072 * i))
    a("s_waitcnt lgkmcnt(0)")
    a("s_add_u32 s46, s44, %d" % YP_OFF)
    a("s_addc_u32 s47, s45, 0")
    srd(a, 4, 46, 47, 224 * 2048)
    a("s_add_u32 s46, s44, %d" % SEL_OFF)
    a("s_addc_u32 s47, s45, 0")
    srd(a, 8, 46, 47, 4096 + 16)
    srd(a, 12, 36, 37, 2 << 20)
    for i in range(4):
        a("buffer_load_dwordx4 v[%d:%d], v1, s[4:7], s%d offen" % (8 + 8 * i, 11 + 8 * i, 20 + i))
        a("buffer_load_dwordx4 v[%d:%d], v1, s[4:7], s%d offen offset:16" % (12 + 8 * i, 15 + 8 * i, 20 + i))
    a("buffer_load_dwordx2 v[40:41], v3, s[8:11], 0 offen")
    a("buffer_load_dwordx2 v[42:43], v3, s[8:11], 0 offen offset:2048")
    a("buffer_load_dwordx2 v[44:45], v4, s[8:11], 0 offen")
    a("s_waitcnt vmcnt(3)")
    for i in range(4):
        a("v_pk_add_f32 v[%d:%d], v[%d:%d], v[%d:%d]" % (8 + 2 * i, 9 + 2 * i, 8 + 2 * i, 9 + 2 * i, 16 + 2 * i, 17 + 2 * i))
        a("v_pk_add_f32 v[%d:%d], v[%d:%d], v[%d:%d]" % (24 + 2 * i, 25 + 2 * i, 24 + 2 * i, 25 + 2 * i, 32 + 2 * i, 33 + 2 * i))
    for i in range(4):
        a("v_pk_add_f32 v[%d:%d], v[%d:%d], v[%d:%d]" % (8 + 2 * i, 9 + 2 * i, 8 + 2 * i, 9 + 2 * i, 24 + 2 * i, 25 + 2 * i))
    a("s_nop 1")
    for i in range(4):
        a("v_permlane32_swap_b32 v%d, v%d" % (8 + i, 12 + i))
    a("s_nop 1")
    for i in range(4):
        a("v_add_f32 v%d, v%d, v%d" % (8 + i, 8 + i, 12 + i))
    a("s_nop 1")
    for i in range(2):
        a("v_permlane16_swap_b32 v%d, v%d" % (8 + i, 10 + i))
    a("s_nop 1")
    for i in range(2):
        a("v_add_f32 v%d, v%d, v%d" % (8 + i, 8 + i, 10 + i))
    for r in (8, 4, 2, 1):
        a("s_nop 1")
        for i in range(2):
            a("v_add_f32_dpp v%d, v%d, v%d row_ror:%d row_mask:0xf bank_mask:0xf" % (8 + i, 8 + i, 8 + i, r))
    a("s_waitcnt vmcnt(0)")
    for i in range(2):
        bf16r(a, 8 + i, 8 + i)
        a("v_mul_f32 v%d, v%d, v44" % (8 + i, 8 + i))
        bf16r(a, 8 + i, 8 + i)
        a("v_add_f32 v%d, v%d, v%d" % (8 + i, 8 + i, 42 + i))
        bf16r(a, 8 + i, 8 + i)
        a("v_add_f32 v%d, v%d, v%d" % (8 + i, 8 + i, 40 + i))
    a("v_cvt_pk_bf16_f32 v8, v8, v9")
    a("v_lshlrev_b32 v5, 10, v45")
    a("v_lshrrev_b32 v3, 1, v3")
    a("v_add_u32 v5, v5, v3")
    a("v_and_b32 v6, 15, v0")
    a("v_cmp_eq_u32 vcc, 0, v6")
    a("s_and_saveexec_b64 s[30:31], vcc")
    a("buffer_store_dword v8, v5, s[12:15], 0 offen")
    a.label("k5_exit")
    a("s_endpgm")
    return name, 48


def main(out):
    head = open("cdna_kernels/%s.s.ref" % NAME).read().split("\n")
    a = A()
    for line in head:
        if line.startswith(";") and "@launch" not in line:
            a.raw(line)
    a.raw("; @launch kernel=k1_kernel grid=(256,1,1) block=(512,1,1) lds=163840")
    a.raw("; @launch kernel=k2_kernel grid=(256,1,1) block=(512,1,1) lds=163840")
    a.raw("; @launch kernel=k3_kernel grid=(512,1,1) block=(256,1,1) lds=0")
    a.raw("; @launch kernel=k4_kernel grid=(256,1,1) block=(256,1,1) lds=256")
    a.raw("; @launch kernel=k5_kernel grid=(64,1,1) block=(64,1,1) lds=0")
    a.raw('.amdgcn_target "amdgcn-amd-amdhsa--gfx950"')
    descs = []
    for k in (k1, k2, k3, k4, k5):
        descs.append(k(a))
    for name, vg in descs:
        kernel_desc(a, name, vg)
    open(out, "w").write(a.text())


if __name__ == "__main__":
    main(sys.argv[1] if len(sys.argv) > 1 else "cdna_kernels/%s.s" % NAME)
```

```python
import sys

NAME = "sequential_preLN__spectral_fnet__moe_arch_mod__prompt"

ABT_OFF = 0
PART_OFF = 4 << 20
H_OFF = 12 << 20
STATS_OFF = 14 << 20
KEYS_OFF = (14 << 20) + 65536
SEL_OFF = (14 << 20) + 131072
YP_OFF = 15 << 20

KA_X, KA_CR, KA_CI, KA_WRE, KA_WIM, KA_BX, KA_WR, KA_WG, KA_WU, KA_WD, KA_OUT, KA_DBG, KA_WS = [8 * i for i in range(13)]

SLOT = 32768
NSLOT = 5


class A:
    def __init__(self):
        self.l = []

    def __call__(self, s):
        for line in s.strip("\n").split("\n"):
            line = line.strip()
            if line:
                self.l.append("    " + line)

    def label(self, s):
        self.l.append(s + ":")

    def raw(self, s):
        self.l.append(s)

    def text(self):
        return "\n".join(self.l) + "\n"


STAMPS = False
STFLAG = ""
EXP = set()
ZERO_FLAGS = None
FILL = None
STV = 254
STAMP_OFF = 32 << 20


def stamp_init(a, kidx, ws_lo, ws_hi, sfx=""):
    if not STAMPS:
        return
    a("s_add_u32 s92, s%d, %d" % (ws_lo, STAMP_OFF + kidx * 512 * 256))
    a("s_addc_u32 s93, s%d, 0" % ws_hi)
    a("s_and_b32 s93, s93, 0xffff")
    a("s_mov_b32 s94, %d" % (512 * 256))
    a("s_mov_b32 s95, 0x00020000")
    a("s_lshl_b32 s96, s2, 8")
    a("s_lshl_b32 s97, s16, 5")
    a("s_add_u32 s96, s96, s97")
    a("s_cmp_lt_u32 s16, 4")
    a("s_cselect_b32 s97, 0, 1")
    a("s_cmp_lt_u32 %d, 2" % kidx)
    a("s_cselect_b32 s97, s97, 1")
    a("s_cmp_eq_u32 s97, 0")
    a("s_cbranch_scc1 stamp_skip_%d%s" % (kidx, sfx))
    a("v_mov_b32 v%d" % STV + ", s90")
    a("v_mov_b32 v%d" % (STV + 1) + ", 24")
    a("s_mov_b64 s[100:101], exec")
    a("s_mov_b64 exec, 1")
    a("buffer_store_dword v%d" % STV + ", v%d" % (STV + 1) + ", s[92:95], s96 offen")
    a("s_mov_b64 exec, s[100:101]")
    a.label("stamp_skip_%d%s" % (kidx, sfx))


def stamp(a, slot):
    if not STAMPS:
        return
    a("s_memrealtime s[98:99]")
    a("s_waitcnt lgkmcnt(0)")
    a("v_mov_b32 v%d" % STV + ", s98")
    a("v_mov_b32 v%d" % (STV + 1) + ", %d" % (4 * slot))
    a("s_mov_b64 s[100:101], exec")
    a("s_mov_b64 exec, 1")
    a("buffer_store_dword v%d" % STV + ", v%d" % (STV + 1) + ", s[92:95], s96 offen")
    a("s_mov_b64 exec, s[100:101]")


def stampc(a, slot):
    if not STAMPS:
        return
    a("s_memtime s[98:99]")
    a("s_waitcnt lgkmcnt(0)")
    a("v_mov_b32 v%d" % STV + ", s98")
    a("v_mov_b32 v%d" % (STV + 1) + ", %d" % (4 * slot))
    a("s_mov_b64 s[100:101], exec")
    a("s_mov_b64 exec, 1")
    a("buffer_store_dword v%d" % STV + ", v%d" % (STV + 1) + ", s[92:95], s96 offen")
    a("s_mov_b64 exec, s[100:101]")


def kernel_head(a, name):
    a.raw(".text")
    a.raw(".globl %s" % name)
    a.raw(".p2align 8")
    a.raw(".type %s,@function" % name)
    a.label(name)
    if STAMPS:
        a("s_memrealtime s[90:91]")


def kernel_desc(a, name, vgpr, sgpr=72):
    if STAMPS:
        vgpr, sgpr = 256, 102
    acc = (vgpr + 3) // 4 * 4
    a.raw('.section .rodata,"a"')
    a.raw(".p2align 6")
    a.raw(".amdhsa_kernel %s" % name)
    a.raw("  .amdhsa_next_free_vgpr %d" % vgpr)
    a.raw("  .amdhsa_next_free_sgpr %d" % sgpr)
    a.raw("  .amdhsa_accum_offset %d" % acc)
    a.raw("  .amdhsa_group_segment_fixed_size 0")
    a.raw("  .amdhsa_kernarg_size 104")
    a.raw("  .amdhsa_user_sgpr_count 2")
    a.raw("  .amdhsa_user_sgpr_kernarg_segment_ptr 1")
    a.raw("  .amdhsa_system_sgpr_workgroup_id_x 1")
    a.raw("  .amdhsa_float_denorm_mode_32 3")
    a.raw(".end_amdhsa_kernel")


def srd(a, d, lo, hi, nrec):
    a("s_mov_b32 s%d, s%d" % (d, lo))
    a("s_and_b32 s%d, s%d, 0xffff" % (d + 1, hi))
    a("s_mov_b32 s%d, %d" % (d + 2, nrec))
    a("s_mov_b32 s%d, 0x00020000" % (d + 3))


def add64(a, lo, hi, off):
    a("s_add_u32 s%d, s%d, %s" % (lo, lo, off))
    a("s_addc_u32 s%d, s%d, 0" % (hi, hi))


def bf16r(a, dst, src, tmp=None):
    a("v_cvt_pk_bf16_f32 v%d, v%d, v%d" % (dst, src, src))
    a("v_and_b32 v%d, 0xffff0000, v%d" % (dst, dst))


def unpack(a, lo, hi, src):
    a("v_lshlrev_b32 v%d, 16, v%d" % (lo, src))
    a("v_and_b32 v%d, 0xffff0000, v%d" % (hi, src))


def allreduce64(a, op, v, t):
    for r in (8, 4, 2, 1):
        a("s_nop 1")
        a("v_%s_dpp v%d, v%d, v%d row_ror:%d row_mask:0xf bank_mask:0xf" % (op, v, v, v, r))
    a("v_mov_b32 v%d, v%d" % (t, v))
    a("s_nop 1")
    a("v_permlane16_swap_b32 v%d, v%d" % (v, t))
    a("s_nop 1")
    a("v_%s v%d, v%d, v%d" % (op, v, v, t))
    a("v_mov_b32 v%d, v%d" % (t, v))
    a("s_nop 1")
    a("v_permlane32_swap_b32 v%d, v%d" % (v, t))
    a("s_nop 1")
    a("v_%s v%d, v%d, v%d" % (op, v, v, t))


ACC = 64
FR = 128
AP = 8
AQ = 12


def gemm_loader(a, pfx, ns, stride, tail_hook=None):
    a("s_sub_u32 s17, s16, 4")
    a("v_lshrrev_b32 v1, 3, v0")
    a("v_lshrrev_b32 v2, 4, v0")
    a("v_and_b32 v3, 7, v0")
    a("s_lshl_b32 s18, s17, 5")
    a("v_add_u32 v1, s18, v1")
    sh = {1024: 10, 4096: 12}[stride]
    for j in range(4):
        a("v_add_u32 v4, %d, v1" % (8 * j))
        a("v_lshlrev_b32 v4, %d, v4" % sh)
        a("v_add_u32 v5, %d, v2" % (4 * j))
        a("v_and_b32 v5, 7, v5")
        a("v_xor_b32 v5, v5, v3")
        a("v_lshlrev_b32 v5, 4, v5")
        a("v_add_u32 v4, v4, v5")
        a("v_subrev_u32 v%d, %d, v4" % (8 + j, 1024 * j))
    a("s_lshl_b32 s21, s17, 12")
    a("s_mov_b32 s20, 0")
    a("s_mov_b32 s25, 0")

    def issue():
        a("s_mov_b32 m0, s21")
        a("s_add_u32 s19, s21, 16384")
        for j in range(4):
            a("buffer_load_dwordx4 v%d, s[4:7], s20 offen offset:%d lds" % (8 + j, 1024 * j))
        a("s_mov_b32 m0, s19")
        a("s_add_u32 s25, s25, 1")
        for j in range(4):
            a("buffer_load_dwordx4 v%d, s[8:11], s20 offen offset:%d lds" % (8 + j, 1024 * j))
        a("s_add_u32 s20, s20, 128")
        a("s_add_u32 s21, s21, %d" % SLOT)
        a("s_cmp_eq_u32 s25, %d" % NSLOT)
        a("s_cselect_b32 s19, %d, 0" % (SLOT * NSLOT))
        a("s_cselect_b32 s26, %d, 0" % NSLOT)
        a("s_sub_u32 s21, s21, s19")
        a("s_sub_u32 s25, s25, s26")

    for st in range(4):
        issue()
    stamp(a, 1)
    a("s_waitcnt vmcnt(16)")
    stamp(a, 2)
    a("s_barrier")
    a("s_mov_b32 s22, %d" % (ns - 4))
    a.label(pfx + "_lloop")
    if "nodma" not in EXP:
        issue()
    a("s_waitcnt vmcnt(16)")
    a("s_barrier")
    a("s_sub_u32 s22, s22, 1")
    a("s_cmp_lg_u32 s22, 0")
    a("s_cbranch_scc1 %s_lloop" % pfx)
    a("s_waitcnt vmcnt(8)")
    a("s_barrier")
    a("s_waitcnt vmcnt(0)")
    a("s_barrier")
    stamp(a, 3)
    if tail_hook:
        tail_hook()
    a("s_barrier")
    a("s_barrier")
    stamp(a, 4)
    a("s_endpgm")


def gemm_consumer_loop(a, pfx, ns, stats, NSLOT=NSLOT):
    a("s_lshr_b32 s17, s16, 1")
    a("s_and_b32 s18, s16, 1")
    a("v_and_b32 v1, 31, v0")
    a("v_lshrrev_b32 v2, 5, v0")
    a("v_lshrrev_b32 v3, 1, v0")
    a("v_and_b32 v3, 7, v3")
    a("v_lshlrev_b32 v4, 7, v1")
    a("s_lshl_b32 s19, s17, 13")
    a("s_lshl_b32 s20, s18, 13")
    a("s_add_u32 s20, s20, 16384")
    for j in range(4):
        a("v_add_u32 v5, %d, v2" % (2 * j))
        a("v_xor_b32 v5, v5, v3")
        a("v_lshlrev_b32 v5, 4, v5")
        a("v_add_u32 v5, v5, v4")
        a("v_add_u32 v%d, s19, v5" % (AP + j))
        a("v_add_u32 v%d, s20, v5" % (AQ + j))
    for r in range(64):
        a("v_mov_b32 v%d, 0" % (ACC + r))
    if stats:
        for r in range(12):
            a("v_mov_b32 v%d, 0" % (16 + r))
        a("s_mov_b32 s30, 0x3f803f80")
    a("s_mov_b32 s23, %d" % SLOT)
    a("s_mov_b32 s24, %d" % SLOT)
    a("s_mov_b32 s25, 1")
    a("s_mov_b32 s22, %d" % ns)
    a("s_mov_b32 s27, %d" % (-(NSLOT - 1) * SLOT))
    a("s_mov_b32 s28, %d" % SLOT)

    def reads(j):
        f = FR + 16 * j
        if "noread" in EXP:
            return
        a("ds_read_b128 v[%d:%d], v%d" % (f, f + 3, AP + j))
        a("ds_read_b128 v[%d:%d], v%d offset:4096" % (f + 4, f + 7, AP + j))
        a("ds_read_b128 v[%d:%d], v%d" % (f + 8, f + 11, AQ + j))
        a("ds_read_b128 v[%d:%d], v%d offset:4096" % (f + 12, f + 15, AQ + j))

    def adv(j, s):
        a("v_add_u32 v%d, s%d, v%d" % (AP + j, s, AP + j))
        a("v_add_u32 v%d, s%d, v%d" % (AQ + j, s, AQ + j))

    def mfmas(j):
        f = FR + 16 * j
        k = 0
        for ti in range(2):
            for tj in range(2):
                c = ACC + 16 * (2 * ti + tj)
                a("v_mfma_f32_32x32x16_bf16 v[%d:%d], v[%d:%d], v[%d:%d], v[%d:%d]" % (
                    c, c + 15, f + 4 * ti, f + 4 * ti + 3, f + 8 + 4 * tj, f + 8 + 4 * tj + 3, c, c + 15))
                if stats:
                    ops = []
                    for t in range(2):
                        for d in range(4):
                            p = f + 4 * t + d
                            ops.append("v_dot2_f32_bf16 v%d, v%d, s30, v%d" % (16 + 2 * t + (d & 1), p, 16 + 2 * t + (d & 1)))
                            ops.append("v_dot2_f32_bf16 v%d, v%d, v%d, v%d" % (20 + 2 * t + (d & 1), p, p, 20 + 2 * t + (d & 1)))
                    for t in range(2):
                        for d in range(4):
                            q = f + 8 + 4 * t + d
                            ops.append("v_dot2_f32_bf16 v%d, v%d, s30, v%d" % (24 + 2 * t + (d & 1), q, 24 + 2 * t + (d & 1)))
                    for o in ops[6 * k:6 * k + 6]:
                        a(o)
                k += 1

    stamp(a, 1)
    a("s_barrier")
    stamp(a, 2)
    stampc(a, 6)
    reads(0)
    adv(0, 23)
    reads(1)
    adv(1, 23)
    a.label(pfx + "_cloop")

    def book():
        return ["s_mov_b32 s23, s24",
                "s_add_u32 s25, s25, 1",
                "s_cmp_eq_u32 s25, %d" % NSLOT,
                "s_cselect_b32 s26, %d, 0" % NSLOT,
                "s_sub_u32 s25, s25, s26",
                "s_cmp_eq_u32 s25, %d" % (NSLOT - 1),
                "s_cselect_b32 s24, s27, s28",
                "s_sub_u32 s22, s22, 1",
                "s_cmp_lg_u32 s22, 0"]

    if "burst" in EXP or stats:
        reads(2)
        adv(2, 23)
        a("s_waitcnt lgkmcnt(8)")
        mfmas(0)
        reads(3)
        adv(3, 23)
        a("s_waitcnt lgkmcnt(8)")
        mfmas(1)
        reads(0)
        adv(0, 24)
        a("s_waitcnt lgkmcnt(8)")
        mfmas(2)
        reads(1)
        adv(1, 24)
        for b in book():
            a(b)
        a("s_waitcnt lgkmcnt(8)")
        mfmas(3)
    else:
        for j in range(4):
            jn = (j + 2) % 4
            sd = 23 if j < 2 else 24
            f = FR + 16 * j
            fn = FR + 16 * jn
            rd = ["ds_read_b128 v[%d:%d], v%d" % (fn, fn + 3, AP + jn),
                  "ds_read_b128 v[%d:%d], v%d" % (fn + 8, fn + 11, AQ + jn),
                  "ds_read_b128 v[%d:%d], v%d offset:4096" % (fn + 4, fn + 7, AP + jn),
                  "ds_read_b128 v[%d:%d], v%d offset:4096" % (fn + 12, fn + 15, AQ + jn)]
            a("s_waitcnt lgkmcnt(4)")
            k = 0
            for ti, tj in ((0, 0), (0, 1), (1, 0), (1, 1)):
                c = ACC + 16 * (2 * ti + tj)
                a("v_mfma_f32_32x32x16_bf16 v[%d:%d], v[%d:%d], v[%d:%d], v[%d:%d]" % (
                    c, c + 15, f + 4 * ti, f + 4 * ti + 3, f + 8 + 4 * tj, f + 8 + 4 * tj + 3, c, c + 15))
                if "noread" not in EXP:
                    a(rd[k])
                if k == 2:
                    a("v_add_u32 v%d, s%d, v%d" % (AP + jn, sd, AP + jn))
                if k == 3:
                    a("v_add_u32 v%d, s%d, v%d" % (AQ + jn, sd, AQ + jn))
                    if j == 3:
                        for b in book():
                            a(b)
                k += 1
    a("s_barrier")
    a("s_cbranch_scc1 %s_cloop" % pfx)
    a("s_waitcnt lgkmcnt(0)")
    a("s_nop 15")
    stamp(a, 3)
    stampc(a, 7)


def gemm_store(a, ostride_sh, pre=None):
    a("v_lshlrev_b32 v4, %d, v1" % ostride_sh)
    a("v_lshlrev_b32 v5, 4, v2")
    a("v_add_u32 v4, v4, v5")
    a("s_lshl_b32 s19, s18, %d" % (6 + ostride_sh))
    a("s_lshl_b32 s20, s17, 7")
    a("s_add_u32 s19, s19, s20")
    a("v_add_u32 v4, s19, v4")
    a("s_mov_b32 s20, 0")
    a("s_mov_b32 s21, %d" % (32 << ostride_sh))
    t = FR
    n = 0
    for ti in range(2):
        for g in (0, 2):
            if pre:
                pre(ti, g)
            for tj in range(2):
                c = ACC + 16 * (2 * ti + tj) + 4 * g
                d = t + 4 * (n % 8)
                n += 1
                a("v_cvt_pk_bf16_f32 v%d, v%d, v%d" % (d, c, c + 1))
                a("v_cvt_pk_bf16_f32 v%d, v%d, v%d" % (d + 1, c + 2, c + 3))
                a("v_cvt_pk_bf16_f32 v%d, v%d, v%d" % (d + 2, c + 4, c + 5))
                a("v_cvt_pk_bf16_f32 v%d, v%d, v%d" % (d + 3, c + 6, c + 7))
                a("s_nop 1")
                a("v_permlane32_swap_b32 v%d, v%d" % (d, d + 2))
                a("v_permlane32_swap_b32 v%d, v%d" % (d + 1, d + 3))
                a("s_nop 1")
                a("buffer_store_dwordx4 v[%d:%d], v4, s[12:15], s%d offen offset:%d%s" % (d, d + 3, 20 + tj, ti * 64 + g * 16, STFLAG))


def gemm16_consumer_loop(a, pfx, ns):
    a("s_lshr_b32 s17, s16, 1")
    a("s_and_b32 s18, s16, 1")
    a("v_and_b32 v1, 15, v0")
    a("v_lshrrev_b32 v2, 4, v0")
    a("v_lshrrev_b32 v3, 1, v1")
    a("v_lshlrev_b32 v4, 7, v1")
    a("s_lshl_b32 s19, s17, 13")
    a("s_lshl_b32 s20, s18, 13")
    a("s_add_u32 s20, s20, 16384")
    for j in range(2):
        a("v_add_u32 v5, %d, v2" % (4 * j))
        a("v_xor_b32 v5, v5, v3")
        a("v_lshlrev_b32 v5, 4, v5")
        a("v_add_u32 v5, v5, v4")
        a("v_add_u32 v%d, s19, v5" % (AP + j))
        a("v_add_u32 v%d, s20, v5" % (AQ + j))
    for r in range(64):
        a("v_mov_b32 v%d, 0" % (ACC + r))
    a("s_mov_b32 s23, %d" % SLOT)
    a("s_mov_b32 s24, %d" % SLOT)
    a("s_mov_b32 s25, 1")
    a("s_mov_b32 s22, %d" % ns)
    a("s_mov_b32 s27, %d" % (-(NSLOT - 1) * SLOT))
    a("s_mov_b32 s28, %d" % SLOT)

    def rdlist(j):
        f = FR + 32 * j
        l = []
        for t in range(4):
            l.append("ds_read_b128 v[%d:%d], v%d offset:%d" % (f + 4 * t, f + 4 * t + 3, AP + j, 2048 * t))
            l.append("ds_read_b128 v[%d:%d], v%d offset:%d" % (f + 16 + 4 * t, f + 16 + 4 * t + 3, AQ + j, 2048 * t))
        return l

    book = ["s_mov_b32 s23, s24",
            "s_add_u32 s25, s25, 1",
            "s_cmp_eq_u32 s25, %d" % NSLOT,
            "s_cselect_b32 s26, %d, 0" % NSLOT,
            "s_sub_u32 s25, s25, s26",
            "s_cmp_eq_u32 s25, %d" % (NSLOT - 1),
            "s_cselect_b32 s24, s27, s28",
            "s_sub_u32 s22, s22, 1",
            "s_cmp_lg_u32 s22, 0"]
    TD = 0
    if pfx == "k2" and ("k2burst" in EXP or any(x.startswith("k2pace") for x in EXP)):
        a("v_and_b32 v20, 7, v0")
        a("v_lshrrev_b32 v21, 3, v0")
        a("s_lshl_b32 s29, s52, 5")
        a("s_lshl_b32 s30, s16, 3")
        a("s_add_u32 s29, s29, s30")
        a("v_add_u32 v20, s29, v20")
        a("v_lshlrev_b32 v20, 12, v20")
        a("v_lshlrev_b32 v22, 7, v21")
        a("v_add_u32 v22, v20, v22")
        if "k2burst" in EXP:
            a("buffer_load_dword v24, v22, s[8:11], 0 offen offset:512")
            a("v_cmp_gt_u32 vcc, 4, v21")
            a("v_cndmask_b32 v22, -1, v22, vcc")
            a("buffer_load_dword v25, v22, s[8:11], 0 offen offset:1536")
        else:
            TD = int([x for x in EXP if x.startswith("k2pace")][0][6:])
            a("v_cmp_gt_u32 vcc, %d, v21" % (TD - 4))
            a("v_cndmask_b32 v22, -1, v22, vcc")
            a("buffer_load_dword v24, v22, s[8:11], 0 offen offset:512")
            a("v_cmp_eq_u32 vcc, 0, v21")
            a("v_cndmask_b32 v22, -1, v20, vcc")
            a("s_movk_i32 s29, %d" % (128 * TD))
    stamp(a, 1)
    a("s_barrier")
    stamp(a, 2)
    stampc(a, 6)
    for r in rdlist(0):
        a(r)
    a("v_add_u32 v%d, s23, v%d" % (AP, AP))
    a("v_add_u32 v%d, s23, v%d" % (AQ, AQ))
    a.label(pfx + "_cloop")
    for j in range(2):
        jn = 1 - j
        sd = 23 if j == 0 else 24
        f = FR + 32 * j
        rd = rdlist(jn)
        a("s_waitcnt lgkmcnt(0)")
        k = 0
        for ti in range(4):
            for tj in range(4):
                c = ACC + 4 * (4 * ti + tj)
                a("v_mfma_f32_16x16x32_bf16 v[%d:%d], v[%d:%d], v[%d:%d], v[%d:%d]" % (
                    c, c + 3, f + 4 * ti, f + 4 * ti + 3, f + 16 + 4 * tj, f + 16 + 4 * tj + 3, c, c + 3))
                if k < 8:
                    a(rd[k])
                if k == 8:
                    a("v_add_u32 v%d, s%d, v%d" % (AP + jn, sd, AP + jn))
                if k == 9:
                    a("v_add_u32 v%d, s%d, v%d" % (AQ + jn, sd, AQ + jn))
                if j == 1 and 10 <= k < 15:
                    for b in book[2 * (k - 10):2 * (k - 10) + 2]:
                        a(b)
                if TD and j == 0 and k == 11:
                    a("s_cmp_lt_u32 s29, 2048")
                    a("s_cselect_b32 s30, s29, 0x7fff0000")
                if TD and j == 0 and k == 12:
                    a("buffer_load_dword v24, v22, s[8:11], s30 offen")
                    a("s_add_u32 s29, s29, 128")
                k += 1
    a("s_barrier")
    a("s_cbranch_scc1 %s_cloop" % pfx)
    a("s_waitcnt lgkmcnt(0)")
    a("s_nop 15")
    stamp(a, 3)
    stampc(a, 7)


def gemm16_store(a, ostride_sh):
    a("v_lshlrev_b32 v4, %d, v1" % ostride_sh)
    a("v_and_b32 v5, 1, v2")
    a("v_lshlrev_b32 v5, 5, v5")
    a("v_lshrrev_b32 v6, 1, v2")
    a("v_lshlrev_b32 v6, 4, v6")
    a("v_add3_u32 v4, v4, v5, v6")
    a("s_lshl_b32 s19, s18, %d" % (6 + ostride_sh))
    a("s_lshl_b32 s20, s17, 7")
    a("s_add_u32 s19, s19, s20")
    a("v_add_u32 v4, s19, v4")
    for tj in range(4):
        a("s_mov_b32 s%d, %d" % (20 + tj, (16 * tj) << ostride_sh))
    n = 0
    for tj in range(4):
        for ti in (0, 2):
            c0 = ACC + 4 * (4 * ti + tj)
            c1 = ACC + 4 * (4 * (ti + 1) + tj)
            d = FR + 4 * (n % 8)
            n += 1
            a("v_cvt_pk_bf16_f32 v%d, v%d, v%d" % (d, c0, c0 + 1))
            a("v_cvt_pk_bf16_f32 v%d, v%d, v%d" % (d + 1, c0 + 2, c0 + 3))
            a("v_cvt_pk_bf16_f32 v%d, v%d, v%d" % (d + 2, c1, c1 + 1))
            a("v_cvt_pk_bf16_f32 v%d, v%d, v%d" % (d + 3, c1 + 2, c1 + 3))
            a("s_nop 1")
            a("v_permlane16_swap_b32 v%d, v%d" % (d, d + 2))
            a("v_permlane16_swap_b32 v%d, v%d" % (d + 1, d + 3))
            a("s_nop 1")
            a("buffer_store_dwordx4 v[%d:%d], v4, s[12:15], s%d offen offset:%d%s" % (d, d + 3, 20 + tj, ti * 32, STFLAG))


def wave_split(a):
    a("v_lshrrev_b32 v1, 6, v0")
    a("v_and_b32 v0, 63, v0")
    a("s_nop 0")
    a("v_readfirstlane_b32 s16, v1")


def k1(a):
    global STV
    STV = 254
    S1 = 24576
    STATS_LDS = 6 * S1
    SUMW_LDS = STATS_LDS + 1024
    name = "k1_kernel"
    kernel_head(a, name)
    a("s_cmp_ge_u32 s2, 256")
    a("s_cbranch_scc1 k1_exit")
    a("s_load_dwordx2 s[32:33], s[0:1], %d" % KA_X)
    a("s_load_dwordx4 s[36:39], s[0:1], %d" % KA_CR)
    a("s_load_dwordx4 s[40:43], s[0:1], %d" % KA_WRE)
    a("s_load_dwordx2 s[44:45], s[0:1], %d" % KA_WS)
    wave_split(a)
    a("s_and_b32 s46, s2, 7")
    a("s_lshr_b32 s47, s2, 3")
    a("s_and_b32 s48, s46, 1")
    a("s_lshr_b32 s49, s46, 1")
    a("s_and_b32 s50, s49, 1")
    a("s_lshr_b32 s51, s49, 1")
    a("s_lshl_b32 s52, s50, 3")
    a("s_lshl_b32 s53, s48, 2")
    a("s_add_u32 s52, s52, s53")
    a("s_and_b32 s57, s47, 3")
    a("s_add_u32 s52, s52, s57")
    a("s_lshr_b32 s53, s47, 2")
    a("s_lshl_b32 s54, s51, 3")
    a("s_add_u32 s54, s54, s53")
    a("s_cmp_ge_u32 s16, 4")
    a("s_cbranch_scc1 k1_loader")

    def srds():
        a("s_lshl_b32 s55, s52, 17")
        add64(a, 32, 33, "s55")
        srd(a, 4, 32, 33, 131072)
        a("s_cmp_eq_u32 s51, 0")
        a("s_cselect_b32 s40, s40, s42")
        a("s_cselect_b32 s41, s41, s43")
        a("s_cselect_b32 s36, s36, s38")
        a("s_cselect_b32 s37, s37, s39")
        a("s_lshl_b32 s55, s53, 16")
        add64(a, 40, 41, "s55")
        srd(a, 8, 40, 41, 65536)

    a("v_lshrrev_b32 v6, 3, v0")
    a("v_and_b32 v7, 7, v0")
    a("v_lshlrev_b32 v6, 10, v6")
    a("v_lshlrev_b32 v7, 7, v7")
    a("v_add_u32 v6, v6, v7")
    a("s_and_b32 s19, s16, 1")
    a("s_lshl_b32 s19, s19, 13")
    a("s_waitcnt lgkmcnt(0)")
    stamp_init(a, 0, 44, 45)
    stamp(a, 0)
    srds()
    if "notouch" not in EXP:
        a("s_cmp_ge_u32 s16, 2")
        a("s_cbranch_scc1 k1_touchw")
        a("s_lshl_b32 s20, s53, 14")
        a("s_add_u32 s19, s19, s20")
        a("buffer_load_dword v60, v6, s[4:7], s19 offen")
        a("s_branch k1_touchdone")
        a.label("k1_touchw")
        a("s_lshl_b32 s20, s57, 14")
        a("s_add_u32 s19, s19, s20")
        a("buffer_load_dword v60, v6, s[8:11], s19 offen")
        a.label("k1_touchdone")
    a("v_and_b32 v1, 31, v0")
    a("v_lshrrev_b32 v2, 5, v0")
    a("v_lshrrev_b32 v3, 1, v1")
    a("v_and_b32 v3, 7, v3")
    a("v_lshlrev_b32 v4, 7, v1")
    a("v_lshlrev_b32 v5, 2, v2")
    a("s_lshr_b32 s17, s16, 1")
    a("s_and_b32 s18, s16, 1")
    a("s_lshl_b32 s19, s17, 13")
    a("s_lshl_b32 s20, s18, 12")
    a("s_add_u32 s20, s20, 16384")
    for j in range(4):
        a("v_add_u32 v7, %d, v5" % j)
        a("v_xor_b32 v7, v7, v3")
        a("v_lshlrev_b32 v7, 4, v7")
        a("v_add3_u32 v%d, v7, v4, s19" % (32 + j))
        a("v_add3_u32 v%d, v7, v4, s20" % (44 + j))
        for b in (1, 2):
            a("v_add_u32 v%d, %d, v%d" % (32 + 4 * b + j, 2 * S1 * b, 32 + j))
            a("v_add_u32 v%d, %d, v%d" % (44 + 4 * b + j, 2 * S1 * b, 44 + j))
    for r in range(32):
        a("v_mov_b32 v%d, 0" % (64 + r))
    a("s_lshl_b32 s55, s54, 18")
    a("s_lshl_b32 s56, s52, 8")
    a("s_add_u32 s55, s55, s56")
    add64(a, 44, 45, "s55")
    srd(a, 12, 44, 45, 63 * 4096 + 256)
    a("v_lshlrev_b32 v4, 12, v1")
    a("v_lshlrev_b32 v5, 4, v2")
    a("s_lshl_b32 s19, s18, 17")
    a("s_lshl_b32 s20, s17, 7")
    a("s_add_u32 s19, s19, s20")
    a("v_add3_u32 v4, v4, v5, s19")
    a("s_lshl_b32 s19, s17, 9")
    a("s_add_u32 s19, s19, %d" % STATS_LDS)
    a("v_lshlrev_b32 v7, 5, v2")
    a("v_add_u32 v7, s19, v7")
    a("s_lshl_b32 s19, s18, 7")
    a("s_add_u32 s19, s19, %d" % SUMW_LDS)
    a("v_lshlrev_b32 v6, 2, v1")
    a("v_add_u32 v6, s19, v6")
    PF = 96

    def prd(n, j):
        f = PF + 12 * j
        sl = n % 6
        b = sl >> 1
        off = (sl & 1) * S1
        return ["ds_read_b128 v[%d:%d], v%d offset:%d" % (f, f + 3, 32 + 4 * b + j, off),
                "ds_read_b128 v[%d:%d], v%d offset:%d" % (f + 8, f + 11, 44 + 4 * b + j, off),
                "ds_read_b128 v[%d:%d], v%d offset:%d" % (f + 4, f + 7, 32 + 4 * b + j, off + 4096)]

    stamp(a, 1)
    a("s_barrier")
    stamp(a, 2)
    stampc(a, 6)
    for r in prd(0, 0) + prd(0, 1):
        a(r)
    for n in range(8):
        for j in range(4):
            g = 4 * n + j + 2
            rd = prd(g // 4, g % 4) if g < 32 else []
            f = PF + 12 * j
            q = f + 8
            a("s_waitcnt lgkmcnt(%d)" % (3 if g - 1 < 32 else 0))
            for ti in range(2):
                c = 64 + 16 * ti
                a("v_mfma_f32_32x32x16_bf16 v[%d:%d], v[%d:%d], v[%d:%d], v[%d:%d]" % (
                    c, c + 15, f + 4 * ti, f + 4 * ti + 3, q, q + 3, c, c + 15))
                if rd:
                    for r in (rd[0:2] if ti == 0 else rd[2:3]):
                        a(r)
        if n < 7:
            a("s_barrier")
    stamp(a, 3)
    stampc(a, 7)
    a("s_barrier")
    a("ds_read_b32 v16, v6")
    for ti in range(2):
        for i in range(8):
            a("ds_read_b128 v[%d:%d], v7 offset:%d" % (128 + 32 * ti + 4 * i, 131 + 32 * ti + 4 * i, ti * 256 + (i >> 1) * 64 + (i & 1) * 16))
    for ti in range(2):
        a("s_waitcnt lgkmcnt(%d)" % (8 if ti == 0 else 0))
        c = 64 + 16 * ti
        for r in range(16):
            a("v_fma_f32 v%d, -v%d, v16, v%d" % (c + r, 128 + 32 * ti + 2 * r, c + r))
            a("v_mul_f32 v%d, v%d, v%d" % (c + r, c + r, 129 + 32 * ti + 2 * r))
        for g in (0, 2):
            cc = c + 4 * g
            d = 96 + 8 * ti + 2 * g
            a("v_cvt_pk_bf16_f32 v%d, v%d, v%d" % (d, cc, cc + 1))
            a("v_cvt_pk_bf16_f32 v%d, v%d, v%d" % (d + 1, cc + 2, cc + 3))
            a("v_cvt_pk_bf16_f32 v%d, v%d, v%d" % (d + 2, cc + 4, cc + 5))
            a("v_cvt_pk_bf16_f32 v%d, v%d, v%d" % (d + 3, cc + 6, cc + 7))
            a("s_nop 1")
            a("v_permlane32_swap_b32 v%d, v%d" % (d, d + 2))
            a("v_permlane32_swap_b32 v%d, v%d" % (d + 1, d + 3))
            a("s_nop 1")
            a("buffer_store_dwordx4 v[%d:%d], v4, s[12:15], 0 offen offset:%d%s" % (d, d + 3, ti * 64 + g * 16, STFLAG))
    stamp(a, 4)
    if STAMPS:
        a("s_waitcnt vmcnt(0)")
    stamp(a, 5)
    a.label("k1_exit")
    a("s_endpgm")

    a.label("k1_loader")
    a("s_sub_u32 s17, s16, 4")
    a("v_lshrrev_b32 v6, 3, v0")
    a("v_lshrrev_b32 v7, 4, v0")
    a("v_and_b32 v16, 7, v0")
    a("s_lshl_b32 s18, s17, 5")
    a("s_lshl_b32 s19, s17, 4")
    for j in range(4):
        a("v_add_u32 v18, %d, v7" % (4 * j))
        a("v_and_b32 v18, 7, v18")
        a("v_xor_b32 v18, v18, v16")
        a("v_lshlrev_b32 v18, 4, v18")
        a("v_add3_u32 v17, v6, s18, %d" % (8 * j))
        a("v_lshlrev_b32 v17, 10, v17")
        a("v_add_u32 v17, v17, v18")
        a("v_subrev_u32 v%d, %d, v17" % (8 + j, 1024 * j))
        if j < 2:
            a("v_add3_u32 v17, v6, s19, %d" % (8 * j))
            a("v_lshlrev_b32 v17, 10, v17")
            a("v_add_u32 v17, v17, v18")
            a("v_subrev_u32 v%d, %d, v17" % (12 + j, 1024 * j))
    a("s_lshl_b32 s21, s17, 12")
    a("s_lshl_b32 s22, s17, 11")
    a("s_add_u32 s22, s22, 16384")
    a("s_waitcnt lgkmcnt(0)")
    stamp_init(a, 0, 44, 45, "b")
    stamp(a, 0)
    srds()

    def issue(n):
        sl = n % 6
        a("s_add_u32 m0, s21, %d" % (sl * S1))
        a("s_movk_i32 s20, %d" % (128 * n))
        for j in range(4):
            a("buffer_load_dwordx4 v%d, s[4:7], s20 offen offset:%d lds" % (8 + j, 1024 * j))
        a("s_add_u32 m0, s22, %d" % (sl * S1))
        a("s_nop 0")
        for j in range(2):
            a("buffer_load_dwordx4 v%d, s[8:11], s20 offen offset:%d lds" % (12 + j, 1024 * j))

    SCHED = {-1: [0, 1, 2], 0: [3, 4], 1: [5, 6], 2: [7]}
    if "sched3" in EXP:
        SCHED = {-1: [0, 1, 2], 0: [3], 1: [4], 2: [5], 3: [6], 4: [7]}
    for n in SCHED[-1]:
        issue(n)
    a("s_lshl_b32 s55, s48, 22")
    a("s_lshl_b32 s56, s47, 17")
    a("s_add_u32 s55, s55, s56")
    a("s_lshl_b32 s56, s50, 11")
    a("s_add_u32 s55, s55, s56")
    a("s_lshl_b32 s56, s17, 15")
    a("s_add_u32 s55, s55, s56")
    add64(a, 36, 37, "s55")
    srd(a, 24, 36, 37, 7 * 4096 + 2048)
    a("v_and_b32 v1, 15, v0")
    a("v_lshlrev_b32 v17, 12, v7")
    a("v_lshlrev_b32 v18, 7, v1")
    a("v_add_u32 v14, v17, v18")
    a("s_movk_i32 s23, 16384")
    a("v_lshrrev_b32 v3, 1, v1")
    a("v_lshlrev_b32 v4, 7, v1")
    for sx in range(2):
        a("v_add_u32 v17, %d, v7" % (4 * sx))
        a("v_xor_b32 v17, v17, v3")
        a("v_lshlrev_b32 v17, 4, v17")
        a("v_add3_u32 v%d, v17, v4, s21" % (32 + sx))
        a("v_add3_u32 v%d, v17, v4, s22" % (44 + sx))
        for b in (1, 2):
            a("v_add_u32 v%d, %d, v%d" % (32 + 2 * b + sx, 2 * S1 * b, 32 + sx))
            a("v_add_u32 v%d, %d, v%d" % (44 + 2 * b + sx, 2 * S1 * b, 44 + sx))
    for r in range(20):
        a("v_mov_b32 v%d, 0" % (64 + r))
    for r in range(4):
        a("v_mov_b32 v%d, 0x3f803f80" % (84 + r))
    stamp(a, 1)
    q = []
    for n in SCHED[-1]:
        q += [n] * 6
    for n in range(8):
        if n < 7:
            last = max(i for i, e in enumerate(q) if e == n + 1)
            a("s_waitcnt vmcnt(%d)" % (len(q) - 1 - last))
            q = q[last + 1:]
            if n == 0:
                stamp(a, 2)
            a("s_barrier")
        sl = n % 6
        b = sl >> 1
        off = (sl & 1) * S1
        for sx in range(2):
            a("ds_read_b128 v[%d:%d], v%d offset:%d" % (96 + 12 * sx, 99 + 12 * sx, 32 + 2 * b + sx, off))
            a("ds_read_b128 v[%d:%d], v%d offset:%d" % (100 + 12 * sx, 103 + 12 * sx, 32 + 2 * b + sx, off + 2048))
            a("ds_read_b128 v[%d:%d], v%d offset:%d" % (104 + 12 * sx, 107 + 12 * sx, 44 + 2 * b + sx, off))
        for sx in range(2):
            a("s_waitcnt lgkmcnt(%d)" % (3 if sx == 0 else 0))
            f = 96 + 12 * sx
            for rb in range(2):
                x = f + 4 * rb
                a("v_mfma_f32_16x16x32_bf16 v[%d:%d], v[%d:%d], v[%d:%d], v[%d:%d]" % (64 + 4 * rb, 67 + 4 * rb, x, x + 3, x, x + 3, 64 + 4 * rb, 67 + 4 * rb))
                a("v_mfma_f32_16x16x32_bf16 v[%d:%d], v[%d:%d], v[84:87], v[%d:%d]" % (72 + 4 * rb, 75 + 4 * rb, x, x + 3, 72 + 4 * rb, 75 + 4 * rb))
            a("v_mfma_f32_16x16x32_bf16 v[80:83], v[84:87], v[%d:%d], v[80:83]" % (f + 8, f + 11))
        for st in SCHED.get(n, []):
            issue(st)
            q += [st] * 6
            if st == 7 and "nopf" not in EXP:
                a("buffer_load_dword v62, v14, s[24:27], 0 offen")
                a("buffer_load_dword v63, v14, s[24:27], s23 offen")
                q += [99, 99]
        if n == 6:
            a("s_barrier")
    stamp(a, 3)
    a("v_and_b32 v16, 3, v0")
    a("v_lshrrev_b32 v17, 2, v1")
    a("s_nop 7")
    a("v_cmp_eq_u32 s[26:27], 1, v16")
    a("v_cmp_eq_u32 s[28:29], 2, v16")
    a("v_cmp_eq_u32 s[30:31], 3, v16")
    a("s_lshl_b32 s19, s17, 8")
    a("s_add_u32 s19, s19, %d" % STATS_LDS)
    a("v_lshlrev_b32 v6, 3, v1")
    a("v_add_u32 v6, s19, v6")
    a("s_lshl_b32 s19, s17, 6")
    a("s_add_u32 s19, s19, %d" % SUMW_LDS)
    a("v_lshlrev_b32 v18, 2, v1")
    a("v_add_u32 v18, s19, v18")
    a("ds_write_b32 v18, v80")
    for base in (64, 68, 72, 76):
        a("v_cndmask_b32 v%d, v%d, v%d, s[26:27]" % (base, base, base + 1))
        a("v_cndmask_b32 v%d, v%d, v%d, s[28:29]" % (base, base, base + 2))
        a("v_cndmask_b32 v%d, v%d, v%d, s[30:31]" % (base, base, base + 3))
    a("v_cmp_eq_u32 vcc, v17, v7")
    a("s_and_saveexec_b64 s[34:35], vcc")
    for rb in range(2):
        a("v_mul_f32 v28, 0x3b000000, v%d" % (72 + 4 * rb))
        a("v_mul_f32 v29, 0x3b000000, v%d" % (64 + 4 * rb))
        a("v_fma_f32 v29, -v28, v28, v29")
        a("v_max_f32 v29, 0, v29")
        bf16r(a, 30, 28)
        bf16r(a, 29, 29)
        a("v_add_f32 v29, 0x3727c5ac, v29")
        bf16r(a, 29, 29)
        a("v_sqrt_f32 v29, v29")
        a("s_nop 0")
        bf16r(a, 29, 29)
        a("v_rcp_f32 v31, v29")
        a("s_nop 0")
        a("ds_write_b64 v6, v[30:31] offset:%d" % (128 * rb))
    a("s_mov_b64 exec, s[34:35]")
    a("s_waitcnt lgkmcnt(0)")
    a("s_barrier")
    stamp(a, 4)
    if STAMPS:
        a("s_waitcnt vmcnt(0)")
    stamp(a, 5)
    a("s_endpgm")
    return name, 192


def k1b(a):
    global STV
    STV = 254
    NS1 = 4
    STATS_LDS = NS1 * SLOT
    SUMW_LDS = STATS_LDS + 1024
    name = "k1_kernel"
    kernel_head(a, name)
    a("s_cmp_ge_u32 s2, 256")
    a("s_cbranch_scc1 k1_exit")
    a("s_load_dwordx2 s[32:33], s[0:1], %d" % KA_X)
    a("s_load_dwordx4 s[36:39], s[0:1], %d" % KA_CR)
    a("s_load_dwordx4 s[40:43], s[0:1], %d" % KA_WRE)
    a("s_load_dwordx2 s[44:45], s[0:1], %d" % KA_WS)
    wave_split(a)
    a("s_and_b32 s46, s2, 7")
    a("s_lshr_b32 s47, s2, 3")
    a("s_and_b32 s48, s46, 1")
    a("s_lshr_b32 s49, s46, 1")
    a("s_and_b32 s50, s49, 1")
    a("s_lshr_b32 s51, s49, 1")
    a("s_lshl_b32 s52, s50, 3")
    a("s_lshl_b32 s53, s48, 2")
    a("s_add_u32 s52, s52, s53")
    a("s_cmp_ge_u32 s47, 16")
    a("s_cbranch_scc1 k1_pref")
    a("s_and_b32 s57, s47, 3")
    a("s_add_u32 s52, s52, s57")
    a("s_lshr_b32 s53, s47, 2")
    a("s_lshl_b32 s54, s51, 2")
    a("s_add_u32 s54, s54, s53")
    a("s_waitcnt lgkmcnt(0)")
    stamp_init(a, 0, 44, 45)
    stamp(a, 0)
    a("s_cmp_ge_u32 s16, 4")
    a("s_cbranch_scc1 k1_loader")

    a("s_lshl_b32 s55, s54, 19")
    a("s_lshl_b32 s56, s52, 8")
    a("s_add_u32 s55, s55, s56")
    add64(a, 44, 45, "s55")
    srd(a, 12, 44, 45, 127 * 4096 + 256)
    gemm_consumer_loop(a, "k1", 8, False, NS1)
    a("s_lshl_b32 s19, s17, 9")
    a("s_add_u32 s19, s19, %d" % STATS_LDS)
    a("v_lshlrev_b32 v7, 5, v2")
    a("v_add_u32 v7, s19, v7")
    a("s_lshl_b32 s19, s18, 8")
    a("s_add_u32 s19, s19, %d" % SUMW_LDS)
    a("v_lshlrev_b32 v6, 2, v1")
    a("v_add_u32 v6, s19, v6")
    a("ds_read_b32 v24, v6")
    a("ds_read_b32 v26, v6 offset:128")

    def pre(ti, g):
        for gg in range(2):
            a("ds_read_b128 v[%d:%d], v7 offset:%d" % (32 + 8 * gg, 35 + 8 * gg, ti * 256 + (g + gg) * 64))
            a("ds_read_b128 v[%d:%d], v7 offset:%d" % (36 + 8 * gg, 39 + 8 * gg, ti * 256 + (g + gg) * 64 + 16))
        a("s_waitcnt lgkmcnt(0)")
        for tj in range(2):
            c = ACC + 16 * (2 * ti + tj) + 4 * g
            for r in range(8):
                a("v_fma_f32 v%d, -v%d, v%d, v%d" % (c + r, 32 + 2 * r, 24 + 2 * tj, c + r))
                a("v_mul_f32 v%d, v%d, v%d" % (c + r, c + r, 33 + 2 * r))

    gemm_store(a, 12, pre)
    stamp(a, 4)
    if STAMPS:
        a("s_waitcnt vmcnt(0)")
    stamp(a, 5)
    a.label("k1_exit")
    a("s_endpgm")

    a.label("k1_loader")
    a("s_lshl_b32 s55, s52, 17")
    add64(a, 32, 33, "s55")
    srd(a, 4, 32, 33, 131072)
    a("s_cmp_eq_u32 s51, 0")
    a("s_cselect_b32 s40, s40, s42")
    a("s_cselect_b32 s41, s41, s43")
    a("s_lshl_b32 s55, s53, 17")
    add64(a, 40, 41, "s55")
    srd(a, 8, 40, 41, 131072)
    a("s_sub_u32 s17, s16, 4")
    a("v_lshrrev_b32 v6, 3, v0")
    a("v_lshrrev_b32 v7, 4, v0")
    a("v_and_b32 v16, 7, v0")
    a("s_lshl_b32 s18, s17, 5")
    for j in range(4):
        a("v_add_u32 v18, %d, v7" % (4 * j))
        a("v_and_b32 v18, 7, v18")
        a("v_xor_b32 v18, v18, v16")
        a("v_lshlrev_b32 v18, 4, v18")
        a("v_add3_u32 v17, v6, s18, %d" % (8 * j))
        a("v_lshlrev_b32 v17, 10, v17")
        a("v_add_u32 v17, v17, v18")
        a("v_subrev_u32 v%d, %d, v17" % (8 + j, 1024 * j))
    a("s_lshl_b32 s21, s17, 12")
    a("s_add_u32 s22, s21, 16384")

    def issue(n):
        sl = n % NS1
        a("s_add_u32 m0, s21, %d" % (sl * SLOT))
        a("s_movk_i32 s20, %d" % (128 * n))
        for j in range(4):
            a("buffer_load_dwordx4 v%d, s[4:7], s20 offen offset:%d lds" % (8 + j, 1024 * j))
        a("s_add_u32 m0, s22, %d" % (sl * SLOT))
        a("s_nop 0")
        for j in range(4):
            a("buffer_load_dwordx4 v%d, s[8:11], s20 offen offset:%d lds" % (8 + j, 1024 * j))

    NPRO = 3
    for n in range(NPRO):
        issue(n)
    a("v_and_b32 v1, 15, v0")
    a("v_lshrrev_b32 v3, 1, v1")
    a("v_lshlrev_b32 v4, 7, v1")
    for sx in range(2):
        a("v_add_u32 v17, %d, v7" % (4 * sx))
        a("v_xor_b32 v17, v17, v3")
        a("v_lshlrev_b32 v17, 4, v17")
        a("v_add3_u32 v%d, v17, v4, s21" % (32 + sx))
        a("v_add_u32 v%d, %d, v%d" % (34 + sx, 2 * SLOT, 32 + sx))
    for r in range(24):
        a("v_mov_b32 v%d, 0" % (64 + r))
    for r in range(4):
        a("v_mov_b32 v%d, 0x3f803f80" % (88 + r))
    stamp(a, 1)
    VST = "mfmastats" not in EXP
    q = []
    for n in range(NPRO):
        q += [n] * 8
    for n in range(8):
        if n < 7:
            last = max(i for i, e in enumerate(q) if e == n + 1)
            a("s_waitcnt vmcnt(%d)" % (len(q) - 1 - last))
            q = q[last + 1:]
            if n == 0:
                stamp(a, 2)
        a("s_barrier")
        sl = n % NS1
        b = sl >> 1
        off = (sl & 1) * SLOT
        for sx in range(2):
            f = 96 + 16 * sx
            a("ds_read_b128 v[%d:%d], v%d offset:%d" % (f, f + 3, 32 + 2 * b + sx, off))
            a("ds_read_b128 v[%d:%d], v%d offset:%d" % (f + 4, f + 7, 32 + 2 * b + sx, off + 2048))
            a("ds_read_b128 v[%d:%d], v%d offset:%d" % (f + 8, f + 11, 32 + 2 * b + sx, off + 16384))
            a("ds_read_b128 v[%d:%d], v%d offset:%d" % (f + 12, f + 15, 32 + 2 * b + sx, off + 16384 + 2048))
        if n + NPRO < 8:
            issue(n + NPRO)
            q += [n + NPRO] * 8
        for sx in range(2):
            a("s_waitcnt lgkmcnt(%d)" % (4 if sx == 0 else 0))
            f = 96 + 16 * sx
            for rb in range(2):
                x = f + 4 * rb
                a("v_mfma_f32_16x16x32_bf16 v[%d:%d], v[88:91], v[%d:%d], v[%d:%d]" % (80 + 4 * rb, 83 + 4 * rb, x + 8, x + 11, 80 + 4 * rb, 83 + 4 * rb))
                if VST:
                    for d in range(4):
                        t = 24 + 2 * (d & 1)
                        unpack(a, t, t + 1, x + d)
                        a("v_add_f32 v%d, v%d, v%d" % (72 + 4 * rb, 72 + 4 * rb, t))
                        a("v_add_f32 v%d, v%d, v%d" % (73 + 4 * rb, 73 + 4 * rb, t + 1))
                        a("v_fmac_f32 v%d, v%d, v%d" % (64 + 4 * rb, t, t))
                        a("v_fmac_f32 v%d, v%d, v%d" % (65 + 4 * rb, t + 1, t + 1))
                else:
                    a("v_mfma_f32_16x16x32_bf16 v[%d:%d], v[%d:%d], v[%d:%d], v[%d:%d]" % (64 + 4 * rb, 67 + 4 * rb, x, x + 3, x, x + 3, 64 + 4 * rb, 67 + 4 * rb))
                    a("v_mfma_f32_16x16x32_bf16 v[%d:%d], v[%d:%d], v[88:91], v[%d:%d]" % (72 + 4 * rb, 75 + 4 * rb, x, x + 3, 72 + 4 * rb, 75 + 4 * rb))
    stamp(a, 3)
    a("v_and_b32 v16, 3, v0")
    a("v_lshrrev_b32 v17, 2, v1")
    a("s_nop 7")
    a("s_lshl_b32 s19, s17, 8")
    a("s_add_u32 s19, s19, %d" % STATS_LDS)
    a("v_lshlrev_b32 v6, 3, v1")
    a("v_add_u32 v6, s19, v6")
    a("s_lshl_b32 s19, s17, 7")
    a("s_add_u32 s19, s19, %d" % SUMW_LDS)
    a("v_lshlrev_b32 v18, 2, v1")
    a("v_add_u32 v18, s19, v18")
    a("ds_write_b32 v18, v80")
    a("ds_write_b32 v18, v84 offset:64")
    if VST:
        for base in (64, 68, 72, 76):
            a("v_add_f32 v%d, v%d, v%d" % (base, base, base + 1))
        for base in (64, 68, 72, 76):
            a("v_mov_b32 v%d, v%d" % (base + 1, base))
        a("s_nop 1")
        for base in (64, 68, 72, 76):
            a("v_permlane16_swap_b32 v%d, v%d" % (base, base + 1))
        a("s_nop 1")
        for base in (64, 68, 72, 76):
            a("v_add_f32 v%d, v%d, v%d" % (base, base, base + 1))
        for base in (64, 68, 72, 76):
            a("v_mov_b32 v%d, v%d" % (base + 1, base))
        a("s_nop 1")
        for base in (64, 68, 72, 76):
            a("v_permlane32_swap_b32 v%d, v%d" % (base, base + 1))
        a("s_nop 1")
        for base in (64, 68, 72, 76):
            a("v_add_f32 v%d, v%d, v%d" % (base, base, base + 1))
        a("s_mov_b64 s[24:25], exec")
    else:
        a("v_cmp_eq_u32 s[26:27], 1, v16")
        a("v_cmp_eq_u32 s[28:29], 2, v16")
        a("v_cmp_eq_u32 s[30:31], 3, v16")
        a("s_nop 1")
        for base in (64, 68, 72, 76):
            a("v_cndmask_b32 v%d, v%d, v%d, s[26:27]" % (base, base, base + 1))
            a("v_cndmask_b32 v%d, v%d, v%d, s[28:29]" % (base, base, base + 2))
            a("v_cndmask_b32 v%d, v%d, v%d, s[30:31]" % (base, base, base + 3))
        a("v_cmp_eq_u32 vcc, v17, v7")
        a("s_and_saveexec_b64 s[24:25], vcc")
    for rb in range(2):
        a("v_mul_f32 v28, 0x3b000000, v%d" % (72 + 4 * rb))
        a("v_mul_f32 v29, 0x3b000000, v%d" % (64 + 4 * rb))
        a("v_fma_f32 v29, -v28, v28, v29")
        a("v_max_f32 v29, 0, v29")
        bf16r(a, 30, 28)
        bf16r(a, 29, 29)
        a("v_add_f32 v29, 0x3727c5ac, v29")
        bf16r(a, 29, 29)
        a("v_sqrt_f32 v29, v29")
        a("s_nop 0")
        bf16r(a, 29, 29)
        a("v_rcp_f32 v31, v29")
        a("s_nop 0")
        a("ds_write_b64 v6, v[30:31] offset:%d" % (128 * rb))
    a("s_mov_b64 exec, s[24:25]")
    a("s_waitcnt lgkmcnt(0)")
    a("s_barrier")
    stamp(a, 4)
    a("s_endpgm")

    a.label("k1_pref")
    a("s_sub_u32 s47, s47, 16")
    a("v_lshrrev_b32 v6, 3, v0")
    a("v_and_b32 v7, 7, v0")
    a("v_lshlrev_b32 v6, 10, v6")
    a("v_lshlrev_b32 v7, 7, v7")
    a("v_add_u32 v6, v6, v7")
    a("s_waitcnt lgkmcnt(0)")
    stamp_init(a, 0, 44, 45, "p")
    stamp(a, 0)
    a("s_cmp_eq_u32 s51, 0")
    a("s_cselect_b32 s40, s40, s42")
    a("s_cselect_b32 s41, s41, s43")
    a("s_cselect_b32 s36, s36, s38")
    a("s_cselect_b32 s37, s37, s39")
    a("s_lshl_b32 s55, s52, 17")
    add64(a, 32, 33, "s55")
    a("s_cmp_lt_u32 s47, 8")
    a("s_cselect_b32 s32, s32, s40")
    a("s_cselect_b32 s33, s33, s41")
    srd(a, 4, 32, 33, 524288)
    a("s_and_b32 s55, s47, 7")
    a("s_lshl_b32 s55, s55, 16")
    a("s_lshl_b32 s56, s16, 13")
    a("s_add_u32 s55, s55, s56")
    a("buffer_load_dword v60, v6, s[4:7], s55 offen")
    if ZERO_FLAGS is not None:
        a("s_cmp_lg_u32 s46, 0")
        a("s_cbranch_scc1 k1_nozero")
        a("s_cmp_ge_u32 s47, 3")
        a("s_cbranch_scc1 k1_nozero")
        a("s_add_u32 s58, s44, %d" % ZERO_FLAGS)
        a("s_addc_u32 s59, s45, 0")
        srd(a, 8, 58, 59, 24576)
        a("v_lshlrev_b32 v11, 4, v0")
        a("s_lshl_b32 s58, s16, 10")
        a("s_lshl_b32 s59, s47, 13")
        a("s_add_u32 s58, s58, s59")
        for r in range(4):
            a("v_mov_b32 v%d, 0" % (16 + r))
        a("buffer_store_dwordx4 v[16:19], v11, s[8:11], s58 offen")
        a.label("k1_nozero")
    if FILL is not None:
        srd(a, 8, 44, 45, 32 << 20)
        a("s_lshl_b32 s58, s46, 4")
        a("s_add_u32 s58, s58, s47")
        a("s_lshl_b32 s58, s58, 12")
        a("s_lshl_b32 s59, s16, 9")
        a("s_add_u32 s58, s58, s59")
        a("v_lshlrev_b32 v11, 3, v0")
        a("v_mov_b32 v16, -1")
        a("v_mov_b32 v17, -1")
        a("s_add_u32 s59, s58, %d" % FILL[0])
        a("buffer_store_dwordx2 v[16:17], v11, s[8:11], s59 offen")
        a("s_add_u32 s59, s58, %d" % FILL[1])
        a("buffer_store_dwordx2 v[16:17], v11, s[8:11], s59 offen")
    a("s_lshl_b32 s55, s48, 22")
    a("s_lshl_b32 s56, s47, 18")
    a("s_add_u32 s55, s55, s56")
    a("s_lshl_b32 s56, s50, 11")
    a("s_add_u32 s55, s55, s56")
    a("s_lshl_b32 s56, s16, 15")
    a("s_add_u32 s55, s55, s56")
    add64(a, 36, 37, "s55")
    srd(a, 24, 36, 37, 7 * 4096 + 2048)
    a("v_lshrrev_b32 v8, 3, v0")
    a("v_and_b32 v9, 7, v0")
    a("v_lshlrev_b32 v8, 12, v8")
    a("v_lshlrev_b32 v10, 7, v9")
    a("v_add_u32 v14, v8, v10")
    PFN = int([x for x in EXP if x.startswith("pfn")][0][3:]) if any(x.startswith("pfn") for x in EXP) else 16
    if PFN < 16:
        a("v_cmp_gt_u32 vcc, %d, v9" % (PFN - 8))
        a("v_cndmask_b32 v15, -1, v14, vcc")
    else:
        a("v_mov_b32 v15, v14")
    if "nowaitpf" not in EXP:
        a("s_waitcnt vmcnt(0)")
    stamp(a, 1)
    a("buffer_load_dword v62, v14, s[24:27], 0 offen")
    if PFN > 8:
        a("buffer_load_dword v63, v15, s[24:27], 0 offen offset:1024")
    if STAMPS:
        a("s_waitcnt vmcnt(0)")
    stamp(a, 5)
    a("s_endpgm")
    return name, 192


def k2(a):
    global STV
    STV = 254
    name = "k2_kernel"
    kernel_head(a, name)
    a("s_cmp_ge_u32 s2, 256")
    a("s_cbranch_scc1 k2_exit")
    a("s_load_dwordx4 s[36:39], s[0:1], %d" % KA_CR)
    a("s_load_dwordx2 s[44:45], s[0:1], %d" % KA_WS)
    wave_split(a)
    a("s_and_b32 s46, s2, 7")
    a("s_lshr_b32 s47, s2, 3")
    a("s_and_b32 s48, s46, 1")
    a("s_lshr_b32 s49, s46, 1")
    a("s_and_b32 s50, s49, 1")
    a("s_lshr_b32 s51, s49, 1")
    a("s_and_b32 s52, s47, 3")
    a("s_lshr_b32 s53, s47, 2")
    a("s_lshl_b32 s54, s48, 3")
    a("s_add_u32 s53, s53, s54")
    a("s_waitcnt lgkmcnt(0)")
    stamp_init(a, 1, 44, 45)
    stamp(a, 0)
    a("s_lshl_b32 s55, s51, 21")
    a("s_lshl_b32 s56, s52, 19")
    a("s_add_u32 s55, s55, s56")
    a("s_lshl_b32 s57, s50, 11")
    a("s_add_u32 s55, s55, s57")
    a("s_add_u32 s32, s44, s55")
    a("s_addc_u32 s33, s45, 0")
    srd(a, 4, 32, 33, 127 * 4096 + 2048)
    a("s_cmp_eq_u32 s51, 0")
    a("s_cselect_b32 s36, s36, s38")
    a("s_cselect_b32 s37, s37, s39")
    a("s_lshl_b32 s55, s53, 19")
    a("s_add_u32 s55, s55, s57")
    add64(a, 36, 37, "s55")
    srd(a, 8, 36, 37, 127 * 4096 + 2048)
    a("s_lshl_b32 s55, s49, 21")
    a("s_lshl_b32 s56, s53, 17")
    a("s_add_u32 s55, s55, s56")
    a("s_lshl_b32 s56, s52, 8")
    a("s_add_u32 s55, s55, s56")
    a("s_add_u32 s55, s55, %d" % PART_OFF)
    add64(a, 44, 45, "s55")
    srd(a, 12, 44, 45, 127 * 1024 + 256)
    a("s_cmp_ge_u32 s16, 4")
    a("s_cbranch_scc1 k2_loader")
    if "m32" in EXP:
        gemm_consumer_loop(a, "k2", 16, False)
        gemm_store(a, 10)
    else:
        gemm16_consumer_loop(a, "k2", 16)
        gemm16_store(a, 10)
    stamp(a, 4)
    if STAMPS:
        a("s_waitcnt vmcnt(0)")
    stamp(a, 5)
    a.label("k2_exit")
    a("s_endpgm")
    a.label("k2_loader")
    gemm_loader(a, "k2", 16, 4096)
    return name, 192


def k3(a):
    name = "k3_kernel"
    kernel_head(a, name)
    a("s_cmp_ge_u32 s2, 512")
    a("s_cbranch_scc1 k3_exit")
    a("s_load_dwordx2 s[32:33], s[0:1], %d" % KA_X)
    a("s_load_dwordx2 s[34:35], s[0:1], %d" % KA_WR)
    a("s_load_dwordx2 s[36:37], s[0:1], %d" % KA_OUT)
    a("s_load_dwordx2 s[44:45], s[0:1], %d" % KA_WS)
    a("v_lshrrev_b32 v1, 6, v0")
    a("v_and_b32 v0, 63, v0")
    a("s_lshl_b32 s3, s2, 2")
    a("v_add_u32 v1, s3, v1")
    a("v_lshlrev_b32 v2, 4, v0")
    a("v_lshlrev_b32 v3, 10, v1")
    a("v_add_u32 v3, v3, v2")
    a("s_mov_b32 s20, 0")
    a("s_mov_b32 s21, %d" % (2 << 20))
    a("s_mov_b32 s22, %d" % (4 << 20))
    a("s_mov_b32 s23, %d" % (6 << 20))
    a("s_waitcnt lgkmcnt(0)")
    if STAMPS:
        a("v_and_b32 v250, 3, v1")
        a("s_nop 0")
        a("v_readfirstlane_b32 s16, v250")
        a("s_nop 3")
    stamp_init(a, 2, 44, 45)
    stamp(a, 0)
    srd(a, 4, 32, 33, 2 << 20)
    srd(a, 8, 34, 35, 1024)
    srd(a, 12, 36, 37, 2 << 20)
    a("s_add_u32 s46, s44, %d" % PART_OFF)
    a("s_addc_u32 s47, s45, 0")
    srd(a, 16, 46, 47, 8 << 20)
    a("s_add_u32 s46, s44, %d" % H_OFF)
    a("s_addc_u32 s47, s45, 0")
    srd(a, 24, 46, 47, (2 << 20) + 65536 + 8192)
    for ks in range(4):
        a("buffer_load_dwordx4 v[%d:%d], v3, s[16:19], s%d offen" % (8 + 4 * ks, 11 + 4 * ks, 20 + ks))
    a("buffer_load_dwordx4 v[24:27], v3, s[4:7], 0 offen")
    a("buffer_load_dwordx4 v[28:31], v2, s[8:11], 0 offen")
    a("s_waitcnt vmcnt(1)")
    stamp(a, 1)
    for i in range(4):
        unpack(a, 48, 49, 8 + i)
        unpack(a, 50, 51, 12 + i)
        unpack(a, 52, 53, 16 + i)
        unpack(a, 54, 55, 20 + i)
        unpack(a, 56, 57, 24 + i)
        a("v_pk_add_f32 v[48:49], v[48:49], v[50:51]")
        a("v_pk_add_f32 v[52:53], v[52:53], v[54:55]")
        a("v_pk_add_f32 v[48:49], v[48:49], v[52:53] neg_lo:[0,1] neg_hi:[0,1]")
        a("v_pk_add_f32 v[48:49], v[48:49], v[56:57]")
        a("v_cvt_pk_bf16_f32 v%d, v48, v49" % (32 + i))
        unpack(a, 40 + 2 * i, 41 + 2 * i, 32 + i)
    a("buffer_store_dwordx4 v[32:35], v3, s[24:27], 0 offen" + STFLAG)
    a("v_pk_add_f32 v[48:49], v[40:41], v[42:43]")
    a("v_pk_add_f32 v[50:51], v[44:45], v[46:47]")
    a("v_pk_add_f32 v[48:49], v[48:49], v[50:51]")
    a("v_add_f32 v48, v48, v49")
    allreduce64(a, "add_f32", 48, 49)
    a("v_mul_f32 v58, 0x3b000000, v48")
    for i in range(4):
        a("v_pk_add_f32 v[%d:%d], v[%d:%d], v[58:59] op_sel_hi:[1,0] neg_lo:[0,1] neg_hi:[0,1]" % (
            50 + 2 * i, 51 + 2 * i, 40 + 2 * i, 41 + 2 * i))
    a("v_pk_mul_f32 v[48:49], v[50:51], v[50:51]")
    for i in range(1, 4):
        a("v_pk_fma_f32 v[48:49], v[%d:%d], v[%d:%d], v[48:49]" % (50 + 2 * i, 51 + 2 * i, 50 + 2 * i, 51 + 2 * i))
    a("v_add_f32 v48, v48, v49")
    allreduce64(a, "add_f32", 48, 49)
    a("v_mul_f32 v48, 0x3b000000, v48")
    bf16r(a, 60, 58)
    bf16r(a, 48, 48)
    a("v_add_f32 v48, 0x3727c5ac, v48")
    bf16r(a, 48, 48)
    a("v_sqrt_f32 v48, v48")
    a("s_nop 0")
    bf16r(a, 48, 48)
    a("v_rcp_f32 v61, v48")
    a("s_nop 0")
    a("v_mul_f32 v62, v60, v61")
    a("v_sub_f32 v62, 0, v62")
    a("v_mov_b32 v58, v61")
    a("s_waitcnt vmcnt(1)")
    for i in range(4):
        a("v_pk_fma_f32 v[48:49], v[%d:%d], v[58:59], v[62:63] op_sel_hi:[1,0,0]" % (40 + 2 * i, 41 + 2 * i))
        a("v_cvt_pk_bf16_f32 v%d, v48, v49" % (36 + i))
        unpack(a, 50 + 2 * i, 51 + 2 * i, 36 + i)
        unpack(a, 8 + 2 * i, 9 + 2 * i, 28 + i)
    a("v_pk_mul_f32 v[48:49], v[50:51], v[8:9]")
    for i in range(1, 4):
        a("v_pk_fma_f32 v[48:49], v[%d:%d], v[%d:%d], v[48:49]" % (50 + 2 * i, 51 + 2 * i, 8 + 2 * i, 9 + 2 * i))
    a("v_add_f32 v48, v48, v49")
    for i in range(4):
        a("v_pk_add_f32 v[%d:%d], v[%d:%d], v[%d:%d]" % (16 + 2 * i, 17 + 2 * i, 40 + 2 * i, 41 + 2 * i, 50 + 2 * i, 51 + 2 * i))
        a("v_cvt_pk_bf16_f32 v%d, v%d, v%d" % (24 + i, 16 + 2 * i, 17 + 2 * i))
    a("buffer_store_dwordx4 v[24:27], v3, s[12:15], 0 offen" + STFLAG)
    allreduce64(a, "add_f32", 48, 49)
    a("v_cvt_pk_bf16_f32 v48, v48, v48")
    a("v_and_b32 v48, 0xffff0000, v48")
    a("v_ashrrev_i32 v49, 31, v48")
    a("v_and_b32 v49, 0x7fff0000, v49")
    a("v_or_b32 v49, 0x80000000, v49")
    a("v_xor_b32 v48, v48, v49")
    a("v_sub_u32 v49, 0xffff, v1")
    a("v_or_b32 v48, v48, v49")
    a("v_lshlrev_b32 v4, 3, v1")
    a("v_add_u32 v4, %d, v4" % (2 << 20))
    a("v_lshlrev_b32 v5, 2, v1")
    a("v_add_u32 v5, %d, v5" % ((2 << 20) + 65536))
    a("v_cmp_eq_u32 vcc, 0, v0")
    a("s_and_saveexec_b64 s[30:31], vcc")
    a("buffer_store_dwordx2 v[60:61], v4, s[24:27], 0 offen")
    a("buffer_store_dword v48, v5, s[24:27], 0 offen")
    stamp(a, 4)
    if STAMPS:
        a("s_waitcnt vmcnt(0)")
    stamp(a, 5)
    a.label("k3_exit")
    a("s_endpgm")
    return name, 64


def k4(a):
    name = "k4_kernel"
    kernel_head(a, name)
    a("s_cmp_ge_u32 s2, 256")
    a("s_cbranch_scc1 k4_exit")
    a("s_and_b32 s46, s2, 7")
    a("s_lshr_b32 s47, s2, 3")
    a("s_lshr_b32 s48, s47, 3")
    a("s_lshl_b32 s48, s48, 3")
    a("s_add_u32 s48, s48, s46")
    a("s_cmp_ge_u32 s48, 28")
    a("s_cbranch_scc1 k4_exit")
    a("s_and_b32 s49, s47, 7")
    a("s_lshl_b32 s48, s48, 3")
    a("s_add_u32 s48, s48, s49")
    a("s_load_dwordx4 s[32:35], s[0:1], %d" % KA_WG)
    a("s_load_dwordx2 s[36:37], s[0:1], %d" % KA_WD)
    a("s_load_dwordx2 s[44:45], s[0:1], %d" % KA_WS)
    a("v_and_b32 v1, 63, v0")
    a("v_lshrrev_b32 v2, 6, v0")
    a("s_movk_i32 s50, 7168")
    a("v_mul_lo_u32 v3, v0, s50")
    a("s_lshl_b32 s51, s48, 4")
    a("v_add_u32 v3, s51, v3")
    a("v_lshlrev_b32 v4, 2, v0")
    a("s_lshl_b32 s52, s48, 13")
    a("s_add_u32 s53, s52, 4096")
    a("v_lshlrev_b32 v5, 4, v1")
    a("s_movk_i32 s54, 4096")
    a("s_waitcnt lgkmcnt(0)")
    if STAMPS:
        a("v_readfirstlane_b32 s16, v2")
        a("s_nop 3")
    stamp_init(a, 3, 44, 45)
    stamp(a, 0)
    a("s_add_u32 s46, s44, %d" % H_OFF)
    a("s_addc_u32 s47, s45, 0")
    srd(a, 24, 46, 47, (2 << 20) + 65536 + 8192)
    a("s_add_u32 s46, s44, %d" % KEYS_OFF)
    a("s_addc_u32 s47, s45, 0")
    srd(a, 16, 46, 47, 8192)
    srd(a, 4, 32, 33, 512 * 3584)
    srd(a, 8, 34, 35, 512 * 3584)
    srd(a, 12, 36, 37, 1792 * 1024)
    for i in range(4):
        a("buffer_load_dwordx4 v[%d:%d], v5, s[16:19], 0 offen offset:%d" % (32 + 4 * i, 35 + 4 * i, 1024 * i))
    for i in range(4):
        a("buffer_load_dwordx4 v[%d:%d], v5, s[16:19], s54 offen offset:%d" % (48 + 4 * i, 51 + 4 * i, 1024 * i))
    a("buffer_load_dwordx4 v[8:11], v3, s[4:7], 0 offen")
    a("buffer_load_dwordx4 v[12:15], v3, s[4:7], 0 offen offset:3584")
    a("buffer_load_dwordx4 v[16:19], v3, s[8:11], 0 offen")
    a("buffer_load_dwordx4 v[20:23], v3, s[8:11], 0 offen offset:3584")
    for j in range(4):
        a("buffer_load_dword v%d, v4, s[12:15], s52 offen offset:%d" % (24 + j, 1024 * j))
    for j in range(4):
        a("buffer_load_dword v%d, v4, s[12:15], s53 offen offset:%d" % (28 + j, 1024 * j))
    a("s_waitcnt vmcnt(12)")
    stamp(a, 1)
    a("v_max3_u32 v64, v32, v33, v34")
    for i in range(35, 63, 2):
        a("v_max3_u32 v64, v64, v%d, v%d" % (i, i + 1))
    a("v_max_u32 v64, v64, v63")
    allreduce64(a, "max_u32", 64, 65)
    a("v_and_b32 v66, 0xffff, v64")
    a("v_sub_u32 v66, 0xffff, v66")
    a("v_lshlrev_b32 v67, 10, v66")
    a("v_add_u32 v67, v67, v4")
    a("v_lshlrev_b32 v68, 3, v66")
    a("v_add_u32 v68, %d, v68" % (2 << 20))
    a("buffer_load_dword v69, v67, s[24:27], 0 offen")
    a("buffer_load_dwordx2 v[70:71], v68, s[24:27], 0 offen")
    a("s_mov_b32 s55, 0x05040100")
    a("s_mov_b32 s56, 0x07060302")
    a("s_waitcnt vmcnt(10)")
    for m in range(2):
        for i in range(4):
            a("v_perm_b32 v%d, v%d, v%d, s55" % (32 + 8 * m + 2 * i, 12 + 8 * m + i, 8 + 8 * m + i))
            a("v_perm_b32 v%d, v%d, v%d, s56" % (33 + 8 * m + 2 * i, 12 + 8 * m + i, 8 + 8 * m + i))
    stamp(a, 2)
    a("s_waitcnt vmcnt(0)")
    stamp(a, 3)
    unpack(a, 72, 73, 69)
    a("v_mul_f32 v74, v70, v71")
    a("v_sub_f32 v74, 0, v74")
    a("v_fma_f32 v76, v72, v71, v74")
    a("v_fma_f32 v77, v73, v71, v74")
    a("v_cvt_pk_bf16_f32 v75, v76, v77")
    for i in range(16):
        a("v_dot2_f32_bf16 v%d, v%d, v75, 0" % (48 + i, 32 + i))
    a("s_nop 2")
    for i in range(8):
        a("v_permlane32_swap_b32 v%d, v%d" % (48 + i, 56 + i))
    a("s_nop 1")
    for i in range(8):
        a("v_add_f32 v%d, v%d, v%d" % (48 + i, 48 + i, 56 + i))
    a("s_nop 1")
    for i in range(4):
        a("v_permlane16_swap_b32 v%d, v%d" % (48 + i, 52 + i))
    a("s_nop 1")
    for i in range(4):
        a("v_add_f32 v%d, v%d, v%d" % (48 + i, 48 + i, 52 + i))
    for r in (8, 4, 2, 1):
        a("s_nop 0")
        for i in range(4):
            a("v_add_f32_dpp v%d, v%d, v%d row_ror:%d row_mask:0xf bank_mask:0xf" % (48 + i, 48 + i, 48 + i, r))
    a("v_lshlrev_b32 v6, 6, v2")
    a("v_lshrrev_b32 v7, 4, v1")
    a("v_lshlrev_b32 v7, 4, v7")
    a("v_add_u32 v6, v6, v7")
    a("ds_write_b128 v6, v[48:51]")
    a("v_and_b32 v7, 7, v1")
    a("v_lshlrev_b32 v7, 2, v7")
    a("s_waitcnt lgkmcnt(0)")
    a("s_barrier")
    for w in range(4):
        a("ds_read_b32 v%d, v7 offset:%d" % (48 + w, 64 * w))
        a("ds_read_b32 v%d, v7 offset:%d" % (52 + w, 64 * w + 32))
    a("s_waitcnt lgkmcnt(0)")
    a("v_add_f32 v48, v48, v49")
    a("v_add_f32 v50, v50, v51")
    a("v_add_f32 v52, v52, v53")
    a("v_add_f32 v54, v54, v55")
    a("v_add_f32 v48, v48, v50")
    a("v_add_f32 v52, v52, v54")
    bf16r(a, 48, 48)
    bf16r(a, 52, 52)
    a("v_mul_f32 v49, 0xbfb8aa3b, v48")
    a("v_exp_f32 v49, v49")
    a("s_nop 0")
    a("v_add_f32 v49, 1.0, v49")
    a("v_rcp_f32 v49, v49")
    a("s_nop 0")
    a("v_mul_f32 v48, v48, v49")
    bf16r(a, 48, 48)
    a("v_mul_f32 v48, v48, v52")
    bf16r(a, 48, 48)
    a("s_nop 0")
    for j in range(8):
        a("v_readlane_b32 s%d, v48, %d" % (56 + j, j))
    a("v_mov_b32 v50, 0")
    a("v_mov_b32 v51, 0")
    for j in range(8):
        unpack(a, 52, 53, 24 + j)
        a("v_fmac_f32 v50, s%d, v52" % (56 + j))
        a("v_fmac_f32 v51, s%d, v53" % (56 + j))
    a("s_add_u32 s46, s44, %d" % YP_OFF)
    a("s_addc_u32 s47, s45, 0")
    srd(a, 16, 46, 47, 224 * 2048)
    a("v_lshlrev_b32 v6, 3, v0")
    a("s_lshl_b32 s52, s48, 11")
    a("buffer_store_dwordx2 v[50:51], v6, s[16:19], s52 offen")
    stamp(a, 4)
    if STAMPS:
        a("s_waitcnt vmcnt(0)")
    stamp(a, 5)
    a("s_cmp_lg_u32 s48, 0")
    a("s_cbranch_scc1 k4_exit")
    a("s_add_u32 s46, s44, %d" % SEL_OFF)
    a("s_addc_u32 s47, s45, 0")
    srd(a, 16, 46, 47, 4096 + 16)
    unpack(a, 76, 77, 75)
    a("buffer_store_dwordx2 v[72:73], v6, s[16:19], 0 offen")
    a("buffer_store_dwordx2 v[76:77], v6, s[16:19], 0 offen offset:2048")
    a("v_and_b32 v52, 0xffff0000, v64")
    a("v_ashrrev_i32 v53, 31, v52")
    a("v_not_b32 v53, v53")
    a("v_and_b32 v53, 0x7fff0000, v53")
    a("v_or_b32 v53, 0x80000000, v53")
    a("v_xor_b32 v52, v52, v53")
    a("v_mul_f32 v53, 0xbfb8aa3b, v52")
    a("v_exp_f32 v53, v53")
    a("s_nop 0")
    a("v_add_f32 v53, 1.0, v53")
    a("v_rcp_f32 v53, v53")
    a("s_nop 0")
    bf16r(a, 54, 53)
    a("v_mov_b32 v55, v66")
    a("v_mov_b32 v7, 4096")
    a("v_cmp_eq_u32 vcc, 0, v0")
    a("s_and_saveexec_b64 s[30:31], vcc")
    a("s_cbranch_execz k4_exit")
    a("buffer_store_dwordx2 v[54:55], v7, s[16:19], 0 offen")
    a.label("k4_exit")
    a("s_endpgm")
    return name, 80


def k5(a):
    name = "k5_kernel"
    kernel_head(a, name)
    a("s_cmp_ge_u32 s2, 64")
    a("s_cbranch_scc1 k5_exit")
    a("s_load_dwordx2 s[36:37], s[0:1], %d" % KA_OUT)
    a("s_load_dwordx2 s[44:45], s[0:1], %d" % KA_WS)
    a("v_lshlrev_b32 v1, 11, v0")
    a("s_lshl_b32 s3, s2, 5")
    a("v_add_u32 v1, s3, v1")
    a("v_lshrrev_b32 v2, 4, v0")
    a("v_lshlrev_b32 v3, 3, v2")
    a("v_add_u32 v3, s3, v3")
    a("v_mov_b32 v4, 4096")
    for i in range(4):
        a("s_mov_b32 s%d, %d" % (20 + i, 131072 * i))
    a("s_waitcnt lgkmcnt(0)")
    if STAMPS:
        a("s_mov_b32 s16, 0")
    stamp_init(a, 4, 44, 45)
    stamp(a, 0)
    a("s_add_u32 s46, s44, %d" % YP_OFF)
    a("s_addc_u32 s47, s45, 0")
    srd(a, 4, 46, 47, 224 * 2048)
    a("s_add_u32 s46, s44, %d" % SEL_OFF)
    a("s_addc_u32 s47, s45, 0")
    srd(a, 8, 46, 47, 4096 + 16)
    srd(a, 12, 36, 37, 2 << 20)
    for i in range(4):
        a("buffer_load_dwordx4 v[%d:%d], v1, s[4:7], s%d offen" % (8 + 8 * i, 11 + 8 * i, 20 + i))
        a("buffer_load_dwordx4 v[%d:%d], v1, s[4:7], s%d offen offset:16" % (12 + 8 * i, 15 + 8 * i, 20 + i))
    a("buffer_load_dwordx2 v[40:41], v3, s[8:11], 0 offen")
    a("buffer_load_dwordx2 v[42:43], v3, s[8:11], 0 offen offset:2048")
    a("buffer_load_dwordx2 v[44:45], v4, s[8:11], 0 offen")
    a("s_waitcnt vmcnt(3)")
    for i in range(4):
        a("v_pk_add_f32 v[%d:%d], v[%d:%d], v[%d:%d]" % (8 + 2 * i, 9 + 2 * i, 8 + 2 * i, 9 + 2 * i, 16 + 2 * i, 17 + 2 * i))
        a("v_pk_add_f32 v[%d:%d], v[%d:%d], v[%d:%d]" % (24 + 2 * i, 25 + 2 * i, 24 + 2 * i, 25 + 2 * i, 32 + 2 * i, 33 + 2 * i))
    for i in range(4):
        a("v_pk_add_f32 v[%d:%d], v[%d:%d], v[%d:%d]" % (8 + 2 * i, 9 + 2 * i, 8 + 2 * i, 9 + 2 * i, 24 + 2 * i, 25 + 2 * i))
    a("s_nop 1")
    for i in range(4):
        a("v_permlane32_swap_b32 v%d, v%d" % (8 + i, 12 + i))
    a("s_nop 1")
    for i in range(4):
        a("v_add_f32 v%d, v%d, v%d" % (8 + i, 8 + i, 12 + i))
    a("s_nop 1")
    for i in range(2):
        a("v_permlane16_swap_b32 v%d, v%d" % (8 + i, 10 + i))
    a("s_nop 1")
    for i in range(2):
        a("v_add_f32 v%d, v%d, v%d" % (8 + i, 8 + i, 10 + i))
    for r in (8, 4, 2, 1):
        a("s_nop 1")
        for i in range(2):
            a("v_add_f32_dpp v%d, v%d, v%d row_ror:%d row_mask:0xf bank_mask:0xf" % (8 + i, 8 + i, 8 + i, r))
    a("s_waitcnt vmcnt(0)")
    for i in range(2):
        bf16r(a, 8 + i, 8 + i)
        a("v_mul_f32 v%d, v%d, v44" % (8 + i, 8 + i))
        bf16r(a, 8 + i, 8 + i)
        a("v_add_f32 v%d, v%d, v%d" % (8 + i, 8 + i, 42 + i))
        bf16r(a, 8 + i, 8 + i)
        a("v_add_f32 v%d, v%d, v%d" % (8 + i, 8 + i, 40 + i))
    a("v_cvt_pk_bf16_f32 v8, v8, v9")
    a("v_lshlrev_b32 v5, 10, v45")
    a("v_lshrrev_b32 v3, 1, v3")
    a("v_add_u32 v5, v5, v3")
    a("v_and_b32 v6, 15, v0")
    a("v_cmp_eq_u32 vcc, 0, v6")
    a("s_and_saveexec_b64 s[30:31], vcc")
    a("buffer_store_dword v8, v5, s[12:15], 0 offen")
    stamp(a, 4)
    if STAMPS:
        a("s_waitcnt vmcnt(0)")
    stamp(a, 5)
    a.label("k5_exit")
    a("s_endpgm")
    return name, 48


def main(out):
    head = open("cdna_kernels/%s.s.ref" % NAME).read().split("\n")
    a = A()
    for line in head:
        if line.startswith(";") and "@launch" not in line:
            a.raw(line)
    a.raw("; @launch kernel=k1_kernel grid=(256,1,1) block=(512,1,1) lds=%d" % (148736 if "k1a" in EXP else 132608))
    a.raw("; @launch kernel=k2_kernel grid=(256,1,1) block=(512,1,1) lds=163840")
    a.raw("; @launch kernel=k3_kernel grid=(512,1,1) block=(256,1,1) lds=0")
    a.raw("; @launch kernel=k4_kernel grid=(256,1,1) block=(256,1,1) lds=256")
    a.raw("; @launch kernel=k5_kernel grid=(64,1,1) block=(64,1,1) lds=0")
    a.raw('.amdgcn_target "amdgcn-amd-amdhsa--gfx950"')
    descs = []
    for k in (k1 if "k1a" in EXP else k1b, k2, k3, k4, k5):
        descs.append(k(a))
    for name, vg in descs:
        kernel_desc(a, name, vg)
    open(out, "w").write(a.text())


if __name__ == "__main__":
    args = [x for x in sys.argv[1:] if not x.startswith("--")]
    if "--stamps" in sys.argv:
        STAMPS = True
    for x in sys.argv:
        if x.startswith("--exp="):
            EXP = set(x[6:].split(","))
        if x.startswith("--st="):
            STFLAG = " " + x[5:].replace(",", " ")
    main(args[0] if args else "cdna_kernels/%s.s" % NAME)
```

```python
import sys
import gen
from gen import (A, NAME, kernel_head, kernel_desc, srd, add64, bf16r, unpack, allreduce64, wave_split,
                 stamp, stampc, stamp_init, SLOT, NSLOT, ACC, FR, AP, AQ,
                 KA_X, KA_CR, KA_WRE, KA_WR, KA_WG, KA_WU, KA_WD, KA_OUT, KA_WS, PART_OFF, YP_OFF)

FLG_OFF = (14 << 20) + 262144
FLAG1 = FLG_OFF
KEYS = FLG_OFF + 4096
NREP = 16
SELROW = 16 << 20
WS_SRD_SIZE = 32 << 20
SC = " sc1"
SPIN_MAX = 1 << 22


def poll(a, lbl, loads, cond):
    a("s_mov_b32 s31, 0")
    a.label(lbl)
    for l in loads:
        a(l)
    a("s_waitcnt vmcnt(0)")
    cond()
    a("s_add_u32 s31, s31, 1")
    a("s_nop 1")
    a("s_cmp_eq_u64 vcc, 0")
    a("s_cbranch_scc1 %s_done" % lbl)
    a("s_cmp_ge_u32 s31, %d" % SPIN_MAX)
    a("s_cbranch_scc1 %s_done" % lbl)
    a("s_sleep %d" % SLEEP)
    a("s_branch %s" % lbl)
    a.label(lbl + "_done")


def k2x(a):
    gen.STV = 254
    EXP = gen.EXP
    name = "k2_kernel"
    kernel_head(a, name)
    a("s_cmp_ge_u32 s2, 256")
    a("s_cbranch_scc1 k2_exit")
    a("s_load_dwordx16 s[32:47], s[0:1], 0")
    a("s_load_dwordx8 s[48:55], s[0:1], 64")
    a("s_load_dwordx2 s[56:57], s[0:1], %d" % KA_WS)
    wave_split(a)
    a("s_and_b32 s58, s2, 7")
    a("s_lshr_b32 s59, s2, 3")
    a("s_and_b32 s60, s58, 1")
    a("s_lshr_b32 s61, s58, 1")
    a("s_and_b32 s62, s59, 3")
    a("s_lshr_b32 s63, s59, 2")
    a("s_lshl_b32 s67, s60, 3")
    a("s_add_u32 s63, s63, s67")
    a("s_lshl_b32 s64, s63, 4")
    a("s_lshl_b32 s67, s62, 2")
    a("s_add_u32 s64, s64, s67")
    a("s_add_u32 s64, s64, s61")
    a("s_lshr_b32 s65, s59, 3")
    a("s_lshl_b32 s65, s65, 3")
    a("s_add_u32 s65, s65, s58")
    a("s_and_b32 s30, s61, 1")
    a("s_lshr_b32 s29, s61, 1")
    a("s_waitcnt lgkmcnt(0)")
    stamp_init(a, 1, 56, 57)
    stamp(a, 0)
    srd(a, 68, 56, 57, WS_SRD_SIZE)
    a("s_cmp_ge_u32 s16, 4")
    a("s_cbranch_scc1 k2_loader")

    a("s_lshr_b32 s17, s16, 1")
    a("s_and_b32 s18, s16, 1")
    a("v_and_b32 v1, 15, v0")
    a("v_lshrrev_b32 v2, 4, v0")
    a("v_lshrrev_b32 v3, 1, v1")
    a("v_lshlrev_b32 v4, 7, v1")
    a("s_lshl_b32 s19, s17, 13")
    a("s_lshl_b32 s20, s18, 13")
    a("s_add_u32 s20, s20, 16384")
    for j in range(2):
        a("v_add_u32 v5, %d, v2" % (4 * j))
        a("v_xor_b32 v5, v5, v3")
        a("v_lshlrev_b32 v5, 4, v5")
        a("v_add_u32 v5, v5, v4")
        a("v_add_u32 v%d, s19, v5" % (AP + j))
        a("v_add_u32 v%d, s20, v5" % (AQ + j))
    for r in range(64):
        a("v_mov_b32 v%d, 0" % (ACC + r))
    a("s_mov_b32 s23, %d" % SLOT)
    a("s_mov_b32 s24, %d" % SLOT)
    a("s_mov_b32 s25, 1")
    a("s_mov_b32 s22, 16")
    a("s_mov_b32 s27, %d" % (-(NSLOT - 1) * SLOT))
    a("s_mov_b32 s28, %d" % SLOT)

    def rdlist(j):
        f = FR + 32 * j
        l = []
        for t in range(4):
            l.append("ds_read_b128 v[%d:%d], v%d offset:%d" % (f + 4 * t, f + 4 * t + 3, AP + j, 2048 * t))
            l.append("ds_read_b128 v[%d:%d], v%d offset:%d" % (f + 16 + 4 * t, f + 16 + 4 * t + 3, AQ + j, 2048 * t))
        return l

    book = ["s_mov_b32 s23, s24",
            "s_add_u32 s25, s25, 1",
            "s_cmp_eq_u32 s25, %d" % NSLOT,
            "s_cselect_b32 s26, %d, 0" % NSLOT,
            "s_sub_u32 s25, s25, s26",
            "s_cmp_eq_u32 s25, %d" % (NSLOT - 1),
            "s_cselect_b32 s24, s27, s28",
            "s_sub_u32 s22, s22, 1",
            "s_cmp_lt_u32 s22, 2"]
    a("s_and_b32 s66, s59, 7")
    a("s_movk_i32 s19, 3584")
    a("v_mul_lo_u32 v20, v0, s19")
    a("s_mul_i32 s19, s66, %d" % (64 * 3584))
    a("s_lshl_b32 s20, s65, 7")
    a("s_add_u32 s21, s19, s20")
    a("s_cmp_eq_u32 s16, 0")
    a("s_cselect_b32 s12, s46, s48")
    a("s_cselect_b32 s13, s47, s49")
    a("s_mov_b32 s14, %d" % (512 * 3584))
    a("s_cmp_lt_u32 s16, 2")
    a("s_cbranch_scc1 k2_tsetup")
    a("s_mov_b32 s12, s50")
    a("s_mov_b32 s13, s51")
    a("s_mov_b32 s14, %d" % (1792 * 1024))
    a("v_lshlrev_b32 v20, 7, v0")
    a("s_lshl_b32 s19, s65, 3")
    a("s_add_u32 s19, s19, s66")
    a("s_lshl_b32 s21, s19, 13")
    a.label("k2_tsetup")
    a("s_and_b32 s13, s13, 0xffff")
    a("s_mov_b32 s15, 0x00020000")
    a("s_cmp_lt_u32 s65, 28")
    a("s_cselect_b32 s29, 14, 99")
    a("s_cmp_lt_u32 s16, %d" % (3 if "ffntouch" in EXP else 0))
    a("s_cselect_b32 s29, s29, 99")
    stamp(a, 1)
    a("s_barrier")
    stamp(a, 2)
    stampc(a, 6)
    for r in rdlist(0):
        a(r)
    a("v_add_u32 v%d, s23, v%d" % (AP, AP))
    a("v_add_u32 v%d, s23, v%d" % (AQ, AQ))
    a.label("k2_cloop")
    for j in range(2):
        jn = 1 - j
        sd = 23 if j == 0 else 24
        f = FR + 32 * j
        rd = rdlist(jn)
        a("s_waitcnt lgkmcnt(0)")
        k = 0
        for ti in range(4):
            for tj in range(4):
                c = ACC + 4 * (4 * ti + tj)
                a("v_mfma_f32_16x16x32_bf16 v[%d:%d], v[%d:%d], v[%d:%d], v[%d:%d]" % (
                    c, c + 3, f + 4 * ti, f + 4 * ti + 3, f + 16 + 4 * tj, f + 16 + 4 * tj + 3, c, c + 3))
                if k < 8:
                    a(rd[k])
                if k == 8:
                    a("v_add_u32 v%d, s%d, v%d" % (AP + jn, sd, AP + jn))
                if k == 9:
                    a("v_add_u32 v%d, s%d, v%d" % (AQ + jn, sd, AQ + jn))
                if j == 1 and 10 <= k < 15:
                    for b in book[2 * (k - 10):2 * (k - 10) + 2]:
                        a(b)
                k += 1
    a("s_cbranch_scc1 k2_nobar")
    a("s_barrier")
    a.label("k2_nobar")
    a("s_cmp_lg_u32 s22, s29")
    a("s_cbranch_scc1 k2_notouch")
    a("buffer_load_dword v21, v20, s[12:15], s21 offen")
    a.label("k2_notouch")
    a("s_cmp_lg_u32 s22, 0")
    a("s_cbranch_scc1 k2_cloop")
    stamp(a, 3)
    stampc(a, 7)
    a("s_mul_i32 s19, s16, 9216")
    a("s_add_u32 s19, s19, 32768")
    a("v_mul_u32_u24 v4, 144, v1")
    a("v_lshlrev_b32 v5, 3, v2")
    a("v_add3_u32 v4, v4, v5, s19")
    a("v_lshrrev_b32 v6, 3, v0")
    a("v_and_b32 v7, 7, v0")
    a("v_lshlrev_b32 v7, 4, v7")
    a("v_mul_u32_u24 v5, 144, v6")
    a("v_add3_u32 v5, v5, v7, s19")
    a("s_lshl_b32 s19, s61, 21")
    a("s_lshl_b32 s20, s63, 17")
    a("s_add_u32 s19, s19, s20")
    a("s_lshl_b32 s20, s62, 8")
    a("s_add_u32 s19, s19, s20")
    a("s_lshl_b32 s20, s18, 16")
    a("s_add_u32 s19, s19, s20")
    a("s_lshl_b32 s20, s17, 7")
    a("s_add_u32 s19, s19, s20")
    a("s_add_u32 s19, s19, %d" % PART_OFF)
    a("v_lshlrev_b32 v6, 10, v6")
    a("v_add_u32 v6, v6, v7")
    a("s_waitcnt lgkmcnt(0)")
    a("s_nop 4")
    n = 0
    for tj in range(4):
        for ti in range(4):
            c = ACC + 4 * (4 * ti + tj)
            d = FR + 2 * (n % 8)
            n += 1
            a("v_cvt_pk_bf16_f32 v%d, v%d, v%d" % (d, c, c + 1))
            a("v_cvt_pk_bf16_f32 v%d, v%d, v%d" % (d + 1, c + 2, c + 3))
            a("ds_write_b64 v4, v[%d:%d] offset:%d" % (d, d + 1, tj * 2304 + ti * 32))
    a("s_waitcnt lgkmcnt(0)")
    for i in range(8):
        a("ds_read_b128 v[%d:%d], v5 offset:%d" % (FR + 16 + 4 * i, FR + 19 + 4 * i, i * 1152))
    for i in range(8):
        a("s_waitcnt lgkmcnt(%d)" % (7 - i))
        a("buffer_store_dwordx4 v[%d:%d], v6, s[68:71], s19 offen%s" % (FR + 16 + 4 * i, FR + 19 + 4 * i, SC))
        if i < 7:
            a("s_add_u32 s19, s19, 8192")
    a("s_and_b32 s19, s64, 15")
    a("s_lshl_b32 s19, s19, 2")
    a("s_add_u32 s19, s19, s16")
    a("s_lshl_b32 s19, s19, 2")
    a("s_lshl_b32 s20, s63, 8")
    a("s_add_u32 s19, s19, s20")
    a("s_add_u32 s19, s19, %d" % FLAG1)
    a("v_mov_b32 v4, 0")
    a("v_mov_b32 v5, 1")
    stamp(a, 4)
    a("s_barrier")
    a("s_waitcnt vmcnt(0)")
    a("s_mov_b64 exec, 1")
    a("buffer_store_dword v5, v4, s[68:71], s19 offen%s" % SC)
    a("s_mov_b64 exec, -1")
    a("s_branch k2_rows")

    a.label("k2_loader")
    a("s_lshl_b32 s19, s29, 21")
    a("s_lshl_b32 s20, s62, 19")
    a("s_add_u32 s19, s19, s20")
    a("s_lshl_b32 s21, s30, 11")
    a("s_add_u32 s19, s19, s21")
    a("s_add_u32 s22, s56, s19")
    a("s_addc_u32 s23, s57, 0")
    srd(a, 4, 22, 23, 127 * 4096 + 2048)
    a("s_cmp_eq_u32 s29, 0")
    a("s_cselect_b32 s22, s34, s36")
    a("s_cselect_b32 s23, s35, s37")
    a("s_lshl_b32 s19, s63, 19")
    a("s_add_u32 s19, s19, s21")
    add64(a, 22, 23, "s19")
    srd(a, 8, 22, 23, 127 * 4096 + 2048)
    a("s_sub_u32 s17, s16, 4")
    a("v_lshrrev_b32 v1, 3, v0")
    a("v_lshrrev_b32 v2, 4, v0")
    a("v_and_b32 v3, 7, v0")
    a("s_lshl_b32 s18, s17, 5")
    a("v_add_u32 v1, s18, v1")
    for j in range(4):
        a("v_add_u32 v4, %d, v1" % (8 * j))
        a("v_lshlrev_b32 v4, 12, v4")
        a("v_add_u32 v5, %d, v2" % (4 * j))
        a("v_and_b32 v5, 7, v5")
        a("v_xor_b32 v5, v5, v3")
        a("v_lshlrev_b32 v5, 4, v5")
        a("v_add_u32 v4, v4, v5")
        a("v_subrev_u32 v%d, %d, v4" % (8 + j, 1024 * j))
    a("s_lshl_b32 s21, s17, 12")
    a("s_mov_b32 s20, 0")
    a("s_mov_b32 s25, 0")
    a("s_mov_b32 s22, 0")
    a("s_and_b32 s66, s59, 7")
    a("s_movk_i32 s19, 3584")
    a("v_mul_lo_u32 v20, v0, s19")
    a("s_mul_i32 s19, s66, %d" % (64 * 3584))
    a("s_lshl_b32 s24, s65, 7")
    a("s_add_u32 s24, s19, s24")
    a("s_cmp_eq_u32 s17, 0")
    a("s_cselect_b32 s12, s46, s48")
    a("s_cselect_b32 s13, s47, s49")
    a("s_mov_b32 s14, %d" % (512 * 3584))
    a("s_cmp_lt_u32 s17, 2")
    a("s_cbranch_scc1 k2_ltsetup")
    a("s_mov_b32 s12, s50")
    a("s_mov_b32 s13, s51")
    a("s_mov_b32 s14, %d" % (1792 * 1024))
    a("v_lshlrev_b32 v20, 7, v0")
    a("s_lshl_b32 s19, s65, 3")
    a("s_add_u32 s19, s19, s66")
    a("s_lshl_b32 s24, s19, 13")
    a.label("k2_ltsetup")
    a("s_and_b32 s13, s13, 0xffff")
    a("s_mov_b32 s15, 0x00020000")
    a("s_cmp_lt_u32 s65, 28")
    a("s_cselect_b32 s27, %d, 99" % LTOUCH)
    a("s_cmp_lt_u32 s17, 3")
    a("s_cselect_b32 s27, s27, 99")
    a.label("k2_lloop")
    a("s_mov_b32 m0, s21")
    a("s_add_u32 s19, s21, 16384")
    for j in range(4):
        a("buffer_load_dwordx4 v%d, s[4:7], s20 offen offset:%d lds" % (8 + j, 1024 * j))
    a("s_mov_b32 m0, s19")
    a("s_add_u32 s25, s25, 1")
    for j in range(4):
        a("buffer_load_dwordx4 v%d, s[8:11], s20 offen offset:%d lds" % (8 + j, 1024 * j))
    a("s_add_u32 s20, s20, 128")
    a("s_add_u32 s21, s21, %d" % SLOT)
    a("s_cmp_eq_u32 s25, %d" % NSLOT)
    a("s_cselect_b32 s19, %d, 0" % (SLOT * NSLOT))
    a("s_cselect_b32 s26, %d, 0" % NSLOT)
    a("s_sub_u32 s21, s21, s19")
    a("s_sub_u32 s25, s25, s26")
    a("s_add_u32 s22, s22, 1")
    a("s_cmp_lg_u32 s22, s27")
    a("s_cbranch_scc1 k2_lnotouch")
    a("buffer_load_dword v21, v20, s[12:15], s24 offen")
    a.label("k2_lnotouch")
    a("s_cmp_lt_u32 s22, 4")
    a("s_cbranch_scc1 k2_lloop")
    a("s_waitcnt vmcnt(16)")
    a("s_barrier")
    a("s_cmp_lt_u32 s22, 16")
    a("s_cbranch_scc1 k2_lloop")
    a("s_waitcnt vmcnt(8)")
    a("s_barrier")
    a("s_waitcnt vmcnt(0)")
    a("s_barrier")
    stamp(a, 3)
    a("s_barrier")
    a("s_lshl_b32 s18, s17, 6")
    a("v_add_u32 v199, s18, v0")
    a("s_cmp_ge_u32 s65, 28")
    a("s_cbranch_scc1 k2_rows")
    a("s_and_b32 s66, s59, 7")
    a("s_lshl_b32 s19, s65, 3")
    a("s_add_u32 s66, s66, s19")
    srd(a, 4, 46, 47, 512 * 3584)
    srd(a, 8, 48, 49, 512 * 3584)
    srd(a, 12, 50, 51, 1792 * 1024)
    a("s_movk_i32 s19, 7168")
    a("v_mul_lo_u32 v3, v199, s19")
    a("s_lshl_b32 s19, s66, 4")
    a("v_add_u32 v3, s19, v3")
    a("v_lshlrev_b32 v4, 2, v199")
    a("s_lshl_b32 s20, s66, 13")
    a("s_add_u32 s21, s20, 4096")
    a("buffer_load_dwordx4 v[200:203], v3, s[4:7], 0 offen")
    a("buffer_load_dwordx4 v[204:207], v3, s[4:7], 0 offen offset:3584")
    a("buffer_load_dwordx4 v[208:211], v3, s[8:11], 0 offen")
    a("buffer_load_dwordx4 v[212:215], v3, s[8:11], 0 offen offset:3584")
    for j in range(4):
        a("buffer_load_dword v%d, v4, s[12:15], s20 offen offset:%d" % (216 + j, 1024 * j))
    for j in range(4):
        a("buffer_load_dword v%d, v4, s[12:15], s21 offen offset:%d" % (220 + j, 1024 * j))

    a.label("k2_rows")
    srd(a, 72, 32, 33, 2 << 20)
    srd(a, 76, 44, 45, 1024)
    srd(a, 80, 52, 53, 2 << 20)
    a("s_lshl_b32 s18, s64, 3")
    a("s_add_u32 s18, s18, s16")
    a("v_lshlrev_b32 v2, 4, v0")
    a("s_lshl_b32 s19, s18, 10")
    a("buffer_load_dwordx4 v[24:27], v2, s[72:75], s19 offen")
    a("buffer_load_dwordx4 v[28:31], v2, s[76:79], 0 offen")
    a("v_lshlrev_b32 v3, 2, v0")
    a("s_lshl_b32 s20, s63, 8")
    a("s_add_u32 s20, s20, %d" % FLAG1)
    a("s_cmp_lg_u32 s16, 0")
    a("s_cbranch_scc1 k2_poll1_done")
    poll(a, "k2_poll1", ["buffer_load_dword v4, v3, s[68:71], s20 offen%s" % SC],
         lambda: a("v_cmp_eq_u32 vcc, 0, v4"))
    a("s_barrier")
    stamp(a, 5)
    for ks in range(4):
        a("s_add_u32 s20, s19, %d" % (PART_OFF + ks * (2 << 20)))
        a("buffer_load_dwordx4 v[%d:%d], v2, s[68:71], s20 offen%s" % (8 + 4 * ks, 11 + 4 * ks, SC))
    a("s_waitcnt vmcnt(0)")
    stamp(a, 1)
    for i in range(4):
        unpack(a, 48, 49, 8 + i)
        unpack(a, 50, 51, 12 + i)
        unpack(a, 52, 53, 16 + i)
        unpack(a, 54, 55, 20 + i)
        unpack(a, 56, 57, 24 + i)
        a("v_pk_add_f32 v[48:49], v[48:49], v[50:51]")
        a("v_pk_add_f32 v[52:53], v[52:53], v[54:55]")
        a("v_pk_add_f32 v[48:49], v[48:49], v[52:53] neg_lo:[0,1] neg_hi:[0,1]")
        a("v_pk_add_f32 v[48:49], v[48:49], v[56:57]")
        a("v_cvt_pk_bf16_f32 v%d, v48, v49" % (32 + i))
        unpack(a, 40 + 2 * i, 41 + 2 * i, 32 + i)
    a("v_pk_add_f32 v[48:49], v[40:41], v[42:43]")
    a("v_pk_add_f32 v[50:51], v[44:45], v[46:47]")
    a("v_pk_add_f32 v[48:49], v[48:49], v[50:51]")
    a("v_add_f32 v48, v48, v49")
    allreduce64(a, "add_f32", 48, 49)
    a("v_mul_f32 v58, 0x3b000000, v48")
    for i in range(4):
        a("v_pk_add_f32 v[%d:%d], v[%d:%d], v[58:59] op_sel_hi:[1,0] neg_lo:[0,1] neg_hi:[0,1]" % (
            50 + 2 * i, 51 + 2 * i, 40 + 2 * i, 41 + 2 * i))
    a("v_pk_mul_f32 v[48:49], v[50:51], v[50:51]")
    for i in range(1, 4):
        a("v_pk_fma_f32 v[48:49], v[%d:%d], v[%d:%d], v[48:49]" % (50 + 2 * i, 51 + 2 * i, 50 + 2 * i, 51 + 2 * i))
    a("v_add_f32 v48, v48, v49")
    allreduce64(a, "add_f32", 48, 49)
    a("v_mul_f32 v48, 0x3b000000, v48")
    bf16r(a, 60, 58)
    bf16r(a, 48, 48)
    a("v_add_f32 v48, 0x3727c5ac, v48")
    bf16r(a, 48, 48)
    a("v_sqrt_f32 v48, v48")
    a("s_nop 0")
    bf16r(a, 48, 48)
    a("v_rcp_f32 v61, v48")
    a("s_nop 0")
    a("v_mul_f32 v62, v60, v61")
    a("v_sub_f32 v62, 0, v62")
    a("v_mov_b32 v58, v61")
    for i in range(4):
        a("v_pk_fma_f32 v[48:49], v[%d:%d], v[58:59], v[62:63] op_sel_hi:[1,0,0]" % (40 + 2 * i, 41 + 2 * i))
        a("v_cvt_pk_bf16_f32 v%d, v48, v49" % (36 + i))
        unpack(a, 50 + 2 * i, 51 + 2 * i, 36 + i)
        unpack(a, 8 + 2 * i, 9 + 2 * i, 28 + i)
    for i in range(4):
        a("v_pk_add_f32 v[%d:%d], v[%d:%d], v[%d:%d]" % (16 + 2 * i, 17 + 2 * i, 40 + 2 * i, 41 + 2 * i, 50 + 2 * i, 51 + 2 * i))
        a("v_cvt_pk_bf16_f32 v%d, v%d, v%d" % (24 + i, 16 + 2 * i, 17 + 2 * i))
    a("v_pk_mul_f32 v[48:49], v[50:51], v[8:9]")
    for i in range(1, 4):
        a("v_pk_fma_f32 v[48:49], v[%d:%d], v[%d:%d], v[48:49]" % (50 + 2 * i, 51 + 2 * i, 8 + 2 * i, 9 + 2 * i))
    a("v_add_f32 v48, v48, v49")
    allreduce64(a, "add_f32", 48, 49)
    a("v_cvt_pk_bf16_f32 v48, v48, v48")
    a("v_and_b32 v48, 0xffff0000, v48")
    a("v_ashrrev_i32 v49, 31, v48")
    a("v_and_b32 v49, 0x7fff0000, v49")
    a("v_or_b32 v49, 0x80000000, v49")
    a("v_xor_b32 v48, v48, v49")
    a("s_sub_u32 s20, 0xffff, s18")
    a("v_or_b32 v48, s20, v48")
    a("s_lshl_b32 s20, s16, 2")
    a("s_add_u32 s20, s20, 98304")
    a("v_mov_b32 v4, s20")
    a("v_mov_b32 v5, 98304")
    a("ds_write_b32 v4, v48")
    a("s_waitcnt lgkmcnt(0)")
    a("s_barrier")
    a("ds_read_b128 v[8:11], v5")
    a("ds_read_b128 v[12:15], v5 offset:16")
    a("s_lshl_b32 s20, s64, 11")
    a("s_add_u32 s20, s20, %d" % SELROW)
    a("s_waitcnt lgkmcnt(0)")
    a("v_max3_u32 v8, v8, v9, v10")
    a("v_max3_u32 v8, v8, v11, v12")
    a("v_max3_u32 v8, v8, v13, v14")
    a("v_max_u32 v63, v8, v15")
    a("v_cmp_eq_u32 vcc, v63, v48")
    a("s_nop 2")
    a("s_cmp_eq_u64 vcc, 0")
    a("s_cbranch_scc0 k2_best")
    a("buffer_store_dwordx4 v[24:27], v2, s[80:83], s19 offen")
    a("s_branch k2_notbest")
    a.label("k2_best")
    a("s_lshl_b32 s21, s64, 2")
    a("s_add_u32 s21, s21, %d" % KEYS)
    a("v_lshlrev_b32 v5, 10, v0")
    a("s_mov_b64 exec, %d" % ((1 << NREP) - 1))
    a("buffer_store_dword v48, v5, s[68:71], s21 offen%s" % SC)
    a("s_mov_b64 exec, -1")
    a("buffer_store_dwordx4 v[36:39], v2, s[68:71], s20 offen%s" % SC)
    a("buffer_store_dwordx4 v[32:35], v2, s[68:71], s20 offen offset:1024%s" % SC)
    a("ds_write_b128 v2, v[24:27] offset:32768")
    a("s_waitcnt lgkmcnt(0)")
    a.label("k2_notbest")
    stamp(a, 2)
    a("s_cmp_lt_u32 s16, 4")
    a("s_cbranch_scc1 k2_exit")

    a("s_cmp_lt_u32 s65, 28")
    a("s_cbranch_scc1 k2_keys")
    a("s_cmp_ge_u32 s16, 6")
    a("s_cbranch_scc1 k2_exit")
    a.label("k2_keys")
    a("s_and_b32 s20, s64, %d" % (NREP - 1))
    a("s_lshl_b32 s20, s20, 10")
    a("s_add_u32 s20, s20, %d" % KEYS)

    def keycond():
        a("v_min_u32 v4, v8, v9")
        a("v_min3_u32 v4, v4, v10, v11")
        a("v_cmp_eq_u32 vcc, 0, v4")
    a("v_mov_b32 v5, 98816")
    a("s_cmp_lg_u32 s16, 4")
    a("s_cbranch_scc1 k2_keywait")
    poll(a, "k2_poll2", ["buffer_load_dwordx4 v[8:11], v2, s[68:71], s20 offen%s" % SC], keycond)
    a("v_max_u32 v64, v8, v9")
    a("v_max3_u32 v64, v64, v10, v11")
    allreduce64(a, "max_u32", 64, 65)
    a("ds_write_b32 v5, v64")
    a("s_waitcnt lgkmcnt(0)")
    a.label("k2_keywait")
    a("s_barrier")
    a("ds_read_b32 v64, v5")
    a("ds_read_b128 v[24:27], v2 offset:32768")
    a("s_waitcnt lgkmcnt(0)")
    stamp(a, 3)
    a("v_and_b32 v66, 0xffff, v64")
    a("v_sub_u32 v66, 0xffff, v66")
    a("v_lshrrev_b32 v67, 3, v66")
    a("v_lshlrev_b32 v67, 11, v67")
    a("s_cmp_lg_u32 s16, 5")
    a("s_cbranch_scc1 k2_noparked")
    a("v_and_b32 v4, 0xffff, v63")
    a("v_sub_u32 v4, 0xffff, v4")
    a("v_lshlrev_b32 v4, 10, v4")
    a("v_add_u32 v4, v4, v2")
    a("v_cmp_ne_u32 vcc, v63, v64")
    a("s_and_saveexec_b64 s[22:23], vcc")
    a("s_cbranch_execz k2_parkskip")
    a("buffer_store_dwordx4 v[24:27], v4, s[80:83], 0 offen")
    a.label("k2_parkskip")
    a("s_mov_b64 exec, s[22:23]")
    a.label("k2_noparked")
    a("s_mov_b32 s20, %d" % SELROW)
    a("s_cmp_ge_u32 s65, 28")
    a("s_cbranch_scc1 k2_final")
    a("v_lshlrev_b32 v4, 2, v199")
    a("v_add_u32 v68, v67, v4")
    poll(a, "k2_poll4", ["buffer_load_dword v75, v68, s[68:71], s20 offen%s" % SC],
         lambda: a("v_cmp_eq_u32 vcc, -1, v75"))
    stamp(a, 0)
    a("s_mov_b32 s22, 0x05040100")
    a("s_mov_b32 s23, 0x07060302")
    for m in range(2):
        for i in range(4):
            a("v_perm_b32 v%d, v%d, v%d, s22" % (32 + 8 * m + 2 * i, 204 + 8 * m + i, 200 + 8 * m + i))
            a("v_perm_b32 v%d, v%d, v%d, s23" % (33 + 8 * m + 2 * i, 204 + 8 * m + i, 200 + 8 * m + i))
    for i in range(16):
        a("v_dot2_f32_bf16 v%d, v%d, v75, 0" % (48 + i, 32 + i))
    a("s_nop 2")
    for i in range(8):
        a("v_permlane32_swap_b32 v%d, v%d" % (48 + i, 56 + i))
    a("s_nop 1")
    for i in range(8):
        a("v_add_f32 v%d, v%d, v%d" % (48 + i, 48 + i, 56 + i))
    a("s_nop 1")
    for i in range(4):
        a("v_permlane16_swap_b32 v%d, v%d" % (48 + i, 52 + i))
    a("s_nop 1")
    for i in range(4):
        a("v_add_f32 v%d, v%d, v%d" % (48 + i, 48 + i, 52 + i))
    for r in (8, 4, 2, 1):
        a("s_nop 0")
        for i in range(4):
            a("v_add_f32_dpp v%d, v%d, v%d row_ror:%d row_mask:0xf bank_mask:0xf" % (48 + i, 48 + i, 48 + i, r))
    a("s_lshl_b32 s21, s17, 6")
    a("s_add_u32 s21, s21, 98560")
    a("v_lshrrev_b32 v7, 4, v0")
    a("v_lshlrev_b32 v7, 4, v7")
    a("v_add_u32 v6, s21, v7")
    a("ds_write_b128 v6, v[48:51]")
    a("v_and_b32 v7, 7, v0")
    a("v_lshlrev_b32 v7, 2, v7")
    a("v_add_u32 v7, 98560, v7")
    a("s_waitcnt lgkmcnt(0)")
    a("s_barrier")
    for w in range(4):
        a("ds_read_b32 v%d, v7 offset:%d" % (48 + w, 64 * w))
        a("ds_read_b32 v%d, v7 offset:%d" % (52 + w, 64 * w + 32))
    a("s_waitcnt lgkmcnt(0)")
    a("v_add_f32 v48, v48, v49")
    a("v_add_f32 v50, v50, v51")
    a("v_add_f32 v52, v52, v53")
    a("v_add_f32 v54, v54, v55")
    a("v_add_f32 v48, v48, v50")
    a("v_add_f32 v52, v52, v54")
    bf16r(a, 48, 48)
    bf16r(a, 52, 52)
    a("v_mul_f32 v49, 0xbfb8aa3b, v48")
    a("v_exp_f32 v49, v49")
    a("s_nop 0")
    a("v_add_f32 v49, 1.0, v49")
    a("v_rcp_f32 v49, v49")
    a("s_nop 0")
    a("v_mul_f32 v48, v48, v49")
    bf16r(a, 48, 48)
    a("v_mul_f32 v48, v48, v52")
    bf16r(a, 48, 48)
    a("s_nop 0")
    for j in range(8):
        a("v_readlane_b32 s%d, v48, %d" % (4 + j, j))
    a("v_mov_b32 v50, 0")
    a("v_mov_b32 v51, 0")
    for j in range(8):
        unpack(a, 52, 53, 216 + j)
        a("v_fmac_f32 v50, s%d, v52" % (4 + j))
        a("v_fmac_f32 v51, s%d, v53" % (4 + j))
    a("v_lshlrev_b32 v6, 3, v199")
    a("s_lshl_b32 s20, s66, 11")
    a("s_add_u32 s20, s20, %d" % YP_OFF)
    a("buffer_store_dwordx2 v[50:51], v6, s[68:71], s20 offen%s" % SC)
    stamp(a, 4)
    a("s_endpgm")

    a.label("k2_final")
    a("s_sub_u32 s18, s58, 4")
    a("s_lshl_b32 s18, s18, 3")
    a("s_add_u32 s18, s18, s59")
    a("s_sub_u32 s18, s18, 24")
    a("s_lshl_b32 s18, s18, 1")
    a("s_add_u32 s18, s18, s17")
    a("v_lshrrev_b32 v5, 4, v0")
    a("v_lshlrev_b32 v3, 2, v5")
    a("s_lshl_b32 s19, s18, 4")
    a("v_add_u32 v3, s19, v3")
    a("v_add_u32 v68, v67, v3")

    def hcond():
        a("v_max_u32 v4, v69, v75")
        a("v_cmp_eq_u32 vcc, -1, v4")
    poll(a, "k2_poll5", ["buffer_load_dword v75, v68, s[68:71], s20 offen%s" % SC,
                         "buffer_load_dword v69, v68, s[68:71], s20 offen offset:1024%s" % SC], hcond)
    a("v_and_b32 v52, 0xffff0000, v64")
    a("v_ashrrev_i32 v53, 31, v52")
    a("v_not_b32 v53, v53")
    a("v_and_b32 v53, 0x7fff0000, v53")
    a("v_or_b32 v53, 0x80000000, v53")
    a("v_xor_b32 v52, v52, v53")
    a("v_mul_f32 v53, 0xbfb8aa3b, v52")
    a("v_exp_f32 v53, v53")
    a("s_nop 0")
    a("v_add_f32 v53, 1.0, v53")
    a("v_rcp_f32 v53, v53")
    a("s_nop 0")
    bf16r(a, 44, 53)
    unpack(a, 40, 41, 69)
    unpack(a, 42, 43, 75)
    a("v_lshlrev_b32 v45, 10, v66")
    a("v_add_u32 v45, v45, v3")
    a("v_lshlrev_b32 v1, 11, v0")
    a("s_lshl_b32 s19, s18, 5")
    a("v_add_u32 v1, s19, v1")
    a("v_cmp_gt_u32 vcc, 32, v0")
    a("v_mov_b32 v6, 0x40000000")
    a("v_cndmask_b32 v6, v6, v1, vcc")
    for i in range(4):
        a("s_mov_b32 s%d, %d" % (24 + i, YP_OFF + 131072 * i))
    loads = []
    for i in range(4):
        vo = 1 if i < 3 else 6
        loads.append("buffer_load_dwordx4 v[%d:%d], v%d, s[68:71], s%d offen%s" % (8 + 8 * i, 11 + 8 * i, vo, 24 + i, SC))
        loads.append("buffer_load_dwordx4 v[%d:%d], v%d, s[68:71], s%d offen offset:16%s" % (12 + 8 * i, 15 + 8 * i, vo, 24 + i, SC))

    def ycond():
        a("v_max3_u32 v4, v8, v9, v10")
        for i in range(11, 39, 2):
            a("v_max3_u32 v4, v4, v%d, v%d" % (i, i + 1))
        a("v_max_u32 v4, v4, v39")
        a("v_cmp_eq_u32 vcc, -1, v4")
    poll(a, "k2_poll3", loads, ycond)
    for i in range(4):
        a("v_pk_add_f32 v[%d:%d], v[%d:%d], v[%d:%d]" % (8 + 2 * i, 9 + 2 * i, 8 + 2 * i, 9 + 2 * i, 16 + 2 * i, 17 + 2 * i))
        a("v_pk_add_f32 v[%d:%d], v[%d:%d], v[%d:%d]" % (24 + 2 * i, 25 + 2 * i, 24 + 2 * i, 25 + 2 * i, 32 + 2 * i, 33 + 2 * i))
    for i in range(4):
        a("v_pk_add_f32 v[%d:%d], v[%d:%d], v[%d:%d]" % (8 + 2 * i, 9 + 2 * i, 8 + 2 * i, 9 + 2 * i, 24 + 2 * i, 25 + 2 * i))
    a("s_nop 1")
    for i in range(4):
        a("v_permlane32_swap_b32 v%d, v%d" % (8 + i, 12 + i))
    a("s_nop 1")
    for i in range(4):
        a("v_add_f32 v%d, v%d, v%d" % (8 + i, 8 + i, 12 + i))
    a("s_nop 1")
    for i in range(2):
        a("v_permlane16_swap_b32 v%d, v%d" % (8 + i, 10 + i))
    a("s_nop 1")
    for i in range(2):
        a("v_add_f32 v%d, v%d, v%d" % (8 + i, 8 + i, 10 + i))
    for r in (8, 4, 2, 1):
        a("s_nop 1")
        for i in range(2):
            a("v_add_f32_dpp v%d, v%d, v%d row_ror:%d row_mask:0xf bank_mask:0xf" % (8 + i, 8 + i, 8 + i, r))
    for i in range(2):
        bf16r(a, 8 + i, 8 + i)
        a("v_mul_f32 v%d, v%d, v44" % (8 + i, 8 + i))
        bf16r(a, 8 + i, 8 + i)
        a("v_add_f32 v%d, v%d, v%d" % (8 + i, 8 + i, 42 + i))
        bf16r(a, 8 + i, 8 + i)
        a("v_add_f32 v%d, v%d, v%d" % (8 + i, 8 + i, 40 + i))
    a("v_cvt_pk_bf16_f32 v8, v8, v9")
    a("v_and_b32 v6, 15, v0")
    a("v_cmp_eq_u32 vcc, 0, v6")
    a("s_and_saveexec_b64 s[30:31], vcc")
    a("buffer_store_dword v8, v45, s[80:83], 0 offen")
    a("s_mov_b64 exec, -1")
    if gen.STAMPS:
        a("s_waitcnt vmcnt(0)")
    stamp(a, 4)
    a.label("k2_exit")
    a("s_endpgm")
    return name, 224


def main(out):
    head = open("cdna_kernels/%s.s.ref" % NAME).read().split("\n")
    a = A()
    for line in head:
        if line.startswith(";") and "@launch" not in line:
            a.raw(line)
    a.raw("; @launch kernel=k1_kernel grid=(256,1,1) block=(512,1,1) lds=132608")
    a.raw("; @launch kernel=k2_kernel grid=(256,1,1) block=(512,1,1) lds=163840")
    a.raw('.amdgcn_target "amdgcn-amd-amdhsa--gfx950"')
    gen.ZERO_FLAGS = FLG_OFF
    gen.FILL = (SELROW, YP_OFF)
    descs = [gen.k1b(a), k2x(a)]
    for name, vg in descs:
        kernel_desc(a, name, vg, 96)
    open(out, "w").write(a.text())


if __name__ == "__main__":
    args = [x for x in sys.argv[1:] if not x.startswith("--")]
    if "--stamps" in sys.argv:
        gen.STAMPS = True
    for x in sys.argv:
        if x.startswith("--exp="):
            gen.EXP = set(x[6:].split(","))
        if x.startswith("--ltouch="):
            LTOUCH = int(x[9:])
        if x.startswith("--sleep="):
            SLEEP = int(x[8:])
    main(args[0] if args else "cdna_kernels/%s.s" % NAME)
```

```python
import sys

NAME = "sequential_preLN__spectral_fnet__moe_arch_mod__prompt"

ABT_OFF = 0
PART_OFF = 4 << 20
H_OFF = 12 << 20
STATS_OFF = 14 << 20
KEYS_OFF = (14 << 20) + 65536
SEL_OFF = (14 << 20) + 131072
YP_OFF = 15 << 20

KA_X, KA_CR, KA_CI, KA_WRE, KA_WIM, KA_BX, KA_WR, KA_WG, KA_WU, KA_WD, KA_OUT, KA_DBG, KA_WS = [8 * i for i in range(13)]

SLOT = 32768
NSLOT = 5


class A:
    def __init__(self):
        self.l = []

    def __call__(self, s):
        for line in s.strip("\n").split("\n"):
            line = line.strip()
            if line:
                self.l.append("    " + line)

    def label(self, s):
        self.l.append(s + ":")

    def raw(self, s):
        self.l.append(s)

    def text(self):
        return "\n".join(self.l) + "\n"


STAMPS = False
STFLAG = ""
EXP = set()
ZERO_FLAGS = None
FILL = None
NT1 = " nt"
NTP = " nt"
NTW = ""
STV = 254
STAMP_OFF = 32 << 20


def stamp_init(a, kidx, ws_lo, ws_hi, sfx=""):
    if not STAMPS:
        return
    a("s_add_u32 s92, s%d, %d" % (ws_lo, STAMP_OFF + kidx * 512 * 256))
    a("s_addc_u32 s93, s%d, 0" % ws_hi)
    a("s_and_b32 s93, s93, 0xffff")
    a("s_mov_b32 s94, %d" % (2 * 512 * 256))
    a("s_mov_b32 s95, 0x00020000")
    a("s_lshl_b32 s96, s2, 8")
    a("s_lshl_b32 s97, s16, 5")
    a("s_add_u32 s96, s96, s97")
    a("s_cmp_lt_u32 s16, 4")
    a("s_cselect_b32 s97, 0, 1")
    a("s_cmp_lt_u32 %d, 2" % kidx)
    a("s_cselect_b32 s97, s97, 1")
    a("s_cmp_eq_u32 s97, 0")
    a("s_cbranch_scc1 stamp_skip_%d%s" % (kidx, sfx))
    a("v_mov_b32 v%d" % STV + ", s90")
    a("v_mov_b32 v%d" % (STV + 1) + ", 24")
    a("s_mov_b64 s[100:101], exec")
    a("s_mov_b64 exec, 1")
    a("buffer_store_dword v%d" % STV + ", v%d" % (STV + 1) + ", s[92:95], s96 offen")
    a("s_mov_b64 exec, s[100:101]")
    a.label("stamp_skip_%d%s" % (kidx, sfx))


def stamp(a, slot):
    if not STAMPS:
        return
    a("s_memrealtime s[98:99]")
    a("s_waitcnt lgkmcnt(0)")
    a("v_mov_b32 v%d" % STV + ", s98")
    a("v_mov_b32 v%d" % (STV + 1) + ", %d" % (4 * (slot & 7) + (slot >> 3) * 131072))
    a("s_mov_b64 s[100:101], exec")
    a("s_mov_b64 exec, 1")
    a("buffer_store_dword v%d" % STV + ", v%d" % (STV + 1) + ", s[92:95], s96 offen")
    a("s_mov_b64 exec, s[100:101]")


def stampc(a, slot):
    if not STAMPS:
        return
    a("s_memtime s[98:99]")
    a("s_waitcnt lgkmcnt(0)")
    a("v_mov_b32 v%d" % STV + ", s98")
    a("v_mov_b32 v%d" % (STV + 1) + ", %d" % (4 * slot))
    a("s_mov_b64 s[100:101], exec")
    a("s_mov_b64 exec, 1")
    a("buffer_store_dword v%d" % STV + ", v%d" % (STV + 1) + ", s[92:95], s96 offen")
    a("s_mov_b64 exec, s[100:101]")


def kernel_head(a, name):
    a.raw(".text")
    a.raw(".globl %s" % name)
    a.raw(".p2align 8")
    a.raw(".type %s,@function" % name)
    a.label(name)
    if STAMPS:
        a("s_memrealtime s[90:91]")


def kernel_desc(a, name, vgpr, sgpr=72):
    if STAMPS:
        vgpr, sgpr = 256, 102
    acc = (vgpr + 3) // 4 * 4
    a.raw('.section .rodata,"a"')
    a.raw(".p2align 6")
    a.raw(".amdhsa_kernel %s" % name)
    a.raw("  .amdhsa_next_free_vgpr %d" % vgpr)
    a.raw("  .amdhsa_next_free_sgpr %d" % sgpr)
    a.raw("  .amdhsa_accum_offset %d" % acc)
    a.raw("  .amdhsa_group_segment_fixed_size 0")
    a.raw("  .amdhsa_kernarg_size 104")
    a.raw("  .amdhsa_user_sgpr_count 2")
    a.raw("  .amdhsa_user_sgpr_kernarg_segment_ptr 1")
    a.raw("  .amdhsa_system_sgpr_workgroup_id_x 1")
    a.raw("  .amdhsa_float_denorm_mode_32 3")
    a.raw(".end_amdhsa_kernel")


def srd(a, d, lo, hi, nrec):
    a("s_mov_b32 s%d, s%d" % (d, lo))
    a("s_and_b32 s%d, s%d, 0xffff" % (d + 1, hi))
    a("s_mov_b32 s%d, %d" % (d + 2, nrec))
    a("s_mov_b32 s%d, 0x00020000" % (d + 3))


def add64(a, lo, hi, off):
    a("s_add_u32 s%d, s%d, %s" % (lo, lo, off))
    a("s_addc_u32 s%d, s%d, 0" % (hi, hi))


def bf16r(a, dst, src, tmp=None):
    a("v_cvt_pk_bf16_f32 v%d, v%d, v%d" % (dst, src, src))
    a("v_and_b32 v%d, 0xffff0000, v%d" % (dst, dst))


def unpack(a, lo, hi, src):
    a("v_lshlrev_b32 v%d, 16, v%d" % (lo, src))
    a("v_and_b32 v%d, 0xffff0000, v%d" % (hi, src))


def allreduce64(a, op, v, t):
    for r in (8, 4, 2, 1):
        a("s_nop 1")
        a("v_%s_dpp v%d, v%d, v%d row_ror:%d row_mask:0xf bank_mask:0xf" % (op, v, v, v, r))
    a("v_mov_b32 v%d, v%d" % (t, v))
    a("s_nop 1")
    a("v_permlane16_swap_b32 v%d, v%d" % (v, t))
    a("s_nop 1")
    a("v_%s v%d, v%d, v%d" % (op, v, v, t))
    a("v_mov_b32 v%d, v%d" % (t, v))
    a("s_nop 1")
    a("v_permlane32_swap_b32 v%d, v%d" % (v, t))
    a("s_nop 1")
    a("v_%s v%d, v%d, v%d" % (op, v, v, t))


ACC = 64
FR = 128
AP = 8
AQ = 12


def gemm_loader(a, pfx, ns, stride, tail_hook=None):
    a("s_sub_u32 s17, s16, 4")
    a("v_lshrrev_b32 v1, 3, v0")
    a("v_lshrrev_b32 v2, 4, v0")
    a("v_and_b32 v3, 7, v0")
    a("s_lshl_b32 s18, s17, 5")
    a("v_add_u32 v1, s18, v1")
    sh = {1024: 10, 4096: 12}[stride]
    for j in range(4):
        a("v_add_u32 v4, %d, v1" % (8 * j))
        a("v_lshlrev_b32 v4, %d, v4" % sh)
        a("v_add_u32 v5, %d, v2" % (4 * j))
        a("v_and_b32 v5, 7, v5")
        a("v_xor_b32 v5, v5, v3")
        a("v_lshlrev_b32 v5, 4, v5")
        a("v_add_u32 v4, v4, v5")
        a("v_subrev_u32 v%d, %d, v4" % (8 + j, 1024 * j))
    a("s_lshl_b32 s21, s17, 12")
    a("s_mov_b32 s20, 0")
    a("s_mov_b32 s25, 0")

    def issue():
        a("s_mov_b32 m0, s21")
        a("s_add_u32 s19, s21, 16384")
        for j in range(4):
            a("buffer_load_dwordx4 v%d, s[4:7], s20 offen offset:%d lds" % (8 + j, 1024 * j))
        a("s_mov_b32 m0, s19")
        a("s_add_u32 s25, s25, 1")
        for j in range(4):
            a("buffer_load_dwordx4 v%d, s[8:11], s20 offen offset:%d lds" % (8 + j, 1024 * j))
        a("s_add_u32 s20, s20, 128")
        a("s_add_u32 s21, s21, %d" % SLOT)
        a("s_cmp_eq_u32 s25, %d" % NSLOT)
        a("s_cselect_b32 s19, %d, 0" % (SLOT * NSLOT))
        a("s_cselect_b32 s26, %d, 0" % NSLOT)
        a("s_sub_u32 s21, s21, s19")
        a("s_sub_u32 s25, s25, s26")

    for st in range(4):
        issue()
    stamp(a, 1)
    a("s_waitcnt vmcnt(16)")
    stamp(a, 2)
    a("s_barrier")
    a("s_mov_b32 s22, %d" % (ns - 4))
    a.label(pfx + "_lloop")
    if "nodma" not in EXP:
        issue()
    a("s_waitcnt vmcnt(16)")
    a("s_barrier")
    a("s_sub_u32 s22, s22, 1")
    a("s_cmp_lg_u32 s22, 0")
    a("s_cbranch_scc1 %s_lloop" % pfx)
    a("s_waitcnt vmcnt(8)")
    a("s_barrier")
    a("s_waitcnt vmcnt(0)")
    a("s_barrier")
    stamp(a, 3)
    if tail_hook:
        tail_hook()
    a("s_barrier")
    a("s_barrier")
    stamp(a, 4)
    a("s_endpgm")


def gemm_consumer_loop(a, pfx, ns, stats, NSLOT=NSLOT):
    a("s_lshr_b32 s17, s16, 1")
    a("s_and_b32 s18, s16, 1")
    a("v_and_b32 v1, 31, v0")
    a("v_lshrrev_b32 v2, 5, v0")
    a("v_lshrrev_b32 v3, 1, v0")
    a("v_and_b32 v3, 7, v3")
    a("v_lshlrev_b32 v4, 7, v1")
    a("s_lshl_b32 s19, s17, 13")
    a("s_lshl_b32 s20, s18, 13")
    a("s_add_u32 s20, s20, 16384")
    for j in range(4):
        a("v_add_u32 v5, %d, v2" % (2 * j))
        a("v_xor_b32 v5, v5, v3")
        a("v_lshlrev_b32 v5, 4, v5")
        a("v_add_u32 v5, v5, v4")
        a("v_add_u32 v%d, s19, v5" % (AP + j))
        a("v_add_u32 v%d, s20, v5" % (AQ + j))
    for r in range(64):
        a("v_mov_b32 v%d, 0" % (ACC + r))
    if stats:
        for r in range(12):
            a("v_mov_b32 v%d, 0" % (16 + r))
        a("s_mov_b32 s30, 0x3f803f80")
    a("s_mov_b32 s23, %d" % SLOT)
    a("s_mov_b32 s24, %d" % SLOT)
    a("s_mov_b32 s25, 1")
    a("s_mov_b32 s22, %d" % ns)
    a("s_mov_b32 s27, %d" % (-(NSLOT - 1) * SLOT))
    a("s_mov_b32 s28, %d" % SLOT)

    def reads(j):
        f = FR + 16 * j
        if "noread" in EXP:
            return
        a("ds_read_b128 v[%d:%d], v%d" % (f, f + 3, AP + j))
        a("ds_read_b128 v[%d:%d], v%d offset:4096" % (f + 4, f + 7, AP + j))
        a("ds_read_b128 v[%d:%d], v%d" % (f + 8, f + 11, AQ + j))
        a("ds_read_b128 v[%d:%d], v%d offset:4096" % (f + 12, f + 15, AQ + j))

    def adv(j, s):
        a("v_add_u32 v%d, s%d, v%d" % (AP + j, s, AP + j))
        a("v_add_u32 v%d, s%d, v%d" % (AQ + j, s, AQ + j))

    def mfmas(j):
        f = FR + 16 * j
        k = 0
        for ti in range(2):
            for tj in range(2):
                c = ACC + 16 * (2 * ti + tj)
                a("v_mfma_f32_32x32x16_bf16 v[%d:%d], v[%d:%d], v[%d:%d], v[%d:%d]" % (
                    c, c + 15, f + 4 * ti, f + 4 * ti + 3, f + 8 + 4 * tj, f + 8 + 4 * tj + 3, c, c + 15))
                if stats:
                    ops = []
                    for t in range(2):
                        for d in range(4):
                            p = f + 4 * t + d
                            ops.append("v_dot2_f32_bf16 v%d, v%d, s30, v%d" % (16 + 2 * t + (d & 1), p, 16 + 2 * t + (d & 1)))
                            ops.append("v_dot2_f32_bf16 v%d, v%d, v%d, v%d" % (20 + 2 * t + (d & 1), p, p, 20 + 2 * t + (d & 1)))
                    for t in range(2):
                        for d in range(4):
                            q = f + 8 + 4 * t + d
                            ops.append("v_dot2_f32_bf16 v%d, v%d, s30, v%d" % (24 + 2 * t + (d & 1), q, 24 + 2 * t + (d & 1)))
                    for o in ops[6 * k:6 * k + 6]:
                        a(o)
                k += 1

    stamp(a, 1)
    a("s_barrier")
    stamp(a, 2)
    stampc(a, 6)
    reads(0)
    adv(0, 23)
    reads(1)
    adv(1, 23)
    a.label(pfx + "_cloop")

    def book():
        return ["s_mov_b32 s23, s24",
                "s_add_u32 s25, s25, 1",
                "s_cmp_eq_u32 s25, %d" % NSLOT,
                "s_cselect_b32 s26, %d, 0" % NSLOT,
                "s_sub_u32 s25, s25, s26",
                "s_cmp_eq_u32 s25, %d" % (NSLOT - 1),
                "s_cselect_b32 s24, s27, s28",
                "s_sub_u32 s22, s22, 1",
                "s_cmp_lg_u32 s22, 0"]

    if "burst" in EXP or stats:
        reads(2)
        adv(2, 23)
        a("s_waitcnt lgkmcnt(8)")
        mfmas(0)
        reads(3)
        adv(3, 23)
        a("s_waitcnt lgkmcnt(8)")
        mfmas(1)
        reads(0)
        adv(0, 24)
        a("s_waitcnt lgkmcnt(8)")
        mfmas(2)
        reads(1)
        adv(1, 24)
        for b in book():
            a(b)
        a("s_waitcnt lgkmcnt(8)")
        mfmas(3)
    else:
        for j in range(4):
            jn = (j + 2) % 4
            sd = 23 if j < 2 else 24
            f = FR + 16 * j
            fn = FR + 16 * jn
            rd = ["ds_read_b128 v[%d:%d], v%d" % (fn, fn + 3, AP + jn),
                  "ds_read_b128 v[%d:%d], v%d" % (fn + 8, fn + 11, AQ + jn),
                  "ds_read_b128 v[%d:%d], v%d offset:4096" % (fn + 4, fn + 7, AP + jn),
                  "ds_read_b128 v[%d:%d], v%d offset:4096" % (fn + 12, fn + 15, AQ + jn)]
            a("s_waitcnt lgkmcnt(4)")
            k = 0
            for ti, tj in ((0, 0), (0, 1), (1, 0), (1, 1)):
                c = ACC + 16 * (2 * ti + tj)
                a("v_mfma_f32_32x32x16_bf16 v[%d:%d], v[%d:%d], v[%d:%d], v[%d:%d]" % (
                    c, c + 15, f + 4 * ti, f + 4 * ti + 3, f + 8 + 4 * tj, f + 8 + 4 * tj + 3, c, c + 15))
                if "noread" not in EXP:
                    a(rd[k])
                if k == 2:
                    a("v_add_u32 v%d, s%d, v%d" % (AP + jn, sd, AP + jn))
                if k == 3:
                    a("v_add_u32 v%d, s%d, v%d" % (AQ + jn, sd, AQ + jn))
                    if j == 3:
                        for b in book():
                            a(b)
                k += 1
    a("s_barrier")
    a("s_cbranch_scc1 %s_cloop" % pfx)
    a("s_waitcnt lgkmcnt(0)")
    a("s_nop 15")
    stamp(a, 3)
    stampc(a, 7)


def gemm_store(a, ostride_sh, pre=None):
    a("v_lshlrev_b32 v4, %d, v1" % ostride_sh)
    a("v_lshlrev_b32 v5, 4, v2")
    a("v_add_u32 v4, v4, v5")
    a("s_lshl_b32 s19, s18, %d" % (6 + ostride_sh))
    a("s_lshl_b32 s20, s17, 7")
    a("s_add_u32 s19, s19, s20")
    a("v_add_u32 v4, s19, v4")
    a("s_mov_b32 s20, 0")
    a("s_mov_b32 s21, %d" % (32 << ostride_sh))
    t = FR
    n = 0
    for ti in range(2):
        for g in (0, 2):
            if pre:
                pre(ti, g)
            for tj in range(2):
                c = ACC + 16 * (2 * ti + tj) + 4 * g
                d = t + 4 * (n % 8)
                n += 1
                a("v_cvt_pk_bf16_f32 v%d, v%d, v%d" % (d, c, c + 1))
                a("v_cvt_pk_bf16_f32 v%d, v%d, v%d" % (d + 1, c + 2, c + 3))
                a("v_cvt_pk_bf16_f32 v%d, v%d, v%d" % (d + 2, c + 4, c + 5))
                a("v_cvt_pk_bf16_f32 v%d, v%d, v%d" % (d + 3, c + 6, c + 7))
                a("s_nop 1")
                a("v_permlane32_swap_b32 v%d, v%d" % (d, d + 2))
                a("v_permlane32_swap_b32 v%d, v%d" % (d + 1, d + 3))
                a("s_nop 1")
                a("buffer_store_dwordx4 v[%d:%d], v4, s[12:15], s%d offen offset:%d%s" % (d, d + 3, 20 + tj, ti * 64 + g * 16, STFLAG))


def gemm16_consumer_loop(a, pfx, ns):
    a("s_lshr_b32 s17, s16, 1")
    a("s_and_b32 s18, s16, 1")
    a("v_and_b32 v1, 15, v0")
    a("v_lshrrev_b32 v2, 4, v0")
    a("v_lshrrev_b32 v3, 1, v1")
    a("v_lshlrev_b32 v4, 7, v1")
    a("s_lshl_b32 s19, s17, 13")
    a("s_lshl_b32 s20, s18, 13")
    a("s_add_u32 s20, s20, 16384")
    for j in range(2):
        a("v_add_u32 v5, %d, v2" % (4 * j))
        a("v_xor_b32 v5, v5, v3")
        a("v_lshlrev_b32 v5, 4, v5")
        a("v_add_u32 v5, v5, v4")
        a("v_add_u32 v%d, s19, v5" % (AP + j))
        a("v_add_u32 v%d, s20, v5" % (AQ + j))
    for r in range(64):
        a("v_mov_b32 v%d, 0" % (ACC + r))
    a("s_mov_b32 s23, %d" % SLOT)
    a("s_mov_b32 s24, %d" % SLOT)
    a("s_mov_b32 s25, 1")
    a("s_mov_b32 s22, %d" % ns)
    a("s_mov_b32 s27, %d" % (-(NSLOT - 1) * SLOT))
    a("s_mov_b32 s28, %d" % SLOT)

    def rdlist(j):
        f = FR + 32 * j
        l = []
        for t in range(4):
            l.append("ds_read_b128 v[%d:%d], v%d offset:%d" % (f + 4 * t, f + 4 * t + 3, AP + j, 2048 * t))
            l.append("ds_read_b128 v[%d:%d], v%d offset:%d" % (f + 16 + 4 * t, f + 16 + 4 * t + 3, AQ + j, 2048 * t))
        return l

    book = ["s_mov_b32 s23, s24",
            "s_add_u32 s25, s25, 1",
            "s_cmp_eq_u32 s25, %d" % NSLOT,
            "s_cselect_b32 s26, %d, 0" % NSLOT,
            "s_sub_u32 s25, s25, s26",
            "s_cmp_eq_u32 s25, %d" % (NSLOT - 1),
            "s_cselect_b32 s24, s27, s28",
            "s_sub_u32 s22, s22, 1",
            "s_cmp_lg_u32 s22, 0"]
    TD = 0
    if pfx == "k2" and ("k2burst" in EXP or any(x.startswith("k2pace") for x in EXP)):
        a("v_and_b32 v20, 7, v0")
        a("v_lshrrev_b32 v21, 3, v0")
        a("s_lshl_b32 s29, s52, 5")
        a("s_lshl_b32 s30, s16, 3")
        a("s_add_u32 s29, s29, s30")
        a("v_add_u32 v20, s29, v20")
        a("v_lshlrev_b32 v20, 12, v20")
        a("v_lshlrev_b32 v22, 7, v21")
        a("v_add_u32 v22, v20, v22")
        if "k2burst" in EXP:
            a("buffer_load_dword v24, v22, s[8:11], 0 offen offset:512")
            a("v_cmp_gt_u32 vcc, 4, v21")
            a("v_cndmask_b32 v22, -1, v22, vcc")
            a("buffer_load_dword v25, v22, s[8:11], 0 offen offset:1536")
        else:
            TD = int([x for x in EXP if x.startswith("k2pace")][0][6:])
            a("v_cmp_gt_u32 vcc, %d, v21" % (TD - 4))
            a("v_cndmask_b32 v22, -1, v22, vcc")
            a("buffer_load_dword v24, v22, s[8:11], 0 offen offset:512")
            a("v_cmp_eq_u32 vcc, 0, v21")
            a("v_cndmask_b32 v22, -1, v20, vcc")
            a("s_movk_i32 s29, %d" % (128 * TD))
    stamp(a, 1)
    a("s_barrier")
    stamp(a, 2)
    stampc(a, 6)
    for r in rdlist(0):
        a(r)
    a("v_add_u32 v%d, s23, v%d" % (AP, AP))
    a("v_add_u32 v%d, s23, v%d" % (AQ, AQ))
    a.label(pfx + "_cloop")
    for j in range(2):
        jn = 1 - j
        sd = 23 if j == 0 else 24
        f = FR + 32 * j
        rd = rdlist(jn)
        a("s_waitcnt lgkmcnt(0)")
        k = 0
        for ti in range(4):
            for tj in range(4):
                c = ACC + 4 * (4 * ti + tj)
                a("v_mfma_f32_16x16x32_bf16 v[%d:%d], v[%d:%d], v[%d:%d], v[%d:%d]" % (
                    c, c + 3, f + 4 * ti, f + 4 * ti + 3, f + 16 + 4 * tj, f + 16 + 4 * tj + 3, c, c + 3))
                if k < 8:
                    a(rd[k])
                if k == 8:
                    a("v_add_u32 v%d, s%d, v%d" % (AP + jn, sd, AP + jn))
                if k == 9:
                    a("v_add_u32 v%d, s%d, v%d" % (AQ + jn, sd, AQ + jn))
                if j == 1 and 10 <= k < 15:
                    for b in book[2 * (k - 10):2 * (k - 10) + 2]:
                        a(b)
                if TD and j == 0 and k == 11:
                    a("s_cmp_lt_u32 s29, 2048")
                    a("s_cselect_b32 s30, s29, 0x7fff0000")
                if TD and j == 0 and k == 12:
                    a("buffer_load_dword v24, v22, s[8:11], s30 offen")
                    a("s_add_u32 s29, s29, 128")
                k += 1
    a("s_barrier")
    a("s_cbranch_scc1 %s_cloop" % pfx)
    a("s_waitcnt lgkmcnt(0)")
    a("s_nop 15")
    stamp(a, 3)
    stampc(a, 7)


def gemm16_store(a, ostride_sh):
    a("v_lshlrev_b32 v4, %d, v1" % ostride_sh)
    a("v_and_b32 v5, 1, v2")
    a("v_lshlrev_b32 v5, 5, v5")
    a("v_lshrrev_b32 v6, 1, v2")
    a("v_lshlrev_b32 v6, 4, v6")
    a("v_add3_u32 v4, v4, v5, v6")
    a("s_lshl_b32 s19, s18, %d" % (6 + ostride_sh))
    a("s_lshl_b32 s20, s17, 7")
    a("s_add_u32 s19, s19, s20")
    a("v_add_u32 v4, s19, v4")
    for tj in range(4):
        a("s_mov_b32 s%d, %d" % (20 + tj, (16 * tj) << ostride_sh))
    n = 0
    for tj in range(4):
        for ti in (0, 2):
            c0 = ACC + 4 * (4 * ti + tj)
            c1 = ACC + 4 * (4 * (ti + 1) + tj)
            d = FR + 4 * (n % 8)
            n += 1
            a("v_cvt_pk_bf16_f32 v%d, v%d, v%d" % (d, c0, c0 + 1))
            a("v_cvt_pk_bf16_f32 v%d, v%d, v%d" % (d + 1, c0 + 2, c0 + 3))
            a("v_cvt_pk_bf16_f32 v%d, v%d, v%d" % (d + 2, c1, c1 + 1))
            a("v_cvt_pk_bf16_f32 v%d, v%d, v%d" % (d + 3, c1 + 2, c1 + 3))
            a("s_nop 1")
            a("v_permlane16_swap_b32 v%d, v%d" % (d, d + 2))
            a("v_permlane16_swap_b32 v%d, v%d" % (d + 1, d + 3))
            a("s_nop 1")
            a("buffer_store_dwordx4 v[%d:%d], v4, s[12:15], s%d offen offset:%d%s" % (d, d + 3, 20 + tj, ti * 32, STFLAG))


def wave_split(a):
    a("v_lshrrev_b32 v1, 6, v0")
    a("v_and_b32 v0, 63, v0")
    a("s_nop 0")
    a("v_readfirstlane_b32 s16, v1")


def k1(a):
    global STV
    STV = 254
    S1 = 24576
    STATS_LDS = 6 * S1
    SUMW_LDS = STATS_LDS + 1024
    name = "k1_kernel"
    kernel_head(a, name)
    a("s_cmp_ge_u32 s2, 256")
    a("s_cbranch_scc1 k1_exit")
    a("s_load_dwordx2 s[32:33], s[0:1], %d" % KA_X)
    a("s_load_dwordx4 s[36:39], s[0:1], %d" % KA_CR)
    a("s_load_dwordx4 s[40:43], s[0:1], %d" % KA_WRE)
    a("s_load_dwordx2 s[44:45], s[0:1], %d" % KA_WS)
    wave_split(a)
    a("s_and_b32 s46, s2, 7")
    a("s_lshr_b32 s47, s2, 3")
    a("s_and_b32 s48, s46, 1")
    a("s_lshr_b32 s49, s46, 1")
    a("s_and_b32 s50, s49, 1")
    a("s_lshr_b32 s51, s49, 1")
    a("s_lshl_b32 s52, s50, 3")
    a("s_lshl_b32 s53, s48, 2")
    a("s_add_u32 s52, s52, s53")
    a("s_and_b32 s57, s47, 3")
    a("s_add_u32 s52, s52, s57")
    a("s_lshr_b32 s53, s47, 2")
    a("s_lshl_b32 s54, s51, 3")
    a("s_add_u32 s54, s54, s53")
    a("s_cmp_ge_u32 s16, 4")
    a("s_cbranch_scc1 k1_loader")

    def srds():
        a("s_lshl_b32 s55, s52, 17")
        add64(a, 32, 33, "s55")
        srd(a, 4, 32, 33, 131072)
        a("s_cmp_eq_u32 s51, 0")
        a("s_cselect_b32 s40, s40, s42")
        a("s_cselect_b32 s41, s41, s43")
        a("s_cselect_b32 s36, s36, s38")
        a("s_cselect_b32 s37, s37, s39")
        a("s_lshl_b32 s55, s53, 16")
        add64(a, 40, 41, "s55")
        srd(a, 8, 40, 41, 65536)

    a("v_lshrrev_b32 v6, 3, v0")
    a("v_and_b32 v7, 7, v0")
    a("v_lshlrev_b32 v6, 10, v6")
    a("v_lshlrev_b32 v7, 7, v7")
    a("v_add_u32 v6, v6, v7")
    a("s_and_b32 s19, s16, 1")
    a("s_lshl_b32 s19, s19, 13")
    a("s_waitcnt lgkmcnt(0)")
    stamp_init(a, 0, 44, 45)
    stamp(a, 0)
    srds()
    if "notouch" not in EXP:
        a("s_cmp_ge_u32 s16, 2")
        a("s_cbranch_scc1 k1_touchw")
        a("s_lshl_b32 s20, s53, 14")
        a("s_add_u32 s19, s19, s20")
        a("buffer_load_dword v60, v6, s[4:7], s19 offen")
        a("s_branch k1_touchdone")
        a.label("k1_touchw")
        a("s_lshl_b32 s20, s57, 14")
        a("s_add_u32 s19, s19, s20")
        a("buffer_load_dword v60, v6, s[8:11], s19 offen")
        a.label("k1_touchdone")
    a("v_and_b32 v1, 31, v0")
    a("v_lshrrev_b32 v2, 5, v0")
    a("v_lshrrev_b32 v3, 1, v1")
    a("v_and_b32 v3, 7, v3")
    a("v_lshlrev_b32 v4, 7, v1")
    a("v_lshlrev_b32 v5, 2, v2")
    a("s_lshr_b32 s17, s16, 1")
    a("s_and_b32 s18, s16, 1")
    a("s_lshl_b32 s19, s17, 13")
    a("s_lshl_b32 s20, s18, 12")
    a("s_add_u32 s20, s20, 16384")
    for j in range(4):
        a("v_add_u32 v7, %d, v5" % j)
        a("v_xor_b32 v7, v7, v3")
        a("v_lshlrev_b32 v7, 4, v7")
        a("v_add3_u32 v%d, v7, v4, s19" % (32 + j))
        a("v_add3_u32 v%d, v7, v4, s20" % (44 + j))
        for b in (1, 2):
            a("v_add_u32 v%d, %d, v%d" % (32 + 4 * b + j, 2 * S1 * b, 32 + j))
            a("v_add_u32 v%d, %d, v%d" % (44 + 4 * b + j, 2 * S1 * b, 44 + j))
    for r in range(32):
        a("v_mov_b32 v%d, 0" % (64 + r))
    a("s_lshl_b32 s55, s54, 18")
    a("s_lshl_b32 s56, s52, 8")
    a("s_add_u32 s55, s55, s56")
    add64(a, 44, 45, "s55")
    srd(a, 12, 44, 45, 63 * 4096 + 256)
    a("v_lshlrev_b32 v4, 12, v1")
    a("v_lshlrev_b32 v5, 4, v2")
    a("s_lshl_b32 s19, s18, 17")
    a("s_lshl_b32 s20, s17, 7")
    a("s_add_u32 s19, s19, s20")
    a("v_add3_u32 v4, v4, v5, s19")
    a("s_lshl_b32 s19, s17, 9")
    a("s_add_u32 s19, s19, %d" % STATS_LDS)
    a("v_lshlrev_b32 v7, 5, v2")
    a("v_add_u32 v7, s19, v7")
    a("s_lshl_b32 s19, s18, 7")
    a("s_add_u32 s19, s19, %d" % SUMW_LDS)
    a("v_lshlrev_b32 v6, 2, v1")
    a("v_add_u32 v6, s19, v6")
    PF = 96

    def prd(n, j):
        f = PF + 12 * j
        sl = n % 6
        b = sl >> 1
        off = (sl & 1) * S1
        return ["ds_read_b128 v[%d:%d], v%d offset:%d" % (f, f + 3, 32 + 4 * b + j, off),
                "ds_read_b128 v[%d:%d], v%d offset:%d" % (f + 8, f + 11, 44 + 4 * b + j, off),
                "ds_read_b128 v[%d:%d], v%d offset:%d" % (f + 4, f + 7, 32 + 4 * b + j, off + 4096)]

    stamp(a, 1)
    a("s_barrier")
    stamp(a, 2)
    stampc(a, 6)
    for r in prd(0, 0) + prd(0, 1):
        a(r)
    for n in range(8):
        for j in range(4):
            g = 4 * n + j + 2
            rd = prd(g // 4, g % 4) if g < 32 else []
            f = PF + 12 * j
            q = f + 8
            a("s_waitcnt lgkmcnt(%d)" % (3 if g - 1 < 32 else 0))
            for ti in range(2):
                c = 64 + 16 * ti
                a("v_mfma_f32_32x32x16_bf16 v[%d:%d], v[%d:%d], v[%d:%d], v[%d:%d]" % (
                    c, c + 15, f + 4 * ti, f + 4 * ti + 3, q, q + 3, c, c + 15))
                if rd:
                    for r in (rd[0:2] if ti == 0 else rd[2:3]):
                        a(r)
        if n < 7:
            a("s_barrier")
    stamp(a, 3)
    stampc(a, 7)
    a("s_barrier")
    a("ds_read_b32 v16, v6")
    for ti in range(2):
        for i in range(8):
            a("ds_read_b128 v[%d:%d], v7 offset:%d" % (128 + 32 * ti + 4 * i, 131 + 32 * ti + 4 * i, ti * 256 + (i >> 1) * 64 + (i & 1) * 16))
    for ti in range(2):
        a("s_waitcnt lgkmcnt(%d)" % (8 if ti == 0 else 0))
        c = 64 + 16 * ti
        for r in range(16):
            a("v_fma_f32 v%d, -v%d, v16, v%d" % (c + r, 128 + 32 * ti + 2 * r, c + r))
            a("v_mul_f32 v%d, v%d, v%d" % (c + r, c + r, 129 + 32 * ti + 2 * r))
        for g in (0, 2):
            cc = c + 4 * g
            d = 96 + 8 * ti + 2 * g
            a("v_cvt_pk_bf16_f32 v%d, v%d, v%d" % (d, cc, cc + 1))
            a("v_cvt_pk_bf16_f32 v%d, v%d, v%d" % (d + 1, cc + 2, cc + 3))
            a("v_cvt_pk_bf16_f32 v%d, v%d, v%d" % (d + 2, cc + 4, cc + 5))
            a("v_cvt_pk_bf16_f32 v%d, v%d, v%d" % (d + 3, cc + 6, cc + 7))
            a("s_nop 1")
            a("v_permlane32_swap_b32 v%d, v%d" % (d, d + 2))
            a("v_permlane32_swap_b32 v%d, v%d" % (d + 1, d + 3))
            a("s_nop 1")
            a("buffer_store_dwordx4 v[%d:%d], v4, s[12:15], 0 offen offset:%d%s" % (d, d + 3, ti * 64 + g * 16, STFLAG))
    stamp(a, 4)
    if STAMPS:
        a("s_waitcnt vmcnt(0)")
    stamp(a, 5)
    a.label("k1_exit")
    a("s_endpgm")

    a.label("k1_loader")
    a("s_sub_u32 s17, s16, 4")
    a("v_lshrrev_b32 v6, 3, v0")
    a("v_lshrrev_b32 v7, 4, v0")
    a("v_and_b32 v16, 7, v0")
    a("s_lshl_b32 s18, s17, 5")
    a("s_lshl_b32 s19, s17, 4")
    for j in range(4):
        a("v_add_u32 v18, %d, v7" % (4 * j))
        a("v_and_b32 v18, 7, v18")
        a("v_xor_b32 v18, v18, v16")
        a("v_lshlrev_b32 v18, 4, v18")
        a("v_add3_u32 v17, v6, s18, %d" % (8 * j))
        a("v_lshlrev_b32 v17, 10, v17")
        a("v_add_u32 v17, v17, v18")
        a("v_subrev_u32 v%d, %d, v17" % (8 + j, 1024 * j))
        if j < 2:
            a("v_add3_u32 v17, v6, s19, %d" % (8 * j))
            a("v_lshlrev_b32 v17, 10, v17")
            a("v_add_u32 v17, v17, v18")
            a("v_subrev_u32 v%d, %d, v17" % (12 + j, 1024 * j))
    a("s_lshl_b32 s21, s17, 12")
    a("s_lshl_b32 s22, s17, 11")
    a("s_add_u32 s22, s22, 16384")
    a("s_waitcnt lgkmcnt(0)")
    stamp_init(a, 0, 44, 45, "b")
    stamp(a, 0)
    srds()

    def issue(n):
        sl = n % 6
        a("s_add_u32 m0, s21, %d" % (sl * S1))
        a("s_movk_i32 s20, %d" % (128 * n))
        for j in range(4):
            a("buffer_load_dwordx4 v%d, s[4:7], s20 offen offset:%d lds" % (8 + j, 1024 * j))
        a("s_add_u32 m0, s22, %d" % (sl * S1))
        a("s_nop 0")
        for j in range(2):
            a("buffer_load_dwordx4 v%d, s[8:11], s20 offen offset:%d lds" % (12 + j, 1024 * j))

    SCHED = {-1: [0, 1, 2], 0: [3, 4], 1: [5, 6], 2: [7]}
    if "sched3" in EXP:
        SCHED = {-1: [0, 1, 2], 0: [3], 1: [4], 2: [5], 3: [6], 4: [7]}
    for n in SCHED[-1]:
        issue(n)
    a("s_lshl_b32 s55, s48, 22")
    a("s_lshl_b32 s56, s47, 17")
    a("s_add_u32 s55, s55, s56")
    a("s_lshl_b32 s56, s50, 11")
    a("s_add_u32 s55, s55, s56")
    a("s_lshl_b32 s56, s17, 15")
    a("s_add_u32 s55, s55, s56")
    add64(a, 36, 37, "s55")
    srd(a, 24, 36, 37, 7 * 4096 + 2048)
    a("v_and_b32 v1, 15, v0")
    a("v_lshlrev_b32 v17, 12, v7")
    a("v_lshlrev_b32 v18, 7, v1")
    a("v_add_u32 v14, v17, v18")
    a("s_movk_i32 s23, 16384")
    a("v_lshrrev_b32 v3, 1, v1")
    a("v_lshlrev_b32 v4, 7, v1")
    for sx in range(2):
        a("v_add_u32 v17, %d, v7" % (4 * sx))
        a("v_xor_b32 v17, v17, v3")
        a("v_lshlrev_b32 v17, 4, v17")
        a("v_add3_u32 v%d, v17, v4, s21" % (32 + sx))
        a("v_add3_u32 v%d, v17, v4, s22" % (44 + sx))
        for b in (1, 2):
            a("v_add_u32 v%d, %d, v%d" % (32 + 2 * b + sx, 2 * S1 * b, 32 + sx))
            a("v_add_u32 v%d, %d, v%d" % (44 + 2 * b + sx, 2 * S1 * b, 44 + sx))
    for r in range(20):
        a("v_mov_b32 v%d, 0" % (64 + r))
    for r in range(4):
        a("v_mov_b32 v%d, 0x3f803f80" % (84 + r))
    stamp(a, 1)
    q = []
    for n in SCHED[-1]:
        q += [n] * 6
    for n in range(8):
        if n < 7:
            last = max(i for i, e in enumerate(q) if e == n + 1)
            a("s_waitcnt vmcnt(%d)" % (len(q) - 1 - last))
            q = q[last + 1:]
            if n == 0:
                stamp(a, 2)
            a("s_barrier")
        sl = n % 6
        b = sl >> 1
        off = (sl & 1) * S1
        for sx in range(2):
            a("ds_read_b128 v[%d:%d], v%d offset:%d" % (96 + 12 * sx, 99 + 12 * sx, 32 + 2 * b + sx, off))
            a("ds_read_b128 v[%d:%d], v%d offset:%d" % (100 + 12 * sx, 103 + 12 * sx, 32 + 2 * b + sx, off + 2048))
            a("ds_read_b128 v[%d:%d], v%d offset:%d" % (104 + 12 * sx, 107 + 12 * sx, 44 + 2 * b + sx, off))
        for sx in range(2):
            a("s_waitcnt lgkmcnt(%d)" % (3 if sx == 0 else 0))
            f = 96 + 12 * sx
            for rb in range(2):
                x = f + 4 * rb
                a("v_mfma_f32_16x16x32_bf16 v[%d:%d], v[%d:%d], v[%d:%d], v[%d:%d]" % (64 + 4 * rb, 67 + 4 * rb, x, x + 3, x, x + 3, 64 + 4 * rb, 67 + 4 * rb))
                a("v_mfma_f32_16x16x32_bf16 v[%d:%d], v[%d:%d], v[84:87], v[%d:%d]" % (72 + 4 * rb, 75 + 4 * rb, x, x + 3, 72 + 4 * rb, 75 + 4 * rb))
            a("v_mfma_f32_16x16x32_bf16 v[80:83], v[84:87], v[%d:%d], v[80:83]" % (f + 8, f + 11))
        for st in SCHED.get(n, []):
            issue(st)
            q += [st] * 6
            if st == 7 and "nopf" not in EXP:
                a("buffer_load_dword v62, v14, s[24:27], 0 offen")
                a("buffer_load_dword v63, v14, s[24:27], s23 offen")
                q += [99, 99]
        if n == 6:
            a("s_barrier")
    stamp(a, 3)
    a("v_and_b32 v16, 3, v0")
    a("v_lshrrev_b32 v17, 2, v1")
    a("s_nop 7")
    a("v_cmp_eq_u32 s[26:27], 1, v16")
    a("v_cmp_eq_u32 s[28:29], 2, v16")
    a("v_cmp_eq_u32 s[30:31], 3, v16")
    a("s_lshl_b32 s19, s17, 8")
    a("s_add_u32 s19, s19, %d" % STATS_LDS)
    a("v_lshlrev_b32 v6, 3, v1")
    a("v_add_u32 v6, s19, v6")
    a("s_lshl_b32 s19, s17, 6")
    a("s_add_u32 s19, s19, %d" % SUMW_LDS)
    a("v_lshlrev_b32 v18, 2, v1")
    a("v_add_u32 v18, s19, v18")
    a("ds_write_b32 v18, v80")
    for base in (64, 68, 72, 76):
        a("v_cndmask_b32 v%d, v%d, v%d, s[26:27]" % (base, base, base + 1))
        a("v_cndmask_b32 v%d, v%d, v%d, s[28:29]" % (base, base, base + 2))
        a("v_cndmask_b32 v%d, v%d, v%d, s[30:31]" % (base, base, base + 3))
    a("v_cmp_eq_u32 vcc, v17, v7")
    a("s_and_saveexec_b64 s[34:35], vcc")
    for rb in range(2):
        a("v_mul_f32 v28, 0x3b000000, v%d" % (72 + 4 * rb))
        a("v_mul_f32 v29, 0x3b000000, v%d" % (64 + 4 * rb))
        a("v_fma_f32 v29, -v28, v28, v29")
        a("v_max_f32 v29, 0, v29")
        bf16r(a, 30, 28)
        bf16r(a, 29, 29)
        a("v_add_f32 v29, 0x3727c5ac, v29")
        bf16r(a, 29, 29)
        a("v_sqrt_f32 v29, v29")
        a("s_nop 0")
        bf16r(a, 29, 29)
        a("v_rcp_f32 v31, v29")
        a("s_nop 0")
        a("ds_write_b64 v6, v[30:31] offset:%d" % (128 * rb))
    a("s_mov_b64 exec, s[34:35]")
    a("s_waitcnt lgkmcnt(0)")
    a("s_barrier")
    stamp(a, 4)
    if STAMPS:
        a("s_waitcnt vmcnt(0)")
    stamp(a, 5)
    a("s_endpgm")
    return name, 192


def k1b(a):
    global STV
    STV = 254
    NS1 = 4
    STATS_LDS = NS1 * SLOT
    SUMW_LDS = STATS_LDS + 1024
    name = "k1_kernel"
    kernel_head(a, name)
    a("s_cmp_ge_u32 s2, 256")
    a("s_cbranch_scc1 k1_exit")
    a("s_load_dwordx2 s[32:33], s[0:1], %d" % KA_X)
    a("s_load_dwordx4 s[36:39], s[0:1], %d" % KA_CR)
    a("s_load_dwordx4 s[40:43], s[0:1], %d" % KA_WRE)
    a("s_load_dwordx2 s[44:45], s[0:1], %d" % KA_WS)
    wave_split(a)
    a("s_and_b32 s46, s2, 7")
    a("s_lshr_b32 s47, s2, 3")
    a("s_and_b32 s48, s46, 1")
    a("s_lshr_b32 s49, s46, 1")
    a("s_and_b32 s50, s49, 1")
    a("s_lshr_b32 s51, s49, 1")
    a("s_lshl_b32 s52, s50, 3")
    a("s_lshl_b32 s53, s48, 2")
    a("s_add_u32 s52, s52, s53")
    a("s_cmp_ge_u32 s47, 16")
    a("s_cbranch_scc1 k1_pref")
    a("s_and_b32 s57, s47, 3")
    a("s_add_u32 s52, s52, s57")
    a("s_lshr_b32 s53, s47, 2")
    a("s_lshl_b32 s54, s51, 2")
    a("s_add_u32 s54, s54, s53")
    a("s_waitcnt lgkmcnt(0)")
    stamp_init(a, 0, 44, 45)
    stamp(a, 0)
    a("s_cmp_ge_u32 s16, 4")
    a("s_cbranch_scc1 k1_loader")

    a("s_lshl_b32 s55, s54, 19")
    a("s_lshl_b32 s56, s52, 8")
    a("s_add_u32 s55, s55, s56")
    add64(a, 44, 45, "s55")
    srd(a, 12, 44, 45, 127 * 4096 + 256)
    gemm_consumer_loop(a, "k1", 8, False, NS1)
    a("s_lshl_b32 s19, s17, 9")
    a("s_add_u32 s19, s19, %d" % STATS_LDS)
    a("v_lshlrev_b32 v7, 5, v2")
    a("v_add_u32 v7, s19, v7")
    a("s_lshl_b32 s19, s18, 8")
    a("s_add_u32 s19, s19, %d" % SUMW_LDS)
    a("v_lshlrev_b32 v6, 2, v1")
    a("v_add_u32 v6, s19, v6")
    a("ds_read_b32 v24, v6")
    a("ds_read_b32 v26, v6 offset:128")

    def pre(ti, g):
        for gg in range(2):
            a("ds_read_b128 v[%d:%d], v7 offset:%d" % (32 + 8 * gg, 35 + 8 * gg, ti * 256 + (g + gg) * 64))
            a("ds_read_b128 v[%d:%d], v7 offset:%d" % (36 + 8 * gg, 39 + 8 * gg, ti * 256 + (g + gg) * 64 + 16))
        a("s_waitcnt lgkmcnt(0)")
        for tj in range(2):
            c = ACC + 16 * (2 * ti + tj) + 4 * g
            for r in range(8):
                a("v_fma_f32 v%d, -v%d, v%d, v%d" % (c + r, 32 + 2 * r, 24 + 2 * tj, c + r))
                a("v_mul_f32 v%d, v%d, v%d" % (c + r, c + r, 33 + 2 * r))

    gemm_store(a, 12, pre)
    stamp(a, 4)
    if STAMPS:
        a("s_waitcnt vmcnt(0)")
    stamp(a, 5)
    a.label("k1_exit")
    a("s_endpgm")

    a.label("k1_loader")
    a("s_lshl_b32 s55, s52, 17")
    add64(a, 32, 33, "s55")
    srd(a, 4, 32, 33, 131072)
    a("s_cmp_eq_u32 s51, 0")
    a("s_cselect_b32 s40, s40, s42")
    a("s_cselect_b32 s41, s41, s43")
    a("s_lshl_b32 s55, s53, 17")
    add64(a, 40, 41, "s55")
    srd(a, 8, 40, 41, 131072)
    a("s_sub_u32 s17, s16, 4")
    a("v_lshrrev_b32 v6, 3, v0")
    a("v_lshrrev_b32 v7, 4, v0")
    a("v_and_b32 v16, 7, v0")
    a("s_lshl_b32 s18, s17, 5")
    for j in range(4):
        a("v_add_u32 v18, %d, v7" % (4 * j))
        a("v_and_b32 v18, 7, v18")
        a("v_xor_b32 v18, v18, v16")
        a("v_lshlrev_b32 v18, 4, v18")
        a("v_add3_u32 v17, v6, s18, %d" % (8 * j))
        a("v_lshlrev_b32 v17, 10, v17")
        a("v_add_u32 v17, v17, v18")
        a("v_subrev_u32 v%d, %d, v17" % (8 + j, 1024 * j))
    a("s_lshl_b32 s21, s17, 12")
    a("s_add_u32 s22, s21, 16384")

    def issue(n):
        sl = n % NS1
        a("s_add_u32 m0, s21, %d" % (sl * SLOT))
        a("s_movk_i32 s20, %d" % (128 * n))
        for j in range(4):
            a("buffer_load_dwordx4 v%d, s[4:7], s20 offen offset:%d%s lds" % (8 + j, 1024 * j, NT1))
        a("s_add_u32 m0, s22, %d" % (sl * SLOT))
        a("s_nop 0")
        for j in range(4):
            a("buffer_load_dwordx4 v%d, s[8:11], s20 offen offset:%d%s lds" % (8 + j, 1024 * j, NT1))

    NPRO = 3
    for n in range(NPRO):
        issue(n)
    a("v_and_b32 v1, 15, v0")
    a("v_lshrrev_b32 v3, 1, v1")
    a("v_lshlrev_b32 v4, 7, v1")
    for sx in range(2):
        a("v_add_u32 v17, %d, v7" % (4 * sx))
        a("v_xor_b32 v17, v17, v3")
        a("v_lshlrev_b32 v17, 4, v17")
        a("v_add3_u32 v%d, v17, v4, s21" % (32 + sx))
        a("v_add_u32 v%d, %d, v%d" % (34 + sx, 2 * SLOT, 32 + sx))
    for r in range(24):
        a("v_mov_b32 v%d, 0" % (64 + r))
    for r in range(4):
        a("v_mov_b32 v%d, 0x3f803f80" % (88 + r))
    stamp(a, 1)
    VST = "mfmastats" not in EXP
    q = []
    for n in range(NPRO):
        q += [n] * 8
    for n in range(8):
        if n < 7:
            last = max(i for i, e in enumerate(q) if e == n + 1)
            a("s_waitcnt vmcnt(%d)" % (len(q) - 1 - last))
            q = q[last + 1:]
            if n == 0:
                stamp(a, 2)
        a("s_barrier")
        sl = n % NS1
        b = sl >> 1
        off = (sl & 1) * SLOT
        for sx in range(2):
            f = 96 + 16 * sx
            a("ds_read_b128 v[%d:%d], v%d offset:%d" % (f, f + 3, 32 + 2 * b + sx, off))
            a("ds_read_b128 v[%d:%d], v%d offset:%d" % (f + 4, f + 7, 32 + 2 * b + sx, off + 2048))
            a("ds_read_b128 v[%d:%d], v%d offset:%d" % (f + 8, f + 11, 32 + 2 * b + sx, off + 16384))
            a("ds_read_b128 v[%d:%d], v%d offset:%d" % (f + 12, f + 15, 32 + 2 * b + sx, off + 16384 + 2048))
        if n + NPRO < 8:
            issue(n + NPRO)
            q += [n + NPRO] * 8
        for sx in range(2):
            a("s_waitcnt lgkmcnt(%d)" % (4 if sx == 0 else 0))
            f = 96 + 16 * sx
            for rb in range(2):
                x = f + 4 * rb
                a("v_mfma_f32_16x16x32_bf16 v[%d:%d], v[88:91], v[%d:%d], v[%d:%d]" % (80 + 4 * rb, 83 + 4 * rb, x + 8, x + 11, 80 + 4 * rb, 83 + 4 * rb))
                if VST:
                    for d in range(4):
                        t = 24 + 2 * (d & 1)
                        unpack(a, t, t + 1, x + d)
                        a("v_add_f32 v%d, v%d, v%d" % (72 + 4 * rb, 72 + 4 * rb, t))
                        a("v_add_f32 v%d, v%d, v%d" % (73 + 4 * rb, 73 + 4 * rb, t + 1))
                        a("v_fmac_f32 v%d, v%d, v%d" % (64 + 4 * rb, t, t))
                        a("v_fmac_f32 v%d, v%d, v%d" % (65 + 4 * rb, t + 1, t + 1))
                else:
                    a("v_mfma_f32_16x16x32_bf16 v[%d:%d], v[%d:%d], v[%d:%d], v[%d:%d]" % (64 + 4 * rb, 67 + 4 * rb, x, x + 3, x, x + 3, 64 + 4 * rb, 67 + 4 * rb))
                    a("v_mfma_f32_16x16x32_bf16 v[%d:%d], v[%d:%d], v[88:91], v[%d:%d]" % (72 + 4 * rb, 75 + 4 * rb, x, x + 3, 72 + 4 * rb, 75 + 4 * rb))
    stamp(a, 3)
    a("v_and_b32 v16, 3, v0")
    a("v_lshrrev_b32 v17, 2, v1")
    a("s_nop 7")
    a("s_lshl_b32 s19, s17, 8")
    a("s_add_u32 s19, s19, %d" % STATS_LDS)
    a("v_lshlrev_b32 v6, 3, v1")
    a("v_add_u32 v6, s19, v6")
    a("s_lshl_b32 s19, s17, 7")
    a("s_add_u32 s19, s19, %d" % SUMW_LDS)
    a("v_lshlrev_b32 v18, 2, v1")
    a("v_add_u32 v18, s19, v18")
    a("ds_write_b32 v18, v80")
    a("ds_write_b32 v18, v84 offset:64")
    if VST:
        for base in (64, 68, 72, 76):
            a("v_add_f32 v%d, v%d, v%d" % (base, base, base + 1))
        for base in (64, 68, 72, 76):
            a("v_mov_b32 v%d, v%d" % (base + 1, base))
        a("s_nop 1")
        for base in (64, 68, 72, 76):
            a("v_permlane16_swap_b32 v%d, v%d" % (base, base + 1))
        a("s_nop 1")
        for base in (64, 68, 72, 76):
            a("v_add_f32 v%d, v%d, v%d" % (base, base, base + 1))
        for base in (64, 68, 72, 76):
            a("v_mov_b32 v%d, v%d" % (base + 1, base))
        a("s_nop 1")
        for base in (64, 68, 72, 76):
            a("v_permlane32_swap_b32 v%d, v%d" % (base, base + 1))
        a("s_nop 1")
        for base in (64, 68, 72, 76):
            a("v_add_f32 v%d, v%d, v%d" % (base, base, base + 1))
        a("s_mov_b64 s[24:25], exec")
    else:
        a("v_cmp_eq_u32 s[26:27], 1, v16")
        a("v_cmp_eq_u32 s[28:29], 2, v16")
        a("v_cmp_eq_u32 s[30:31], 3, v16")
        a("s_nop 1")
        for base in (64, 68, 72, 76):
            a("v_cndmask_b32 v%d, v%d, v%d, s[26:27]" % (base, base, base + 1))
            a("v_cndmask_b32 v%d, v%d, v%d, s[28:29]" % (base, base, base + 2))
            a("v_cndmask_b32 v%d, v%d, v%d, s[30:31]" % (base, base, base + 3))
        a("v_cmp_eq_u32 vcc, v17, v7")
        a("s_and_saveexec_b64 s[24:25], vcc")
    for rb in range(2):
        a("v_mul_f32 v28, 0x3b000000, v%d" % (72 + 4 * rb))
        a("v_mul_f32 v29, 0x3b000000, v%d" % (64 + 4 * rb))
        a("v_fma_f32 v29, -v28, v28, v29")
        a("v_max_f32 v29, 0, v29")
        bf16r(a, 30, 28)
        bf16r(a, 29, 29)
        a("v_add_f32 v29, 0x3727c5ac, v29")
        bf16r(a, 29, 29)
        a("v_sqrt_f32 v29, v29")
        a("s_nop 0")
        bf16r(a, 29, 29)
        a("v_rcp_f32 v31, v29")
        a("s_nop 0")
        a("ds_write_b64 v6, v[30:31] offset:%d" % (128 * rb))
    a("s_mov_b64 exec, s[24:25]")
    a("s_waitcnt lgkmcnt(0)")
    a("s_barrier")
    stamp(a, 4)
    a("s_endpgm")

    a.label("k1_pref")
    a("s_load_dwordx4 s[60:63], s[0:1], %d" % KA_WG)
    a("s_load_dwordx2 s[64:65], s[0:1], %d" % KA_WD)
    a("s_sub_u32 s47, s47, 16")
    a("v_lshrrev_b32 v6, 3, v0")
    a("v_and_b32 v7, 7, v0")
    a("v_lshlrev_b32 v6, 10, v6")
    a("v_lshlrev_b32 v7, 7, v7")
    a("v_add_u32 v6, v6, v7")
    a("s_waitcnt lgkmcnt(0)")
    stamp_init(a, 0, 44, 45, "p")
    stamp(a, 0)
    a("s_cmp_eq_u32 s51, 0")
    a("s_cselect_b32 s40, s40, s42")
    a("s_cselect_b32 s41, s41, s43")
    a("s_cselect_b32 s36, s36, s38")
    a("s_cselect_b32 s37, s37, s39")
    a("s_lshl_b32 s55, s52, 17")
    add64(a, 32, 33, "s55")
    a("s_cmp_lt_u32 s47, 8")
    a("s_cselect_b32 s32, s32, s40")
    a("s_cselect_b32 s33, s33, s41")
    srd(a, 4, 32, 33, 524288)
    a("s_and_b32 s55, s47, 7")
    a("s_lshl_b32 s55, s55, 16")
    a("s_lshl_b32 s56, s16, 13")
    a("s_add_u32 s55, s55, s56")
    a("buffer_load_dword v60, v6, s[4:7], s55 offen" + NTP)
    if ZERO_FLAGS is not None:
        a("s_add_u32 s58, s44, %d" % ZERO_FLAGS)
        a("s_addc_u32 s59, s45, 0")
        srd(a, 8, 58, 59, 262144)
        a("s_lshl_b32 s58, s46, 4")
        a("s_add_u32 s58, s58, s47")
        a("s_lshl_b32 s58, s58, 11")
        a("s_lshl_b32 s59, s16, 8")
        a("s_add_u32 s58, s58, s59")
        a("v_lshlrev_b32 v11, 2, v0")
        a("v_mov_b32 v16, 0")
        a("buffer_store_dword v16, v11, s[8:11], s58 offen")
    if FILL is not None:
        srd(a, 8, 44, 45, 32 << 20)
        a("s_lshl_b32 s58, s46, 4")
        a("s_add_u32 s58, s58, s47")
        a("s_lshl_b32 s58, s58, 12")
        a("s_lshl_b32 s59, s16, 9")
        a("s_add_u32 s58, s58, s59")
        a("v_lshlrev_b32 v11, 3, v0")
        a("v_mov_b32 v16, -1")
        a("v_mov_b32 v17, -1")
        a("s_add_u32 s59, s58, %d" % FILL[0])
        a("buffer_store_dwordx2 v[16:17], v11, s[8:11], s59 offen")
        a("s_add_u32 s59, s58, %d" % FILL[1])
        a("buffer_store_dwordx2 v[16:17], v11, s[8:11], s59 offen")
    if "rowmap" in EXP:
        a("s_load_dwordx4 s[36:39], s[0:1], %d" % KA_CR)
        a("s_waitcnt lgkmcnt(0)")
        a("s_cmp_lt_u32 s47, 8")
        a("s_cselect_b32 s36, s36, s38")
        a("s_cselect_b32 s37, s37, s39")
        a("s_lshl_b32 s55, s46, 20")
        a("s_and_b32 s56, s47, 7")
        a("s_lshl_b32 s56, s56, 17")
        a("s_add_u32 s55, s55, s56")
        a("s_lshl_b32 s56, s16, 14")
        a("s_add_u32 s55, s55, s56")
        add64(a, 36, 37, "s55")
        srd(a, 24, 36, 37, 16384)
        a("v_lshrrev_b32 v8, 4, v0")
        a("v_and_b32 v9, 7, v0")
        a("v_lshlrev_b32 v8, 12, v8")
        a("v_lshlrev_b32 v10, 7, v9")
        a("v_add_u32 v14, v8, v10")
        a("v_and_b32 v10, 8, v0")
        a("v_lshlrev_b32 v10, 8, v10")
        a("v_add_u32 v14, v14, v10")
    else:
        a("s_lshl_b32 s55, s48, 22")
        a("s_lshl_b32 s56, s47, 18")
        a("s_add_u32 s55, s55, s56")
        a("s_lshl_b32 s56, s50, 11")
        a("s_add_u32 s55, s55, s56")
        a("s_lshl_b32 s56, s16, 15")
        a("s_add_u32 s55, s55, s56")
        add64(a, 36, 37, "s55")
        srd(a, 24, 36, 37, 7 * 4096 + 2048)
        a("v_lshrrev_b32 v8, 3, v0")
        a("v_and_b32 v9, 7, v0")
        a("v_lshlrev_b32 v8, 12, v8")
        a("v_lshlrev_b32 v10, 7, v9")
        a("v_add_u32 v14, v8, v10")
    PFN = int([x for x in EXP if x.startswith("pfn")][0][3:]) if any(x.startswith("pfn") for x in EXP) else 16
    if 8 < PFN < 16:
        a("v_cmp_gt_u32 vcc, %d, v9" % (PFN - 8))
        a("v_mov_b32 v15, 0x40000000")
        a("v_cndmask_b32 v15, v15, v14, vcc")
    else:
        a("v_mov_b32 v15, v14")
    if "nowaitpf" not in EXP:
        a("s_waitcnt vmcnt(0)")
    stamp(a, 1)
    if "ffnlast" in EXP or "noffnpf" in EXP:
        if PFN > 0:
            a("buffer_load_dword v62, v14, s[24:27], 0 offen" + NTP)
        if PFN > 8:
            a("buffer_load_dword v63, v15, s[24:27], 0 offen offset:1024" + NTP)
    if "noffnpf" not in EXP:
        a("s_lshl_b32 s55, s47, 3")
        a("s_add_u32 s55, s55, s16")
        a("s_mul_i32 s56, s55, 2731")
        a("s_lshr_b32 s56, s56, 16")
        a("s_mul_i32 s57, s56, 24")
        a("s_sub_u32 s57, s55, s57")
        a("s_lshl_b32 s58, s56, 3")
        a("s_add_u32 s58, s58, s46")
        a("s_movk_i32 s59, 3584")
        a("v_mul_lo_u32 v10, v0, s59")
        a("s_cmp_ge_u32 s58, 28")
        a("s_cbranch_scc1 k1_pref_done")
        a("s_cmp_ge_u32 s57, 16")
        a("s_cbranch_scc1 k1_pref_wd")
        a("s_cmp_lt_u32 s57, 8")
        a("s_cselect_b32 s60, s60, s62")
        a("s_cselect_b32 s61, s61, s63")
        srd(a, 8, 60, 61, 512 * 3584)
        a("s_and_b32 s57, s57, 7")
        a("s_mul_i32 s55, s57, %d" % (64 * 3584))
        a("s_lshl_b32 s56, s58, 7")
        a("s_add_u32 s55, s55, s56")
        a("buffer_load_dword v61, v10, s[8:11], s55 offen" + NTW)
        a("s_branch k1_pref_done")
        a.label("k1_pref_wd")
        srd(a, 8, 64, 65, 1792 * 1024)
        a("s_sub_u32 s57, s57, 16")
        a("s_lshl_b32 s55, s58, 16")
        a("s_lshl_b32 s56, s57, 13")
        a("s_add_u32 s55, s55, s56")
        a("buffer_load_dword v61, v6, s[8:11], s55 offen" + NTW)
        a.label("k1_pref_done")
        if "ffnlast" not in EXP:
            if "ffnwait" in EXP:
                a("s_waitcnt vmcnt(0)")
            if PFN > 0:
                a("buffer_load_dword v62, v14, s[24:27], 0 offen" + NTP)
            if PFN > 8:
                a("buffer_load_dword v63, v15, s[24:27], 0 offen offset:1024" + NTP)
    if STAMPS:
        a("s_waitcnt vmcnt(0)")
    stamp(a, 5)
    a("s_endpgm")
    return name, 192


def k2(a):
    global STV
    STV = 254
    name = "k2_kernel"
    kernel_head(a, name)
    a("s_cmp_ge_u32 s2, 256")
    a("s_cbranch_scc1 k2_exit")
    a("s_load_dwordx4 s[36:39], s[0:1], %d" % KA_CR)
    a("s_load_dwordx2 s[44:45], s[0:1], %d" % KA_WS)
    wave_split(a)
    a("s_and_b32 s46, s2, 7")
    a("s_lshr_b32 s47, s2, 3")
    a("s_and_b32 s48, s46, 1")
    a("s_lshr_b32 s49, s46, 1")
    a("s_and_b32 s50, s49, 1")
    a("s_lshr_b32 s51, s49, 1")
    a("s_and_b32 s52, s47, 3")
    a("s_lshr_b32 s53, s47, 2")
    a("s_lshl_b32 s54, s48, 3")
    a("s_add_u32 s53, s53, s54")
    a("s_waitcnt lgkmcnt(0)")
    stamp_init(a, 1, 44, 45)
    stamp(a, 0)
    a("s_lshl_b32 s55, s51, 21")
    a("s_lshl_b32 s56, s52, 19")
    a("s_add_u32 s55, s55, s56")
    a("s_lshl_b32 s57, s50, 11")
    a("s_add_u32 s55, s55, s57")
    a("s_add_u32 s32, s44, s55")
    a("s_addc_u32 s33, s45, 0")
    srd(a, 4, 32, 33, 127 * 4096 + 2048)
    a("s_cmp_eq_u32 s51, 0")
    a("s_cselect_b32 s36, s36, s38")
    a("s_cselect_b32 s37, s37, s39")
    a("s_lshl_b32 s55, s53, 19")
    a("s_add_u32 s55, s55, s57")
    add64(a, 36, 37, "s55")
    srd(a, 8, 36, 37, 127 * 4096 + 2048)
    a("s_lshl_b32 s55, s49, 21")
    a("s_lshl_b32 s56, s53, 17")
    a("s_add_u32 s55, s55, s56")
    a("s_lshl_b32 s56, s52, 8")
    a("s_add_u32 s55, s55, s56")
    a("s_add_u32 s55, s55, %d" % PART_OFF)
    add64(a, 44, 45, "s55")
    srd(a, 12, 44, 45, 127 * 1024 + 256)
    a("s_cmp_ge_u32 s16, 4")
    a("s_cbranch_scc1 k2_loader")
    if "m32" in EXP:
        gemm_consumer_loop(a, "k2", 16, False)
        gemm_store(a, 10)
    else:
        gemm16_consumer_loop(a, "k2", 16)
        gemm16_store(a, 10)
    stamp(a, 4)
    if STAMPS:
        a("s_waitcnt vmcnt(0)")
    stamp(a, 5)
    a.label("k2_exit")
    a("s_endpgm")
    a.label("k2_loader")
    gemm_loader(a, "k2", 16, 4096)
    return name, 192


def k3(a):
    name = "k3_kernel"
    kernel_head(a, name)
    a("s_cmp_ge_u32 s2, 512")
    a("s_cbranch_scc1 k3_exit")
    a("s_load_dwordx2 s[32:33], s[0:1], %d" % KA_X)
    a("s_load_dwordx2 s[34:35], s[0:1], %d" % KA_WR)
    a("s_load_dwordx2 s[36:37], s[0:1], %d" % KA_OUT)
    a("s_load_dwordx2 s[44:45], s[0:1], %d" % KA_WS)
    a("v_lshrrev_b32 v1, 6, v0")
    a("v_and_b32 v0, 63, v0")
    a("s_lshl_b32 s3, s2, 2")
    a("v_add_u32 v1, s3, v1")
    a("v_lshlrev_b32 v2, 4, v0")
    a("v_lshlrev_b32 v3, 10, v1")
    a("v_add_u32 v3, v3, v2")
    a("s_mov_b32 s20, 0")
    a("s_mov_b32 s21, %d" % (2 << 20))
    a("s_mov_b32 s22, %d" % (4 << 20))
    a("s_mov_b32 s23, %d" % (6 << 20))
    a("s_waitcnt lgkmcnt(0)")
    if STAMPS:
        a("v_and_b32 v250, 3, v1")
        a("s_nop 0")
        a("v_readfirstlane_b32 s16, v250")
        a("s_nop 3")
    stamp_init(a, 2, 44, 45)
    stamp(a, 0)
    srd(a, 4, 32, 33, 2 << 20)
    srd(a, 8, 34, 35, 1024)
    srd(a, 12, 36, 37, 2 << 20)
    a("s_add_u32 s46, s44, %d" % PART_OFF)
    a("s_addc_u32 s47, s45, 0")
    srd(a, 16, 46, 47, 8 << 20)
    a("s_add_u32 s46, s44, %d" % H_OFF)
    a("s_addc_u32 s47, s45, 0")
    srd(a, 24, 46, 47, (2 << 20) + 65536 + 8192)
    for ks in range(4):
        a("buffer_load_dwordx4 v[%d:%d], v3, s[16:19], s%d offen" % (8 + 4 * ks, 11 + 4 * ks, 20 + ks))
    a("buffer_load_dwordx4 v[24:27], v3, s[4:7], 0 offen")
    a("buffer_load_dwordx4 v[28:31], v2, s[8:11], 0 offen")
    a("s_waitcnt vmcnt(1)")
    stamp(a, 1)
    for i in range(4):
        unpack(a, 48, 49, 8 + i)
        unpack(a, 50, 51, 12 + i)
        unpack(a, 52, 53, 16 + i)
        unpack(a, 54, 55, 20 + i)
        unpack(a, 56, 57, 24 + i)
        a("v_pk_add_f32 v[48:49], v[48:49], v[50:51]")
        a("v_pk_add_f32 v[52:53], v[52:53], v[54:55]")
        a("v_pk_add_f32 v[48:49], v[48:49], v[52:53] neg_lo:[0,1] neg_hi:[0,1]")
        a("v_pk_add_f32 v[48:49], v[48:49], v[56:57]")
        a("v_cvt_pk_bf16_f32 v%d, v48, v49" % (32 + i))
        unpack(a, 40 + 2 * i, 41 + 2 * i, 32 + i)
    a("buffer_store_dwordx4 v[32:35], v3, s[24:27], 0 offen" + STFLAG)
    a("v_pk_add_f32 v[48:49], v[40:41], v[42:43]")
    a("v_pk_add_f32 v[50:51], v[44:45], v[46:47]")
    a("v_pk_add_f32 v[48:49], v[48:49], v[50:51]")
    a("v_add_f32 v48, v48, v49")
    allreduce64(a, "add_f32", 48, 49)
    a("v_mul_f32 v58, 0x3b000000, v48")
    for i in range(4):
        a("v_pk_add_f32 v[%d:%d], v[%d:%d], v[58:59] op_sel_hi:[1,0] neg_lo:[0,1] neg_hi:[0,1]" % (
            50 + 2 * i, 51 + 2 * i, 40 + 2 * i, 41 + 2 * i))
    a("v_pk_mul_f32 v[48:49], v[50:51], v[50:51]")
    for i in range(1, 4):
        a("v_pk_fma_f32 v[48:49], v[%d:%d], v[%d:%d], v[48:49]" % (50 + 2 * i, 51 + 2 * i, 50 + 2 * i, 51 + 2 * i))
    a("v_add_f32 v48, v48, v49")
    allreduce64(a, "add_f32", 48, 49)
    a("v_mul_f32 v48, 0x3b000000, v48")
    bf16r(a, 60, 58)
    bf16r(a, 48, 48)
    a("v_add_f32 v48, 0x3727c5ac, v48")
    bf16r(a, 48, 48)
    a("v_sqrt_f32 v48, v48")
    a("s_nop 0")
    bf16r(a, 48, 48)
    a("v_rcp_f32 v61, v48")
    a("s_nop 0")
    a("v_mul_f32 v62, v60, v61")
    a("v_sub_f32 v62, 0, v62")
    a("v_mov_b32 v58, v61")
    a("s_waitcnt vmcnt(1)")
    for i in range(4):
        a("v_pk_fma_f32 v[48:49], v[%d:%d], v[58:59], v[62:63] op_sel_hi:[1,0,0]" % (40 + 2 * i, 41 + 2 * i))
        a("v_cvt_pk_bf16_f32 v%d, v48, v49" % (36 + i))
        unpack(a, 50 + 2 * i, 51 + 2 * i, 36 + i)
        unpack(a, 8 + 2 * i, 9 + 2 * i, 28 + i)
    a("v_pk_mul_f32 v[48:49], v[50:51], v[8:9]")
    for i in range(1, 4):
        a("v_pk_fma_f32 v[48:49], v[%d:%d], v[%d:%d], v[48:49]" % (50 + 2 * i, 51 + 2 * i, 8 + 2 * i, 9 + 2 * i))
    a("v_add_f32 v48, v48, v49")
    for i in range(4):
        a("v_pk_add_f32 v[%d:%d], v[%d:%d], v[%d:%d]" % (16 + 2 * i, 17 + 2 * i, 40 + 2 * i, 41 + 2 * i, 50 + 2 * i, 51 + 2 * i))
        a("v_cvt_pk_bf16_f32 v%d, v%d, v%d" % (24 + i, 16 + 2 * i, 17 + 2 * i))
    a("buffer_store_dwordx4 v[24:27], v3, s[12:15], 0 offen" + STFLAG)
    allreduce64(a, "add_f32", 48, 49)
    a("v_cvt_pk_bf16_f32 v48, v48, v48")
    a("v_and_b32 v48, 0xffff0000, v48")
    a("v_ashrrev_i32 v49, 31, v48")
    a("v_and_b32 v49, 0x7fff0000, v49")
    a("v_or_b32 v49, 0x80000000, v49")
    a("v_xor_b32 v48, v48, v49")
    a("v_sub_u32 v49, 0xffff, v1")
    a("v_or_b32 v48, v48, v49")
    a("v_lshlrev_b32 v4, 3, v1")
    a("v_add_u32 v4, %d, v4" % (2 << 20))
    a("v_lshlrev_b32 v5, 2, v1")
    a("v_add_u32 v5, %d, v5" % ((2 << 20) + 65536))
    a("v_cmp_eq_u32 vcc, 0, v0")
    a("s_and_saveexec_b64 s[30:31], vcc")
    a("buffer_store_dwordx2 v[60:61], v4, s[24:27], 0 offen")
    a("buffer_store_dword v48, v5, s[24:27], 0 offen")
    stamp(a, 4)
    if STAMPS:
        a("s_waitcnt vmcnt(0)")
    stamp(a, 5)
    a.label("k3_exit")
    a("s_endpgm")
    return name, 64


def k4(a):
    name = "k4_kernel"
    kernel_head(a, name)
    a("s_cmp_ge_u32 s2, 256")
    a("s_cbranch_scc1 k4_exit")
    a("s_and_b32 s46, s2, 7")
    a("s_lshr_b32 s47, s2, 3")
    a("s_lshr_b32 s48, s47, 3")
    a("s_lshl_b32 s48, s48, 3")
    a("s_add_u32 s48, s48, s46")
    a("s_cmp_ge_u32 s48, 28")
    a("s_cbranch_scc1 k4_exit")
    a("s_and_b32 s49, s47, 7")
    a("s_lshl_b32 s48, s48, 3")
    a("s_add_u32 s48, s48, s49")
    a("s_load_dwordx4 s[32:35], s[0:1], %d" % KA_WG)
    a("s_load_dwordx2 s[36:37], s[0:1], %d" % KA_WD)
    a("s_load_dwordx2 s[44:45], s[0:1], %d" % KA_WS)
    a("v_and_b32 v1, 63, v0")
    a("v_lshrrev_b32 v2, 6, v0")
    a("s_movk_i32 s50, 7168")
    a("v_mul_lo_u32 v3, v0, s50")
    a("s_lshl_b32 s51, s48, 4")
    a("v_add_u32 v3, s51, v3")
    a("v_lshlrev_b32 v4, 2, v0")
    a("s_lshl_b32 s52, s48, 13")
    a("s_add_u32 s53, s52, 4096")
    a("v_lshlrev_b32 v5, 4, v1")
    a("s_movk_i32 s54, 4096")
    a("s_waitcnt lgkmcnt(0)")
    if STAMPS:
        a("v_readfirstlane_b32 s16, v2")
        a("s_nop 3")
    stamp_init(a, 3, 44, 45)
    stamp(a, 0)
    a("s_add_u32 s46, s44, %d" % H_OFF)
    a("s_addc_u32 s47, s45, 0")
    srd(a, 24, 46, 47, (2 << 20) + 65536 + 8192)
    a("s_add_u32 s46, s44, %d" % KEYS_OFF)
    a("s_addc_u32 s47, s45, 0")
    srd(a, 16, 46, 47, 8192)
    srd(a, 4, 32, 33, 512 * 3584)
    srd(a, 8, 34, 35, 512 * 3584)
    srd(a, 12, 36, 37, 1792 * 1024)
    for i in range(4):
        a("buffer_load_dwordx4 v[%d:%d], v5, s[16:19], 0 offen offset:%d" % (32 + 4 * i, 35 + 4 * i, 1024 * i))
    for i in range(4):
        a("buffer_load_dwordx4 v[%d:%d], v5, s[16:19], s54 offen offset:%d" % (48 + 4 * i, 51 + 4 * i, 1024 * i))
    a("buffer_load_dwordx4 v[8:11], v3, s[4:7], 0 offen")
    a("buffer_load_dwordx4 v[12:15], v3, s[4:7], 0 offen offset:3584")
    a("buffer_load_dwordx4 v[16:19], v3, s[8:11], 0 offen")
    a("buffer_load_dwordx4 v[20:23], v3, s[8:11], 0 offen offset:3584")
    for j in range(4):
        a("buffer_load_dword v%d, v4, s[12:15], s52 offen offset:%d" % (24 + j, 1024 * j))
    for j in range(4):
        a("buffer_load_dword v%d, v4, s[12:15], s53 offen offset:%d" % (28 + j, 1024 * j))
    a("s_waitcnt vmcnt(12)")
    stamp(a, 1)
    a("v_max3_u32 v64, v32, v33, v34")
    for i in range(35, 63, 2):
        a("v_max3_u32 v64, v64, v%d, v%d" % (i, i + 1))
    a("v_max_u32 v64, v64, v63")
    allreduce64(a, "max_u32", 64, 65)
    a("v_and_b32 v66, 0xffff, v64")
    a("v_sub_u32 v66, 0xffff, v66")
    a("v_lshlrev_b32 v67, 10, v66")
    a("v_add_u32 v67, v67, v4")
    a("v_lshlrev_b32 v68, 3, v66")
    a("v_add_u32 v68, %d, v68" % (2 << 20))
    a("buffer_load_dword v69, v67, s[24:27], 0 offen")
    a("buffer_load_dwordx2 v[70:71], v68, s[24:27], 0 offen")
    a("s_mov_b32 s55, 0x05040100")
    a("s_mov_b32 s56, 0x07060302")
    a("s_waitcnt vmcnt(10)")
    for m in range(2):
        for i in range(4):
            a("v_perm_b32 v%d, v%d, v%d, s55" % (32 + 8 * m + 2 * i, 12 + 8 * m + i, 8 + 8 * m + i))
            a("v_perm_b32 v%d, v%d, v%d, s56" % (33 + 8 * m + 2 * i, 12 + 8 * m + i, 8 + 8 * m + i))
    stamp(a, 2)
    a("s_waitcnt vmcnt(0)")
    stamp(a, 3)
    unpack(a, 72, 73, 69)
    a("v_mul_f32 v74, v70, v71")
    a("v_sub_f32 v74, 0, v74")
    a("v_fma_f32 v76, v72, v71, v74")
    a("v_fma_f32 v77, v73, v71, v74")
    a("v_cvt_pk_bf16_f32 v75, v76, v77")
    for i in range(16):
        a("v_dot2_f32_bf16 v%d, v%d, v75, 0" % (48 + i, 32 + i))
    a("s_nop 2")
    for i in range(8):
        a("v_permlane32_swap_b32 v%d, v%d" % (48 + i, 56 + i))
    a("s_nop 1")
    for i in range(8):
        a("v_add_f32 v%d, v%d, v%d" % (48 + i, 48 + i, 56 + i))
    a("s_nop 1")
    for i in range(4):
        a("v_permlane16_swap_b32 v%d, v%d" % (48 + i, 52 + i))
    a("s_nop 1")
    for i in range(4):
        a("v_add_f32 v%d, v%d, v%d" % (48 + i, 48 + i, 52 + i))
    for r in (8, 4, 2, 1):
        a("s_nop 0")
        for i in range(4):
            a("v_add_f32_dpp v%d, v%d, v%d row_ror:%d row_mask:0xf bank_mask:0xf" % (48 + i, 48 + i, 48 + i, r))
    a("v_lshlrev_b32 v6, 6, v2")
    a("v_lshrrev_b32 v7, 4, v1")
    a("v_lshlrev_b32 v7, 4, v7")
    a("v_add_u32 v6, v6, v7")
    a("ds_write_b128 v6, v[48:51]")
    a("v_and_b32 v7, 7, v1")
    a("v_lshlrev_b32 v7, 2, v7")
    a("s_waitcnt lgkmcnt(0)")
    a("s_barrier")
    for w in range(4):
        a("ds_read_b32 v%d, v7 offset:%d" % (48 + w, 64 * w))
        a("ds_read_b32 v%d, v7 offset:%d" % (52 + w, 64 * w + 32))
    a("s_waitcnt lgkmcnt(0)")
    a("v_add_f32 v48, v48, v49")
    a("v_add_f32 v50, v50, v51")
    a("v_add_f32 v52, v52, v53")
    a("v_add_f32 v54, v54, v55")
    a("v_add_f32 v48, v48, v50")
    a("v_add_f32 v52, v52, v54")
    bf16r(a, 48, 48)
    bf16r(a, 52, 52)
    a("v_mul_f32 v49, 0xbfb8aa3b, v48")
    a("v_exp_f32 v49, v49")
    a("s_nop 0")
    a("v_add_f32 v49, 1.0, v49")
    a("v_rcp_f32 v49, v49")
    a("s_nop 0")
    a("v_mul_f32 v48, v48, v49")
    bf16r(a, 48, 48)
    a("v_mul_f32 v48, v48, v52")
    bf16r(a, 48, 48)
    a("s_nop 0")
    for j in range(8):
        a("v_readlane_b32 s%d, v48, %d" % (56 + j, j))
    a("v_mov_b32 v50, 0")
    a("v_mov_b32 v51, 0")
    for j in range(8):
        unpack(a, 52, 53, 24 + j)
        a("v_fmac_f32 v50, s%d, v52" % (56 + j))
        a("v_fmac_f32 v51, s%d, v53" % (56 + j))
    a("s_add_u32 s46, s44, %d" % YP_OFF)
    a("s_addc_u32 s47, s45, 0")
    srd(a, 16, 46, 47, 224 * 2048)
    a("v_lshlrev_b32 v6, 3, v0")
    a("s_lshl_b32 s52, s48, 11")
    a("buffer_store_dwordx2 v[50:51], v6, s[16:19], s52 offen")
    stamp(a, 4)
    if STAMPS:
        a("s_waitcnt vmcnt(0)")
    stamp(a, 5)
    a("s_cmp_lg_u32 s48, 0")
    a("s_cbranch_scc1 k4_exit")
    a("s_add_u32 s46, s44, %d" % SEL_OFF)
    a("s_addc_u32 s47, s45, 0")
    srd(a, 16, 46, 47, 4096 + 16)
    unpack(a, 76, 77, 75)
    a("buffer_store_dwordx2 v[72:73], v6, s[16:19], 0 offen")
    a("buffer_store_dwordx2 v[76:77], v6, s[16:19], 0 offen offset:2048")
    a("v_and_b32 v52, 0xffff0000, v64")
    a("v_ashrrev_i32 v53, 31, v52")
    a("v_not_b32 v53, v53")
    a("v_and_b32 v53, 0x7fff0000, v53")
    a("v_or_b32 v53, 0x80000000, v53")
    a("v_xor_b32 v52, v52, v53")
    a("v_mul_f32 v53, 0xbfb8aa3b, v52")
    a("v_exp_f32 v53, v53")
    a("s_nop 0")
    a("v_add_f32 v53, 1.0, v53")
    a("v_rcp_f32 v53, v53")
    a("s_nop 0")
    bf16r(a, 54, 53)
    a("v_mov_b32 v55, v66")
    a("v_mov_b32 v7, 4096")
    a("v_cmp_eq_u32 vcc, 0, v0")
    a("s_and_saveexec_b64 s[30:31], vcc")
    a("s_cbranch_execz k4_exit")
    a("buffer_store_dwordx2 v[54:55], v7, s[16:19], 0 offen")
    a.label("k4_exit")
    a("s_endpgm")
    return name, 80


def k5(a):
    name = "k5_kernel"
    kernel_head(a, name)
    a("s_cmp_ge_u32 s2, 64")
    a("s_cbranch_scc1 k5_exit")
    a("s_load_dwordx2 s[36:37], s[0:1], %d" % KA_OUT)
    a("s_load_dwordx2 s[44:45], s[0:1], %d" % KA_WS)
    a("v_lshlrev_b32 v1, 11, v0")
    a("s_lshl_b32 s3, s2, 5")
    a("v_add_u32 v1, s3, v1")
    a("v_lshrrev_b32 v2, 4, v0")
    a("v_lshlrev_b32 v3, 3, v2")
    a("v_add_u32 v3, s3, v3")
    a("v_mov_b32 v4, 4096")
    for i in range(4):
        a("s_mov_b32 s%d, %d" % (20 + i, 131072 * i))
    a("s_waitcnt lgkmcnt(0)")
    if STAMPS:
        a("s_mov_b32 s16, 0")
    stamp_init(a, 4, 44, 45)
    stamp(a, 0)
    a("s_add_u32 s46, s44, %d" % YP_OFF)
    a("s_addc_u32 s47, s45, 0")
    srd(a, 4, 46, 47, 224 * 2048)
    a("s_add_u32 s46, s44, %d" % SEL_OFF)
    a("s_addc_u32 s47, s45, 0")
    srd(a, 8, 46, 47, 4096 + 16)
    srd(a, 12, 36, 37, 2 << 20)
    for i in range(4):
        a("buffer_load_dwordx4 v[%d:%d], v1, s[4:7], s%d offen" % (8 + 8 * i, 11 + 8 * i, 20 + i))
        a("buffer_load_dwordx4 v[%d:%d], v1, s[4:7], s%d offen offset:16" % (12 + 8 * i, 15 + 8 * i, 20 + i))
    a("buffer_load_dwordx2 v[40:41], v3, s[8:11], 0 offen")
    a("buffer_load_dwordx2 v[42:43], v3, s[8:11], 0 offen offset:2048")
    a("buffer_load_dwordx2 v[44:45], v4, s[8:11], 0 offen")
    a("s_waitcnt vmcnt(3)")
    for i in range(4):
        a("v_pk_add_f32 v[%d:%d], v[%d:%d], v[%d:%d]" % (8 + 2 * i, 9 + 2 * i, 8 + 2 * i, 9 + 2 * i, 16 + 2 * i, 17 + 2 * i))
        a("v_pk_add_f32 v[%d:%d], v[%d:%d], v[%d:%d]" % (24 + 2 * i, 25 + 2 * i, 24 + 2 * i, 25 + 2 * i, 32 + 2 * i, 33 + 2 * i))
    for i in range(4):
        a("v_pk_add_f32 v[%d:%d], v[%d:%d], v[%d:%d]" % (8 + 2 * i, 9 + 2 * i, 8 + 2 * i, 9 + 2 * i, 24 + 2 * i, 25 + 2 * i))
    a("s_nop 1")
    for i in range(4):
        a("v_permlane32_swap_b32 v%d, v%d" % (8 + i, 12 + i))
    a("s_nop 1")
    for i in range(4):
        a("v_add_f32 v%d, v%d, v%d" % (8 + i, 8 + i, 12 + i))
    a("s_nop 1")
    for i in range(2):
        a("v_permlane16_swap_b32 v%d, v%d" % (8 + i, 10 + i))
    a("s_nop 1")
    for i in range(2):
        a("v_add_f32 v%d, v%d, v%d" % (8 + i, 8 + i, 10 + i))
    for r in (8, 4, 2, 1):
        a("s_nop 1")
        for i in range(2):
            a("v_add_f32_dpp v%d, v%d, v%d row_ror:%d row_mask:0xf bank_mask:0xf" % (8 + i, 8 + i, 8 + i, r))
    a("s_waitcnt vmcnt(0)")
    for i in range(2):
        bf16r(a, 8 + i, 8 + i)
        a("v_mul_f32 v%d, v%d, v44" % (8 + i, 8 + i))
        bf16r(a, 8 + i, 8 + i)
        a("v_add_f32 v%d, v%d, v%d" % (8 + i, 8 + i, 42 + i))
        bf16r(a, 8 + i, 8 + i)
        a("v_add_f32 v%d, v%d, v%d" % (8 + i, 8 + i, 40 + i))
    a("v_cvt_pk_bf16_f32 v8, v8, v9")
    a("v_lshlrev_b32 v5, 10, v45")
    a("v_lshrrev_b32 v3, 1, v3")
    a("v_add_u32 v5, v5, v3")
    a("v_and_b32 v6, 15, v0")
    a("v_cmp_eq_u32 vcc, 0, v6")
    a("s_and_saveexec_b64 s[30:31], vcc")
    a("buffer_store_dword v8, v5, s[12:15], 0 offen")
    stamp(a, 4)
    if STAMPS:
        a("s_waitcnt vmcnt(0)")
    stamp(a, 5)
    a.label("k5_exit")
    a("s_endpgm")
    return name, 48


def main(out):
    head = open("cdna_kernels/%s.s.ref" % NAME).read().split("\n")
    a = A()
    for line in head:
        if line.startswith(";") and "@launch" not in line:
            a.raw(line)
    a.raw("; @launch kernel=k1_kernel grid=(256,1,1) block=(512,1,1) lds=%d" % (148736 if "k1a" in EXP else 132608))
    a.raw("; @launch kernel=k2_kernel grid=(256,1,1) block=(512,1,1) lds=163840")
    a.raw("; @launch kernel=k3_kernel grid=(512,1,1) block=(256,1,1) lds=0")
    a.raw("; @launch kernel=k4_kernel grid=(256,1,1) block=(256,1,1) lds=256")
    a.raw("; @launch kernel=k5_kernel grid=(64,1,1) block=(64,1,1) lds=0")
    a.raw('.amdgcn_target "amdgcn-amd-amdhsa--gfx950"')
    descs = []
    for k in (k1 if "k1a" in EXP else k1b, k2, k3, k4, k5):
        descs.append(k(a))
    for name, vg in descs:
        kernel_desc(a, name, vg)
    open(out, "w").write(a.text())


if __name__ == "__main__":
    args = [x for x in sys.argv[1:] if not x.startswith("--")]
    if "--stamps" in sys.argv:
        STAMPS = True
    for x in sys.argv:
        if x.startswith("--exp="):
            EXP = set(x[6:].split(","))
        if x.startswith("--st="):
            STFLAG = " " + x[5:].replace(",", " ")
    main(args[0] if args else "cdna_kernels/%s.s" % NAME)
```

```python
import sys
import gen
from gen import (A, NAME, kernel_head, kernel_desc, srd, add64, bf16r, unpack, allreduce64, wave_split,
                 stamp, stampc, stamp_init, SLOT, NSLOT, ACC, FR, AP, AQ,
                 KA_X, KA_CR, KA_WRE, KA_WR, KA_WG, KA_WU, KA_WD, KA_OUT, KA_WS, PART_OFF, YP_OFF)

FLG_OFF = (14 << 20) + 262144
FLAG1 = FLG_OFF
KEYS = FLG_OFF + 32768
NREP = 16
SELROW = 16 << 20
WS_SRD_SIZE = 32 << 20
SC = " sc1"
SCP = " sc1"
SCL = " sc1"
SPIN_MAX = 1 << 22


def poll(a, lbl, loads, cond):
    a("s_mov_b32 s31, 0")
    a.label(lbl)
    for l in loads:
        a(l)
    a("s_waitcnt vmcnt(0)")
    cond()
    a("s_add_u32 s31, s31, 1")
    a("s_nop 1")
    a("s_cmp_eq_u64 vcc, 0")
    a("s_cbranch_scc1 %s_done" % lbl)
    a("s_cmp_ge_u32 s31, %d" % SPIN_MAX)
    a("s_cbranch_scc1 %s_done" % lbl)
    a("s_sleep %d" % SLEEP)
    a("s_branch %s" % lbl)
    a.label(lbl + "_done")


def poll_pipe(a, lbl, D, nload, loads, cond, done):
    a("s_mov_b32 s31, 0")
    for k in range(D):
        for l in loads(k):
            a(l)
        if k < D - 1:
            a("s_sleep %d" % PGAP)
    a.label(lbl)
    for k in range(D):
        a("s_waitcnt vmcnt(%d)" % (nload * (D - 1)))
        cond(k)
        a("s_add_u32 s31, s31, 1")
        a("s_nop 1")
        a("s_cmp_eq_u64 vcc, 0")
        a("s_cbranch_scc1 %s_ok%d" % (lbl, k))
        for l in loads(k):
            a(l)
    a("s_cmp_lt_u32 s31, %d" % SPIN_MAX)
    a("s_cbranch_scc1 %s" % lbl)
    a("s_waitcnt vmcnt(0)")
    for k in range(D):
        a.label("%s_ok%d" % (lbl, k))
        done(k)
        if k < D - 1:
            a("s_branch %s_done" % lbl)
    a.label(lbl + "_done")


def k2x(a):
    gen.STV = 254
    EXP = gen.EXP
    name = "k2_kernel"
    kernel_head(a, name)
    a("s_cmp_ge_u32 s2, 256")
    a("s_cbranch_scc1 k2_exit")
    a("s_load_dwordx16 s[32:47], s[0:1], 0")
    a("s_load_dwordx8 s[48:55], s[0:1], 64")
    a("s_load_dwordx2 s[56:57], s[0:1], %d" % KA_WS)
    wave_split(a)
    a("s_and_b32 s58, s2, 7")
    a("s_lshr_b32 s59, s2, 3")
    if "rowmap" in EXP:
        a("s_and_b32 s62, s59, 3")
        a("s_lshr_b32 s61, s59, 2")
        a("s_and_b32 s61, s61, 3")
        a("s_lshr_b32 s63, s59, 4")
        a("s_lshl_b32 s67, s58, 1")
        a("s_add_u32 s63, s63, s67")
    else:
        a("s_and_b32 s60, s58, 1")
        a("s_lshr_b32 s61, s58, 1")
        a("s_and_b32 s62, s59, 3")
        a("s_lshr_b32 s63, s59, 2")
        a("s_lshl_b32 s67, s60, 3")
        a("s_add_u32 s63, s63, s67")
    a("s_lshl_b32 s64, s63, 4")
    a("s_lshl_b32 s67, s62, 2")
    a("s_add_u32 s64, s64, s67")
    a("s_add_u32 s64, s64, s61")
    a("s_lshr_b32 s65, s59, 3")
    a("s_lshl_b32 s65, s65, 3")
    a("s_add_u32 s65, s65, s58")
    a("s_and_b32 s30, s61, 1")
    a("s_lshr_b32 s29, s61, 1")
    a("s_waitcnt lgkmcnt(0)")
    stamp_init(a, 1, 56, 57)
    stamp(a, 0)
    srd(a, 68, 56, 57, WS_SRD_SIZE)
    a("s_cmp_ge_u32 s16, 4")
    a("s_cbranch_scc1 k2_loader")

    a("s_lshl_b32 s18, s16, 6")
    a("v_add_u32 v199, s18, v0")
    a("s_cmp_ge_u32 s65, 28")
    a("s_cbranch_scc1 k2_noffn")
    a("s_and_b32 s66, s59, 7")
    a("s_lshl_b32 s26, s65, 3")
    a("s_add_u32 s66, s66, s26")
    srd(a, 4, 46, 47, 512 * 3584)
    srd(a, 8, 48, 49, 512 * 3584)
    srd(a, 12, 50, 51, 1792 * 1024)
    a("s_movk_i32 s26, 7168")
    a("v_mul_lo_u32 v5, v199, s26")
    a("s_lshl_b32 s26, s66, 4")
    a("v_add_u32 v5, s26, v5")
    a("v_lshlrev_b32 v4, 2, v199")
    a("s_lshl_b32 s20, s66, 13")
    a("s_add_u32 s21, s20, 4096")
    a("buffer_load_dwordx4 v[200:203], v5, s[4:7], 0 offen" + NTF)
    a("buffer_load_dwordx4 v[204:207], v5, s[4:7], 0 offen offset:3584" + NTF)
    a("buffer_load_dwordx4 v[208:211], v5, s[8:11], 0 offen" + NTF)
    a("buffer_load_dwordx4 v[212:215], v5, s[8:11], 0 offen offset:3584" + NTF)
    for j in range(4):
        a("buffer_load_dword v%d, v4, s[12:15], s20 offen offset:%d" % (216 + j, 1024 * j) + NTF)
    for j in range(4):
        a("buffer_load_dword v%d, v4, s[12:15], s21 offen offset:%d" % (220 + j, 1024 * j) + NTF)

    a.label("k2_noffn")
    a("s_lshr_b32 s17, s16, 1")
    a("s_and_b32 s18, s16, 1")
    a("v_and_b32 v1, 15, v0")
    a("v_lshrrev_b32 v2, 4, v0")
    a("v_lshrrev_b32 v3, 1, v1")
    a("v_lshlrev_b32 v4, 7, v1")
    a("s_lshl_b32 s19, s17, 13")
    a("s_lshl_b32 s20, s18, 13")
    a("s_add_u32 s20, s20, 16384")
    for j in range(2):
        a("v_add_u32 v5, %d, v2" % (4 * j))
        a("v_xor_b32 v5, v5, v3")
        a("v_lshlrev_b32 v5, 4, v5")
        a("v_add_u32 v5, v5, v4")
        a("v_add_u32 v%d, s19, v5" % (AP + j))
        a("v_add_u32 v%d, s20, v5" % (AQ + j))
    for r in range(64):
        a("v_mov_b32 v%d, 0" % (ACC + r))
    a("s_mov_b32 s23, %d" % SLOT)
    a("s_mov_b32 s24, %d" % SLOT)
    a("s_mov_b32 s25, 1")
    a("s_mov_b32 s22, 16")
    a("s_mov_b32 s27, %d" % (-(NSLOT - 1) * SLOT))
    a("s_mov_b32 s28, %d" % SLOT)

    def rdlist(j):
        f = FR + 32 * j
        l = []
        for t in range(4):
            l.append("ds_read_b128 v[%d:%d], v%d offset:%d" % (f + 4 * t, f + 4 * t + 3, AP + j, 2048 * t))
            l.append("ds_read_b128 v[%d:%d], v%d offset:%d" % (f + 16 + 4 * t, f + 16 + 4 * t + 3, AQ + j, 2048 * t))
        return l

    book = ["s_mov_b32 s23, s24",
            "s_add_u32 s25, s25, 1",
            "s_cmp_eq_u32 s25, %d" % NSLOT,
            "s_cselect_b32 s26, %d, 0" % NSLOT,
            "s_sub_u32 s25, s25, s26",
            "s_cmp_eq_u32 s25, %d" % (NSLOT - 1),
            "s_cselect_b32 s24, s27, s28",
            "s_sub_u32 s22, s22, 1",
            "s_cmp_lt_u32 s22, 2"]
    if "pretouch" in EXP:
        a("v_lshrrev_b32 v6, 3, v0")
        a("v_and_b32 v7, 7, v0")
        a("v_lshlrev_b32 v7, 4, v7")
        a("v_lshlrev_b32 v6, 10, v6")
        a("v_add_u32 v6, v6, v7")
        a("s_lshl_b32 s19, s61, 21")
        a("s_lshl_b32 s20, s63, 17")
        a("s_add_u32 s19, s19, s20")
        a("s_lshl_b32 s20, s62, 8")
        a("s_add_u32 s19, s19, s20")
        a("s_lshl_b32 s20, s18, 16")
        a("s_add_u32 s19, s19, s20")
        a("s_lshl_b32 s20, s17, 7")
        a("s_add_u32 s19, s19, s20")
        a("s_add_u32 s19, s19, %d" % PART_OFF)
        for i in range(8):
            a("buffer_store_dwordx4 v[%d:%d], v6, s[68:71], s19 offen%s" % (ACC, ACC + 3, SCP))
            if i < 7:
                a("s_add_u32 s19, s19, 8192")
    stamp(a, 1)
    a("s_barrier")
    stamp(a, 2)
    stampc(a, 6)
    for r in rdlist(0):
        a(r)
    a("v_add_u32 v%d, s23, v%d" % (AP, AP))
    a("v_add_u32 v%d, s23, v%d" % (AQ, AQ))
    a.label("k2_cloop")
    for j in range(2):
        jn = 1 - j
        sd = 23 if j == 0 else 24
        f = FR + 32 * j
        rd = rdlist(jn)
        a("s_waitcnt lgkmcnt(0)")
        k = 0
        for ti in range(4):
            for tj in range(4):
                c = ACC + 4 * (4 * ti + tj)
                a("v_mfma_f32_16x16x32_bf16 v[%d:%d], v[%d:%d], v[%d:%d], v[%d:%d]" % (
                    c, c + 3, f + 4 * ti, f + 4 * ti + 3, f + 16 + 4 * tj, f + 16 + 4 * tj + 3, c, c + 3))
                if k < 8:
                    a(rd[k])
                if k == 8:
                    a("v_add_u32 v%d, s%d, v%d" % (AP + jn, sd, AP + jn))
                if k == 9:
                    a("v_add_u32 v%d, s%d, v%d" % (AQ + jn, sd, AQ + jn))
                if j == 1 and 10 <= k < 15:
                    for b in book[2 * (k - 10):2 * (k - 10) + 2]:
                        a(b)
                k += 1
    a("s_cbranch_scc1 k2_nobar")
    a("s_barrier")
    a.label("k2_nobar")
    a("s_cmp_lg_u32 s22, 0")
    a("s_cbranch_scc1 k2_cloop")
    stamp(a, 3)
    stampc(a, 7)
    a("s_mul_i32 s19, s16, 9216")
    a("s_add_u32 s19, s19, 32768")
    a("v_mul_u32_u24 v4, 144, v1")
    a("v_lshlrev_b32 v5, 3, v2")
    a("v_add3_u32 v4, v4, v5, s19")
    a("v_lshrrev_b32 v6, 3, v0")
    a("v_and_b32 v7, 7, v0")
    a("v_lshlrev_b32 v7, 4, v7")
    a("v_mul_u32_u24 v5, 144, v6")
    a("v_add3_u32 v5, v5, v7, s19")
    a("s_lshl_b32 s19, s64, 15")
    a("s_lshl_b32 s20, s16, 13")
    a("s_add_u32 s19, s19, s20")
    a("s_add_u32 s19, s19, %d" % PART_OFF)
    a("s_add_u32 s20, s19, 4096")
    a("v_lshlrev_b32 v6, 4, v0")
    a("s_waitcnt lgkmcnt(0)")
    a("s_nop 4")
    n = 0
    for tj in range(4):
        for ti in range(4):
            c = ACC + 4 * (4 * ti + tj)
            d = FR + 2 * (n % 8)
            n += 1
            a("v_cvt_pk_bf16_f32 v%d, v%d, v%d" % (d, c, c + 1))
            a("v_cvt_pk_bf16_f32 v%d, v%d, v%d" % (d + 1, c + 2, c + 3))
            a("ds_write_b64 v4, v[%d:%d] offset:%d" % (d, d + 1, tj * 2304 + ti * 32))
    a("s_waitcnt lgkmcnt(0)")
    for i in range(8):
        a("ds_read_b128 v[%d:%d], v5 offset:%d" % (FR + 16 + 4 * i, FR + 19 + 4 * i, i * 1152))
    for i in range(8):
        a("s_waitcnt lgkmcnt(%d)" % (7 - i))
        a("buffer_store_dwordx4 v[%d:%d], v6, s[68:71], s%d offen offset:%d%s" % (FR + 16 + 4 * i, FR + 19 + 4 * i, 19 + (i >> 2), 1024 * (i & 3), SCP))
    a("s_lshl_b32 s19, s64, 7")
    a("s_lshl_b32 s20, s16, 2")
    a("s_add_u32 s19, s19, s20")
    a("s_add_u32 s19, s19, %d" % FLAG1)
    a("v_mov_b32 v4, 0")
    a("v_mov_b32 v5, 1")
    stamp(a, 4)
    a("s_waitcnt vmcnt(0)")
    a("s_mov_b64 exec, 1")
    a("buffer_store_dword v5, v4, s[68:71], s19 offen%s" % SC)
    a("s_mov_b64 exec, -1")
    a("s_branch k2_rows")

    a.label("k2_loader")
    a("s_lshl_b32 s19, s29, 21")
    a("s_lshl_b32 s20, s62, 19")
    a("s_add_u32 s19, s19, s20")
    a("s_lshl_b32 s21, s30, 11")
    a("s_add_u32 s19, s19, s21")
    a("s_add_u32 s22, s56, s19")
    a("s_addc_u32 s23, s57, 0")
    srd(a, 4, 22, 23, 127 * 4096 + 2048)
    a("s_cmp_eq_u32 s29, 0")
    a("s_cselect_b32 s22, s34, s36")
    a("s_cselect_b32 s23, s35, s37")
    a("s_lshl_b32 s19, s63, 19")
    a("s_add_u32 s19, s19, s21")
    add64(a, 22, 23, "s19")
    srd(a, 8, 22, 23, 127 * 4096 + 2048)
    a("s_sub_u32 s17, s16, 4")
    a("v_lshrrev_b32 v1, 3, v0")
    a("v_lshrrev_b32 v2, 4, v0")
    a("v_and_b32 v3, 7, v0")
    a("s_lshl_b32 s18, s17, 5")
    a("v_add_u32 v1, s18, v1")
    for j in range(4):
        a("v_add_u32 v4, %d, v1" % (8 * j))
        a("v_lshlrev_b32 v4, 12, v4")
        a("v_add_u32 v5, %d, v2" % (4 * j))
        a("v_and_b32 v5, 7, v5")
        a("v_xor_b32 v5, v5, v3")
        a("v_lshlrev_b32 v5, 4, v5")
        a("v_add_u32 v4, v4, v5")
        a("v_subrev_u32 v%d, %d, v4" % (8 + j, 1024 * j))
    a("s_lshl_b32 s21, s17, 12")
    a("s_mov_b32 s20, 0")
    a("s_mov_b32 s25, 0")
    a("s_mov_b32 s22, 0")
    a("s_and_b32 s66, s59, 7")
    a("s_movk_i32 s19, 3584")
    a("v_mul_lo_u32 v20, v0, s19")
    a("s_mul_i32 s19, s66, %d" % (64 * 3584))
    a("s_lshl_b32 s24, s65, 7")
    a("s_add_u32 s24, s19, s24")
    a("s_cmp_eq_u32 s17, 0")
    a("s_cselect_b32 s12, s46, s48")
    a("s_cselect_b32 s13, s47, s49")
    a("s_mov_b32 s14, %d" % (512 * 3584))
    a("s_cmp_lt_u32 s17, 2")
    a("s_cbranch_scc1 k2_ltsetup")
    a("s_mov_b32 s12, s50")
    a("s_mov_b32 s13, s51")
    a("s_mov_b32 s14, %d" % (1792 * 1024))
    a("v_lshlrev_b32 v20, 7, v0")
    a("s_lshl_b32 s19, s65, 3")
    a("s_add_u32 s19, s19, s66")
    a("s_lshl_b32 s24, s19, 13")
    a.label("k2_ltsetup")
    a("s_and_b32 s13, s13, 0xffff")
    a("s_mov_b32 s15, 0x00020000")
    if LTOUCH == 0:
        a("s_mul_i32 s27, s59, 3")
        a("s_add_u32 s27, s27, s17")
        a("s_mul_i32 s19, s27, 5958")
        a("s_lshr_b32 s19, s19, 16")
        a("s_mul_i32 s19, s19, 11")
        a("s_sub_u32 s27, s27, s19")
        a("s_add_u32 s27, s27, 5")
    else:
        a("s_mov_b32 s27, %d" % LTOUCH)
    a("s_cmp_lt_u32 s65, 28")
    a("s_cselect_b32 s27, s27, 99")
    a("s_cmp_lt_u32 s17, 3")
    a("s_cselect_b32 s27, s27, 99")
    a.label("k2_lloop")
    a("s_mov_b32 m0, s21")
    a("s_add_u32 s19, s21, 16384")
    for j in range(4):
        a("buffer_load_dwordx4 v%d, s[4:7], s20 offen offset:%d lds" % (8 + j, 1024 * j))
    a("s_mov_b32 m0, s19")
    a("s_add_u32 s25, s25, 1")
    for j in range(4):
        a("buffer_load_dwordx4 v%d, s[8:11], s20 offen offset:%d%s lds" % (8 + j, 1024 * j, NTQ))
    a("s_add_u32 s20, s20, 128")
    a("s_add_u32 s21, s21, %d" % SLOT)
    a("s_cmp_eq_u32 s25, %d" % NSLOT)
    a("s_cselect_b32 s19, %d, 0" % (SLOT * NSLOT))
    a("s_cselect_b32 s26, %d, 0" % NSLOT)
    a("s_sub_u32 s21, s21, s19")
    a("s_sub_u32 s25, s25, s26")
    a("s_add_u32 s22, s22, 1")
    a("s_cmp_lg_u32 s22, s27")
    a("s_cbranch_scc1 k2_lnotouch")
    a("buffer_load_dword v21, v20, s[12:15], s24 offen" + NTT)
    a.label("k2_lnotouch")
    a("s_cmp_lt_u32 s22, 4")
    a("s_cbranch_scc1 k2_lloop")
    a("s_waitcnt vmcnt(16)")
    a("s_barrier")
    a("s_cmp_lt_u32 s22, 16")
    a("s_cbranch_scc1 k2_lloop")
    a("s_waitcnt vmcnt(8)")
    a("s_barrier")
    a("s_waitcnt vmcnt(0)")
    a("s_barrier")
    stamp(a, 3)
    a.label("k2_rows")
    srd(a, 72, 32, 33, 2 << 20)
    srd(a, 76, 44, 45, 1024)
    srd(a, 80, 52, 53, 2 << 20)
    a("s_lshl_b32 s18, s64, 3")
    a("s_add_u32 s18, s18, s16")
    a("v_lshlrev_b32 v2, 4, v0")
    a("s_lshl_b32 s19, s18, 10")
    a("buffer_load_dwordx4 v[24:27], v2, s[72:75], s19 offen")
    a("buffer_load_dwordx4 v[28:31], v2, s[76:79], 0 offen")
    a("v_lshrrev_b32 v5, 4, v0")
    a("v_lshlrev_b32 v5, 17, v5")
    a("v_and_b32 v6, 8, v0")
    a("v_lshlrev_b32 v6, 11, v6")
    a("v_and_b32 v7, 7, v0")
    a("v_lshlrev_b32 v7, 4, v7")
    a("v_add3_u32 v5, v5, v6, v7")
    a("s_lshl_b32 s21, s63, 19")
    a("s_and_b32 s22, s18, 64")
    a("s_lshl_b32 s22, s22, 7")
    a("s_add_u32 s21, s21, s22")
    a("s_and_b32 s22, s18, 63")
    a("s_lshl_b32 s22, s22, 7")
    a("s_add_u32 s21, s21, s22")
    a("s_add_u32 s21, s21, %d" % PART_OFF)
    a("v_and_b32 v3, 15, v0")
    a("v_lshlrev_b32 v3, 7, v3")
    a("s_lshl_b32 s20, s63, 11")
    a("s_add_u32 s20, s20, %d" % FLAG1)
    a("s_cmp_lg_u32 s16, 0")
    a("s_cbranch_scc1 k2_poll1_done")

    def f1cond():
        a("v_min_u32 v4, v8, v9")
        a("v_min3_u32 v4, v4, v10, v11")
        a("v_cmp_eq_u32 vcc, 0, v4")
    a("s_mov_b64 exec, 0xffff")
    poll(a, "k2_poll1", ["buffer_load_dwordx4 v[8:11], v3, s[68:71], s20 offen%s" % SC], f1cond)
    a("s_mov_b64 exec, -1")
    a("s_barrier")
    stamp(a, 5)
    for ks in range(4):
        a("s_add_u32 s20, s21, %d" % (ks * 32768))
        a("buffer_load_dwordx4 v[%d:%d], v5, s[68:71], s20 offen%s" % (8 + 4 * ks, 11 + 4 * ks, SCL))
    a("s_waitcnt vmcnt(0)")
    stamp(a, 1)
    for i in range(4):
        unpack(a, 48, 49, 8 + i)
        unpack(a, 50, 51, 12 + i)
        unpack(a, 52, 53, 16 + i)
        unpack(a, 54, 55, 20 + i)
        unpack(a, 56, 57, 24 + i)
        a("v_pk_add_f32 v[48:49], v[48:49], v[50:51]")
        a("v_pk_add_f32 v[52:53], v[52:53], v[54:55]")
        a("v_pk_add_f32 v[48:49], v[48:49], v[52:53] neg_lo:[0,1] neg_hi:[0,1]")
        a("v_pk_add_f32 v[48:49], v[48:49], v[56:57]")
        a("v_cvt_pk_bf16_f32 v%d, v48, v49" % (32 + i))
        unpack(a, 40 + 2 * i, 41 + 2 * i, 32 + i)
    a("v_pk_add_f32 v[48:49], v[40:41], v[42:43]")
    a("v_pk_add_f32 v[50:51], v[44:45], v[46:47]")
    a("v_pk_add_f32 v[48:49], v[48:49], v[50:51]")
    a("v_add_f32 v48, v48, v49")
    allreduce64(a, "add_f32", 48, 49)
    a("v_mul_f32 v58, 0x3b000000, v48")
    for i in range(4):
        a("v_pk_add_f32 v[%d:%d], v[%d:%d], v[58:59] op_sel_hi:[1,0] neg_lo:[0,1] neg_hi:[0,1]" % (
            50 + 2 * i, 51 + 2 * i, 40 + 2 * i, 41 + 2 * i))
    a("v_pk_mul_f32 v[48:49], v[50:51], v[50:51]")
    for i in range(1, 4):
        a("v_pk_fma_f32 v[48:49], v[%d:%d], v[%d:%d], v[48:49]" % (50 + 2 * i, 51 + 2 * i, 50 + 2 * i, 51 + 2 * i))
    a("v_add_f32 v48, v48, v49")
    allreduce64(a, "add_f32", 48, 49)
    a("v_mul_f32 v48, 0x3b000000, v48")
    bf16r(a, 60, 58)
    bf16r(a, 48, 48)
    a("v_add_f32 v48, 0x3727c5ac, v48")
    bf16r(a, 48, 48)
    a("v_sqrt_f32 v48, v48")
    a("s_nop 0")
    bf16r(a, 48, 48)
    a("v_rcp_f32 v61, v48")
    a("s_nop 0")
    a("v_mul_f32 v62, v60, v61")
    a("v_sub_f32 v62, 0, v62")
    a("v_mov_b32 v58, v61")
    for i in range(4):
        a("v_pk_fma_f32 v[48:49], v[%d:%d], v[58:59], v[62:63] op_sel_hi:[1,0,0]" % (40 + 2 * i, 41 + 2 * i))
        a("v_cvt_pk_bf16_f32 v%d, v48, v49" % (36 + i))
        unpack(a, 50 + 2 * i, 51 + 2 * i, 36 + i)
        unpack(a, 8 + 2 * i, 9 + 2 * i, 28 + i)
    for i in range(4):
        a("v_pk_add_f32 v[%d:%d], v[%d:%d], v[%d:%d]" % (16 + 2 * i, 17 + 2 * i, 40 + 2 * i, 41 + 2 * i, 50 + 2 * i, 51 + 2 * i))
        a("v_cvt_pk_bf16_f32 v%d, v%d, v%d" % (24 + i, 16 + 2 * i, 17 + 2 * i))
    a("v_pk_mul_f32 v[48:49], v[50:51], v[8:9]")
    for i in range(1, 4):
        a("v_pk_fma_f32 v[48:49], v[%d:%d], v[%d:%d], v[48:49]" % (50 + 2 * i, 51 + 2 * i, 8 + 2 * i, 9 + 2 * i))
    a("v_add_f32 v48, v48, v49")
    allreduce64(a, "add_f32", 48, 49)
    a("v_cvt_pk_bf16_f32 v48, v48, v48")
    a("v_and_b32 v48, 0xffff0000, v48")
    a("v_ashrrev_i32 v49, 31, v48")
    a("v_and_b32 v49, 0x7fff0000, v49")
    a("v_or_b32 v49, 0x80000000, v49")
    a("v_xor_b32 v48, v48, v49")
    a("s_sub_u32 s20, 0xffff, s18")
    a("v_or_b32 v48, s20, v48")
    a("s_lshl_b32 s20, s16, 2")
    a("s_add_u32 s20, s20, 98304")
    a("v_mov_b32 v4, s20")
    a("v_mov_b32 v5, 98304")
    a("ds_write_b32 v4, v48")
    a("s_waitcnt lgkmcnt(0)")
    a("s_barrier")
    a("ds_read_b128 v[8:11], v5")
    a("ds_read_b128 v[12:15], v5 offset:16")
    a("s_lshl_b32 s20, s64, 11")
    a("s_add_u32 s20, s20, %d" % SELROW)
    a("s_waitcnt lgkmcnt(0)")
    a("v_max3_u32 v8, v8, v9, v10")
    a("v_max3_u32 v8, v8, v11, v12")
    a("v_max3_u32 v8, v8, v13, v14")
    a("v_max_u32 v63, v8, v15")
    a("v_cmp_eq_u32 vcc, v63, v48")
    a("s_nop 2")
    a("s_cmp_eq_u64 vcc, 0")
    a("s_cbranch_scc0 k2_best")
    a("buffer_store_dwordx4 v[24:27], v2, s[80:83], s19 offen")
    a("s_branch k2_notbest")
    a.label("k2_best")
    a("s_lshr_b32 s21, s64, 2")
    a("s_lshl_b32 s21, s21, 7")
    a("s_and_b32 s22, s64, 3")
    a("s_lshl_b32 s22, s22, 2")
    a("s_add_u32 s21, s21, s22")
    a("s_add_u32 s21, s21, %d" % KEYS)
    a("v_lshlrev_b32 v5, 13, v0")
    a("s_mov_b64 exec, %d" % ((1 << NREP) - 1))
    a("buffer_store_dword v48, v5, s[68:71], s21 offen%s" % SC)
    a("s_mov_b64 exec, -1")
    a("buffer_store_dwordx4 v[36:39], v2, s[68:71], s20 offen%s" % SC)
    a("buffer_store_dwordx4 v[32:35], v2, s[68:71], s20 offen offset:1024%s" % SC)
    a("ds_write_b128 v2, v[24:27] offset:32768")
    a("s_waitcnt lgkmcnt(0)")
    a.label("k2_notbest")
    stamp(a, 2)
    a("s_cmp_ge_u32 s16, 4")
    a("s_cbranch_scc1 k2_exit")

    a("s_mov_b32 s17, s16")
    a("s_cmp_lt_u32 s65, 28")
    a("s_cbranch_scc1 k2_keys")
    a("s_cmp_ge_u32 s16, 2")
    a("s_cbranch_scc1 k2_exit")
    a.label("k2_keys")
    a("s_and_b32 s20, s64, %d" % (NREP - 1))
    a("s_lshl_b32 s20, s20, 13")
    a("s_add_u32 s20, s20, %d" % KEYS)
    a("v_lshlrev_b32 v3, 7, v0")

    def keycond():
        a("v_min_u32 v4, v8, v9")
        a("v_min3_u32 v4, v4, v10, v11")
        a("v_cmp_eq_u32 vcc, 0, v4")
    a("v_mov_b32 v5, 98816")
    a("s_cmp_lg_u32 s16, 0")
    a("s_cbranch_scc1 k2_keywait")
    if PD > 1:
        def kc(k):
            b = 224 + 4 * k
            a("v_min_u32 v4, v%d, v%d" % (b, b + 1))
            a("v_min3_u32 v4, v4, v%d, v%d" % (b + 2, b + 3))
            a("v_cmp_eq_u32 vcc, 0, v4")

        def kd(k):
            b = 224 + 4 * k
            a("v_max_u32 v64, v%d, v%d" % (b, b + 1))
            a("v_max3_u32 v64, v64, v%d, v%d" % (b + 2, b + 3))
        poll_pipe(a, "k2_poll2", PD, 1,
                  lambda k: ["buffer_load_dwordx4 v[%d:%d], v3, s[68:71], s20 offen%s" % (224 + 4 * k, 227 + 4 * k, SC)], kc, kd)
    else:
        poll(a, "k2_poll2", ["buffer_load_dwordx4 v[8:11], v3, s[68:71], s20 offen%s" % SC], keycond)
        a("v_max_u32 v64, v8, v9")
        a("v_max3_u32 v64, v64, v10, v11")
    allreduce64(a, "max_u32", 64, 65)
    a("ds_write_b32 v5, v64")
    a("s_waitcnt lgkmcnt(0)")
    a.label("k2_keywait")
    a("s_barrier")
    a("ds_read_b32 v64, v5")
    a("ds_read_b128 v[24:27], v2 offset:32768")
    a("s_waitcnt lgkmcnt(0)")
    stamp(a, 3)
    a("v_and_b32 v66, 0xffff, v64")
    a("v_sub_u32 v66, 0xffff, v66")
    a("v_lshrrev_b32 v67, 3, v66")
    a("v_lshlrev_b32 v67, 11, v67")
    a("s_cmp_lg_u32 s16, 1")
    a("s_cbranch_scc1 k2_noparked")
    a("v_and_b32 v4, 0xffff, v63")
    a("v_sub_u32 v4, 0xffff, v4")
    a("v_lshlrev_b32 v4, 10, v4")
    a("v_add_u32 v4, v4, v2")
    a("v_cmp_ne_u32 vcc, v63, v64")
    a("s_and_saveexec_b64 s[22:23], vcc")
    a("s_cbranch_execz k2_parkskip")
    a("buffer_store_dwordx4 v[24:27], v4, s[80:83], 0 offen")
    a.label("k2_parkskip")
    a("s_mov_b64 exec, s[22:23]")
    a.label("k2_noparked")
    a("s_mov_b32 s20, %d" % SELROW)
    a("s_cmp_ge_u32 s65, 28")
    a("s_cbranch_scc1 k2_final")
    a("v_lshlrev_b32 v4, 2, v199")
    a("v_add_u32 v68, v67, v4")
    poll(a, "k2_poll4", ["buffer_load_dword v75, v68, s[68:71], s20 offen%s" % SC],
         lambda: a("v_cmp_eq_u32 vcc, -1, v75"))
    stamp(a, 0)
    a("s_mov_b32 s22, 0x05040100")
    a("s_mov_b32 s23, 0x07060302")
    for m in range(2):
        for i in range(4):
            a("v_perm_b32 v%d, v%d, v%d, s22" % (32 + 8 * m + 2 * i, 204 + 8 * m + i, 200 + 8 * m + i))
            a("v_perm_b32 v%d, v%d, v%d, s23" % (33 + 8 * m + 2 * i, 204 + 8 * m + i, 200 + 8 * m + i))
    for i in range(16):
        a("v_dot2_f32_bf16 v%d, v%d, v75, 0" % (48 + i, 32 + i))
    a("s_nop 2")
    for i in range(8):
        a("v_permlane32_swap_b32 v%d, v%d" % (48 + i, 56 + i))
    a("s_nop 1")
    for i in range(8):
        a("v_add_f32 v%d, v%d, v%d" % (48 + i, 48 + i, 56 + i))
    a("s_nop 1")
    for i in range(4):
        a("v_permlane16_swap_b32 v%d, v%d" % (48 + i, 52 + i))
    a("s_nop 1")
    for i in range(4):
        a("v_add_f32 v%d, v%d, v%d" % (48 + i, 48 + i, 52 + i))
    for r in (8, 4, 2, 1):
        a("s_nop 0")
        for i in range(4):
            a("v_add_f32_dpp v%d, v%d, v%d row_ror:%d row_mask:0xf bank_mask:0xf" % (48 + i, 48 + i, 48 + i, r))
    a("s_lshl_b32 s21, s17, 6")
    a("s_add_u32 s21, s21, 98560")
    a("v_lshrrev_b32 v7, 4, v0")
    a("v_lshlrev_b32 v7, 4, v7")
    a("v_add_u32 v6, s21, v7")
    a("ds_write_b128 v6, v[48:51]")
    a("v_and_b32 v7, 7, v0")
    a("v_lshlrev_b32 v7, 2, v7")
    a("v_add_u32 v7, 98560, v7")
    a("s_waitcnt lgkmcnt(0)")
    a("s_barrier")
    for w in range(4):
        a("ds_read_b32 v%d, v7 offset:%d" % (48 + w, 64 * w))
        a("ds_read_b32 v%d, v7 offset:%d" % (52 + w, 64 * w + 32))
    a("s_waitcnt lgkmcnt(0)")
    a("v_add_f32 v48, v48, v49")
    a("v_add_f32 v50, v50, v51")
    a("v_add_f32 v52, v52, v53")
    a("v_add_f32 v54, v54, v55")
    a("v_add_f32 v48, v48, v50")
    a("v_add_f32 v52, v52, v54")
    bf16r(a, 48, 48)
    bf16r(a, 52, 52)
    a("v_mul_f32 v49, 0xbfb8aa3b, v48")
    a("v_exp_f32 v49, v49")
    a("s_nop 0")
    a("v_add_f32 v49, 1.0, v49")
    a("v_rcp_f32 v49, v49")
    a("s_nop 0")
    a("v_mul_f32 v48, v48, v49")
    bf16r(a, 48, 48)
    a("v_mul_f32 v48, v48, v52")
    bf16r(a, 48, 48)
    a("s_nop 0")
    for j in range(8):
        a("v_readlane_b32 s%d, v48, %d" % (4 + j, j))
    a("v_mov_b32 v50, 0")
    a("v_mov_b32 v51, 0")
    for j in range(8):
        unpack(a, 52, 53, 216 + j)
        a("v_fmac_f32 v50, s%d, v52" % (4 + j))
        a("v_fmac_f32 v51, s%d, v53" % (4 + j))
    a("v_lshlrev_b32 v6, 3, v199")
    a("s_lshl_b32 s20, s66, 11")
    a("s_add_u32 s20, s20, %d" % YP_OFF)
    a("buffer_store_dwordx2 v[50:51], v6, s[68:71], s20 offen%s" % SC)
    stamp(a, 4)
    a("s_endpgm")

    a.label("k2_final")
    a("s_sub_u32 s18, s58, 4")
    a("s_lshl_b32 s18, s18, 3")
    a("s_add_u32 s18, s18, s59")
    a("s_sub_u32 s18, s18, 24")
    a("s_lshl_b32 s18, s18, 1")
    a("s_add_u32 s18, s18, s17")
    a("v_lshrrev_b32 v5, 4, v0")
    a("v_lshlrev_b32 v3, 2, v5")
    a("s_lshl_b32 s19, s18, 4")
    a("v_add_u32 v3, s19, v3")
    a("v_add_u32 v68, v67, v3")

    def hcond():
        a("v_max_u32 v4, v69, v75")
        a("v_cmp_eq_u32 vcc, -1, v4")
    poll(a, "k2_poll5", ["buffer_load_dword v75, v68, s[68:71], s20 offen%s" % SC,
                         "buffer_load_dword v69, v68, s[68:71], s20 offen offset:1024%s" % SC], hcond)
    a("v_and_b32 v52, 0xffff0000, v64")
    a("v_ashrrev_i32 v53, 31, v52")
    a("v_not_b32 v53, v53")
    a("v_and_b32 v53, 0x7fff0000, v53")
    a("v_or_b32 v53, 0x80000000, v53")
    a("v_xor_b32 v52, v52, v53")
    a("v_mul_f32 v53, 0xbfb8aa3b, v52")
    a("v_exp_f32 v53, v53")
    a("s_nop 0")
    a("v_add_f32 v53, 1.0, v53")
    a("v_rcp_f32 v53, v53")
    a("s_nop 0")
    bf16r(a, 44, 53)
    unpack(a, 40, 41, 69)
    unpack(a, 42, 43, 75)
    a("v_lshlrev_b32 v45, 10, v66")
    a("v_add_u32 v45, v45, v3")
    a("v_lshlrev_b32 v1, 11, v0")
    a("s_lshl_b32 s19, s18, 5")
    a("v_add_u32 v1, s19, v1")
    a("v_cmp_gt_u32 vcc, 32, v0")
    a("v_mov_b32 v6, 0x40000000")
    a("v_cndmask_b32 v6, v6, v1, vcc")
    for i in range(4):
        a("s_mov_b32 s%d, %d" % (24 + i, YP_OFF + 131072 * i))
    loads = []
    for i in range(4):
        vo = 1 if i < 3 else 6
        loads.append("buffer_load_dwordx4 v[%d:%d], v%d, s[68:71], s%d offen%s" % (8 + 8 * i, 11 + 8 * i, vo, 24 + i, SC))
        loads.append("buffer_load_dwordx4 v[%d:%d], v%d, s[68:71], s%d offen offset:16%s" % (12 + 8 * i, 15 + 8 * i, vo, 24 + i, SC))

    def ycond():
        a("v_max3_u32 v4, v8, v9, v10")
        for i in range(11, 39, 2):
            a("v_max3_u32 v4, v4, v%d, v%d" % (i, i + 1))
        a("v_max_u32 v4, v4, v39")
        a("v_cmp_eq_u32 vcc, -1, v4")
    if PD > 1:
        def yl(k):
            b = 96 + 32 * k
            l = []
            for i in range(4):
                vo = 1 if i < 3 else 6
                l.append("buffer_load_dwordx4 v[%d:%d], v%d, s[68:71], s%d offen%s" % (b + 8 * i, b + 3 + 8 * i, vo, 24 + i, SC))
                l.append("buffer_load_dwordx4 v[%d:%d], v%d, s[68:71], s%d offen offset:16%s" % (b + 4 + 8 * i, b + 7 + 8 * i, vo, 24 + i, SC))
            return l

        def yc(k):
            b = 96 + 32 * k
            a("v_max3_u32 v4, v%d, v%d, v%d" % (b, b + 1, b + 2))
            for i in range(3, 31, 2):
                a("v_max3_u32 v4, v4, v%d, v%d" % (b + i, b + i + 1))
            a("v_max_u32 v4, v4, v%d" % (b + 31))
            a("v_cmp_eq_u32 vcc, -1, v4")

        def yd(k):
            b = 96 + 32 * k
            for i in range(16):
                a("v_mov_b64 v[%d:%d], v[%d:%d]" % (8 + 2 * i, 9 + 2 * i, b + 2 * i, b + 2 * i + 1))
        poll_pipe(a, "k2_poll3", 3, 8, yl, yc, yd)
    else:
        poll(a, "k2_poll3", loads, ycond)
    for i in range(4):
        a("v_pk_add_f32 v[%d:%d], v[%d:%d], v[%d:%d]" % (8 + 2 * i, 9 + 2 * i, 8 + 2 * i, 9 + 2 * i, 16 + 2 * i, 17 + 2 * i))
        a("v_pk_add_f32 v[%d:%d], v[%d:%d], v[%d:%d]" % (24 + 2 * i, 25 + 2 * i, 24 + 2 * i, 25 + 2 * i, 32 + 2 * i, 33 + 2 * i))
    for i in range(4):
        a("v_pk_add_f32 v[%d:%d], v[%d:%d], v[%d:%d]" % (8 + 2 * i, 9 + 2 * i, 8 + 2 * i, 9 + 2 * i, 24 + 2 * i, 25 + 2 * i))
    a("s_nop 1")
    for i in range(4):
        a("v_permlane32_swap_b32 v%d, v%d" % (8 + i, 12 + i))
    a("s_nop 1")
    for i in range(4):
        a("v_add_f32 v%d, v%d, v%d" % (8 + i, 8 + i, 12 + i))
    a("s_nop 1")
    for i in range(2):
        a("v_permlane16_swap_b32 v%d, v%d" % (8 + i, 10 + i))
    a("s_nop 1")
    for i in range(2):
        a("v_add_f32 v%d, v%d, v%d" % (8 + i, 8 + i, 10 + i))
    for r in (8, 4, 2, 1):
        a("s_nop 1")
        for i in range(2):
            a("v_add_f32_dpp v%d, v%d, v%d row_ror:%d row_mask:0xf bank_mask:0xf" % (8 + i, 8 + i, 8 + i, r))
    for i in range(2):
        bf16r(a, 8 + i, 8 + i)
        a("v_mul_f32 v%d, v%d, v44" % (8 + i, 8 + i))
        bf16r(a, 8 + i, 8 + i)
        a("v_add_f32 v%d, v%d, v%d" % (8 + i, 8 + i, 42 + i))
        bf16r(a, 8 + i, 8 + i)
        a("v_add_f32 v%d, v%d, v%d" % (8 + i, 8 + i, 40 + i))
    a("v_cvt_pk_bf16_f32 v8, v8, v9")
    a("v_and_b32 v6, 15, v0")
    a("v_cmp_eq_u32 vcc, 0, v6")
    a("s_and_saveexec_b64 s[30:31], vcc")
    a("buffer_store_dword v8, v45, s[80:83], 0 offen")
    a("s_mov_b64 exec, -1")
    if gen.STAMPS:
        a("s_waitcnt vmcnt(0)")
    stamp(a, 4)
    a.label("k2_exit")
    a("s_endpgm")
    return name, 248


def main(out):
    head = open("cdna_kernels/%s.s.ref" % NAME).read().split("\n")
    a = A()
    for line in head:
        if line.startswith(";") and "@launch" not in line:
            a.raw(line)
    a.raw("; @launch kernel=k1_kernel grid=(256,1,1) block=(512,1,1) lds=132608")
    a.raw("; @launch kernel=k2_kernel grid=(256,1,1) block=(512,1,1) lds=163840")
    a.raw('.amdgcn_target "amdgcn-amd-amdhsa--gfx950"')
    gen.ZERO_FLAGS = FLG_OFF
    gen.FILL = (SELROW, YP_OFF)
    descs = [gen.k1b(a), k2x(a)]
    for name, vg in descs:
        kernel_desc(a, name, vg, 96)
    open(out, "w").write(a.text())


if __name__ == "__main__":
    args = [x for x in sys.argv[1:] if not x.startswith("--")]
    if "--stamps" in sys.argv:
        gen.STAMPS = True
    for x in sys.argv:
        if x.startswith("--exp="):
            gen.EXP = set(x[6:].split(","))
        if x == "--nt1off":
            gen.NT1 = ""
        if x.startswith("--ntw="):
            gen.NTW = " " + x[6:].replace(",", " ")
        if x.startswith("--scp="):
            SCP = " " + x[6:].replace(",", " ")
        if x.startswith("--scl="):
            SCL = " " + x[6:].replace(",", " ")
        if x == "--ntt":
            NTT = " nt"
        if x.startswith("--pd="):
            PD = int(x[5:])
        if x.startswith("--pgap="):
            PGAP = int(x[7:])
        if x.startswith("--nrep="):
            NREP = int(x[7:])
        if x == "--ntq":
            NTQ = " nt"
        if x.startswith("--ltouch="):
            LTOUCH = int(x[9:])
        if x.startswith("--sleep="):
            SLEEP = int(x[8:])
    main(args[0] if args else "cdna_kernels/%s.s" % NAME)
```

```python
import sys
import gen
from gen import (A, NAME, kernel_head, kernel_desc, srd, add64, bf16r, unpack, allreduce64, wave_split,
                 stamp, stampc, stamp_init, SLOT, NSLOT, ACC, FR, AP, AQ, KA_WS)

ABT_OFF = 0
PART_OFF = 4 << 20
FLAG0 = 12 << 20
FLAG1 = FLAG0 + 16384
KEYS = FLAG1 + 32768
YP_OFF = 15 << 20
SELROW = 16 << 20
WS_SRD_SIZE = 32 << 20
NREP = 16
SC = " sc1"
SPIN_MAX = 1 << 20
SLEEP = 4
NT = " nt"
NTQ = " nt"
PFN = 16
STATS_LDS = 4 * SLOT
SUMW_LDS = STATS_LDS + 1024
NONCE_LDS = STATS_LDS + 2048


def poll(a, lbl, loads, cond):
    a("s_mov_b32 s31, 0")
    a.label(lbl)
    for l in loads:
        a(l)
    a("s_waitcnt vmcnt(0)")
    cond()
    a("s_add_u32 s31, s31, 1")
    a("s_nop 1")
    a("s_cmp_eq_u64 vcc, 0")
    a("s_cbranch_scc1 %s_done" % lbl)
    a("s_cmp_ge_u32 s31, %d" % SPIN_MAX)
    a("s_cbranch_scc1 %s_done" % lbl)
    a("s_sleep %d" % SLEEP)
    a("s_branch %s" % lbl)
    a.label(lbl + "_done")


def kx(a, name):
    gen.STV = 254
    EXP = gen.EXP
    kernel_head(a, name)
    a("s_cmp_ge_u32 s2, 256")
    a("s_cbranch_scc1 kx_exit")
    a("s_load_dwordx16 s[32:47], s[0:1], 0")
    a("s_load_dwordx8 s[48:55], s[0:1], 64")
    a("s_load_dwordx2 s[56:57], s[0:1], %d" % KA_WS)
    wave_split(a)
    a("s_and_b32 s58, s2, 7")
    a("s_lshr_b32 s59, s2, 3")
    a("s_and_b32 s60, s58, 1")
    a("s_lshr_b32 s61, s58, 1")
    a("s_and_b32 s62, s59, 3")
    a("s_lshr_b32 s63, s59, 2")
    a("s_lshl_b32 s67, s60, 3")
    a("s_add_u32 s63, s63, s67")
    a("s_lshl_b32 s64, s63, 4")
    a("s_lshl_b32 s67, s62, 2")
    a("s_add_u32 s64, s64, s67")
    a("s_add_u32 s64, s64, s61")
    a("s_lshr_b32 s65, s59, 3")
    a("s_lshl_b32 s65, s65, 3")
    a("s_add_u32 s65, s65, s58")
    a("s_and_b32 s88, s61, 1")
    a("s_lshr_b32 s89, s61, 1")
    a("s_lshl_b32 s85, s88, 3")
    a("s_lshl_b32 s67, s60, 2")
    a("s_add_u32 s85, s85, s67")
    a("s_waitcnt lgkmcnt(0)")
    stamp_init(a, 0, 56, 57)
    stamp(a, 0)
    srd(a, 68, 56, 57, WS_SRD_SIZE)
    srd(a, 72, 54, 55, 256)
    a("v_mov_b32 v197, 0")
    a("s_cmp_lg_u32 s2, 128")
    a("s_cbranch_scc1 kx_nononce")
    a("s_cmp_lg_u32 s16, 0")
    a("s_cbranch_scc1 kx_nononce")
    a("s_memrealtime s[18:19]")
    a("s_waitcnt lgkmcnt(0)")
    a("s_or_b32 s84, s18, 1")
    a("v_mov_b32 v194, s84")
    a("s_mov_b64 exec, 1")
    a("buffer_store_dword v194, v197, s[72:75], 0 offen%s" % SC)
    a("s_mov_b64 exec, -1")
    a.label("kx_nononce")
    a("s_cmp_ge_u32 s59, 16")
    a("s_cbranch_scc1 kx_pref")
    a("s_add_u32 s85, s85, s62")
    a("s_lshr_b32 s86, s59, 2")
    a("s_lshl_b32 s87, s89, 2")
    a("s_add_u32 s87, s87, s86")
    a("s_cmp_ge_u32 s16, 4")
    a("s_cbranch_scc1 kx_loader1")
    a("s_mov_b32 s30, 0")
    a("s_mov_b32 s22, 8")

    a.label("kx_cons")
    a("s_lshr_b32 s17, s16, 1")
    a("s_and_b32 s18, s16, 1")
    a("v_and_b32 v1, 15, v0")
    a("v_lshrrev_b32 v2, 4, v0")
    a("v_lshrrev_b32 v3, 1, v1")
    a("v_lshlrev_b32 v4, 7, v1")
    a("s_lshl_b32 s19, s17, 13")
    a("s_lshl_b32 s20, s18, 13")
    a("s_add_u32 s20, s20, 16384")
    for j in range(2):
        a("v_add_u32 v5, %d, v2" % (4 * j))
        a("v_xor_b32 v5, v5, v3")
        a("v_lshlrev_b32 v5, 4, v5")
        a("v_add_u32 v5, v5, v4")
        a("v_add_u32 v%d, s19, v5" % (AP + j))
        a("v_add_u32 v%d, s20, v5" % (AQ + j))
    for r in range(32):
        a("v_mov_b64 v[%d:%d], 0" % (ACC + 2 * r, ACC + 2 * r + 1))
    a("s_mov_b32 s23, %d" % SLOT)
    a("s_mov_b32 s24, %d" % SLOT)
    a("s_mov_b32 s25, 1")
    a("s_mov_b32 s27, %d" % (-(NSLOT - 1) * SLOT))
    a("s_mov_b32 s28, %d" % SLOT)

    def rdlist(j):
        f = FR + 32 * j
        l = []
        for t in range(4):
            l.append("ds_read_b128 v[%d:%d], v%d offset:%d" % (f + 4 * t, f + 4 * t + 3, AP + j, 2048 * t))
            l.append("ds_read_b128 v[%d:%d], v%d offset:%d" % (f + 16 + 4 * t, f + 16 + 4 * t + 3, AQ + j, 2048 * t))
        return l

    book = ["s_mov_b32 s23, s24",
            "s_add_u32 s25, s25, 1",
            "s_cmp_eq_u32 s25, %d" % NSLOT,
            "s_cselect_b32 s26, %d, 0" % NSLOT,
            "s_sub_u32 s25, s25, s26",
            "s_cmp_eq_u32 s25, %d" % (NSLOT - 1),
            "s_cselect_b32 s24, s27, s28",
            "s_sub_u32 s22, s22, 1",
            "s_cmp_lt_u32 s22, 2"]
    a("s_barrier")
    for r in rdlist(0):
        a(r)
    a("v_add_u32 v%d, s23, v%d" % (AP, AP))
    a("v_add_u32 v%d, s23, v%d" % (AQ, AQ))
    a.label("kx_cloop")
    for j in range(2):
        jn = 1 - j
        sd = 23 if j == 0 else 24
        f = FR + 32 * j
        rd = rdlist(jn)
        a("s_waitcnt lgkmcnt(0)")
        k = 0
        for ti in range(4):
            for tj in range(4):
                c = ACC + 4 * (4 * ti + tj)
                a("v_mfma_f32_16x16x32_bf16 v[%d:%d], v[%d:%d], v[%d:%d], v[%d:%d]" % (
                    c, c + 3, f + 4 * ti, f + 4 * ti + 3, f + 16 + 4 * tj, f + 16 + 4 * tj + 3, c, c + 3))
                if k < 8:
                    a(rd[k])
                if k == 8:
                    a("v_add_u32 v%d, s%d, v%d" % (AP + jn, sd, AP + jn))
                if k == 9:
                    a("v_add_u32 v%d, s%d, v%d" % (AQ + jn, sd, AQ + jn))
                if j == 1 and 10 <= k < 15:
                    for b in book[2 * (k - 10):2 * (k - 10) + 2]:
                        a(b)
                k += 1
    a("s_cbranch_scc1 kx_nobar")
    a("s_barrier")
    a.label("kx_nobar")
    a("s_cmp_lg_u32 s22, 0")
    a("s_cbranch_scc1 kx_cloop")
    a("s_waitcnt lgkmcnt(0)")
    a("s_cmp_lg_u32 s30, 0")
    a("s_cbranch_scc1 kx_epi2")

    stamp(a, 1)
    a("s_lshl_b32 s19, s17, 9")
    a("s_add_u32 s19, s19, %d" % STATS_LDS)
    a("v_lshlrev_b32 v7, 5, v2")
    a("v_add_u32 v7, s19, v7")
    a("s_lshl_b32 s19, s18, 8")
    a("s_add_u32 s19, s19, %d" % SUMW_LDS)
    a("v_lshlrev_b32 v6, 2, v1")
    a("v_add_u32 v6, s19, v6")
    a("v_mov_b32 v5, %d" % NONCE_LDS)
    a("s_barrier")
    a("ds_read_b32 v16, v5")
    for tj in range(4):
        a("ds_read_b32 v%d, v6 offset:%d" % (20 + tj, 64 * tj))
    for ti in range(4):
        a("ds_read_b128 v[%d:%d], v7 offset:%d" % (32 + 8 * ti, 35 + 8 * ti, 128 * ti))
        a("ds_read_b128 v[%d:%d], v7 offset:%d" % (36 + 8 * ti, 39 + 8 * ti, 128 * ti + 16))
    a("s_waitcnt lgkmcnt(0)")
    a("v_readfirstlane_b32 s84, v16")
    for ti in range(4):
        for tj in range(4):
            c = ACC + 4 * (4 * ti + tj)
            for r in range(4):
                a("v_fma_f32 v%d, -v%d, v%d, v%d" % (c + r, 32 + 8 * ti + 2 * r, 20 + tj, c + r))
                a("v_mul_f32 v%d, v%d, v%d" % (c + r, c + r, 33 + 8 * ti + 2 * r))
    a("s_lshl_b32 s21, s16, 15")
    a("s_lshl_b32 s19, s87, 5")
    a("s_lshl_b32 s20, s85, 1")
    a("s_add_u32 s19, s19, s20")
    a("s_add_u32 s19, s19, s17")
    a("s_lshl_b32 s19, s19, 14")
    a("s_lshl_b32 s20, s18, 13")
    a("s_add_u32 s19, s19, s20")
    a("s_lshl_b32 s29, s87, 4")
    a("s_add_u32 s29, s29, s85")
    a("s_lshl_b32 s29, s29, 7")
    a("s_add_u32 s29, s29, %d" % FLAG0)
    a("s_branch kx_epi")
    a.label("kx_epi2")
    stamp(a, 3)
    a("s_mul_i32 s21, s16, 9216")
    a("s_add_u32 s21, s21, 32768")
    a("s_lshl_b32 s19, s64, 15")
    a("s_lshl_b32 s20, s16, 13")
    a("s_add_u32 s19, s19, s20")
    a("s_add_u32 s19, s19, %d" % PART_OFF)
    a("s_lshl_b32 s29, s64, 7")
    a("s_add_u32 s29, s29, %d" % FLAG1)
    a("s_nop 4")
    a.label("kx_epi")
    a("v_mul_u32_u24 v4, 144, v1")
    a("v_lshlrev_b32 v5, 3, v2")
    a("v_add3_u32 v4, v4, v5, s21")
    a("v_lshrrev_b32 v6, 3, v0")
    a("v_and_b32 v7, 7, v0")
    a("v_lshlrev_b32 v7, 4, v7")
    a("v_mul_u32_u24 v5, 144, v6")
    a("v_add3_u32 v5, v5, v7, s21")
    a("s_add_u32 s20, s19, 4096")
    a("v_lshlrev_b32 v6, 4, v0")
    n = 0
    for tj in range(4):
        for ti in range(4):
            c = ACC + 4 * (4 * ti + tj)
            d = FR + 2 * (n % 8)
            n += 1
            a("v_cvt_pk_bf16_f32 v%d, v%d, v%d" % (d, c, c + 1))
            a("v_cvt_pk_bf16_f32 v%d, v%d, v%d" % (d + 1, c + 2, c + 3))
            a("ds_write_b64 v4, v[%d:%d] offset:%d" % (d, d + 1, tj * 2304 + ti * 32))
    a("s_waitcnt lgkmcnt(0)")
    for i in range(8):
        a("ds_read_b128 v[%d:%d], v5 offset:%d" % (FR + 16 + 4 * i, FR + 19 + 4 * i, i * 1152))
    for i in range(8):
        a("s_waitcnt lgkmcnt(%d)" % (7 - i))
        a("buffer_store_dwordx4 v[%d:%d], v6, s[68:71], s%d offen offset:%d%s" % (FR + 16 + 4 * i, FR + 19 + 4 * i, 19 + (i >> 2), 1024 * (i & 3), SC))
    a("s_lshl_b32 s20, s16, 2")
    a("s_add_u32 s29, s29, s20")
    a("v_mov_b32 v4, 0")
    a("v_mov_b32 v5, s84")
    a("s_waitcnt vmcnt(0)")
    a("s_mov_b64 exec, 1")
    a("buffer_store_dword v5, v4, s[68:71], s29 offen%s" % SC)
    a("s_mov_b64 exec, -1")
    a("s_cmp_lg_u32 s30, 0")
    a("s_cbranch_scc1 kx_rows")
    stamp(a, 2)

    a.label("kx_cons2")
    a("s_lshl_b32 s18, s16, 6")
    a("v_add_u32 v199, s18, v0")
    a("v_mov_b32 v16, -1")
    a("v_mov_b32 v17, -1")
    a("v_mov_b32 v18, -1")
    a("v_mov_b32 v19, -1")
    a("s_cmp_lt_u32 s16, 2")
    a("s_cbranch_scc1 kx_c2a")
    a("s_lshl_b32 s20, s64, 11")
    a("s_and_b32 s21, s16, 1")
    a("s_lshl_b32 s21, s21, 10")
    a("s_add_u32 s20, s20, s21")
    a("s_add_u32 s20, s20, %d" % SELROW)
    a("v_lshlrev_b32 v4, 4, v0")
    a("buffer_store_dwordx4 v[16:19], v4, s[68:71], s20 offen%s" % SC)
    a.label("kx_c2a")
    a("s_cmp_ge_u32 s65, 28")
    a("s_cbranch_scc1 kx_c2final")
    a("s_and_b32 s66, s59, 7")
    a("s_lshl_b32 s26, s65, 3")
    a("s_add_u32 s66, s66, s26")
    srd(a, 4, 46, 47, 512 * 3584)
    srd(a, 8, 48, 49, 512 * 3584)
    srd(a, 12, 50, 51, 1792 * 1024)
    a("s_movk_i32 s26, 7168")
    a("v_mul_lo_u32 v5, v199, s26")
    a("s_lshl_b32 s26, s66, 4")
    a("v_add_u32 v5, s26, v5")
    a("v_lshlrev_b32 v4, 2, v199")
    a("s_lshl_b32 s20, s66, 13")
    a("s_add_u32 s21, s20, 4096")
    a("buffer_load_dwordx4 v[200:203], v5, s[4:7], 0 offen")
    a("buffer_load_dwordx4 v[204:207], v5, s[4:7], 0 offen offset:3584")
    a("buffer_load_dwordx4 v[208:211], v5, s[8:11], 0 offen")
    a("buffer_load_dwordx4 v[212:215], v5, s[8:11], 0 offen offset:3584")
    for j in range(4):
        a("buffer_load_dword v%d, v4, s[12:15], s20 offen offset:%d" % (216 + j, 1024 * j))
    for j in range(4):
        a("buffer_load_dword v%d, v4, s[12:15], s21 offen offset:%d" % (220 + j, 1024 * j))
    a("s_branch kx_c2done")
    a.label("kx_c2final")
    a("s_sub_u32 s66, s58, 4")
    a("s_lshl_b32 s66, s66, 3")
    a("s_add_u32 s66, s66, s59")
    a("s_sub_u32 s66, s66, 24")
    a("s_lshl_b32 s66, s66, 1")
    a("s_add_u32 s66, s66, s16")
    a("s_cmp_ge_u32 s16, 2")
    a("s_cbranch_scc1 kx_c2done")
    a("v_lshlrev_b32 v4, 11, v0")
    a("s_lshl_b32 s19, s66, 5")
    a("v_add_u32 v4, s19, v4")
    for i in range(4):
        a("s_mov_b32 s20, %d" % (YP_OFF + 131072 * i))
        a("buffer_store_dwordx4 v[16:19], v4, s[68:71], s20 offen%s" % SC)
        a("buffer_store_dwordx4 v[16:19], v4, s[68:71], s20 offen offset:16%s" % SC)
    a.label("kx_c2done")
    a("s_mov_b32 s30, 1")
    a("s_mov_b32 s22, 16")
    a("s_barrier")
    a("s_branch kx_cons")

    a.label("kx_loader1")
    a("s_lshl_b32 s19, s85, 17")
    a("s_add_u32 s22, s32, s19")
    a("s_addc_u32 s23, s33, 0")
    srd(a, 4, 22, 23, 131072)
    a("s_cmp_eq_u32 s89, 0")
    a("s_cselect_b32 s22, s38, s40")
    a("s_cselect_b32 s23, s39, s41")
    a("s_lshl_b32 s19, s86, 17")
    add64(a, 22, 23, "s19")
    srd(a, 8, 22, 23, 131072)
    a("s_sub_u32 s17, s16, 4")
    a("v_lshrrev_b32 v6, 3, v0")
    a("v_lshrrev_b32 v7, 4, v0")
    a("v_and_b32 v16, 7, v0")
    a("s_lshl_b32 s18, s17, 5")
    for j in range(4):
        a("v_add_u32 v18, %d, v7" % (4 * j))
        a("v_and_b32 v18, 7, v18")
        a("v_xor_b32 v18, v18, v16")
        a("v_lshlrev_b32 v18, 4, v18")
        a("v_add3_u32 v17, v6, s18, %d" % (8 * j))
        a("v_lshlrev_b32 v17, 10, v17")
        a("v_add_u32 v17, v17, v18")
        a("v_subrev_u32 v%d, %d, v17" % (8 + j, 1024 * j))
    a("s_lshl_b32 s21, s17, 12")
    a("s_mov_b32 s20, 0")
    a("s_mov_b32 s22, 0")
    a("s_mov_b32 s29, -4")
    a("v_and_b32 v1, 15, v0")
    a("v_lshrrev_b32 v3, 1, v1")
    a("v_lshlrev_b32 v4, 7, v1")
    for sx in range(2):
        a("v_add_u32 v17, %d, v7" % (4 * sx))
        a("v_xor_b32 v17, v17, v3")
        a("v_lshlrev_b32 v17, 4, v17")
        a("v_add3_u32 v%d, v17, v4, s21" % (32 + sx))
    for r in range(12):
        a("v_mov_b64 v[%d:%d], 0" % (64 + 2 * r, 65 + 2 * r))
    for r in range(4):
        a("v_mov_b32 v%d, 0x3f803f80" % (88 + r))
    a.label("kx_l1loop")
    a("s_cmp_lt_i32 s29, 0")
    a("s_cbranch_scc1 kx_l1issue")
    a("s_cmp_lt_u32 s29, 5")
    a("s_cbranch_scc1 kx_l1w16")
    a("s_cmp_eq_u32 s29, 5")
    a("s_cbranch_scc1 kx_l1w8")
    a("s_waitcnt vmcnt(0)")
    a.label("kx_l1w8")
    a("s_waitcnt vmcnt(8)")
    a.label("kx_l1w16")
    a("s_waitcnt vmcnt(16)")
    a("s_cmp_eq_u32 s29, 7")
    a("s_cbranch_scc1 kx_l1nob")
    a("s_barrier")
    a.label("kx_l1nob")
    for sx in range(2):
        f = 96 + 16 * sx
        a("ds_read_b128 v[%d:%d], v%d" % (f, f + 3, 32 + sx))
        a("ds_read_b128 v[%d:%d], v%d offset:2048" % (f + 4, f + 7, 32 + sx))
        a("ds_read_b128 v[%d:%d], v%d offset:16384" % (f + 8, f + 11, 32 + sx))
        a("ds_read_b128 v[%d:%d], v%d offset:18432" % (f + 12, f + 15, 32 + sx))
    a("s_cmp_eq_u32 s29, 4")
    a("s_cselect_b32 s19, %d, 0" % (NSLOT * SLOT))
    a("s_sub_u32 s19, %d, s19" % SLOT)
    a("v_add_u32 v32, s19, v32")
    a("v_add_u32 v33, s19, v33")
    a.label("kx_l1issue")
    a("s_cmp_ge_u32 s22, 8")
    a("s_cbranch_scc1 kx_l1noissue")
    a("s_mov_b32 m0, s21")
    a("s_add_u32 s19, s21, 16384")
    for j in range(4):
        a("buffer_load_dwordx4 v%d, s[4:7], s20 offen offset:%d%s lds" % (8 + j, 1024 * j, NT))
    a("s_mov_b32 m0, s19")
    a("s_add_u32 s22, s22, 1")
    for j in range(4):
        a("buffer_load_dwordx4 v%d, s[8:11], s20 offen offset:%d%s lds" % (8 + j, 1024 * j, NT))
    a("s_add_u32 s20, s20, 128")
    a("s_add_u32 s21, s21, %d" % SLOT)
    a("s_cmp_eq_u32 s22, %d" % NSLOT)
    a("s_cselect_b32 s19, %d, 0" % (SLOT * NSLOT))
    a("s_sub_u32 s21, s21, s19")
    a.label("kx_l1noissue")
    a("s_cmp_lt_i32 s29, 0")
    a("s_cbranch_scc1 kx_l1next")
    a("s_cmp_lg_u32 s29, 4")
    a("s_cbranch_scc1 kx_l1non")
    a("buffer_load_dword v194, v197, s[72:75], 0 offen%s" % SC)
    a.label("kx_l1non")
    for sx in range(2):
        a("s_waitcnt lgkmcnt(%d)" % (4 if sx == 0 else 0))
        f = 96 + 16 * sx
        for rb in range(2):
            x = f + 4 * rb
            a("v_mfma_f32_16x16x32_bf16 v[%d:%d], v[%d:%d], v[%d:%d], v[%d:%d]" % (64 + 4 * rb, 67 + 4 * rb, x, x + 3, x, x + 3, 64 + 4 * rb, 67 + 4 * rb))
            a("v_mfma_f32_16x16x32_bf16 v[%d:%d], v[%d:%d], v[88:91], v[%d:%d]" % (72 + 4 * rb, 75 + 4 * rb, x, x + 3, 72 + 4 * rb, 75 + 4 * rb))
            a("v_mfma_f32_16x16x32_bf16 v[%d:%d], v[88:91], v[%d:%d], v[%d:%d]" % (80 + 4 * rb, 83 + 4 * rb, x + 8, x + 11, 80 + 4 * rb, 83 + 4 * rb))
    a.label("kx_l1next")
    a("s_add_i32 s29, s29, 1")
    a("s_cmp_lt_i32 s29, 8")
    a("s_cbranch_scc1 kx_l1loop")
    a("v_and_b32 v16, 3, v0")
    a("v_lshrrev_b32 v17, 2, v1")
    a("s_nop 7")
    a("v_cmp_eq_u32 s[24:25], 1, v16")
    a("v_cmp_eq_u32 s[26:27], 2, v16")
    a("v_cmp_eq_u32 s[28:29], 3, v16")
    a("s_lshl_b32 s19, s17, 8")
    a("s_add_u32 s19, s19, %d" % STATS_LDS)
    a("v_lshlrev_b32 v6, 3, v1")
    a("v_add_u32 v6, s19, v6")
    a("s_lshl_b32 s19, s17, 7")
    a("s_add_u32 s19, s19, %d" % SUMW_LDS)
    a("v_lshlrev_b32 v18, 2, v1")
    a("v_add_u32 v18, s19, v18")
    a("ds_write_b32 v18, v80")
    a("ds_write_b32 v18, v84 offset:64")
    for base in (64, 68, 72, 76):
        a("v_cndmask_b32 v%d, v%d, v%d, s[24:25]" % (base, base, base + 1))
        a("v_cndmask_b32 v%d, v%d, v%d, s[26:27]" % (base, base, base + 2))
        a("v_cndmask_b32 v%d, v%d, v%d, s[28:29]" % (base, base, base + 3))
    a("v_cmp_eq_u32 vcc, v17, v7")
    a("s_and_saveexec_b64 s[24:25], vcc")
    for rb in range(2):
        a("v_mul_f32 v28, 0x3b000000, v%d" % (72 + 4 * rb))
        a("v_mul_f32 v29, 0x3b000000, v%d" % (64 + 4 * rb))
        a("v_fma_f32 v29, -v28, v28, v29")
        a("v_max_f32 v29, 0, v29")
        bf16r(a, 30, 28)
        bf16r(a, 29, 29)
        a("v_add_f32 v29, 0x3727c5ac, v29")
        bf16r(a, 29, 29)
        a("v_sqrt_f32 v29, v29")
        a("s_nop 0")
        bf16r(a, 29, 29)
        a("v_rcp_f32 v31, v29")
        a("s_nop 0")
        a("ds_write_b64 v6, v[30:31] offset:%d" % (128 * rb))
    a("s_mov_b64 exec, -1")
    a("s_cmp_lg_u32 s16, 4")
    a("s_cbranch_scc1 kx_l1s")
    a("v_cmp_eq_u32 vcc, 0, v194")
    a("s_nop 2")
    a("s_cmp_eq_u64 vcc, 0")
    a("s_cbranch_scc1 kx_polln_done")
    poll(a, "kx_polln", ["buffer_load_dword v194, v197, s[72:75], 0 offen%s" % SC], lambda: a("v_cmp_eq_u32 vcc, 0, v194"))
    a("v_mov_b32 v195, %d" % NONCE_LDS)
    a("ds_write_b32 v195, v194")
    a.label("kx_l1s")
    a("s_waitcnt lgkmcnt(0)")
    a("s_barrier")
    a("s_branch kx_loader2")

    a.label("kx_pref")
    a("s_sub_u32 s86, s59, 16")
    a("v_lshrrev_b32 v6, 3, v0")
    a("v_and_b32 v7, 7, v0")
    a("v_lshlrev_b32 v8, 12, v6")
    a("v_lshlrev_b32 v6, 10, v6")
    a("v_lshlrev_b32 v9, 7, v7")
    a("v_add_u32 v6, v6, v9")
    a("v_add_u32 v14, v8, v9")
    a("s_cmp_eq_u32 s89, 0")
    a("s_cselect_b32 s24, s38, s40")
    a("s_cselect_b32 s25, s39, s41")
    a("s_cselect_b32 s26, s34, s36")
    a("s_cselect_b32 s27, s35, s37")
    a("s_lshl_b32 s19, s85, 17")
    a("s_add_u32 s22, s32, s19")
    a("s_addc_u32 s23, s33, 0")
    a("s_cmp_lt_u32 s86, 8")
    a("s_cselect_b32 s22, s22, s24")
    a("s_cselect_b32 s23, s23, s25")
    srd(a, 4, 22, 23, 524288)
    a("s_and_b32 s19, s86, 7")
    a("s_lshl_b32 s19, s19, 16")
    a("s_lshl_b32 s20, s16, 13")
    a("s_add_u32 s19, s19, s20")
    a("buffer_load_dword v60, v6, s[4:7], s19 offen" + NT)
    a("s_lshl_b32 s19, s60, 22")
    a("s_lshl_b32 s20, s86, 18")
    a("s_add_u32 s19, s19, s20")
    a("s_lshl_b32 s20, s88, 11")
    a("s_add_u32 s19, s19, s20")
    a("s_lshl_b32 s20, s16, 15")
    a("s_add_u32 s19, s19, s20")
    add64(a, 26, 27, "s19")
    srd(a, 8, 26, 27, 7 * 4096 + 2048)
    if 8 < PFN < 16:
        a("v_cmp_gt_u32 vcc, %d, v7" % (PFN - 8))
        a("v_mov_b32 v15, 0x40000000")
        a("v_cndmask_b32 v15, v15, v14, vcc")
    else:
        a("v_mov_b32 v15, v14")
    a("s_lshl_b32 s19, s86, 3")
    a("s_add_u32 s19, s19, s16")
    a("s_mul_i32 s20, s19, 2731")
    a("s_lshr_b32 s20, s20, 16")
    a("s_mul_i32 s21, s20, 24")
    a("s_sub_u32 s21, s19, s21")
    a("s_lshl_b32 s20, s20, 3")
    a("s_add_u32 s20, s20, s58")
    a("s_movk_i32 s19, 3584")
    a("v_mul_lo_u32 v10, v0, s19")
    a("s_waitcnt vmcnt(0)")
    if PFN > 0:
        a("buffer_load_dword v62, v14, s[8:11], 0 offen" + NT)
    a("s_cmp_ge_u32 s20, 28")
    a("s_cbranch_scc1 kx_pf_done")
    a("s_cmp_ge_u32 s21, 16")
    a("s_cbranch_scc1 kx_pf_wd")
    a("s_cmp_lt_u32 s21, 8")
    a("s_cselect_b32 s22, s46, s48")
    a("s_cselect_b32 s23, s47, s49")
    srd(a, 12, 22, 23, 512 * 3584)
    a("s_and_b32 s21, s21, 7")
    a("s_mul_i32 s19, s21, %d" % (64 * 3584))
    a("s_lshl_b32 s20, s20, 7")
    a("s_add_u32 s19, s19, s20")
    a("buffer_load_dword v61, v10, s[12:15], s19 offen" + NT)
    a("s_branch kx_pf_done")
    a.label("kx_pf_wd")
    srd(a, 12, 50, 51, 1792 * 1024)
    a("s_sub_u32 s21, s21, 16")
    a("s_lshl_b32 s19, s20, 16")
    a("s_lshl_b32 s21, s21, 13")
    a("s_add_u32 s19, s19, s21")
    a("buffer_load_dword v61, v6, s[12:15], s19 offen" + NT)
    a.label("kx_pf_done")
    if PFN > 8:
        a("buffer_load_dword v63, v15, s[8:11], 0 offen offset:1024" + NT)
    a("s_cmp_lg_u32 s16, 0")
    a("s_cbranch_scc1 kx_pf_s")
    poll(a, "kx_pollp", ["buffer_load_dword v194, v197, s[72:75], 0 offen%s" % SC], lambda: a("v_cmp_eq_u32 vcc, 0, v194"))
    a("v_mov_b32 v195, %d" % NONCE_LDS)
    a("ds_write_b32 v195, v194")
    a("s_waitcnt lgkmcnt(0)")
    a.label("kx_pf_s")
    a("s_waitcnt vmcnt(0)")
    stamp(a, 1)
    a("s_barrier")
    a("s_cmp_ge_u32 s16, 4")
    a("s_cbranch_scc1 kx_loader2")
    a("v_mov_b32 v5, %d" % NONCE_LDS)
    a("ds_read_b32 v16, v5")
    a("s_waitcnt lgkmcnt(0)")
    a("v_readfirstlane_b32 s84, v16")
    a("s_branch kx_cons2")

    a.label("kx_loader2")
    a("v_mov_b32 v5, %d" % NONCE_LDS)
    a("ds_read_b32 v16, v5")
    a("s_lshl_b32 s19, s89, 2")
    a("s_add_u32 s19, s19, s62")
    a("s_lshl_b32 s24, s19, 11")
    a("s_lshl_b32 s19, s19, 19")
    a("s_lshl_b32 s20, s88, 18")
    a("s_add_u32 s19, s19, s20")
    a("s_add_u32 s22, s56, s19")
    a("s_addc_u32 s23, s57, 0")
    srd(a, 4, 22, 23, 16 * 16384)
    a("s_cmp_eq_u32 s89, 0")
    a("s_cselect_b32 s22, s34, s36")
    a("s_cselect_b32 s23, s35, s37")
    a("s_lshl_b32 s19, s63, 19")
    a("s_lshl_b32 s21, s88, 11")
    a("s_add_u32 s19, s19, s21")
    add64(a, 22, 23, "s19")
    srd(a, 8, 22, 23, 127 * 4096 + 2048)
    a("s_lshl_b32 s20, s88, 10")
    a("s_add_u32 s24, s24, s20")
    a("s_add_u32 s24, s24, %d" % FLAG0)
    a("s_sub_u32 s17, s16, 4")
    a("v_lshrrev_b32 v1, 3, v0")
    a("v_lshrrev_b32 v2, 4, v0")
    a("v_and_b32 v3, 7, v0")
    a("s_lshl_b32 s18, s17, 5")
    a("v_add_u32 v1, s18, v1")
    a("v_lshlrev_b32 v6, 7, v1")
    for j in range(4):
        a("v_add_u32 v4, %d, v1" % (8 * j))
        a("v_lshlrev_b32 v4, 12, v4")
        a("v_add_u32 v5, %d, v2" % (4 * j))
        a("v_and_b32 v5, 7, v5")
        a("v_xor_b32 v5, v5, v3")
        a("v_lshlrev_b32 v5, 4, v5")
        a("v_add_u32 v4, v4, v5")
        a("v_subrev_u32 v%d, %d, v4" % (8 + j, 1024 * j))
        a("v_add_u32 v%d, v6, v5" % (12 + j))
    a("s_waitcnt lgkmcnt(0)")
    a("v_readfirstlane_b32 s84, v16")
    a("s_lshl_b32 s21, s17, 12")
    a("s_mov_b32 s20, 0")
    a("s_add_u32 s19, s21, 16384")
    a.label("kx_l2q")
    a("s_mov_b32 m0, s19")
    a("s_add_u32 s19, s19, %d" % SLOT)
    for j in range(4):
        a("buffer_load_dwordx4 v%d, s[8:11], s20 offen offset:%d%s lds" % (8 + j, 1024 * j, NTQ))
    a("s_add_u32 s20, s20, 128")
    a("s_cmp_lt_u32 s20, 512")
    a("s_cbranch_scc1 kx_l2q")
    a("s_cmp_lg_u32 s16, 4")
    a("s_cbranch_scc1 kx_poll0_done")
    a("v_lshlrev_b32 v20, 7, v3")

    def f0cond():
        a("v_xor_b32 v24, s84, v24")
        a("v_xor_b32 v25, s84, v25")
        a("v_xor_b32 v26, s84, v26")
        a("v_xor_b32 v27, s84, v27")
        a("v_or3_b32 v24, v24, v25, v26")
        a("v_or_b32 v24, v24, v27")
        a("v_cmp_ne_u32 vcc, 0, v24")
    a("s_mov_b64 exec, 0xff")
    poll(a, "kx_poll0", ["buffer_load_dwordx4 v[24:27], v20, s[68:71], s24 offen%s" % SC], f0cond)
    a("s_mov_b64 exec, -1")
    stamp(a, 2)
    a("s_barrier")
    a("s_mov_b32 s26, 0")
    a("s_mov_b32 s19, s21")
    a.label("kx_l2p")
    a("s_mov_b32 m0, s19")
    a("s_add_u32 s19, s19, %d" % SLOT)
    for j in range(4):
        a("buffer_load_dwordx4 v%d, s[4:7], s26 offen offset:%d%s lds" % (12 + j, 1024 * j, SC))
    a("s_add_u32 s26, s26, 16384")
    a("s_cmp_lt_u32 s26, 65536")
    a("s_cbranch_scc1 kx_l2p")
    a("s_waitcnt vmcnt(8)")
    a("s_barrier")
    a("s_add_u32 s21, s21, %d" % (4 * SLOT))
    a("s_mov_b32 s25, 4")
    a("s_mov_b32 s22, 4")
    a.label("kx_l2loop")
    a("s_mov_b32 m0, s21")
    a("s_add_u32 s19, s21, 16384")
    for j in range(4):
        a("buffer_load_dwordx4 v%d, s[4:7], s26 offen offset:%d%s lds" % (12 + j, 1024 * j, SC))
    a("s_mov_b32 m0, s19")
    a("s_add_u32 s25, s25, 1")
    for j in range(4):
        a("buffer_load_dwordx4 v%d, s[8:11], s20 offen offset:%d%s lds" % (8 + j, 1024 * j, NTQ))
    a("s_add_u32 s20, s20, 128")
    a("s_add_u32 s26, s26, 16384")
    a("s_add_u32 s21, s21, %d" % SLOT)
    a("s_cmp_eq_u32 s25, %d" % NSLOT)
    a("s_cselect_b32 s19, %d, 0" % (SLOT * NSLOT))
    a("s_cselect_b32 s27, %d, 0" % NSLOT)
    a("s_sub_u32 s21, s21, s19")
    a("s_sub_u32 s25, s25, s27")
    a("s_add_u32 s22, s22, 1")
    a("s_cmp_lg_u32 s22, 5")
    a("s_cbranch_scc1 kx_l2w16")
    a("s_waitcnt vmcnt(12)")
    a.label("kx_l2w16")
    a("s_waitcnt vmcnt(16)")
    a("s_barrier")
    a("s_cmp_lt_u32 s22, 16")
    a("s_cbranch_scc1 kx_l2loop")
    a("s_waitcnt vmcnt(8)")
    a("s_barrier")
    a("s_waitcnt vmcnt(0)")
    a("s_barrier")
    stamp(a, 3)

    a.label("kx_rows")
    srd(a, 72, 32, 33, 2 << 20)
    srd(a, 76, 44, 45, 1024)
    srd(a, 80, 52, 53, 2 << 20)
    a("s_lshl_b32 s18, s64, 3")
    a("s_add_u32 s18, s18, s16")
    a("v_lshlrev_b32 v2, 4, v0")
    a("s_lshl_b32 s19, s18, 10")
    a("buffer_load_dwordx4 v[24:27], v2, s[72:75], s19 offen")
    a("buffer_load_dwordx4 v[28:31], v2, s[76:79], 0 offen")
    a("v_lshrrev_b32 v5, 4, v0")
    a("v_lshlrev_b32 v5, 17, v5")
    a("v_and_b32 v6, 8, v0")
    a("v_lshlrev_b32 v6, 11, v6")
    a("v_and_b32 v7, 7, v0")
    a("v_lshlrev_b32 v7, 4, v7")
    a("v_add3_u32 v5, v5, v6, v7")
    a("s_lshl_b32 s21, s63, 19")
    a("s_and_b32 s22, s18, 64")
    a("s_lshl_b32 s22, s22, 7")
    a("s_add_u32 s21, s21, s22")
    a("s_and_b32 s22, s18, 63")
    a("s_lshl_b32 s22, s22, 7")
    a("s_add_u32 s21, s21, s22")
    a("s_add_u32 s21, s21, %d" % PART_OFF)
    a("v_and_b32 v3, 15, v0")
    a("v_lshlrev_b32 v3, 7, v3")
    a("s_lshl_b32 s20, s63, 11")
    a("s_add_u32 s20, s20, %d" % FLAG1)
    a("s_cmp_lg_u32 s16, 0")
    a("s_cbranch_scc1 kx_poll1_done")

    def f1cond():
        a("v_xor_b32 v8, s84, v8")
        a("v_xor_b32 v9, s84, v9")
        a("v_xor_b32 v10, s84, v10")
        a("v_xor_b32 v11, s84, v11")
        a("v_or3_b32 v8, v8, v9, v10")
        a("v_or_b32 v8, v8, v11")
        a("v_cmp_ne_u32 vcc, 0, v8")
    a("s_mov_b64 exec, 0xffff")
    poll(a, "kx_poll1", ["buffer_load_dwordx4 v[8:11], v3, s[68:71], s20 offen%s" % SC], f1cond)
    a("s_mov_b64 exec, -1")
    a("s_barrier")
    stamp(a, 4)
    for ks in range(4):
        a("s_add_u32 s20, s21, %d" % (ks * 32768))
        a("buffer_load_dwordx4 v[%d:%d], v5, s[68:71], s20 offen%s" % (8 + 4 * ks, 11 + 4 * ks, SC))
    a("s_waitcnt vmcnt(0)")
    for i in range(4):
        unpack(a, 48, 49, 8 + i)
        unpack(a, 50, 51, 12 + i)
        unpack(a, 52, 53, 16 + i)
        unpack(a, 54, 55, 20 + i)
        unpack(a, 56, 57, 24 + i)
        a("v_pk_add_f32 v[48:49], v[48:49], v[50:51]")
        a("v_pk_add_f32 v[52:53], v[52:53], v[54:55]")
        a("v_pk_add_f32 v[48:49], v[48:49], v[52:53] neg_lo:[0,1] neg_hi:[0,1]")
        a("v_pk_add_f32 v[48:49], v[48:49], v[56:57]")
        a("v_cvt_pk_bf16_f32 v%d, v48, v49" % (32 + i))
        unpack(a, 40 + 2 * i, 41 + 2 * i, 32 + i)
    a("v_pk_add_f32 v[48:49], v[40:41], v[42:43]")
    a("v_pk_add_f32 v[50:51], v[44:45], v[46:47]")
    a("v_pk_add_f32 v[48:49], v[48:49], v[50:51]")
    a("v_add_f32 v48, v48, v49")
    allreduce64(a, "add_f32", 48, 49)
    a("v_mul_f32 v58, 0x3b000000, v48")
    for i in range(4):
        a("v_pk_add_f32 v[%d:%d], v[%d:%d], v[58:59] op_sel_hi:[1,0] neg_lo:[0,1] neg_hi:[0,1]" % (
            50 + 2 * i, 51 + 2 * i, 40 + 2 * i, 41 + 2 * i))
    a("v_pk_mul_f32 v[48:49], v[50:51], v[50:51]")
    for i in range(1, 4):
        a("v_pk_fma_f32 v[48:49], v[%d:%d], v[%d:%d], v[48:49]" % (50 + 2 * i, 51 + 2 * i, 50 + 2 * i, 51 + 2 * i))
    a("v_add_f32 v48, v48, v49")
    allreduce64(a, "add_f32", 48, 49)
    a("v_mul_f32 v48, 0x3b000000, v48")
    bf16r(a, 60, 58)
    bf16r(a, 48, 48)
    a("v_add_f32 v48, 0x3727c5ac, v48")
    bf16r(a, 48, 48)
    a("v_sqrt_f32 v48, v48")
    a("s_nop 0")
    bf16r(a, 48, 48)
    a("v_rcp_f32 v61, v48")
    a("s_nop 0")
    a("v_mul_f32 v62, v60, v61")
    a("v_sub_f32 v62, 0, v62")
    a("v_mov_b32 v58, v61")
    for i in range(4):
        a("v_pk_fma_f32 v[48:49], v[%d:%d], v[58:59], v[62:63] op_sel_hi:[1,0,0]" % (40 + 2 * i, 41 + 2 * i))
        a("v_cvt_pk_bf16_f32 v%d, v48, v49" % (36 + i))
        unpack(a, 50 + 2 * i, 51 + 2 * i, 36 + i)
        unpack(a, 8 + 2 * i, 9 + 2 * i, 28 + i)
    for i in range(4):
        a("v_pk_add_f32 v[%d:%d], v[%d:%d], v[%d:%d]" % (16 + 2 * i, 17 + 2 * i, 40 + 2 * i, 41 + 2 * i, 50 + 2 * i, 51 + 2 * i))
        a("v_cvt_pk_bf16_f32 v%d, v%d, v%d" % (24 + i, 16 + 2 * i, 17 + 2 * i))
    a("v_pk_mul_f32 v[48:49], v[50:51], v[8:9]")
    for i in range(1, 4):
        a("v_pk_fma_f32 v[48:49], v[%d:%d], v[%d:%d], v[48:49]" % (50 + 2 * i, 51 + 2 * i, 8 + 2 * i, 9 + 2 * i))
    a("v_add_f32 v48, v48, v49")
    allreduce64(a, "add_f32", 48, 49)
    a("v_cvt_pk_bf16_f32 v48, v48, v48")
    a("v_and_b32 v48, 0xffff0000, v48")
    a("v_ashrrev_i32 v49, 31, v48")
    a("v_and_b32 v49, 0x7fff0000, v49")
    a("v_or_b32 v49, 0x80000000, v49")
    a("v_xor_b32 v48, v48, v49")
    a("s_sub_u32 s20, 0xffff, s18")
    a("v_or_b32 v48, s20, v48")
    a("v_mov_b32 v49, s84")
    a("s_lshl_b32 s20, s16, 2")
    a("s_add_u32 s20, s20, 98304")
    a("v_mov_b32 v4, s20")
    a("v_mov_b32 v5, 98304")
    a("ds_write_b32 v4, v48")
    a("s_waitcnt lgkmcnt(0)")
    a("s_barrier")
    a("ds_read_b128 v[8:11], v5")
    a("ds_read_b128 v[12:15], v5 offset:16")
    a("s_lshl_b32 s20, s64, 11")
    a("s_add_u32 s20, s20, %d" % SELROW)
    a("s_waitcnt lgkmcnt(0)")
    a("v_max3_u32 v8, v8, v9, v10")
    a("v_max3_u32 v8, v8, v11, v12")
    a("v_max3_u32 v8, v8, v13, v14")
    a("v_max_u32 v63, v8, v15")
    a("v_cmp_eq_u32 vcc, v63, v48")
    a("s_nop 2")
    a("s_cmp_eq_u64 vcc, 0")
    a("s_cbranch_scc0 kx_best")
    a("buffer_store_dwordx4 v[24:27], v2, s[80:83], s19 offen")
    a("s_branch kx_notbest")
    a.label("kx_best")
    a("s_lshr_b32 s21, s64, 2")
    a("s_lshl_b32 s21, s21, 7")
    a("s_and_b32 s22, s64, 3")
    a("s_lshl_b32 s22, s22, 3")
    a("s_add_u32 s21, s21, s22")
    a("s_add_u32 s21, s21, %d" % KEYS)
    a("v_lshlrev_b32 v5, 13, v0")
    a("s_mov_b64 exec, %d" % ((1 << NREP) - 1))
    a("buffer_store_dwordx2 v[48:49], v5, s[68:71], s21 offen%s" % SC)
    a("s_mov_b64 exec, -1")
    a("buffer_store_dwordx4 v[36:39], v2, s[68:71], s20 offen%s" % SC)
    a("buffer_store_dwordx4 v[32:35], v2, s[68:71], s20 offen offset:1024%s" % SC)
    a("ds_write_b128 v2, v[24:27] offset:32768")
    a("s_waitcnt lgkmcnt(0)")
    a.label("kx_notbest")
    a("s_cmp_ge_u32 s16, 4")
    a("s_cbranch_scc1 kx_exit")

    a("s_cmp_lt_u32 s65, 28")
    a("s_cbranch_scc1 kx_keys")
    a("s_cmp_ge_u32 s16, 2")
    a("s_cbranch_scc1 kx_exit")
    a.label("kx_keys")
    a("s_and_b32 s20, s64, %d" % (NREP - 1))
    a("s_lshl_b32 s20, s20, 13")
    a("s_add_u32 s20, s20, %d" % KEYS)
    a("v_lshlrev_b32 v3, 7, v0")
    a("v_mov_b32 v5, 98816")
    a("s_cmp_lg_u32 s16, 0")
    a("s_cbranch_scc1 kx_keywait")

    def keycond():
        a("v_xor_b32 v9, s84, v9")
        a("v_xor_b32 v11, s84, v11")
        a("v_xor_b32 v13, s84, v13")
        a("v_xor_b32 v15, s84, v15")
        a("v_or3_b32 v4, v9, v11, v13")
        a("v_or_b32 v4, v4, v15")
        a("v_cmp_ne_u32 vcc, 0, v4")
    poll(a, "kx_poll2", ["buffer_load_dwordx4 v[8:11], v3, s[68:71], s20 offen%s" % SC,
                         "buffer_load_dwordx4 v[12:15], v3, s[68:71], s20 offen offset:16%s" % SC], keycond)
    a("v_max_u32 v64, v8, v10")
    a("v_max3_u32 v64, v64, v12, v14")
    allreduce64(a, "max_u32", 64, 65)
    a("ds_write_b32 v5, v64")
    a("s_waitcnt lgkmcnt(0)")
    a.label("kx_keywait")
    a("s_barrier")
    a("ds_read_b32 v64, v5")
    a("ds_read_b128 v[24:27], v2 offset:32768")
    a("s_waitcnt lgkmcnt(0)")
    stamp(a, 5)
    a("v_and_b32 v66, 0xffff, v64")
    a("v_sub_u32 v66, 0xffff, v66")
    a("v_lshrrev_b32 v67, 3, v66")
    a("v_lshlrev_b32 v67, 11, v67")
    a("s_cmp_lg_u32 s16, 1")
    a("s_cbranch_scc1 kx_noparked")
    a("v_and_b32 v4, 0xffff, v63")
    a("v_sub_u32 v4, 0xffff, v4")
    a("v_lshlrev_b32 v4, 10, v4")
    a("v_add_u32 v4, v4, v2")
    a("v_cmp_ne_u32 vcc, v63, v64")
    a("s_and_saveexec_b64 s[22:23], vcc")
    a("s_cbranch_execz kx_parkskip")
    a("buffer_store_dwordx4 v[24:27], v4, s[80:83], 0 offen")
    a.label("kx_parkskip")
    a("s_mov_b64 exec, -1")
    a.label("kx_noparked")
    a("s_mov_b32 s20, %d" % SELROW)
    a("s_cmp_ge_u32 s65, 28")
    a("s_cbranch_scc1 kx_final")
    a("v_lshlrev_b32 v4, 2, v199")
    a("v_add_u32 v68, v67, v4")
    poll(a, "kx_poll4", ["buffer_load_dword v75, v68, s[68:71], s20 offen%s" % SC],
         lambda: a("v_cmp_eq_u32 vcc, -1, v75"))
    a("s_mov_b32 s22, 0x05040100")
    a("s_mov_b32 s23, 0x07060302")
    for m in range(2):
        for i in range(4):
            a("v_perm_b32 v%d, v%d, v%d, s22" % (32 + 8 * m + 2 * i, 204 + 8 * m + i, 200 + 8 * m + i))
            a("v_perm_b32 v%d, v%d, v%d, s23" % (33 + 8 * m + 2 * i, 204 + 8 * m + i, 200 + 8 * m + i))
    for i in range(16):
        a("v_dot2_f32_bf16 v%d, v%d, v75, 0" % (48 + i, 32 + i))
    a("s_nop 2")
    for i in range(8):
        a("v_permlane32_swap_b32 v%d, v%d" % (48 + i, 56 + i))
    a("s_nop 1")
    for i in range(8):
        a("v_add_f32 v%d, v%d, v%d" % (48 + i, 48 + i, 56 + i))
    a("s_nop 1")
    for i in range(4):
        a("v_permlane16_swap_b32 v%d, v%d" % (48 + i, 52 + i))
    a("s_nop 1")
    for i in range(4):
        a("v_add_f32 v%d, v%d, v%d" % (48 + i, 48 + i, 52 + i))
    for r in (8, 4, 2, 1):
        a("s_nop 0")
        for i in range(4):
            a("v_add_f32_dpp v%d, v%d, v%d row_ror:%d row_mask:0xf bank_mask:0xf" % (48 + i, 48 + i, 48 + i, r))
    a("s_lshl_b32 s21, s16, 6")
    a("s_add_u32 s21, s21, 98560")
    a("v_lshrrev_b32 v7, 4, v0")
    a("v_lshlrev_b32 v7, 4, v7")
    a("v_add_u32 v6, s21, v7")
    a("ds_write_b128 v6, v[48:51]")
    a("v_and_b32 v7, 7, v0")
    a("v_lshlrev_b32 v7, 2, v7")
    a("v_add_u32 v7, 98560, v7")
    a("s_waitcnt lgkmcnt(0)")
    a("s_barrier")
    for w in range(4):
        a("ds_read_b32 v%d, v7 offset:%d" % (48 + w, 64 * w))
        a("ds_read_b32 v%d, v7 offset:%d" % (52 + w, 64 * w + 32))
    a("s_waitcnt lgkmcnt(0)")
    a("v_add_f32 v48, v48, v49")
    a("v_add_f32 v50, v50, v51")
    a("v_add_f32 v52, v52, v53")
    a("v_add_f32 v54, v54, v55")
    a("v_add_f32 v48, v48, v50")
    a("v_add_f32 v52, v52, v54")
    bf16r(a, 48, 48)
    bf16r(a, 52, 52)
    a("v_mul_f32 v49, 0xbfb8aa3b, v48")
    a("v_exp_f32 v49, v49")
    a("s_nop 0")
    a("v_add_f32 v49, 1.0, v49")
    a("v_rcp_f32 v49, v49")
    a("s_nop 0")
    a("v_mul_f32 v48, v48, v49")
    bf16r(a, 48, 48)
    a("v_mul_f32 v48, v48, v52")
    bf16r(a, 48, 48)
    a("s_nop 0")
    for j in range(8):
        a("v_readlane_b32 s%d, v48, %d" % (4 + j, j))
    a("v_mov_b32 v50, 0")
    a("v_mov_b32 v51, 0")
    for j in range(8):
        unpack(a, 52, 53, 216 + j)
        a("v_fmac_f32 v50, s%d, v52" % (4 + j))
        a("v_fmac_f32 v51, s%d, v53" % (4 + j))
    a("v_lshlrev_b32 v6, 3, v199")
    a("s_lshl_b32 s20, s66, 11")
    a("s_add_u32 s20, s20, %d" % YP_OFF)
    a("buffer_store_dwordx2 v[50:51], v6, s[68:71], s20 offen%s" % SC)
    stamp(a, 7)
    a("s_endpgm")

    a.label("kx_final")
    a("v_lshrrev_b32 v5, 4, v0")
    a("v_lshlrev_b32 v3, 2, v5")
    a("s_lshl_b32 s19, s66, 4")
    a("v_add_u32 v3, s19, v3")
    a("v_add_u32 v68, v67, v3")

    def hcond():
        a("v_max_u32 v4, v69, v75")
        a("v_cmp_eq_u32 vcc, -1, v4")
    poll(a, "kx_poll5", ["buffer_load_dword v75, v68, s[68:71], s20 offen%s" % SC,
                         "buffer_load_dword v69, v68, s[68:71], s20 offen offset:1024%s" % SC], hcond)
    a("v_and_b32 v52, 0xffff0000, v64")
    a("v_ashrrev_i32 v53, 31, v52")
    a("v_not_b32 v53, v53")
    a("v_and_b32 v53, 0x7fff0000, v53")
    a("v_or_b32 v53, 0x80000000, v53")
    a("v_xor_b32 v52, v52, v53")
    a("v_mul_f32 v53, 0xbfb8aa3b, v52")
    a("v_exp_f32 v53, v53")
    a("s_nop 0")
    a("v_add_f32 v53, 1.0, v53")
    a("v_rcp_f32 v53, v53")
    a("s_nop 0")
    bf16r(a, 44, 53)
    unpack(a, 40, 41, 69)
    unpack(a, 42, 43, 75)
    a("v_lshlrev_b32 v45, 10, v66")
    a("v_add_u32 v45, v45, v3")
    a("v_lshlrev_b32 v1, 11, v0")
    a("s_lshl_b32 s19, s66, 5")
    a("v_add_u32 v1, s19, v1")
    a("v_cmp_gt_u32 vcc, 32, v0")
    a("v_mov_b32 v6, 0x40000000")
    a("v_cndmask_b32 v6, v6, v1, vcc")
    for i in range(4):
        a("s_mov_b32 s%d, %d" % (24 + i, YP_OFF + 131072 * i))
    loads = []
    for i in range(4):
        vo = 1 if i < 3 else 6
        loads.append("buffer_load_dwordx4 v[%d:%d], v%d, s[68:71], s%d offen%s" % (8 + 8 * i, 11 + 8 * i, vo, 24 + i, SC))
        loads.append("buffer_load_dwordx4 v[%d:%d], v%d, s[68:71], s%d offen offset:16%s" % (12 + 8 * i, 15 + 8 * i, vo, 24 + i, SC))

    def ycond():
        a("v_max3_u32 v4, v8, v9, v10")
        for i in range(11, 39, 2):
            a("v_max3_u32 v4, v4, v%d, v%d" % (i, i + 1))
        a("v_max_u32 v4, v4, v39")
        a("v_cmp_eq_u32 vcc, -1, v4")
    poll(a, "kx_poll3", loads, ycond)
    for i in range(4):
        a("v_pk_add_f32 v[%d:%d], v[%d:%d], v[%d:%d]" % (8 + 2 * i, 9 + 2 * i, 8 + 2 * i, 9 + 2 * i, 16 + 2 * i, 17 + 2 * i))
        a("v_pk_add_f32 v[%d:%d], v[%d:%d], v[%d:%d]" % (24 + 2 * i, 25 + 2 * i, 24 + 2 * i, 25 + 2 * i, 32 + 2 * i, 33 + 2 * i))
    for i in range(4):
        a("v_pk_add_f32 v[%d:%d], v[%d:%d], v[%d:%d]" % (8 + 2 * i, 9 + 2 * i, 8 + 2 * i, 9 + 2 * i, 24 + 2 * i, 25 + 2 * i))
    a("s_nop 1")
    for i in range(4):
        a("v_permlane32_swap_b32 v%d, v%d" % (8 + i, 12 + i))
    a("s_nop 1")
    for i in range(4):
        a("v_add_f32 v%d, v%d, v%d" % (8 + i, 8 + i, 12 + i))
    a("s_nop 1")
    for i in range(2):
        a("v_permlane16_swap_b32 v%d, v%d" % (8 + i, 10 + i))
    a("s_nop 1")
    for i in range(2):
        a("v_add_f32 v%d, v%d, v%d" % (8 + i, 8 + i, 10 + i))
    for r in (8, 4, 2, 1):
        a("s_nop 1")
        for i in range(2):
            a("v_add_f32_dpp v%d, v%d, v%d row_ror:%d row_mask:0xf bank_mask:0xf" % (8 + i, 8 + i, 8 + i, r))
    for i in range(2):
        bf16r(a, 8 + i, 8 + i)
        a("v_mul_f32 v%d, v%d, v44" % (8 + i, 8 + i))
        bf16r(a, 8 + i, 8 + i)
        a("v_add_f32 v%d, v%d, v%d" % (8 + i, 8 + i, 42 + i))
        bf16r(a, 8 + i, 8 + i)
        a("v_add_f32 v%d, v%d, v%d" % (8 + i, 8 + i, 40 + i))
    a("v_cvt_pk_bf16_f32 v8, v8, v9")
    a("v_and_b32 v6, 15, v0")
    a("v_cmp_eq_u32 vcc, 0, v6")
    a("s_and_saveexec_b64 s[30:31], vcc")
    a("buffer_store_dword v8, v45, s[80:83], 0 offen")
    a("s_mov_b64 exec, -1")
    if gen.STAMPS:
        a("s_waitcnt vmcnt(0)")
    stamp(a, 7)
    a.label("kx_exit")
    a("s_endpgm")
    return name, 224


def main(out):
    head = open("cdna_kernels/%s.s.ref" % NAME).read().split("\n")
    a = A()
    for line in head:
        if line.startswith(";") and "@launch" not in line:
            a.raw(line)
    kname = "kx_kernel"
    a.raw("; @launch kernel=%s grid=(256,1,1) block=(512,1,1) lds=163840" % kname)
    a.raw('.amdgcn_target "amdgcn-amd-amdhsa--gfx950"')
    name, vg = kx(a, kname)
    kernel_desc(a, name, vg, 96)
    open(out, "w").write(a.text())


if __name__ == "__main__":
    args = [x for x in sys.argv[1:] if not x.startswith("--")]
    if "--stamps" in sys.argv:
        gen.STAMPS = True
    for x in sys.argv:
        if x.startswith("--exp="):
            gen.EXP = set(x[6:].split(","))
        if x.startswith("--sleep="):
            SLEEP = int(x[8:])
        if x.startswith("--pfn="):
            PFN = int(x[6:])
        if x == "--noq":
            NTQ = ""
        if x == "--nont":
            NT = ""
    main(args[0] if args else "cdna_kernels/%s.s" % NAME)
```

```python
import sys
import gen
from gen import (A, NAME, kernel_head, kernel_desc, srd, add64, bf16r, unpack, allreduce64, wave_split,
                 stamp, stampc, stamp_init, SLOT, NSLOT, ACC, FR, AP, AQ, KA_WS)

ABT_OFF = 0
PART_OFF = 4 << 20
FLAG0 = 12 << 20
FLAG1 = FLAG0 + 32768
KEYS = FLAG1 + 32768
YP_OFF = 15 << 20
SELROW = 16 << 20
WS_SRD_SIZE = 32 << 20
NREP = 16
SC = " sc1"
SPIN_MAX = 1 << 20
SLEEP = 4
NT = ""
NTQ = ""
PFN = 16
STATS_LDS = 4 * SLOT
SUMW_LDS = STATS_LDS + 1024
NONCE_LDS = STATS_LDS + 2048


def poll(a, lbl, loads, cond):
    a("s_mov_b32 s31, 0")
    a.label(lbl)
    for l in loads:
        a(l)
    a("s_waitcnt vmcnt(0)")
    cond()
    a("s_add_u32 s31, s31, 1")
    a("s_nop 1")
    a("s_cmp_eq_u64 vcc, 0")
    a("s_cbranch_scc1 %s_done" % lbl)
    a("s_cmp_ge_u32 s31, %d" % SPIN_MAX)
    a("s_cbranch_scc1 %s_done" % lbl)
    a("s_sleep %d" % SLEEP)
    a("s_branch %s" % lbl)
    a.label(lbl + "_done")


def kx(a, name):
    gen.STV = 254
    EXP = gen.EXP
    kernel_head(a, name)
    a("s_cmp_ge_u32 s2, 256")
    a("s_cbranch_scc1 kx_exit")
    a("s_load_dwordx16 s[32:47], s[0:1], 0")
    a("s_load_dwordx8 s[48:55], s[0:1], 64")
    a("s_load_dwordx2 s[56:57], s[0:1], %d" % KA_WS)
    wave_split(a)
    a("s_and_b32 s58, s2, 7")
    a("s_lshr_b32 s59, s2, 3")
    a("s_and_b32 s60, s58, 1")
    a("s_lshr_b32 s61, s58, 1")
    a("s_and_b32 s62, s59, 3")
    a("s_lshr_b32 s63, s59, 2")
    a("s_lshl_b32 s67, s60, 3")
    a("s_add_u32 s63, s63, s67")
    a("s_lshl_b32 s64, s63, 4")
    a("s_lshl_b32 s67, s62, 2")
    a("s_add_u32 s64, s64, s67")
    a("s_add_u32 s64, s64, s61")
    a("s_lshr_b32 s65, s59, 3")
    a("s_lshl_b32 s65, s65, 3")
    a("s_add_u32 s65, s65, s58")
    a("s_and_b32 s88, s61, 1")
    a("s_lshr_b32 s89, s61, 1")
    a("s_lshl_b32 s85, s88, 3")
    a("s_lshl_b32 s67, s60, 2")
    a("s_add_u32 s85, s85, s67")
    a("s_waitcnt lgkmcnt(0)")
    stamp_init(a, 0, 56, 57)
    stamp(a, 0)
    srd(a, 68, 56, 57, WS_SRD_SIZE)
    srd(a, 72, 54, 55, 256)
    a("v_mov_b32 v197, 0")
    a("s_add_u32 s85, s85, s62")
    a("s_lshr_b32 s86, s59, 2")
    a("s_cmp_ge_u32 s16, 4")
    a("s_cbranch_scc1 kx_loader1")
    a("s_or_b32 s19, s2, s16")
    a("s_cmp_lg_u32 s19, 0")
    a("s_cbranch_scc1 kx_nononce")
    a("s_memrealtime s[18:19]")
    a("s_waitcnt lgkmcnt(0)")
    a("s_or_b32 s84, s18, 1")
    a("v_mov_b32 v194, s84")
    a("s_mov_b64 exec, 1")
    a("buffer_store_dword v194, v197, s[72:75], 0 offen%s" % SC)
    a("s_mov_b64 exec, -1")
    a.label("kx_nononce")

    a("s_lshr_b32 s17, s16, 1")
    a("s_and_b32 s18, s16, 1")
    a("v_and_b32 v1, 15, v0")
    a("v_lshrrev_b32 v2, 4, v0")
    a("v_lshrrev_b32 v3, 1, v1")
    a("v_lshlrev_b32 v4, 7, v1")
    a("s_lshl_b32 s19, s17, 13")
    a("s_lshl_b32 s20, s18, 12")
    a("s_add_u32 s20, s20, 16384")
    for j in range(2):
        a("v_add_u32 v5, %d, v2" % (4 * j))
        a("v_xor_b32 v5, v5, v3")
        a("v_lshlrev_b32 v5, 4, v5")
        a("v_add_u32 v5, v5, v4")
        a("v_add_u32 v%d, s19, v5" % (AP + j))
        a("v_add_u32 v%d, s20, v5" % (AQ + j))
    for r in range(16):
        a("v_mov_b64 v[%d:%d], 0" % (ACC + 2 * r, ACC + 2 * r + 1))
    a("s_mov_b32 s23, %d" % SLOT)
    a("s_mov_b32 s24, %d" % SLOT)
    a("s_mov_b32 s25, 1")
    a("s_mov_b32 s22, 8")
    a("s_mov_b32 s27, %d" % (-(NSLOT - 1) * SLOT))
    a("s_mov_b32 s28, %d" % SLOT)
    a("s_lshl_b32 s19, s17, 8")
    a("s_add_u32 s19, s19, %d" % STATS_LDS)
    a("v_lshlrev_b32 v7, 4, v2")
    a("v_add_u32 v7, s19, v7")
    a("s_lshl_b32 s19, s18, 7")
    a("s_add_u32 s19, s19, %d" % SUMW_LDS)
    a("v_lshlrev_b32 v6, 2, v1")
    a("v_add_u32 v6, s19, v6")

    def rd1(j):
        f = FR + 32 * j
        l = []
        for t in range(4):
            l.append("ds_read_b128 v[%d:%d], v%d offset:%d" % (f + 4 * t, f + 4 * t + 3, AP + j, 2048 * t))
            if t < 2:
                l.append("ds_read_b128 v[%d:%d], v%d offset:%d" % (f + 16 + 4 * t, f + 16 + 4 * t + 3, AQ + j, 2048 * t))
        return l

    book1 = ["s_mov_b32 s23, s24",
             "s_add_u32 s25, s25, 1",
             "s_cmp_eq_u32 s25, %d" % NSLOT,
             "s_cselect_b32 s26, %d, 0" % NSLOT,
             "s_sub_u32 s25, s25, s26",
             "s_cmp_eq_u32 s25, %d" % (NSLOT - 1),
             "s_cselect_b32 s24, s27, s28",
             "s_sub_u32 s22, s22, 1",
             "s_cmp_lt_u32 s22, 2"]
    a("s_barrier")
    stamp(a, 8)
    for r in rd1(0):
        a(r)
    a("v_add_u32 v%d, s23, v%d" % (AP, AP))
    a("v_add_u32 v%d, s23, v%d" % (AQ, AQ))
    a.label("kx_c1loop")
    for j in range(2):
        jn = 1 - j
        sd = 23 if j == 0 else 24
        f = FR + 32 * j
        rd = rd1(jn)
        a("s_waitcnt lgkmcnt(0)")
        k = 0
        for ti in range(4):
            for tj in range(2):
                c = ACC + 4 * (2 * ti + tj)
                a("v_mfma_f32_16x16x32_bf16 v[%d:%d], v[%d:%d], v[%d:%d], v[%d:%d]" % (
                    c, c + 3, f + 4 * ti, f + 4 * ti + 3, f + 16 + 4 * tj, f + 16 + 4 * tj + 3, c, c + 3))
                if k < 6:
                    a(rd[k])
                if k == 6:
                    a("v_add_u32 v%d, s%d, v%d" % (AP + jn, sd, AP + jn))
                    a("v_add_u32 v%d, s%d, v%d" % (AQ + jn, sd, AQ + jn))
                if j == 1 and k == 7:
                    for b in book1:
                        a(b)
                k += 1
    a("s_cbranch_scc1 kx_c1nobar")
    a("s_barrier")
    a.label("kx_c1nobar")
    a("s_cmp_lg_u32 s22, 0")
    a("s_cbranch_scc1 kx_c1loop")
    stamp(a, 1)
    a("s_lshl_b32 s31, s16, 6")
    a("v_add_u32 v199, s31, v0")
    a("v_mov_b32 v16, -1")
    a("v_mov_b32 v17, -1")
    a("v_mov_b32 v18, -1")
    a("v_mov_b32 v19, -1")
    a("s_cmp_lt_u32 s16, 2")
    a("s_cbranch_scc1 kx_c2a")
    a("s_lshl_b32 s20, s64, 11")
    a("s_and_b32 s21, s16, 1")
    a("s_lshl_b32 s21, s21, 10")
    a("s_add_u32 s20, s20, s21")
    a("s_add_u32 s20, s20, %d" % SELROW)
    a("v_lshlrev_b32 v4, 4, v0")
    a("buffer_store_dwordx4 v[16:19], v4, s[68:71], s20 offen%s" % SC)
    a.label("kx_c2a")
    a("s_cmp_ge_u32 s65, 28")
    a("s_cbranch_scc1 kx_c2final")
    a("s_and_b32 s66, s59, 7")
    a("s_lshl_b32 s26, s65, 3")
    a("s_add_u32 s66, s66, s26")
    a("s_cmp_ge_u32 s16, 2")
    a("s_cbranch_scc1 kx_c2b")
    a("s_lshl_b32 s20, s66, 11")
    a("s_lshl_b32 s21, s16, 10")
    a("s_add_u32 s20, s20, s21")
    a("s_add_u32 s20, s20, %d" % YP_OFF)
    a("v_lshlrev_b32 v4, 4, v0")
    a("buffer_store_dwordx4 v[16:19], v4, s[68:71], s20 offen%s" % SC)
    a.label("kx_c2b")
    srd(a, 4, 46, 47, 512 * 3584)
    srd(a, 8, 48, 49, 512 * 3584)
    srd(a, 12, 50, 51, 1792 * 1024)
    a("s_movk_i32 s26, 7168")
    a("v_mul_lo_u32 v5, v199, s26")
    a("s_lshl_b32 s26, s66, 4")
    a("v_add_u32 v5, s26, v5")
    a("v_lshlrev_b32 v4, 2, v199")
    a("s_lshl_b32 s20, s66, 13")
    a("s_add_u32 s21, s20, 4096")
    a("buffer_load_dwordx4 v[200:203], v5, s[4:7], 0 offen")
    a("buffer_load_dwordx4 v[204:207], v5, s[4:7], 0 offen offset:3584")
    a("buffer_load_dwordx4 v[208:211], v5, s[8:11], 0 offen")
    a("buffer_load_dwordx4 v[212:215], v5, s[8:11], 0 offen offset:3584")
    for j in range(4):
        a("buffer_load_dword v%d, v4, s[12:15], s20 offen offset:%d" % (216 + j, 1024 * j))
    for j in range(4):
        a("buffer_load_dword v%d, v4, s[12:15], s21 offen offset:%d" % (220 + j, 1024 * j))
    a("s_branch kx_c2done")
    a.label("kx_c2final")
    a("s_sub_u32 s66, s58, 4")
    a("s_lshl_b32 s66, s66, 3")
    a("s_add_u32 s66, s66, s59")
    a("s_sub_u32 s66, s66, 24")
    a("s_lshl_b32 s66, s66, 1")
    a("s_add_u32 s66, s66, s16")
    a.label("kx_c2done")
    a("v_mov_b32 v5, %d" % NONCE_LDS)
    a("s_lshl_b32 s21, s16, 15")
    a("v_mul_u32_u24 v4, 144, v1")
    a("v_lshlrev_b32 v8, 3, v2")
    a("v_add3_u32 v4, v4, v8, s21")
    a("v_lshrrev_b32 v8, 3, v0")
    a("v_and_b32 v9, 7, v0")
    a("v_lshlrev_b32 v9, 4, v9")
    a("v_mul_u32_u24 v8, 144, v8")
    a("v_add3_u32 v8, v8, v9, s21")
    a("v_lshlrev_b32 v9, 4, v0")
    a("s_lshl_b32 s19, s89, 2")
    a("s_lshr_b32 s20, s86, 1")
    a("s_add_u32 s87, s19, s20")
    a("s_lshl_b32 s19, s87, 5")
    a("s_lshl_b32 s20, s85, 1")
    a("s_add_u32 s19, s19, s20")
    a("s_add_u32 s19, s19, s17")
    a("s_lshl_b32 s19, s19, 14")
    a("s_and_b32 s20, s86, 1")
    a("s_lshl_b32 s20, s20, 13")
    a("s_add_u32 s19, s19, s20")
    a("s_lshl_b32 s20, s18, 12")
    a("s_add_u32 s19, s19, s20")
    a("s_lshl_b32 s29, s87, 4")
    a("s_add_u32 s29, s29, s85")
    a("s_lshl_b32 s29, s29, 1")
    a("s_and_b32 s20, s86, 1")
    a("s_add_u32 s29, s29, s20")
    a("s_lshl_b32 s29, s29, 7")
    a("s_lshl_b32 s20, s16, 2")
    a("s_add_u32 s29, s29, s20")
    a("s_add_u32 s29, s29, %d" % FLAG0)
    a("s_waitcnt lgkmcnt(0)")
    a("s_barrier")
    a("ds_read_b32 v16, v5")
    a("ds_read_b32 v20, v6")
    a("ds_read_b32 v22, v6 offset:64")
    for ti in range(4):
        a("ds_read_b128 v[%d:%d], v7 offset:%d" % (32 + 8 * ti, 35 + 8 * ti, 64 * ti))
        a("ds_read_b128 v[%d:%d], v7 offset:%d" % (36 + 8 * ti, 39 + 8 * ti, 64 * ti + 512))
    a("s_waitcnt lgkmcnt(0)")
    a("v_readfirstlane_b32 s84, v16")
    n = 0
    for ti in range(4):
        for tj in range(2):
            c = ACC + 4 * (2 * ti + tj)
            d = FR + 2 * n
            n += 1
            for h in range(2):
                a("v_pk_fma_f32 v[%d:%d], v[%d:%d], v[%d:%d], v[%d:%d] op_sel_hi:[1,0,1] neg_lo:[1,0,0] neg_hi:[1,0,0]" % (
                    c + 2 * h, c + 2 * h + 1, 32 + 8 * ti + 2 * h, 33 + 8 * ti + 2 * h, 20 + 2 * tj, 21 + 2 * tj, c + 2 * h, c + 2 * h + 1))
                a("v_pk_mul_f32 v[%d:%d], v[%d:%d], v[%d:%d]" % (
                    c + 2 * h, c + 2 * h + 1, c + 2 * h, c + 2 * h + 1, 36 + 8 * ti + 2 * h, 37 + 8 * ti + 2 * h))
                a("v_cvt_pk_bf16_f32 v%d, v%d, v%d" % (d + h, c + 2 * h, c + 2 * h + 1))
            a("ds_write_b64 v4, v[%d:%d] offset:%d" % (d, d + 1, tj * 2304 + ti * 32))
    a("s_waitcnt lgkmcnt(0)")
    for i in range(4):
        a("ds_read_b128 v[%d:%d], v8 offset:%d" % (FR + 16 + 4 * i, FR + 19 + 4 * i, i * 1152))
    for i in range(4):
        a("s_waitcnt lgkmcnt(%d)" % (3 - i))
        a("buffer_store_dwordx4 v[%d:%d], v9, s[68:71], s19 offen offset:%d%s" % (FR + 16 + 4 * i, FR + 19 + 4 * i, 1024 * i, SC))
    a("v_mov_b32 v4, 0")
    a("v_mov_b32 v5, s84")
    stamp(a, 10)
    if "noe1" not in EXP:
        a("s_barrier")
    a("s_waitcnt vmcnt(0)")
    a("s_mov_b64 exec, 1")
    a("buffer_store_dword v5, v4, s[68:71], s29 offen%s" % SC)
    a("s_mov_b64 exec, -1")
    stamp(a, 2)
    a("s_branch kx_cons2")

    a.label("kx_cons")
    a("s_lshr_b32 s17, s16, 1")
    a("s_and_b32 s18, s16, 1")
    a("v_and_b32 v1, 15, v0")
    a("v_lshrrev_b32 v2, 4, v0")
    a("v_lshrrev_b32 v3, 1, v1")
    a("v_lshlrev_b32 v4, 7, v1")
    a("s_lshl_b32 s19, s17, 13")
    a("s_lshl_b32 s20, s18, 13")
    a("s_add_u32 s20, s20, 16384")
    for j in range(2):
        a("v_add_u32 v5, %d, v2" % (4 * j))
        a("v_xor_b32 v5, v5, v3")
        a("v_lshlrev_b32 v5, 4, v5")
        a("v_add_u32 v5, v5, v4")
        a("v_add_u32 v%d, s19, v5" % (AP + j))
        a("v_add_u32 v%d, s20, v5" % (AQ + j))
    for r in range(32):
        a("v_mov_b64 v[%d:%d], 0" % (ACC + 2 * r, ACC + 2 * r + 1))
    a("s_mov_b32 s23, %d" % SLOT)
    a("s_mov_b32 s24, %d" % SLOT)
    a("s_mov_b32 s25, 1")
    a("s_mov_b32 s27, %d" % (-(NSLOT - 1) * SLOT))
    a("s_mov_b32 s28, %d" % SLOT)

    def rdlist(j):
        f = FR + 32 * j
        l = []
        for t in range(4):
            l.append("ds_read_b128 v[%d:%d], v%d offset:%d" % (f + 4 * t, f + 4 * t + 3, AP + j, 2048 * t))
            l.append("ds_read_b128 v[%d:%d], v%d offset:%d" % (f + 16 + 4 * t, f + 16 + 4 * t + 3, AQ + j, 2048 * t))
        return l

    book = ["s_mov_b32 s23, s24",
            "s_add_u32 s25, s25, 1",
            "s_cmp_eq_u32 s25, %d" % NSLOT,
            "s_cselect_b32 s26, %d, 0" % NSLOT,
            "s_sub_u32 s25, s25, s26",
            "s_cmp_eq_u32 s25, %d" % (NSLOT - 1),
            "s_cselect_b32 s24, s27, s28",
            "s_sub_u32 s22, s22, 1",
            "s_cmp_lt_u32 s22, 2"]
    a("s_barrier")
    stamp(a, 9)
    for r in rdlist(0):
        a(r)
    a("v_add_u32 v%d, s23, v%d" % (AP, AP))
    a("v_add_u32 v%d, s23, v%d" % (AQ, AQ))
    a.label("kx_cloop")
    for j in range(2):
        jn = 1 - j
        sd = 23 if j == 0 else 24
        f = FR + 32 * j
        rd = rdlist(jn)
        a("s_waitcnt lgkmcnt(0)")
        k = 0
        for ti in range(4):
            for tj in range(4):
                c = ACC + 4 * (4 * ti + tj)
                a("v_mfma_f32_16x16x32_bf16 v[%d:%d], v[%d:%d], v[%d:%d], v[%d:%d]" % (
                    c, c + 3, f + 4 * ti, f + 4 * ti + 3, f + 16 + 4 * tj, f + 16 + 4 * tj + 3, c, c + 3))
                if k < 8:
                    a(rd[k])
                if k == 8:
                    a("v_add_u32 v%d, s%d, v%d" % (AP + jn, sd, AP + jn))
                if k == 9:
                    a("v_add_u32 v%d, s%d, v%d" % (AQ + jn, sd, AQ + jn))
                if j == 1 and 10 <= k < 15:
                    for b in book[2 * (k - 10):2 * (k - 10) + 2]:
                        a(b)
                k += 1
    a("s_cbranch_scc1 kx_nobar")
    a("s_barrier")
    a.label("kx_nobar")
    a("s_cmp_lg_u32 s22, 0")
    a("s_cbranch_scc1 kx_cloop")
    a("s_waitcnt lgkmcnt(0)")
    stamp(a, 3)
    a("s_mul_i32 s21, s16, 9216")
    a("s_add_u32 s21, s21, 32768")
    a("s_lshl_b32 s19, s64, 15")
    a("s_lshl_b32 s20, s16, 13")
    a("s_add_u32 s19, s19, s20")
    a("s_add_u32 s19, s19, %d" % PART_OFF)
    a("s_lshl_b32 s29, s64, 7")
    a("s_add_u32 s29, s29, %d" % FLAG1)
    a("s_nop 4")
    a.label("kx_epi")
    a("v_mul_u32_u24 v4, 144, v1")
    a("v_lshlrev_b32 v5, 3, v2")
    a("v_add3_u32 v4, v4, v5, s21")
    a("v_lshrrev_b32 v6, 3, v0")
    a("v_and_b32 v7, 7, v0")
    a("v_lshlrev_b32 v7, 4, v7")
    a("v_mul_u32_u24 v5, 144, v6")
    a("v_add3_u32 v5, v5, v7, s21")
    a("s_add_u32 s20, s19, 4096")
    a("v_lshlrev_b32 v6, 4, v0")
    n = 0
    for tj in range(4):
        for ti in range(4):
            c = ACC + 4 * (4 * ti + tj)
            d = FR + 2 * (n % 8)
            n += 1
            a("v_cvt_pk_bf16_f32 v%d, v%d, v%d" % (d, c, c + 1))
            a("v_cvt_pk_bf16_f32 v%d, v%d, v%d" % (d + 1, c + 2, c + 3))
            a("ds_write_b64 v4, v[%d:%d] offset:%d" % (d, d + 1, tj * 2304 + ti * 32))
    a("s_waitcnt lgkmcnt(0)")
    for i in range(8):
        a("ds_read_b128 v[%d:%d], v5 offset:%d" % (FR + 16 + 4 * i, FR + 19 + 4 * i, i * 1152))
    for i in range(8):
        a("s_waitcnt lgkmcnt(%d)" % (7 - i))
        a("buffer_store_dwordx4 v[%d:%d], v6, s[68:71], s%d offen offset:%d%s" % (FR + 16 + 4 * i, FR + 19 + 4 * i, 19 + (i >> 2), 1024 * (i & 3), SC))
    a("s_lshl_b32 s20, s16, 2")
    a("s_add_u32 s29, s29, s20")
    a("v_mov_b32 v4, 0")
    a("v_mov_b32 v5, s84")
    stamp(a, 11)
    a("s_waitcnt vmcnt(0)")
    a("s_mov_b64 exec, 1")
    a("buffer_store_dword v5, v4, s[68:71], s29 offen%s" % SC)
    a("s_mov_b64 exec, -1")
    a("s_branch kx_rows")

    a.label("kx_cons2")
    a("s_mov_b32 s22, 16")
    a("s_barrier")
    a("s_branch kx_cons")

    a.label("kx_loader1")
    a("s_lshl_b32 s19, s85, 17")
    a("s_add_u32 s22, s32, s19")
    a("s_addc_u32 s23, s33, 0")
    srd(a, 4, 22, 23, 131072)
    a("s_cmp_eq_u32 s89, 0")
    a("s_cselect_b32 s22, s38, s40")
    a("s_cselect_b32 s23, s39, s41")
    a("s_lshl_b32 s19, s86, 16")
    add64(a, 22, 23, "s19")
    srd(a, 8, 22, 23, 65536)
    a("s_sub_u32 s17, s16, 4")
    a("v_lshrrev_b32 v6, 3, v0")
    a("v_lshrrev_b32 v7, 4, v0")
    a("v_and_b32 v16, 7, v0")
    a("s_lshl_b32 s18, s17, 5")
    for j in range(4):
        a("v_add_u32 v18, %d, v7" % (4 * j))
        a("v_and_b32 v18, 7, v18")
        a("v_xor_b32 v18, v18, v16")
        a("v_lshlrev_b32 v18, 4, v18")
        a("v_add3_u32 v17, v6, s18, %d" % (8 * j))
        a("v_lshlrev_b32 v17, 10, v17")
        a("v_add_u32 v17, v17, v18")
        a("v_subrev_u32 v%d, %d, v17" % (8 + j, 1024 * j))
        if j < 2:
            a("s_lshl_b32 s19, s17, 14")
            a("v_subrev_u32 v%d, s19, v%d" % (12 + j, 8 + j))
    a("s_lshl_b32 s21, s17, 12")
    a("s_lshl_b32 s30, s17, 11")
    a("s_sub_u32 s30, 16384, s30")
    a("s_mov_b32 s20, 0")
    a("s_mov_b32 s22, 0")
    a("s_mov_b32 s29, -4")
    a("v_and_b32 v1, 15, v0")
    a("v_lshrrev_b32 v3, 1, v1")
    a("v_lshlrev_b32 v4, 7, v1")
    for sx in range(2):
        a("v_add_u32 v17, %d, v7" % (4 * sx))
        a("v_xor_b32 v17, v17, v3")
        a("v_lshlrev_b32 v17, 4, v17")
        a("v_add3_u32 v%d, v17, v4, s21" % (32 + sx))
        a("v_add_u32 v%d, s30, v%d" % (34 + sx, 32 + sx))
    for r in range(12):
        a("v_mov_b64 v[%d:%d], 0" % (64 + 2 * r, 65 + 2 * r))
    for r in range(4):
        a("v_mov_b32 v%d, 0x3f803f80" % (88 + r))
    a.label("kx_l1loop")
    a("s_cmp_lt_i32 s29, 0")
    a("s_cbranch_scc1 kx_l1issue")
    a("s_cmp_lt_u32 s29, 5")
    a("s_cbranch_scc1 kx_l1w16")
    a("s_cmp_eq_u32 s29, 5")
    a("s_cbranch_scc1 kx_l1w8")
    a("s_waitcnt vmcnt(0)")
    a.label("kx_l1w8")
    a("s_waitcnt vmcnt(6)")
    a.label("kx_l1w16")
    a("s_waitcnt vmcnt(12)")
    a("s_cmp_eq_u32 s29, 7")
    a("s_cbranch_scc1 kx_l1nob")
    a("s_barrier")
    a.label("kx_l1nob")
    for sx in range(2):
        f = 96 + 16 * sx
        a("ds_read_b128 v[%d:%d], v%d" % (f, f + 3, 32 + sx))
        a("ds_read_b128 v[%d:%d], v%d offset:2048" % (f + 4, f + 7, 32 + sx))
        a("ds_read_b128 v[%d:%d], v%d" % (f + 8, f + 11, 34 + sx))
    a("s_cmp_eq_u32 s29, 4")
    a("s_cselect_b32 s19, %d, 0" % (NSLOT * SLOT))
    a("s_sub_u32 s19, %d, s19" % SLOT)
    for r in range(4):
        a("v_add_u32 v%d, s19, v%d" % (32 + r, 32 + r))
    a.label("kx_l1issue")
    a("s_cmp_ge_u32 s22, 8")
    a("s_cbranch_scc1 kx_l1noissue")
    a("s_mov_b32 m0, s21")
    a("s_add_u32 s19, s21, s30")
    for j in range(4):
        a("buffer_load_dwordx4 v%d, s[4:7], s20 offen offset:%d%s lds" % (8 + j, 1024 * j, NT))
    a("s_mov_b32 m0, s19")
    a("s_add_u32 s22, s22, 1")
    for j in range(2):
        a("buffer_load_dwordx4 v%d, s[8:11], s20 offen offset:%d%s lds" % (12 + j, 1024 * j, NT))
    a("s_add_u32 s20, s20, 128")
    a("s_add_u32 s21, s21, %d" % SLOT)
    a("s_cmp_eq_u32 s22, %d" % NSLOT)
    a("s_cselect_b32 s19, %d, 0" % (SLOT * NSLOT))
    a("s_sub_u32 s21, s21, s19")
    a.label("kx_l1noissue")
    a("s_cmp_lt_i32 s29, 0")
    a("s_cbranch_scc1 kx_l1next")
    a("s_cmp_lg_u32 s29, 4")
    a("s_cbranch_scc1 kx_l1non")
    a("buffer_load_dword v194, v197, s[72:75], 0 offen%s" % SC)
    a.label("kx_l1non")
    for sx in range(2):
        a("s_waitcnt lgkmcnt(%d)" % (3 if sx == 0 else 0))
        f = 96 + 16 * sx
        for rb in range(2):
            x = f + 4 * rb
            a("v_mfma_f32_16x16x32_bf16 v[%d:%d], v[%d:%d], v[%d:%d], v[%d:%d]" % (64 + 4 * rb, 67 + 4 * rb, x, x + 3, x, x + 3, 64 + 4 * rb, 67 + 4 * rb))
            a("v_mfma_f32_16x16x32_bf16 v[%d:%d], v[%d:%d], v[88:91], v[%d:%d]" % (72 + 4 * rb, 75 + 4 * rb, x, x + 3, 72 + 4 * rb, 75 + 4 * rb))
        a("v_mfma_f32_16x16x32_bf16 v[80:83], v[88:91], v[%d:%d], v[80:83]" % (f + 8, f + 11))
    a.label("kx_l1next")
    a("s_add_i32 s29, s29, 1")
    a("s_cmp_lt_i32 s29, 8")
    a("s_cbranch_scc1 kx_l1loop")
    a("v_and_b32 v16, 3, v0")
    a("v_lshrrev_b32 v17, 2, v1")
    a("s_nop 7")
    a("v_cmp_eq_u32 s[24:25], 1, v16")
    a("v_cmp_eq_u32 s[26:27], 2, v16")
    a("v_cmp_eq_u32 s[28:29], 3, v16")
    a("s_lshl_b32 s19, s17, 7")
    a("s_add_u32 s19, s19, %d" % STATS_LDS)
    a("v_lshlrev_b32 v18, 2, v1")
    a("v_add_u32 v6, s19, v18")
    a("s_lshl_b32 s19, s17, 6")
    a("s_add_u32 s19, s19, %d" % SUMW_LDS)
    a("v_add_u32 v18, s19, v18")
    a("ds_write_b32 v18, v80")
    for base in (64, 68, 72, 76):
        a("v_cndmask_b32 v%d, v%d, v%d, s[24:25]" % (base, base, base + 1))
        a("v_cndmask_b32 v%d, v%d, v%d, s[26:27]" % (base, base, base + 2))
        a("v_cndmask_b32 v%d, v%d, v%d, s[28:29]" % (base, base, base + 3))
    a("v_cmp_eq_u32 vcc, v17, v7")
    a("s_and_saveexec_b64 s[24:25], vcc")
    for rb in range(2):
        a("v_mul_f32 v28, 0x3b000000, v%d" % (72 + 4 * rb))
        a("v_mul_f32 v29, 0x3b000000, v%d" % (64 + 4 * rb))
        a("v_fma_f32 v29, -v28, v28, v29")
        a("v_max_f32 v29, 0, v29")
        bf16r(a, 30, 28)
        bf16r(a, 29, 29)
        a("v_add_f32 v29, 0x3727c5ac, v29")
        bf16r(a, 29, 29)
        a("v_sqrt_f32 v29, v29")
        a("s_nop 0")
        bf16r(a, 29, 29)
        a("v_rcp_f32 v31, v29")
        a("s_nop 0")
        a("ds_write_b32 v6, v30 offset:%d" % (64 * rb))
        a("ds_write_b32 v6, v31 offset:%d" % (64 * rb + 512))
    a("s_mov_b64 exec, -1")
    a("s_cmp_lg_u32 s16, 4")
    a("s_cbranch_scc1 kx_l1s")
    a("v_cmp_eq_u32 vcc, 0, v194")
    a("s_nop 2")
    a("s_cmp_eq_u64 vcc, 0")
    a("s_cbranch_scc1 kx_polln_done")
    poll(a, "kx_polln", ["buffer_load_dword v194, v197, s[72:75], 0 offen%s" % SC], lambda: a("v_cmp_eq_u32 vcc, 0, v194"))
    a("v_mov_b32 v195, %d" % NONCE_LDS)
    a("ds_write_b32 v195, v194")
    a.label("kx_l1s")
    a("s_waitcnt lgkmcnt(0)")
    a("s_barrier")

    a.label("kx_loader2")
    a("v_mov_b32 v5, %d" % NONCE_LDS)
    a("ds_read_b32 v16, v5")
    a("s_lshl_b32 s19, s89, 2")
    a("s_add_u32 s19, s19, s62")
    a("s_lshl_b32 s24, s19, 12")
    a("s_lshl_b32 s19, s19, 19")
    a("s_lshl_b32 s20, s88, 18")
    a("s_add_u32 s19, s19, s20")
    a("s_add_u32 s22, s56, s19")
    a("s_addc_u32 s23, s57, 0")
    srd(a, 4, 22, 23, 16 * 16384)
    a("s_cmp_eq_u32 s89, 0")
    a("s_cselect_b32 s22, s34, s36")
    a("s_cselect_b32 s23, s35, s37")
    a("s_lshl_b32 s19, s63, 19")
    a("s_lshl_b32 s21, s88, 11")
    a("s_add_u32 s19, s19, s21")
    add64(a, 22, 23, "s19")
    srd(a, 8, 22, 23, 127 * 4096 + 2048)
    a("s_lshl_b32 s20, s88, 11")
    a("s_add_u32 s24, s24, s20")
    a("s_add_u32 s24, s24, %d" % FLAG0)
    a("s_sub_u32 s17, s16, 4")
    a("v_lshrrev_b32 v1, 3, v0")
    a("v_lshrrev_b32 v2, 4, v0")
    a("v_and_b32 v3, 7, v0")
    a("s_lshl_b32 s18, s17, 5")
    a("v_add_u32 v1, s18, v1")
    a("v_lshlrev_b32 v6, 7, v1")
    for j in range(4):
        a("v_add_u32 v4, %d, v1" % (8 * j))
        a("v_lshlrev_b32 v4, 12, v4")
        a("v_add_u32 v5, %d, v2" % (4 * j))
        a("v_and_b32 v5, 7, v5")
        a("v_xor_b32 v5, v5, v3")
        a("v_lshlrev_b32 v5, 4, v5")
        a("v_add_u32 v4, v4, v5")
        a("v_subrev_u32 v%d, %d, v4" % (8 + j, 1024 * j))
        a("v_add_u32 v%d, v6, v5" % (12 + j))
    a("s_waitcnt lgkmcnt(0)")
    a("v_readfirstlane_b32 s84, v16")
    a("s_lshl_b32 s21, s17, 12")
    if "noe1" not in EXP:
        a("s_barrier")
    a("s_mov_b32 s20, 0")
    a("s_add_u32 s19, s21, 16384")
    a.label("kx_l2q")
    a("s_mov_b32 m0, s19")
    a("s_add_u32 s19, s19, %d" % SLOT)
    for j in range(4):
        a("buffer_load_dwordx4 v%d, s[8:11], s20 offen offset:%d%s lds" % (8 + j, 1024 * j, NTQ))
    a("s_add_u32 s20, s20, 128")
    a("s_cmp_lt_u32 s20, 512")
    a("s_cbranch_scc1 kx_l2q")
    a("s_cmp_lg_u32 s16, 4")
    a("s_cbranch_scc1 kx_poll0_done")
    a("v_lshlrev_b32 v20, 7, v0")

    def f0cond():
        a("v_xor_b32 v24, s84, v24")
        a("v_xor_b32 v25, s84, v25")
        a("v_xor_b32 v26, s84, v26")
        a("v_xor_b32 v27, s84, v27")
        a("v_or3_b32 v24, v24, v25, v26")
        a("v_or_b32 v24, v24, v27")
        a("v_cmp_ne_u32 vcc, 0, v24")
    a("s_mov_b64 exec, 0xffff")
    poll(a, "kx_poll0", ["buffer_load_dwordx4 v[24:27], v20, s[68:71], s24 offen%s" % SC], f0cond)
    a("s_mov_b64 exec, -1")
    stamp(a, 2)
    a("s_barrier")
    a("s_mov_b32 s26, 0")
    a("s_mov_b32 s19, s21")
    a.label("kx_l2p")
    a("s_mov_b32 m0, s19")
    a("s_add_u32 s19, s19, %d" % SLOT)
    for j in range(4):
        a("buffer_load_dwordx4 v%d, s[4:7], s26 offen offset:%d%s lds" % (12 + j, 1024 * j, SC))
    a("s_add_u32 s26, s26, 16384")
    a("s_cmp_lt_u32 s26, 65536")
    a("s_cbranch_scc1 kx_l2p")
    a("s_waitcnt vmcnt(8)")
    a("s_barrier")
    a("s_add_u32 s21, s21, %d" % (4 * SLOT))
    a("s_mov_b32 s25, 4")
    a("s_mov_b32 s22, 4")
    a.label("kx_l2loop")
    a("s_mov_b32 m0, s21")
    a("s_add_u32 s19, s21, 16384")
    for j in range(4):
        a("buffer_load_dwordx4 v%d, s[4:7], s26 offen offset:%d%s lds" % (12 + j, 1024 * j, SC))
    a("s_mov_b32 m0, s19")
    a("s_add_u32 s25, s25, 1")
    for j in range(4):
        a("buffer_load_dwordx4 v%d, s[8:11], s20 offen offset:%d%s lds" % (8 + j, 1024 * j, NTQ))
    a("s_add_u32 s20, s20, 128")
    a("s_add_u32 s26, s26, 16384")
    a("s_add_u32 s21, s21, %d" % SLOT)
    a("s_cmp_eq_u32 s25, %d" % NSLOT)
    a("s_cselect_b32 s19, %d, 0" % (SLOT * NSLOT))
    a("s_cselect_b32 s27, %d, 0" % NSLOT)
    a("s_sub_u32 s21, s21, s19")
    a("s_sub_u32 s25, s25, s27")
    a("s_add_u32 s22, s22, 1")
    a("s_cmp_lg_u32 s22, 5")
    a("s_cbranch_scc1 kx_l2w16")
    a("s_waitcnt vmcnt(12)")
    a.label("kx_l2w16")
    a("s_waitcnt vmcnt(16)")
    a("s_barrier")
    a("s_cmp_lt_u32 s22, 16")
    a("s_cbranch_scc1 kx_l2loop")
    a("s_waitcnt vmcnt(8)")
    a("s_barrier")
    a("s_waitcnt vmcnt(0)")
    a("s_barrier")
    stamp(a, 3)

    a.label("kx_rows")
    stamp(a, 12)
    srd(a, 72, 32, 33, 2 << 20)
    srd(a, 76, 44, 45, 1024)
    srd(a, 80, 52, 53, 2 << 20)
    a("s_lshl_b32 s18, s64, 3")
    a("s_add_u32 s18, s18, s16")
    a("v_lshlrev_b32 v2, 4, v0")
    a("s_lshl_b32 s19, s18, 10")
    a("buffer_load_dwordx4 v[24:27], v2, s[72:75], s19 offen")
    a("buffer_load_dwordx4 v[28:31], v2, s[76:79], 0 offen")
    a("v_lshrrev_b32 v5, 4, v0")
    a("v_lshlrev_b32 v5, 17, v5")
    a("v_and_b32 v6, 8, v0")
    a("v_lshlrev_b32 v6, 11, v6")
    a("v_and_b32 v7, 7, v0")
    a("v_lshlrev_b32 v7, 4, v7")
    a("v_add3_u32 v5, v5, v6, v7")
    a("s_lshl_b32 s21, s63, 19")
    a("s_and_b32 s22, s18, 64")
    a("s_lshl_b32 s22, s22, 7")
    a("s_add_u32 s21, s21, s22")
    a("s_and_b32 s22, s18, 63")
    a("s_lshl_b32 s22, s22, 7")
    a("s_add_u32 s21, s21, s22")
    a("s_add_u32 s21, s21, %d" % PART_OFF)
    a("v_and_b32 v3, 15, v0")
    a("v_lshlrev_b32 v3, 7, v3")
    a("s_lshl_b32 s20, s63, 11")
    a("s_add_u32 s20, s20, %d" % FLAG1)
    a("s_cmp_lg_u32 s16, 0")
    a("s_cbranch_scc1 kx_poll1_done")

    def f1cond():
        a("v_xor_b32 v8, s84, v8")
        a("v_xor_b32 v9, s84, v9")
        a("v_xor_b32 v10, s84, v10")
        a("v_xor_b32 v11, s84, v11")
        a("v_or3_b32 v8, v8, v9, v10")
        a("v_or_b32 v8, v8, v11")
        a("v_cmp_ne_u32 vcc, 0, v8")
    a("s_mov_b64 exec, 0xffff")
    poll(a, "kx_poll1", ["buffer_load_dwordx4 v[8:11], v3, s[68:71], s20 offen%s" % SC], f1cond)
    a("s_mov_b64 exec, -1")
    a("s_barrier")
    stamp(a, 4)
    for ks in range(4):
        a("s_add_u32 s20, s21, %d" % (ks * 32768))
        a("buffer_load_dwordx4 v[%d:%d], v5, s[68:71], s20 offen%s" % (8 + 4 * ks, 11 + 4 * ks, SC))
    a("s_waitcnt vmcnt(0)")
    stamp(a, 13)
    for i in range(4):
        unpack(a, 48, 49, 8 + i)
        unpack(a, 50, 51, 12 + i)
        unpack(a, 52, 53, 16 + i)
        unpack(a, 54, 55, 20 + i)
        unpack(a, 56, 57, 24 + i)
        a("v_pk_add_f32 v[48:49], v[48:49], v[50:51]")
        a("v_pk_add_f32 v[52:53], v[52:53], v[54:55]")
        a("v_pk_add_f32 v[48:49], v[48:49], v[52:53] neg_lo:[0,1] neg_hi:[0,1]")
        a("v_pk_add_f32 v[48:49], v[48:49], v[56:57]")
        a("v_cvt_pk_bf16_f32 v%d, v48, v49" % (32 + i))
        unpack(a, 40 + 2 * i, 41 + 2 * i, 32 + i)
    a("v_pk_add_f32 v[48:49], v[40:41], v[42:43]")
    a("v_pk_add_f32 v[50:51], v[44:45], v[46:47]")
    a("v_pk_add_f32 v[48:49], v[48:49], v[50:51]")
    a("v_add_f32 v48, v48, v49")
    allreduce64(a, "add_f32", 48, 49)
    a("v_mul_f32 v58, 0x3b000000, v48")
    for i in range(4):
        a("v_pk_add_f32 v[%d:%d], v[%d:%d], v[58:59] op_sel_hi:[1,0] neg_lo:[0,1] neg_hi:[0,1]" % (
            50 + 2 * i, 51 + 2 * i, 40 + 2 * i, 41 + 2 * i))
    a("v_pk_mul_f32 v[48:49], v[50:51], v[50:51]")
    for i in range(1, 4):
        a("v_pk_fma_f32 v[48:49], v[%d:%d], v[%d:%d], v[48:49]" % (50 + 2 * i, 51 + 2 * i, 50 + 2 * i, 51 + 2 * i))
    a("v_add_f32 v48, v48, v49")
    allreduce64(a, "add_f32", 48, 49)
    a("v_mul_f32 v48, 0x3b000000, v48")
    bf16r(a, 60, 58)
    bf16r(a, 48, 48)
    a("v_add_f32 v48, 0x3727c5ac, v48")
    bf16r(a, 48, 48)
    a("v_sqrt_f32 v48, v48")
    a("s_nop 0")
    bf16r(a, 48, 48)
    a("v_rcp_f32 v61, v48")
    a("s_nop 0")
    a("v_mul_f32 v62, v60, v61")
    a("v_sub_f32 v62, 0, v62")
    a("v_mov_b32 v58, v61")
    for i in range(4):
        a("v_pk_fma_f32 v[48:49], v[%d:%d], v[58:59], v[62:63] op_sel_hi:[1,0,0]" % (40 + 2 * i, 41 + 2 * i))
        a("v_cvt_pk_bf16_f32 v%d, v48, v49" % (36 + i))
        unpack(a, 50 + 2 * i, 51 + 2 * i, 36 + i)
        unpack(a, 8 + 2 * i, 9 + 2 * i, 28 + i)
    for i in range(4):
        a("v_pk_add_f32 v[%d:%d], v[%d:%d], v[%d:%d]" % (16 + 2 * i, 17 + 2 * i, 40 + 2 * i, 41 + 2 * i, 50 + 2 * i, 51 + 2 * i))
        a("v_cvt_pk_bf16_f32 v%d, v%d, v%d" % (24 + i, 16 + 2 * i, 17 + 2 * i))
    a("v_pk_mul_f32 v[48:49], v[50:51], v[8:9]")
    for i in range(1, 4):
        a("v_pk_fma_f32 v[48:49], v[%d:%d], v[%d:%d], v[48:49]" % (50 + 2 * i, 51 + 2 * i, 8 + 2 * i, 9 + 2 * i))
    a("v_add_f32 v48, v48, v49")
    allreduce64(a, "add_f32", 48, 49)
    a("v_cvt_pk_bf16_f32 v48, v48, v48")
    a("v_and_b32 v48, 0xffff0000, v48")
    a("v_ashrrev_i32 v49, 31, v48")
    a("v_and_b32 v49, 0x7fff0000, v49")
    a("v_or_b32 v49, 0x80000000, v49")
    a("v_xor_b32 v48, v48, v49")
    a("s_sub_u32 s20, 0xffff, s18")
    a("v_or_b32 v48, s20, v48")
    a("v_mov_b32 v49, s84")
    a("s_lshl_b32 s20, s16, 2")
    a("s_add_u32 s20, s20, 98304")
    a("v_mov_b32 v4, s20")
    a("v_mov_b32 v5, 98304")
    a("ds_write_b32 v4, v48")
    a("s_waitcnt lgkmcnt(0)")
    a("s_barrier")
    a("ds_read_b128 v[8:11], v5")
    a("ds_read_b128 v[12:15], v5 offset:16")
    a("s_lshl_b32 s20, s64, 11")
    a("s_add_u32 s20, s20, %d" % SELROW)
    a("s_waitcnt lgkmcnt(0)")
    a("v_max3_u32 v8, v8, v9, v10")
    a("v_max3_u32 v8, v8, v11, v12")
    a("v_max3_u32 v8, v8, v13, v14")
    a("v_max_u32 v63, v8, v15")
    a("v_cmp_eq_u32 vcc, v63, v48")
    a("s_nop 2")
    a("s_cmp_eq_u64 vcc, 0")
    a("s_cbranch_scc0 kx_best")
    a("buffer_store_dwordx4 v[24:27], v2, s[80:83], s19 offen")
    a("s_branch kx_notbest")
    a.label("kx_best")
    a("s_lshr_b32 s21, s64, 2")
    a("s_lshl_b32 s21, s21, 7")
    a("s_and_b32 s22, s64, 3")
    a("s_lshl_b32 s22, s22, 3")
    a("s_add_u32 s21, s21, s22")
    a("s_add_u32 s21, s21, %d" % KEYS)
    a("v_lshlrev_b32 v5, 13, v0")
    a("s_mov_b64 exec, %d" % ((1 << NREP) - 1))
    a("buffer_store_dwordx2 v[48:49], v5, s[68:71], s21 offen%s" % SC)
    a("s_mov_b64 exec, -1")
    a("buffer_store_dwordx4 v[36:39], v2, s[68:71], s20 offen%s" % SC)
    a("buffer_store_dwordx4 v[32:35], v2, s[68:71], s20 offen offset:1024%s" % SC)
    a("ds_write_b128 v2, v[24:27] offset:32768")
    a("s_waitcnt lgkmcnt(0)")
    a.label("kx_notbest")
    stamp(a, 14)
    a("s_cmp_ge_u32 s16, 4")
    a("s_cbranch_scc1 kx_exit")

    a("s_cmp_lt_u32 s65, 28")
    a("s_cbranch_scc1 kx_keys")
    a("s_cmp_ge_u32 s16, 2")
    a("s_cbranch_scc1 kx_exit")
    a.label("kx_keys")
    a("s_and_b32 s20, s64, %d" % (NREP - 1))
    a("s_lshl_b32 s20, s20, 13")
    a("s_add_u32 s20, s20, %d" % KEYS)
    a("v_lshlrev_b32 v3, 7, v0")
    a("v_mov_b32 v5, 98816")
    a("s_cmp_lg_u32 s16, 0")
    a("s_cbranch_scc1 kx_keywait")

    def keycond():
        a("v_xor_b32 v9, s84, v9")
        a("v_xor_b32 v11, s84, v11")
        a("v_xor_b32 v13, s84, v13")
        a("v_xor_b32 v15, s84, v15")
        a("v_or3_b32 v4, v9, v11, v13")
        a("v_or_b32 v4, v4, v15")
        a("v_cmp_ne_u32 vcc, 0, v4")
    poll(a, "kx_poll2", ["buffer_load_dwordx4 v[8:11], v3, s[68:71], s20 offen%s" % SC,
                         "buffer_load_dwordx4 v[12:15], v3, s[68:71], s20 offen offset:16%s" % SC], keycond)
    a("v_max_u32 v64, v8, v10")
    a("v_max3_u32 v64, v64, v12, v14")
    allreduce64(a, "max_u32", 64, 65)
    a("ds_write_b32 v5, v64")
    a("s_waitcnt lgkmcnt(0)")
    a.label("kx_keywait")
    a("s_barrier")
    a("ds_read_b32 v64, v5")
    a("ds_read_b128 v[24:27], v2 offset:32768")
    a("s_waitcnt lgkmcnt(0)")
    stamp(a, 5)
    a("v_and_b32 v66, 0xffff, v64")
    a("v_sub_u32 v66, 0xffff, v66")
    a("v_lshrrev_b32 v67, 3, v66")
    a("v_lshlrev_b32 v67, 11, v67")
    a("s_cmp_lg_u32 s16, 1")
    a("s_cbranch_scc1 kx_noparked")
    a("v_and_b32 v4, 0xffff, v63")
    a("v_sub_u32 v4, 0xffff, v4")
    a("v_lshlrev_b32 v4, 10, v4")
    a("v_add_u32 v4, v4, v2")
    a("v_cmp_ne_u32 vcc, v63, v64")
    a("s_and_saveexec_b64 s[22:23], vcc")
    a("s_cbranch_execz kx_parkskip")
    a("buffer_store_dwordx4 v[24:27], v4, s[80:83], 0 offen")
    a.label("kx_parkskip")
    a("s_mov_b64 exec, -1")
    a.label("kx_noparked")
    a("s_mov_b32 s20, %d" % SELROW)
    a("s_cmp_ge_u32 s65, 28")
    a("s_cbranch_scc1 kx_final")
    a("v_lshlrev_b32 v4, 2, v199")
    a("v_add_u32 v68, v67, v4")
    poll(a, "kx_poll4", ["buffer_load_dword v75, v68, s[68:71], s20 offen%s" % SC],
         lambda: a("v_cmp_eq_u32 vcc, -1, v75"))
    a("s_mov_b32 s22, 0x05040100")
    a("s_mov_b32 s23, 0x07060302")
    for m in range(2):
        for i in range(4):
            a("v_perm_b32 v%d, v%d, v%d, s22" % (32 + 8 * m + 2 * i, 204 + 8 * m + i, 200 + 8 * m + i))
            a("v_perm_b32 v%d, v%d, v%d, s23" % (33 + 8 * m + 2 * i, 204 + 8 * m + i, 200 + 8 * m + i))
    for i in range(16):
        a("v_dot2_f32_bf16 v%d, v%d, v75, 0" % (48 + i, 32 + i))
    a("s_nop 2")
    for i in range(8):
        a("v_permlane32_swap_b32 v%d, v%d" % (48 + i, 56 + i))
    a("s_nop 1")
    for i in range(8):
        a("v_add_f32 v%d, v%d, v%d" % (48 + i, 48 + i, 56 + i))
    a("s_nop 1")
    for i in range(4):
        a("v_permlane16_swap_b32 v%d, v%d" % (48 + i, 52 + i))
    a("s_nop 1")
    for i in range(4):
        a("v_add_f32 v%d, v%d, v%d" % (48 + i, 48 + i, 52 + i))
    for r in (8, 4, 2, 1):
        a("s_nop 0")
        for i in range(4):
            a("v_add_f32_dpp v%d, v%d, v%d row_ror:%d row_mask:0xf bank_mask:0xf" % (48 + i, 48 + i, 48 + i, r))
    a("s_lshl_b32 s21, s16, 6")
    a("s_add_u32 s21, s21, 98560")
    a("v_lshrrev_b32 v7, 4, v0")
    a("v_lshlrev_b32 v7, 4, v7")
    a("v_add_u32 v6, s21, v7")
    a("ds_write_b128 v6, v[48:51]")
    a("v_and_b32 v7, 7, v0")
    a("v_lshlrev_b32 v7, 2, v7")
    a("v_add_u32 v7, 98560, v7")
    a("s_waitcnt lgkmcnt(0)")
    a("s_barrier")
    for w in range(4):
        a("ds_read_b32 v%d, v7 offset:%d" % (48 + w, 64 * w))
        a("ds_read_b32 v%d, v7 offset:%d" % (52 + w, 64 * w + 32))
    a("s_waitcnt lgkmcnt(0)")
    a("v_add_f32 v48, v48, v49")
    a("v_add_f32 v50, v50, v51")
    a("v_add_f32 v52, v52, v53")
    a("v_add_f32 v54, v54, v55")
    a("v_add_f32 v48, v48, v50")
    a("v_add_f32 v52, v52, v54")
    bf16r(a, 48, 48)
    bf16r(a, 52, 52)
    a("v_mul_f32 v49, 0xbfb8aa3b, v48")
    a("v_exp_f32 v49, v49")
    a("s_nop 0")
    a("v_add_f32 v49, 1.0, v49")
    a("v_rcp_f32 v49, v49")
    a("s_nop 0")
    a("v_mul_f32 v48, v48, v49")
    bf16r(a, 48, 48)
    a("v_mul_f32 v48, v48, v52")
    bf16r(a, 48, 48)
    a("s_nop 0")
    for j in range(8):
        a("v_readlane_b32 s%d, v48, %d" % (4 + j, j))
    a("v_mov_b32 v50, 0")
    a("v_mov_b32 v51, 0")
    for j in range(8):
        unpack(a, 52, 53, 216 + j)
        a("v_fmac_f32 v50, s%d, v52" % (4 + j))
        a("v_fmac_f32 v51, s%d, v53" % (4 + j))
    a("v_lshlrev_b32 v6, 3, v199")
    a("s_lshl_b32 s20, s66, 11")
    a("s_add_u32 s20, s20, %d" % YP_OFF)
    a("buffer_store_dwordx2 v[50:51], v6, s[68:71], s20 offen%s" % SC)
    stamp(a, 7)
    a("s_endpgm")

    a.label("kx_final")
    a("v_lshrrev_b32 v5, 4, v0")
    a("v_lshlrev_b32 v3, 2, v5")
    a("s_lshl_b32 s19, s66, 4")
    a("v_add_u32 v3, s19, v3")
    a("v_add_u32 v68, v67, v3")

    def hcond():
        a("v_max_u32 v4, v69, v75")
        a("v_cmp_eq_u32 vcc, -1, v4")
    poll(a, "kx_poll5", ["buffer_load_dword v75, v68, s[68:71], s20 offen%s" % SC,
                         "buffer_load_dword v69, v68, s[68:71], s20 offen offset:1024%s" % SC], hcond)
    a("v_and_b32 v52, 0xffff0000, v64")
    a("v_ashrrev_i32 v53, 31, v52")
    a("v_not_b32 v53, v53")
    a("v_and_b32 v53, 0x7fff0000, v53")
    a("v_or_b32 v53, 0x80000000, v53")
    a("v_xor_b32 v52, v52, v53")
    a("v_mul_f32 v53, 0xbfb8aa3b, v52")
    a("v_exp_f32 v53, v53")
    a("s_nop 0")
    a("v_add_f32 v53, 1.0, v53")
    a("v_rcp_f32 v53, v53")
    a("s_nop 0")
    bf16r(a, 44, 53)
    unpack(a, 40, 41, 69)
    unpack(a, 42, 43, 75)
    a("v_lshlrev_b32 v45, 10, v66")
    a("v_add_u32 v45, v45, v3")
    a("v_lshlrev_b32 v1, 11, v0")
    a("s_lshl_b32 s19, s66, 5")
    a("v_add_u32 v1, s19, v1")
    a("v_cmp_gt_u32 vcc, 32, v0")
    a("v_mov_b32 v6, 0x40000000")
    a("v_cndmask_b32 v6, v6, v1, vcc")
    for i in range(4):
        a("s_mov_b32 s%d, %d" % (24 + i, YP_OFF + 131072 * i))
    loads = []
    for i in range(4):
        vo = 1 if i < 3 else 6
        loads.append("buffer_load_dwordx4 v[%d:%d], v%d, s[68:71], s%d offen%s" % (8 + 8 * i, 11 + 8 * i, vo, 24 + i, SC))
        loads.append("buffer_load_dwordx4 v[%d:%d], v%d, s[68:71], s%d offen offset:16%s" % (12 + 8 * i, 15 + 8 * i, vo, 24 + i, SC))

    def ycond():
        a("v_max3_u32 v4, v8, v9, v10")
        for i in range(11, 39, 2):
            a("v_max3_u32 v4, v4, v%d, v%d" % (i, i + 1))
        a("v_max_u32 v4, v4, v39")
        a("v_cmp_eq_u32 vcc, -1, v4")
    poll(a, "kx_poll3", loads, ycond)
    for i in range(4):
        a("v_pk_add_f32 v[%d:%d], v[%d:%d], v[%d:%d]" % (8 + 2 * i, 9 + 2 * i, 8 + 2 * i, 9 + 2 * i, 16 + 2 * i, 17 + 2 * i))
        a("v_pk_add_f32 v[%d:%d], v[%d:%d], v[%d:%d]" % (24 + 2 * i, 25 + 2 * i, 24 + 2 * i, 25 + 2 * i, 32 + 2 * i, 33 + 2 * i))
    for i in range(4):
        a("v_pk_add_f32 v[%d:%d], v[%d:%d], v[%d:%d]" % (8 + 2 * i, 9 + 2 * i, 8 + 2 * i, 9 + 2 * i, 24 + 2 * i, 25 + 2 * i))
    a("s_nop 1")
    for i in range(4):
        a("v_permlane32_swap_b32 v%d, v%d" % (8 + i, 12 + i))
    a("s_nop 1")
    for i in range(4):
        a("v_add_f32 v%d, v%d, v%d" % (8 + i, 8 + i, 12 + i))
    a("s_nop 1")
    for i in range(2):
        a("v_permlane16_swap_b32 v%d, v%d" % (8 + i, 10 + i))
    a("s_nop 1")
    for i in range(2):
        a("v_add_f32 v%d, v%d, v%d" % (8 + i, 8 + i, 10 + i))
    for r in (8, 4, 2, 1):
        a("s_nop 1")
        for i in range(2):
            a("v_add_f32_dpp v%d, v%d, v%d row_ror:%d row_mask:0xf bank_mask:0xf" % (8 + i, 8 + i, 8 + i, r))
    for i in range(2):
        bf16r(a, 8 + i, 8 + i)
        a("v_mul_f32 v%d, v%d, v44" % (8 + i, 8 + i))
        bf16r(a, 8 + i, 8 + i)
        a("v_add_f32 v%d, v%d, v%d" % (8 + i, 8 + i, 42 + i))
        bf16r(a, 8 + i, 8 + i)
        a("v_add_f32 v%d, v%d, v%d" % (8 + i, 8 + i, 40 + i))
    a("v_cvt_pk_bf16_f32 v8, v8, v9")
    a("v_and_b32 v6, 15, v0")
    a("v_cmp_eq_u32 vcc, 0, v6")
    a("s_and_saveexec_b64 s[30:31], vcc")
    a("buffer_store_dword v8, v45, s[80:83], 0 offen")
    a("s_mov_b64 exec, -1")
    if gen.STAMPS:
        a("s_waitcnt vmcnt(0)")
    stamp(a, 7)
    a.label("kx_exit")
    a("s_endpgm")
    return name, 224


def main(out):
    head = open("cdna_kernels/%s.s.ref" % NAME).read().split("\n")
    a = A()
    for line in head:
        if line.startswith(";") and "@launch" not in line:
            a.raw(line)
    kname = "kx_kernel"
    a.raw("; @launch kernel=%s grid=(256,1,1) block=(512,1,1) lds=163840" % kname)
    a.raw('.amdgcn_target "amdgcn-amd-amdhsa--gfx950"')
    name, vg = kx(a, kname)
    kernel_desc(a, name, vg, 96)
    open(out, "w").write(a.text())


if __name__ == "__main__":
    args = [x for x in sys.argv[1:] if not x.startswith("--")]
    if "--stamps" in sys.argv:
        gen.STAMPS = True
    for x in sys.argv:
        if x.startswith("--exp="):
            gen.EXP = set(x[6:].split(","))
        if x.startswith("--sleep="):
            SLEEP = int(x[8:])
        if x.startswith("--pfn="):
            PFN = int(x[6:])
        if x == "--noq":
            NTQ = ""
        if x == "--nont":
            NT = ""
    main(args[0] if args else "cdna_kernels/%s.s" % NAME)
```

```python
import sys
import gen
from gen import (A, NAME, kernel_head, kernel_desc, srd, add64, bf16r, unpack, allreduce64, wave_split,
                 stamp, stampc, stamp_init, SLOT, NSLOT, ACC, FR, AP, AQ, KA_WS)

ABT_OFF = 0
PART_OFF = 4 << 20
FLAG0 = 12 << 20
FLAG1 = FLAG0 + 16384
KEYS = FLAG1 + 32768
YP_OFF = 15 << 20
SELROW = 16 << 20
WS_SRD_SIZE = 32 << 20
NREP = 16
SC = " sc1"
SPIN_MAX = 1 << 20
SLEEP = 4
NT = ""
NTQ = ""
PFN = 16
STATS_LDS = 4 * SLOT
SUMW_LDS = STATS_LDS + 1024
NONCE_LDS = STATS_LDS + 2048


def poll(a, lbl, loads, cond):
    a("s_mov_b32 s31, 0")
    a.label(lbl)
    for l in loads:
        a(l)
    a("s_waitcnt vmcnt(0)")
    cond()
    a("s_add_u32 s31, s31, 1")
    a("s_nop 1")
    a("s_cmp_eq_u64 vcc, 0")
    a("s_cbranch_scc1 %s_done" % lbl)
    a("s_cmp_ge_u32 s31, %d" % SPIN_MAX)
    a("s_cbranch_scc1 %s_done" % lbl)
    a("s_sleep %d" % SLEEP)
    a("s_branch %s" % lbl)
    a.label(lbl + "_done")


def kx(a, name):
    gen.STV = 254
    EXP = gen.EXP
    kernel_head(a, name)
    a("s_cmp_ge_u32 s2, 256")
    a("s_cbranch_scc1 kx_exit")
    a("s_load_dwordx16 s[32:47], s[0:1], 0")
    a("s_load_dwordx8 s[48:55], s[0:1], 64")
    a("s_load_dwordx2 s[56:57], s[0:1], %d" % KA_WS)
    wave_split(a)
    a("s_and_b32 s58, s2, 7")
    a("s_lshr_b32 s59, s2, 3")
    a("s_and_b32 s60, s58, 1")
    a("s_lshr_b32 s61, s58, 1")
    a("s_and_b32 s62, s59, 3")
    a("s_lshr_b32 s63, s59, 2")
    a("s_lshl_b32 s67, s60, 3")
    a("s_add_u32 s63, s63, s67")
    a("s_lshl_b32 s64, s63, 4")
    a("s_lshl_b32 s67, s62, 2")
    a("s_add_u32 s64, s64, s67")
    a("s_add_u32 s64, s64, s61")
    a("s_lshr_b32 s65, s59, 3")
    a("s_lshl_b32 s65, s65, 3")
    a("s_add_u32 s65, s65, s58")
    a("s_and_b32 s88, s61, 1")
    a("s_lshr_b32 s89, s61, 1")
    a("s_lshl_b32 s85, s88, 3")
    a("s_lshl_b32 s67, s60, 2")
    a("s_add_u32 s85, s85, s67")
    a("s_waitcnt lgkmcnt(0)")
    stamp_init(a, 0, 56, 57)
    stamp(a, 0)
    srd(a, 68, 56, 57, WS_SRD_SIZE)
    srd(a, 72, 54, 55, 256)
    a("v_mov_b32 v197, 0")
    a("s_cmp_lg_u32 s2, 128")
    a("s_cbranch_scc1 kx_nononce")
    a("s_cmp_lg_u32 s16, 0")
    a("s_cbranch_scc1 kx_nononce")
    a("s_memrealtime s[18:19]")
    a("s_waitcnt lgkmcnt(0)")
    a("s_or_b32 s84, s18, 1")
    a("v_mov_b32 v194, s84")
    a("s_mov_b64 exec, 1")
    a("buffer_store_dword v194, v197, s[72:75], 0 offen%s" % SC)
    a("s_mov_b64 exec, -1")
    a.label("kx_nononce")
    a("s_cmp_ge_u32 s59, 16")
    a("s_cbranch_scc1 kx_pref")
    a("s_add_u32 s85, s85, s62")
    a("s_lshr_b32 s86, s59, 2")
    a("s_lshl_b32 s87, s89, 2")
    a("s_add_u32 s87, s87, s86")
    a("s_cmp_ge_u32 s16, 4")
    a("s_cbranch_scc1 kx_loader1")
    a("s_mov_b32 s30, 0")
    a("s_mov_b32 s22, 8")

    a.label("kx_cons")
    a("s_lshr_b32 s17, s16, 1")
    a("s_and_b32 s18, s16, 1")
    a("v_and_b32 v1, 15, v0")
    a("v_lshrrev_b32 v2, 4, v0")
    a("v_lshrrev_b32 v3, 1, v1")
    a("v_lshlrev_b32 v4, 7, v1")
    a("s_lshl_b32 s19, s17, 13")
    a("s_lshl_b32 s20, s18, 13")
    a("s_add_u32 s20, s20, 16384")
    for j in range(2):
        a("v_add_u32 v5, %d, v2" % (4 * j))
        a("v_xor_b32 v5, v5, v3")
        a("v_lshlrev_b32 v5, 4, v5")
        a("v_add_u32 v5, v5, v4")
        a("v_add_u32 v%d, s19, v5" % (AP + j))
        a("v_add_u32 v%d, s20, v5" % (AQ + j))
    for r in range(32):
        a("v_mov_b64 v[%d:%d], 0" % (ACC + 2 * r, ACC + 2 * r + 1))
    a("s_mov_b32 s23, %d" % SLOT)
    a("s_mov_b32 s24, %d" % SLOT)
    a("s_mov_b32 s25, 1")
    a("s_mov_b32 s27, %d" % (-(NSLOT - 1) * SLOT))
    a("s_mov_b32 s28, %d" % SLOT)

    def rdlist(j):
        f = FR + 32 * j
        l = []
        for t in range(4):
            l.append("ds_read_b128 v[%d:%d], v%d offset:%d" % (f + 4 * t, f + 4 * t + 3, AP + j, 2048 * t))
            l.append("ds_read_b128 v[%d:%d], v%d offset:%d" % (f + 16 + 4 * t, f + 16 + 4 * t + 3, AQ + j, 2048 * t))
        return l

    book = ["s_mov_b32 s23, s24",
            "s_add_u32 s25, s25, 1",
            "s_cmp_eq_u32 s25, %d" % NSLOT,
            "s_cselect_b32 s26, %d, 0" % NSLOT,
            "s_sub_u32 s25, s25, s26",
            "s_cmp_eq_u32 s25, %d" % (NSLOT - 1),
            "s_cselect_b32 s24, s27, s28",
            "s_sub_u32 s22, s22, 1",
            "s_cmp_lt_u32 s22, 2"]
    a("s_barrier")
    if gen.STAMPS:
        a("s_cmp_lg_u32 s30, 0")
        a("s_cbranch_scc1 kx_st9")
        stamp(a, 8)
        a("s_branch kx_st9d")
        a.label("kx_st9")
        stamp(a, 9)
        a.label("kx_st9d")
    for r in rdlist(0):
        a(r)
    a("v_add_u32 v%d, s23, v%d" % (AP, AP))
    a("v_add_u32 v%d, s23, v%d" % (AQ, AQ))
    a.label("kx_cloop")
    for j in range(2):
        jn = 1 - j
        sd = 23 if j == 0 else 24
        f = FR + 32 * j
        rd = rdlist(jn)
        a("s_waitcnt lgkmcnt(0)")
        k = 0
        for ti in range(4):
            for tj in range(4):
                c = ACC + 4 * (4 * ti + tj)
                a("v_mfma_f32_16x16x32_bf16 v[%d:%d], v[%d:%d], v[%d:%d], v[%d:%d]" % (
                    c, c + 3, f + 4 * ti, f + 4 * ti + 3, f + 16 + 4 * tj, f + 16 + 4 * tj + 3, c, c + 3))
                if k < 8:
                    a(rd[k])
                if k == 8:
                    a("v_add_u32 v%d, s%d, v%d" % (AP + jn, sd, AP + jn))
                if k == 9:
                    a("v_add_u32 v%d, s%d, v%d" % (AQ + jn, sd, AQ + jn))
                if j == 1 and 10 <= k < 15:
                    for b in book[2 * (k - 10):2 * (k - 10) + 2]:
                        a(b)
                k += 1
    a("s_cbranch_scc1 kx_nobar")
    a("s_barrier")
    a.label("kx_nobar")
    a("s_cmp_lg_u32 s22, 0")
    a("s_cbranch_scc1 kx_cloop")
    a("s_waitcnt lgkmcnt(0)")
    a("s_cmp_lg_u32 s30, 0")
    a("s_cbranch_scc1 kx_epi2")

    stamp(a, 1)
    a("s_lshl_b32 s19, s17, 9")
    a("s_add_u32 s19, s19, %d" % STATS_LDS)
    a("v_lshlrev_b32 v7, 5, v2")
    a("v_add_u32 v7, s19, v7")
    a("s_lshl_b32 s19, s18, 8")
    a("s_add_u32 s19, s19, %d" % SUMW_LDS)
    a("v_lshlrev_b32 v6, 2, v1")
    a("v_add_u32 v6, s19, v6")
    a("v_mov_b32 v5, %d" % NONCE_LDS)
    a("s_barrier")
    a("ds_read_b32 v16, v5")
    for tj in range(4):
        a("ds_read_b32 v%d, v6 offset:%d" % (20 + tj, 64 * tj))
    for ti in range(4):
        a("ds_read_b128 v[%d:%d], v7 offset:%d" % (32 + 8 * ti, 35 + 8 * ti, 128 * ti))
        a("ds_read_b128 v[%d:%d], v7 offset:%d" % (36 + 8 * ti, 39 + 8 * ti, 128 * ti + 16))
    a("s_waitcnt lgkmcnt(0)")
    a("v_readfirstlane_b32 s84, v16")
    for ti in range(4):
        for tj in range(4):
            c = ACC + 4 * (4 * ti + tj)
            for r in range(4):
                a("v_fma_f32 v%d, -v%d, v%d, v%d" % (c + r, 32 + 8 * ti + 2 * r, 20 + tj, c + r))
                a("v_mul_f32 v%d, v%d, v%d" % (c + r, c + r, 33 + 8 * ti + 2 * r))
    a("s_lshl_b32 s21, s16, 15")
    a("s_lshl_b32 s19, s87, 5")
    a("s_lshl_b32 s20, s85, 1")
    a("s_add_u32 s19, s19, s20")
    a("s_add_u32 s19, s19, s17")
    a("s_lshl_b32 s19, s19, 14")
    a("s_lshl_b32 s20, s18, 13")
    a("s_add_u32 s19, s19, s20")
    a("s_lshl_b32 s29, s87, 4")
    a("s_add_u32 s29, s29, s85")
    a("s_lshl_b32 s29, s29, 7")
    a("s_add_u32 s29, s29, %d" % FLAG0)
    a("s_branch kx_epi")
    a.label("kx_epi2")
    stamp(a, 3)
    a("s_mul_i32 s21, s16, 9216")
    a("s_add_u32 s21, s21, 32768")
    a("s_lshl_b32 s19, s64, 15")
    a("s_lshl_b32 s20, s16, 13")
    a("s_add_u32 s19, s19, s20")
    a("s_add_u32 s19, s19, %d" % PART_OFF)
    a("s_lshl_b32 s29, s64, 7")
    a("s_add_u32 s29, s29, %d" % FLAG1)
    a("s_nop 4")
    a.label("kx_epi")
    a("v_mul_u32_u24 v4, 144, v1")
    a("v_lshlrev_b32 v5, 3, v2")
    a("v_add3_u32 v4, v4, v5, s21")
    a("v_lshrrev_b32 v6, 3, v0")
    a("v_and_b32 v7, 7, v0")
    a("v_lshlrev_b32 v7, 4, v7")
    a("v_mul_u32_u24 v5, 144, v6")
    a("v_add3_u32 v5, v5, v7, s21")
    a("s_add_u32 s20, s19, 4096")
    a("v_lshlrev_b32 v6, 4, v0")
    n = 0
    for tj in range(4):
        for ti in range(4):
            c = ACC + 4 * (4 * ti + tj)
            d = FR + 2 * (n % 8)
            n += 1
            a("v_cvt_pk_bf16_f32 v%d, v%d, v%d" % (d, c, c + 1))
            a("v_cvt_pk_bf16_f32 v%d, v%d, v%d" % (d + 1, c + 2, c + 3))
            a("ds_write_b64 v4, v[%d:%d] offset:%d" % (d, d + 1, tj * 2304 + ti * 32))
    a("s_waitcnt lgkmcnt(0)")
    for i in range(8):
        a("ds_read_b128 v[%d:%d], v5 offset:%d" % (FR + 16 + 4 * i, FR + 19 + 4 * i, i * 1152))
    for i in range(8):
        a("s_waitcnt lgkmcnt(%d)" % (7 - i))
        a("buffer_store_dwordx4 v[%d:%d], v6, s[68:71], s%d offen offset:%d%s" % (FR + 16 + 4 * i, FR + 19 + 4 * i, 19 + (i >> 2), 1024 * (i & 3), SC))
    a("s_lshl_b32 s20, s16, 2")
    a("s_add_u32 s29, s29, s20")
    a("v_mov_b32 v4, 0")
    a("v_mov_b32 v5, s84")
    if gen.STAMPS:
        a("s_cmp_lg_u32 s30, 0")
        a("s_cbranch_scc1 kx_st11")
        stamp(a, 10)
        a("s_branch kx_st11d")
        a.label("kx_st11")
        stamp(a, 11)
        a.label("kx_st11d")
    a("s_waitcnt vmcnt(0)")
    a("s_mov_b64 exec, 1")
    a("buffer_store_dword v5, v4, s[68:71], s29 offen%s" % SC)
    a("s_mov_b64 exec, -1")
    a("s_cmp_lg_u32 s30, 0")
    a("s_cbranch_scc1 kx_rows")
    stamp(a, 2)

    a.label("kx_cons2")
    a("s_lshl_b32 s18, s16, 6")
    a("v_add_u32 v199, s18, v0")
    a("v_mov_b32 v16, -1")
    a("v_mov_b32 v17, -1")
    a("v_mov_b32 v18, -1")
    a("v_mov_b32 v19, -1")
    a("s_cmp_lt_u32 s16, 2")
    a("s_cbranch_scc1 kx_c2a")
    a("s_lshl_b32 s20, s64, 11")
    a("s_and_b32 s21, s16, 1")
    a("s_lshl_b32 s21, s21, 10")
    a("s_add_u32 s20, s20, s21")
    a("s_add_u32 s20, s20, %d" % SELROW)
    a("v_lshlrev_b32 v4, 4, v0")
    a("buffer_store_dwordx4 v[16:19], v4, s[68:71], s20 offen%s" % SC)
    a.label("kx_c2a")
    a("s_cmp_ge_u32 s65, 28")
    a("s_cbranch_scc1 kx_c2final")
    a("s_and_b32 s66, s59, 7")
    a("s_lshl_b32 s26, s65, 3")
    a("s_add_u32 s66, s66, s26")
    srd(a, 4, 46, 47, 512 * 3584)
    srd(a, 8, 48, 49, 512 * 3584)
    srd(a, 12, 50, 51, 1792 * 1024)
    a("s_movk_i32 s26, 7168")
    a("v_mul_lo_u32 v5, v199, s26")
    a("s_lshl_b32 s26, s66, 4")
    a("v_add_u32 v5, s26, v5")
    a("v_lshlrev_b32 v4, 2, v199")
    a("s_lshl_b32 s20, s66, 13")
    a("s_add_u32 s21, s20, 4096")
    a("buffer_load_dwordx4 v[200:203], v5, s[4:7], 0 offen")
    a("buffer_load_dwordx4 v[204:207], v5, s[4:7], 0 offen offset:3584")
    a("buffer_load_dwordx4 v[208:211], v5, s[8:11], 0 offen")
    a("buffer_load_dwordx4 v[212:215], v5, s[8:11], 0 offen offset:3584")
    for j in range(4):
        a("buffer_load_dword v%d, v4, s[12:15], s20 offen offset:%d" % (216 + j, 1024 * j))
    for j in range(4):
        a("buffer_load_dword v%d, v4, s[12:15], s21 offen offset:%d" % (220 + j, 1024 * j))
    a("s_branch kx_c2done")
    a.label("kx_c2final")
    a("s_sub_u32 s66, s58, 4")
    a("s_lshl_b32 s66, s66, 3")
    a("s_add_u32 s66, s66, s59")
    a("s_sub_u32 s66, s66, 24")
    a("s_lshl_b32 s66, s66, 1")
    a("s_add_u32 s66, s66, s16")
    a("s_cmp_ge_u32 s16, 2")
    a("s_cbranch_scc1 kx_c2done")
    a("v_lshlrev_b32 v4, 11, v0")
    a("s_lshl_b32 s19, s66, 5")
    a("v_add_u32 v4, s19, v4")
    for i in range(4):
        a("s_mov_b32 s20, %d" % (YP_OFF + 131072 * i))
        a("buffer_store_dwordx4 v[16:19], v4, s[68:71], s20 offen%s" % SC)
        a("buffer_store_dwordx4 v[16:19], v4, s[68:71], s20 offen offset:16%s" % SC)
    a.label("kx_c2done")
    a("s_mov_b32 s30, 1")
    a("s_mov_b32 s22, 16")
    a("s_barrier")
    a("s_branch kx_cons")

    a.label("kx_loader1")
    a("s_lshl_b32 s19, s85, 17")
    a("s_add_u32 s22, s32, s19")
    a("s_addc_u32 s23, s33, 0")
    srd(a, 4, 22, 23, 131072)
    a("s_cmp_eq_u32 s89, 0")
    a("s_cselect_b32 s22, s38, s40")
    a("s_cselect_b32 s23, s39, s41")
    a("s_lshl_b32 s19, s86, 17")
    add64(a, 22, 23, "s19")
    srd(a, 8, 22, 23, 131072)
    a("s_sub_u32 s17, s16, 4")
    a("v_lshrrev_b32 v6, 3, v0")
    a("v_lshrrev_b32 v7, 4, v0")
    a("v_and_b32 v16, 7, v0")
    a("s_lshl_b32 s18, s17, 5")
    for j in range(4):
        a("v_add_u32 v18, %d, v7" % (4 * j))
        a("v_and_b32 v18, 7, v18")
        a("v_xor_b32 v18, v18, v16")
        a("v_lshlrev_b32 v18, 4, v18")
        a("v_add3_u32 v17, v6, s18, %d" % (8 * j))
        a("v_lshlrev_b32 v17, 10, v17")
        a("v_add_u32 v17, v17, v18")
        a("v_subrev_u32 v%d, %d, v17" % (8 + j, 1024 * j))
    a("s_lshl_b32 s21, s17, 12")
    a("s_mov_b32 s20, 0")
    a("s_mov_b32 s22, 0")
    a("s_mov_b32 s29, -4")
    a("v_and_b32 v1, 15, v0")
    a("v_lshrrev_b32 v3, 1, v1")
    a("v_lshlrev_b32 v4, 7, v1")
    for sx in range(2):
        a("v_add_u32 v17, %d, v7" % (4 * sx))
        a("v_xor_b32 v17, v17, v3")
        a("v_lshlrev_b32 v17, 4, v17")
        a("v_add3_u32 v%d, v17, v4, s21" % (32 + sx))
    for r in range(12):
        a("v_mov_b64 v[%d:%d], 0" % (64 + 2 * r, 65 + 2 * r))
    for r in range(4):
        a("v_mov_b32 v%d, 0x3f803f80" % (88 + r))
    a.label("kx_l1loop")
    a("s_cmp_lt_i32 s29, 0")
    a("s_cbranch_scc1 kx_l1issue")
    a("s_cmp_lt_u32 s29, 5")
    a("s_cbranch_scc1 kx_l1w16")
    a("s_cmp_eq_u32 s29, 5")
    a("s_cbranch_scc1 kx_l1w8")
    a("s_waitcnt vmcnt(0)")
    a.label("kx_l1w8")
    a("s_waitcnt vmcnt(8)")
    a.label("kx_l1w16")
    a("s_waitcnt vmcnt(16)")
    a("s_cmp_eq_u32 s29, 7")
    a("s_cbranch_scc1 kx_l1nob")
    a("s_barrier")
    a.label("kx_l1nob")
    for sx in range(2):
        f = 96 + 16 * sx
        a("ds_read_b128 v[%d:%d], v%d" % (f, f + 3, 32 + sx))
        a("ds_read_b128 v[%d:%d], v%d offset:2048" % (f + 4, f + 7, 32 + sx))
        a("ds_read_b128 v[%d:%d], v%d offset:16384" % (f + 8, f + 11, 32 + sx))
        a("ds_read_b128 v[%d:%d], v%d offset:18432" % (f + 12, f + 15, 32 + sx))
    a("s_cmp_eq_u32 s29, 4")
    a("s_cselect_b32 s19, %d, 0" % (NSLOT * SLOT))
    a("s_sub_u32 s19, %d, s19" % SLOT)
    a("v_add_u32 v32, s19, v32")
    a("v_add_u32 v33, s19, v33")
    a.label("kx_l1issue")
    a("s_cmp_ge_u32 s22, 8")
    a("s_cbranch_scc1 kx_l1noissue")
    a("s_mov_b32 m0, s21")
    a("s_add_u32 s19, s21, 16384")
    for j in range(4):
        a("buffer_load_dwordx4 v%d, s[4:7], s20 offen offset:%d%s lds" % (8 + j, 1024 * j, NT))
    a("s_mov_b32 m0, s19")
    a("s_add_u32 s22, s22, 1")
    for j in range(4):
        a("buffer_load_dwordx4 v%d, s[8:11], s20 offen offset:%d%s lds" % (8 + j, 1024 * j, NT))
    a("s_add_u32 s20, s20, 128")
    a("s_add_u32 s21, s21, %d" % SLOT)
    a("s_cmp_eq_u32 s22, %d" % NSLOT)
    a("s_cselect_b32 s19, %d, 0" % (SLOT * NSLOT))
    a("s_sub_u32 s21, s21, s19")
    a.label("kx_l1noissue")
    a("s_cmp_lt_i32 s29, 0")
    a("s_cbranch_scc1 kx_l1next")
    a("s_cmp_lg_u32 s29, 4")
    a("s_cbranch_scc1 kx_l1non")
    a("buffer_load_dword v194, v197, s[72:75], 0 offen%s" % SC)
    a.label("kx_l1non")
    for sx in range(2):
        a("s_waitcnt lgkmcnt(%d)" % (4 if sx == 0 else 0))
        f = 96 + 16 * sx
        for rb in range(2):
            x = f + 4 * rb
            a("v_mfma_f32_16x16x32_bf16 v[%d:%d], v[%d:%d], v[%d:%d], v[%d:%d]" % (64 + 4 * rb, 67 + 4 * rb, x, x + 3, x, x + 3, 64 + 4 * rb, 67 + 4 * rb))
            a("v_mfma_f32_16x16x32_bf16 v[%d:%d], v[%d:%d], v[88:91], v[%d:%d]" % (72 + 4 * rb, 75 + 4 * rb, x, x + 3, 72 + 4 * rb, 75 + 4 * rb))
            a("v_mfma_f32_16x16x32_bf16 v[%d:%d], v[88:91], v[%d:%d], v[%d:%d]" % (80 + 4 * rb, 83 + 4 * rb, x + 8, x + 11, 80 + 4 * rb, 83 + 4 * rb))
    a.label("kx_l1next")
    a("s_add_i32 s29, s29, 1")
    a("s_cmp_lt_i32 s29, 8")
    a("s_cbranch_scc1 kx_l1loop")
    a("v_and_b32 v16, 3, v0")
    a("v_lshrrev_b32 v17, 2, v1")
    a("s_nop 7")
    a("v_cmp_eq_u32 s[24:25], 1, v16")
    a("v_cmp_eq_u32 s[26:27], 2, v16")
    a("v_cmp_eq_u32 s[28:29], 3, v16")
    a("s_lshl_b32 s19, s17, 8")
    a("s_add_u32 s19, s19, %d" % STATS_LDS)
    a("v_lshlrev_b32 v6, 3, v1")
    a("v_add_u32 v6, s19, v6")
    a("s_lshl_b32 s19, s17, 7")
    a("s_add_u32 s19, s19, %d" % SUMW_LDS)
    a("v_lshlrev_b32 v18, 2, v1")
    a("v_add_u32 v18, s19, v18")
    a("ds_write_b32 v18, v80")
    a("ds_write_b32 v18, v84 offset:64")
    for base in (64, 68, 72, 76):
        a("v_cndmask_b32 v%d, v%d, v%d, s[24:25]" % (base, base, base + 1))
        a("v_cndmask_b32 v%d, v%d, v%d, s[26:27]" % (base, base, base + 2))
        a("v_cndmask_b32 v%d, v%d, v%d, s[28:29]" % (base, base, base + 3))
    a("v_cmp_eq_u32 vcc, v17, v7")
    a("s_and_saveexec_b64 s[24:25], vcc")
    for rb in range(2):
        a("v_mul_f32 v28, 0x3b000000, v%d" % (72 + 4 * rb))
        a("v_mul_f32 v29, 0x3b000000, v%d" % (64 + 4 * rb))
        a("v_fma_f32 v29, -v28, v28, v29")
        a("v_max_f32 v29, 0, v29")
        bf16r(a, 30, 28)
        bf16r(a, 29, 29)
        a("v_add_f32 v29, 0x3727c5ac, v29")
        bf16r(a, 29, 29)
        a("v_sqrt_f32 v29, v29")
        a("s_nop 0")
        bf16r(a, 29, 29)
        a("v_rcp_f32 v31, v29")
        a("s_nop 0")
        a("ds_write_b64 v6, v[30:31] offset:%d" % (128 * rb))
    a("s_mov_b64 exec, -1")
    a("s_cmp_lg_u32 s16, 4")
    a("s_cbranch_scc1 kx_l1s")
    a("v_cmp_eq_u32 vcc, 0, v194")
    a("s_nop 2")
    a("s_cmp_eq_u64 vcc, 0")
    a("s_cbranch_scc1 kx_polln_done")
    poll(a, "kx_polln", ["buffer_load_dword v194, v197, s[72:75], 0 offen%s" % SC], lambda: a("v_cmp_eq_u32 vcc, 0, v194"))
    a("v_mov_b32 v195, %d" % NONCE_LDS)
    a("ds_write_b32 v195, v194")
    a.label("kx_l1s")
    a("s_waitcnt lgkmcnt(0)")
    a("s_barrier")
    a("s_branch kx_loader2")

    a.label("kx_pref")
    a("s_sub_u32 s86, s59, 16")
    a("v_lshrrev_b32 v6, 3, v0")
    a("v_and_b32 v7, 7, v0")
    a("v_lshlrev_b32 v8, 12, v6")
    a("v_lshlrev_b32 v6, 10, v6")
    a("v_lshlrev_b32 v9, 7, v7")
    a("v_add_u32 v6, v6, v9")
    a("v_add_u32 v14, v8, v9")
    a("s_cmp_eq_u32 s89, 0")
    a("s_cselect_b32 s24, s38, s40")
    a("s_cselect_b32 s25, s39, s41")
    a("s_cselect_b32 s26, s34, s36")
    a("s_cselect_b32 s27, s35, s37")
    a("s_lshl_b32 s19, s85, 17")
    a("s_add_u32 s22, s32, s19")
    a("s_addc_u32 s23, s33, 0")
    a("s_cmp_lt_u32 s86, 8")
    a("s_cselect_b32 s22, s22, s24")
    a("s_cselect_b32 s23, s23, s25")
    srd(a, 4, 22, 23, 524288)
    a("s_and_b32 s19, s86, 7")
    a("s_lshl_b32 s19, s19, 16")
    a("s_lshl_b32 s20, s16, 13")
    a("s_add_u32 s19, s19, s20")
    a("buffer_load_dword v60, v6, s[4:7], s19 offen" + NT)
    a("s_lshl_b32 s19, s60, 22")
    a("s_lshl_b32 s20, s86, 18")
    a("s_add_u32 s19, s19, s20")
    a("s_lshl_b32 s20, s88, 11")
    a("s_add_u32 s19, s19, s20")
    a("s_lshl_b32 s20, s16, 15")
    a("s_add_u32 s19, s19, s20")
    add64(a, 26, 27, "s19")
    srd(a, 8, 26, 27, 7 * 4096 + 2048)
    if 8 < PFN < 16:
        a("v_cmp_gt_u32 vcc, %d, v7" % (PFN - 8))
        a("v_mov_b32 v15, 0x40000000")
        a("v_cndmask_b32 v15, v15, v14, vcc")
    else:
        a("v_mov_b32 v15, v14")
    a("s_lshl_b32 s19, s86, 3")
    a("s_add_u32 s19, s19, s16")
    a("s_mul_i32 s20, s19, 2731")
    a("s_lshr_b32 s20, s20, 16")
    a("s_mul_i32 s21, s20, 24")
    a("s_sub_u32 s21, s19, s21")
    a("s_lshl_b32 s20, s20, 3")
    a("s_add_u32 s20, s20, s58")
    a("s_movk_i32 s19, 3584")
    a("v_mul_lo_u32 v10, v0, s19")
    a("s_waitcnt vmcnt(0)")
    if PFN > 0:
        a("buffer_load_dword v62, v14, s[8:11], 0 offen" + NT)
    a("s_cmp_ge_u32 s20, 28")
    a("s_cbranch_scc1 kx_pf_done")
    a("s_cmp_ge_u32 s21, 16")
    a("s_cbranch_scc1 kx_pf_wd")
    a("s_cmp_lt_u32 s21, 8")
    a("s_cselect_b32 s22, s46, s48")
    a("s_cselect_b32 s23, s47, s49")
    srd(a, 12, 22, 23, 512 * 3584)
    a("s_and_b32 s21, s21, 7")
    a("s_mul_i32 s19, s21, %d" % (64 * 3584))
    a("s_lshl_b32 s20, s20, 7")
    a("s_add_u32 s19, s19, s20")
    a("buffer_load_dword v61, v10, s[12:15], s19 offen" + NT)
    a("s_branch kx_pf_done")
    a.label("kx_pf_wd")
    srd(a, 12, 50, 51, 1792 * 1024)
    a("s_sub_u32 s21, s21, 16")
    a("s_lshl_b32 s19, s20, 16")
    a("s_lshl_b32 s21, s21, 13")
    a("s_add_u32 s19, s19, s21")
    a("buffer_load_dword v61, v6, s[12:15], s19 offen" + NT)
    a.label("kx_pf_done")
    if PFN > 8:
        a("buffer_load_dword v63, v15, s[8:11], 0 offen offset:1024" + NT)
    a("s_cmp_lg_u32 s16, 0")
    a("s_cbranch_scc1 kx_pf_s")
    poll(a, "kx_pollp", ["buffer_load_dword v194, v197, s[72:75], 0 offen%s" % SC], lambda: a("v_cmp_eq_u32 vcc, 0, v194"))
    a("v_mov_b32 v195, %d" % NONCE_LDS)
    a("ds_write_b32 v195, v194")
    a("s_waitcnt lgkmcnt(0)")
    a.label("kx_pf_s")
    a("s_waitcnt vmcnt(0)")
    stamp(a, 1)
    a("s_barrier")
    a("s_cmp_ge_u32 s16, 4")
    a("s_cbranch_scc1 kx_loader2")
    a("v_mov_b32 v5, %d" % NONCE_LDS)
    a("ds_read_b32 v16, v5")
    a("s_waitcnt lgkmcnt(0)")
    a("v_readfirstlane_b32 s84, v16")
    a("s_branch kx_cons2")

    a.label("kx_loader2")
    a("v_mov_b32 v5, %d" % NONCE_LDS)
    a("ds_read_b32 v16, v5")
    a("s_lshl_b32 s19, s89, 2")
    a("s_add_u32 s19, s19, s62")
    a("s_lshl_b32 s24, s19, 11")
    a("s_lshl_b32 s19, s19, 19")
    a("s_lshl_b32 s20, s88, 18")
    a("s_add_u32 s19, s19, s20")
    a("s_add_u32 s22, s56, s19")
    a("s_addc_u32 s23, s57, 0")
    srd(a, 4, 22, 23, 16 * 16384)
    a("s_cmp_eq_u32 s89, 0")
    a("s_cselect_b32 s22, s34, s36")
    a("s_cselect_b32 s23, s35, s37")
    a("s_lshl_b32 s19, s63, 19")
    a("s_lshl_b32 s21, s88, 11")
    a("s_add_u32 s19, s19, s21")
    add64(a, 22, 23, "s19")
    srd(a, 8, 22, 23, 127 * 4096 + 2048)
    a("s_lshl_b32 s20, s88, 10")
    a("s_add_u32 s24, s24, s20")
    a("s_add_u32 s24, s24, %d" % FLAG0)
    a("s_sub_u32 s17, s16, 4")
    a("v_lshrrev_b32 v1, 3, v0")
    a("v_lshrrev_b32 v2, 4, v0")
    a("v_and_b32 v3, 7, v0")
    a("s_lshl_b32 s18, s17, 5")
    a("v_add_u32 v1, s18, v1")
    a("v_lshlrev_b32 v6, 7, v1")
    for j in range(4):
        a("v_add_u32 v4, %d, v1" % (8 * j))
        a("v_lshlrev_b32 v4, 12, v4")
        a("v_add_u32 v5, %d, v2" % (4 * j))
        a("v_and_b32 v5, 7, v5")
        a("v_xor_b32 v5, v5, v3")
        a("v_lshlrev_b32 v5, 4, v5")
        a("v_add_u32 v4, v4, v5")
        a("v_subrev_u32 v%d, %d, v4" % (8 + j, 1024 * j))
        a("v_add_u32 v%d, v6, v5" % (12 + j))
    a("s_waitcnt lgkmcnt(0)")
    a("v_readfirstlane_b32 s84, v16")
    a("s_lshl_b32 s21, s17, 12")
    a("s_mov_b32 s20, 0")
    a("s_add_u32 s19, s21, 16384")
    a.label("kx_l2q")
    a("s_mov_b32 m0, s19")
    a("s_add_u32 s19, s19, %d" % SLOT)
    for j in range(4):
        a("buffer_load_dwordx4 v%d, s[8:11], s20 offen offset:%d%s lds" % (8 + j, 1024 * j, NTQ))
    a("s_add_u32 s20, s20, 128")
    a("s_cmp_lt_u32 s20, 512")
    a("s_cbranch_scc1 kx_l2q")
    a("s_cmp_lg_u32 s16, 4")
    a("s_cbranch_scc1 kx_poll0_done")
    a("v_lshlrev_b32 v20, 7, v3")

    def f0cond():
        a("v_xor_b32 v24, s84, v24")
        a("v_xor_b32 v25, s84, v25")
        a("v_xor_b32 v26, s84, v26")
        a("v_xor_b32 v27, s84, v27")
        a("v_or3_b32 v24, v24, v25, v26")
        a("v_or_b32 v24, v24, v27")
        a("v_cmp_ne_u32 vcc, 0, v24")
    a("s_mov_b64 exec, 0xff")
    poll(a, "kx_poll0", ["buffer_load_dwordx4 v[24:27], v20, s[68:71], s24 offen%s" % SC], f0cond)
    a("s_mov_b64 exec, -1")
    stamp(a, 2)
    a("s_barrier")
    a("s_mov_b32 s26, 0")
    a("s_mov_b32 s19, s21")
    a.label("kx_l2p")
    a("s_mov_b32 m0, s19")
    a("s_add_u32 s19, s19, %d" % SLOT)
    for j in range(4):
        a("buffer_load_dwordx4 v%d, s[4:7], s26 offen offset:%d%s lds" % (12 + j, 1024 * j, SC))
    a("s_add_u32 s26, s26, 16384")
    a("s_cmp_lt_u32 s26, 65536")
    a("s_cbranch_scc1 kx_l2p")
    a("s_waitcnt vmcnt(8)")
    a("s_barrier")
    a("s_add_u32 s21, s21, %d" % (4 * SLOT))
    a("s_mov_b32 s25, 4")
    a("s_mov_b32 s22, 4")
    a.label("kx_l2loop")
    a("s_mov_b32 m0, s21")
    a("s_add_u32 s19, s21, 16384")
    for j in range(4):
        a("buffer_load_dwordx4 v%d, s[4:7], s26 offen offset:%d%s lds" % (12 + j, 1024 * j, SC))
    a("s_mov_b32 m0, s19")
    a("s_add_u32 s25, s25, 1")
    for j in range(4):
        a("buffer_load_dwordx4 v%d, s[8:11], s20 offen offset:%d%s lds" % (8 + j, 1024 * j, NTQ))
    a("s_add_u32 s20, s20, 128")
    a("s_add_u32 s26, s26, 16384")
    a("s_add_u32 s21, s21, %d" % SLOT)
    a("s_cmp_eq_u32 s25, %d" % NSLOT)
    a("s_cselect_b32 s19, %d, 0" % (SLOT * NSLOT))
    a("s_cselect_b32 s27, %d, 0" % NSLOT)
    a("s_sub_u32 s21, s21, s19")
    a("s_sub_u32 s25, s25, s27")
    a("s_add_u32 s22, s22, 1")
    a("s_cmp_lg_u32 s22, 5")
    a("s_cbranch_scc1 kx_l2w16")
    a("s_waitcnt vmcnt(12)")
    a.label("kx_l2w16")
    a("s_waitcnt vmcnt(16)")
    a("s_barrier")
    a("s_cmp_lt_u32 s22, 16")
    a("s_cbranch_scc1 kx_l2loop")
    a("s_waitcnt vmcnt(8)")
    a("s_barrier")
    a("s_waitcnt vmcnt(0)")
    a("s_barrier")
    stamp(a, 3)

    a.label("kx_rows")
    stamp(a, 12)
    srd(a, 72, 32, 33, 2 << 20)
    srd(a, 76, 44, 45, 1024)
    srd(a, 80, 52, 53, 2 << 20)
    a("s_lshl_b32 s18, s64, 3")
    a("s_add_u32 s18, s18, s16")
    a("v_lshlrev_b32 v2, 4, v0")
    a("s_lshl_b32 s19, s18, 10")
    a("buffer_load_dwordx4 v[24:27], v2, s[72:75], s19 offen")
    a("buffer_load_dwordx4 v[28:31], v2, s[76:79], 0 offen")
    a("v_lshrrev_b32 v5, 4, v0")
    a("v_lshlrev_b32 v5, 17, v5")
    a("v_and_b32 v6, 8, v0")
    a("v_lshlrev_b32 v6, 11, v6")
    a("v_and_b32 v7, 7, v0")
    a("v_lshlrev_b32 v7, 4, v7")
    a("v_add3_u32 v5, v5, v6, v7")
    a("s_lshl_b32 s21, s63, 19")
    a("s_and_b32 s22, s18, 64")
    a("s_lshl_b32 s22, s22, 7")
    a("s_add_u32 s21, s21, s22")
    a("s_and_b32 s22, s18, 63")
    a("s_lshl_b32 s22, s22, 7")
    a("s_add_u32 s21, s21, s22")
    a("s_add_u32 s21, s21, %d" % PART_OFF)
    a("v_and_b32 v3, 15, v0")
    a("v_lshlrev_b32 v3, 7, v3")
    a("s_lshl_b32 s20, s63, 11")
    a("s_add_u32 s20, s20, %d" % FLAG1)
    a("s_cmp_lg_u32 s16, 0")
    a("s_cbranch_scc1 kx_poll1_done")

    def f1cond():
        a("v_xor_b32 v8, s84, v8")
        a("v_xor_b32 v9, s84, v9")
        a("v_xor_b32 v10, s84, v10")
        a("v_xor_b32 v11, s84, v11")
        a("v_or3_b32 v8, v8, v9, v10")
        a("v_or_b32 v8, v8, v11")
        a("v_cmp_ne_u32 vcc, 0, v8")
    a("s_mov_b64 exec, 0xffff")
    poll(a, "kx_poll1", ["buffer_load_dwordx4 v[8:11], v3, s[68:71], s20 offen%s" % SC], f1cond)
    a("s_mov_b64 exec, -1")
    a("s_barrier")
    stamp(a, 4)
    for ks in range(4):
        a("s_add_u32 s20, s21, %d" % (ks * 32768))
        a("buffer_load_dwordx4 v[%d:%d], v5, s[68:71], s20 offen%s" % (8 + 4 * ks, 11 + 4 * ks, SC))
    a("s_waitcnt vmcnt(0)")
    stamp(a, 13)
    for i in range(4):
        unpack(a, 48, 49, 8 + i)
        unpack(a, 50, 51, 12 + i)
        unpack(a, 52, 53, 16 + i)
        unpack(a, 54, 55, 20 + i)
        unpack(a, 56, 57, 24 + i)
        a("v_pk_add_f32 v[48:49], v[48:49], v[50:51]")
        a("v_pk_add_f32 v[52:53], v[52:53], v[54:55]")
        a("v_pk_add_f32 v[48:49], v[48:49], v[52:53] neg_lo:[0,1] neg_hi:[0,1]")
        a("v_pk_add_f32 v[48:49], v[48:49], v[56:57]")
        a("v_cvt_pk_bf16_f32 v%d, v48, v49" % (32 + i))
        unpack(a, 40 + 2 * i, 41 + 2 * i, 32 + i)
    a("v_pk_add_f32 v[48:49], v[40:41], v[42:43]")
    a("v_pk_add_f32 v[50:51], v[44:45], v[46:47]")
    a("v_pk_add_f32 v[48:49], v[48:49], v[50:51]")
    a("v_add_f32 v48, v48, v49")
    allreduce64(a, "add_f32", 48, 49)
    a("v_mul_f32 v58, 0x3b000000, v48")
    for i in range(4):
        a("v_pk_add_f32 v[%d:%d], v[%d:%d], v[58:59] op_sel_hi:[1,0] neg_lo:[0,1] neg_hi:[0,1]" % (
            50 + 2 * i, 51 + 2 * i, 40 + 2 * i, 41 + 2 * i))
    a("v_pk_mul_f32 v[48:49], v[50:51], v[50:51]")
    for i in range(1, 4):
        a("v_pk_fma_f32 v[48:49], v[%d:%d], v[%d:%d], v[48:49]" % (50 + 2 * i, 51 + 2 * i, 50 + 2 * i, 51 + 2 * i))
    a("v_add_f32 v48, v48, v49")
    allreduce64(a, "add_f32", 48, 49)
    a("v_mul_f32 v48, 0x3b000000, v48")
    bf16r(a, 60, 58)
    bf16r(a, 48, 48)
    a("v_add_f32 v48, 0x3727c5ac, v48")
    bf16r(a, 48, 48)
    a("v_sqrt_f32 v48, v48")
    a("s_nop 0")
    bf16r(a, 48, 48)
    a("v_rcp_f32 v61, v48")
    a("s_nop 0")
    a("v_mul_f32 v62, v60, v61")
    a("v_sub_f32 v62, 0, v62")
    a("v_mov_b32 v58, v61")
    for i in range(4):
        a("v_pk_fma_f32 v[48:49], v[%d:%d], v[58:59], v[62:63] op_sel_hi:[1,0,0]" % (40 + 2 * i, 41 + 2 * i))
        a("v_cvt_pk_bf16_f32 v%d, v48, v49" % (36 + i))
        unpack(a, 50 + 2 * i, 51 + 2 * i, 36 + i)
        unpack(a, 8 + 2 * i, 9 + 2 * i, 28 + i)
    for i in range(4):
        a("v_pk_add_f32 v[%d:%d], v[%d:%d], v[%d:%d]" % (16 + 2 * i, 17 + 2 * i, 40 + 2 * i, 41 + 2 * i, 50 + 2 * i, 51 + 2 * i))
        a("v_cvt_pk_bf16_f32 v%d, v%d, v%d" % (24 + i, 16 + 2 * i, 17 + 2 * i))
    a("v_pk_mul_f32 v[48:49], v[50:51], v[8:9]")
    for i in range(1, 4):
        a("v_pk_fma_f32 v[48:49], v[%d:%d], v[%d:%d], v[48:49]" % (50 + 2 * i, 51 + 2 * i, 8 + 2 * i, 9 + 2 * i))
    a("v_add_f32 v48, v48, v49")
    allreduce64(a, "add_f32", 48, 49)
    a("v_cvt_pk_bf16_f32 v48, v48, v48")
    a("v_and_b32 v48, 0xffff0000, v48")
    a("v_ashrrev_i32 v49, 31, v48")
    a("v_and_b32 v49, 0x7fff0000, v49")
    a("v_or_b32 v49, 0x80000000, v49")
    a("v_xor_b32 v48, v48, v49")
    a("s_sub_u32 s20, 0xffff, s18")
    a("v_or_b32 v48, s20, v48")
    a("v_mov_b32 v49, s84")
    a("s_lshl_b32 s20, s16, 2")
    a("s_add_u32 s20, s20, 98304")
    a("v_mov_b32 v4, s20")
    a("v_mov_b32 v5, 98304")
    a("ds_write_b32 v4, v48")
    a("s_waitcnt lgkmcnt(0)")
    a("s_barrier")
    a("ds_read_b128 v[8:11], v5")
    a("ds_read_b128 v[12:15], v5 offset:16")
    a("s_lshl_b32 s20, s64, 11")
    a("s_add_u32 s20, s20, %d" % SELROW)
    a("s_waitcnt lgkmcnt(0)")
    a("v_max3_u32 v8, v8, v9, v10")
    a("v_max3_u32 v8, v8, v11, v12")
    a("v_max3_u32 v8, v8, v13, v14")
    a("v_max_u32 v63, v8, v15")
    a("v_cmp_eq_u32 vcc, v63, v48")
    a("s_nop 2")
    a("s_cmp_eq_u64 vcc, 0")
    a("s_cbranch_scc0 kx_best")
    a("buffer_store_dwordx4 v[24:27], v2, s[80:83], s19 offen")
    a("s_branch kx_notbest")
    a.label("kx_best")
    a("s_lshr_b32 s21, s64, 2")
    a("s_lshl_b32 s21, s21, 7")
    a("s_and_b32 s22, s64, 3")
    a("s_lshl_b32 s22, s22, 3")
    a("s_add_u32 s21, s21, s22")
    a("s_add_u32 s21, s21, %d" % KEYS)
    a("v_lshlrev_b32 v5, 13, v0")
    a("s_mov_b64 exec, %d" % ((1 << NREP) - 1))
    a("buffer_store_dwordx2 v[48:49], v5, s[68:71], s21 offen%s" % SC)
    a("s_mov_b64 exec, -1")
    a("buffer_store_dwordx4 v[36:39], v2, s[68:71], s20 offen%s" % SC)
    a("buffer_store_dwordx4 v[32:35], v2, s[68:71], s20 offen offset:1024%s" % SC)
    a("ds_write_b128 v2, v[24:27] offset:32768")
    a("s_waitcnt lgkmcnt(0)")
    a.label("kx_notbest")
    stamp(a, 14)
    a("s_cmp_ge_u32 s16, 4")
    a("s_cbranch_scc1 kx_exit")

    a("s_cmp_lt_u32 s65, 28")
    a("s_cbranch_scc1 kx_keys")
    a("s_cmp_ge_u32 s16, 2")
    a("s_cbranch_scc1 kx_exit")
    a.label("kx_keys")
    a("s_and_b32 s20, s64, %d" % (NREP - 1))
    a("s_lshl_b32 s20, s20, 13")
    a("s_add_u32 s20, s20, %d" % KEYS)
    a("v_lshlrev_b32 v3, 7, v0")
    a("v_mov_b32 v5, 98816")
    a("s_cmp_lg_u32 s16, 0")
    a("s_cbranch_scc1 kx_keywait")

    def keycond():
        a("v_xor_b32 v9, s84, v9")
        a("v_xor_b32 v11, s84, v11")
        a("v_xor_b32 v13, s84, v13")
        a("v_xor_b32 v15, s84, v15")
        a("v_or3_b32 v4, v9, v11, v13")
        a("v_or_b32 v4, v4, v15")
        a("v_cmp_ne_u32 vcc, 0, v4")
    poll(a, "kx_poll2", ["buffer_load_dwordx4 v[8:11], v3, s[68:71], s20 offen%s" % SC,
                         "buffer_load_dwordx4 v[12:15], v3, s[68:71], s20 offen offset:16%s" % SC], keycond)
    a("v_max_u32 v64, v8, v10")
    a("v_max3_u32 v64, v64, v12, v14")
    allreduce64(a, "max_u32", 64, 65)
    a("ds_write_b32 v5, v64")
    a("s_waitcnt lgkmcnt(0)")
    a.label("kx_keywait")
    a("s_barrier")
    a("ds_read_b32 v64, v5")
    a("ds_read_b128 v[24:27], v2 offset:32768")
    a("s_waitcnt lgkmcnt(0)")
    stamp(a, 5)
    a("v_and_b32 v66, 0xffff, v64")
    a("v_sub_u32 v66, 0xffff, v66")
    a("v_lshrrev_b32 v67, 3, v66")
    a("v_lshlrev_b32 v67, 11, v67")
    a("s_cmp_lg_u32 s16, 1")
    a("s_cbranch_scc1 kx_noparked")
    a("v_and_b32 v4, 0xffff, v63")
    a("v_sub_u32 v4, 0xffff, v4")
    a("v_lshlrev_b32 v4, 10, v4")
    a("v_add_u32 v4, v4, v2")
    a("v_cmp_ne_u32 vcc, v63, v64")
    a("s_and_saveexec_b64 s[22:23], vcc")
    a("s_cbranch_execz kx_parkskip")
    a("buffer_store_dwordx4 v[24:27], v4, s[80:83], 0 offen")
    a.label("kx_parkskip")
    a("s_mov_b64 exec, -1")
    a.label("kx_noparked")
    a("s_mov_b32 s20, %d" % SELROW)
    a("s_cmp_ge_u32 s65, 28")
    a("s_cbranch_scc1 kx_final")
    a("v_lshlrev_b32 v4, 2, v199")
    a("v_add_u32 v68, v67, v4")
    poll(a, "kx_poll4", ["buffer_load_dword v75, v68, s[68:71], s20 offen%s" % SC],
         lambda: a("v_cmp_eq_u32 vcc, -1, v75"))
    a("s_mov_b32 s22, 0x05040100")
    a("s_mov_b32 s23, 0x07060302")
    for m in range(2):
        for i in range(4):
            a("v_perm_b32 v%d, v%d, v%d, s22" % (32 + 8 * m + 2 * i, 204 + 8 * m + i, 200 + 8 * m + i))
            a("v_perm_b32 v%d, v%d, v%d, s23" % (33 + 8 * m + 2 * i, 204 + 8 * m + i, 200 + 8 * m + i))
    for i in range(16):
        a("v_dot2_f32_bf16 v%d, v%d, v75, 0" % (48 + i, 32 + i))
    a("s_nop 2")
    for i in range(8):
        a("v_permlane32_swap_b32 v%d, v%d" % (48 + i, 56 + i))
    a("s_nop 1")
    for i in range(8):
        a("v_add_f32 v%d, v%d, v%d" % (48 + i, 48 + i, 56 + i))
    a("s_nop 1")
    for i in range(4):
        a("v_permlane16_swap_b32 v%d, v%d" % (48 + i, 52 + i))
    a("s_nop 1")
    for i in range(4):
        a("v_add_f32 v%d, v%d, v%d" % (48 + i, 48 + i, 52 + i))
    for r in (8, 4, 2, 1):
        a("s_nop 0")
        for i in range(4):
            a("v_add_f32_dpp v%d, v%d, v%d row_ror:%d row_mask:0xf bank_mask:0xf" % (48 + i, 48 + i, 48 + i, r))
    a("s_lshl_b32 s21, s16, 6")
    a("s_add_u32 s21, s21, 98560")
    a("v_lshrrev_b32 v7, 4, v0")
    a("v_lshlrev_b32 v7, 4, v7")
    a("v_add_u32 v6, s21, v7")
    a("ds_write_b128 v6, v[48:51]")
    a("v_and_b32 v7, 7, v0")
    a("v_lshlrev_b32 v7, 2, v7")
    a("v_add_u32 v7, 98560, v7")
    a("s_waitcnt lgkmcnt(0)")
    a("s_barrier")
    for w in range(4):
        a("ds_read_b32 v%d, v7 offset:%d" % (48 + w, 64 * w))
        a("ds_read_b32 v%d, v7 offset:%d" % (52 + w, 64 * w + 32))
    a("s_waitcnt lgkmcnt(0)")
    a("v_add_f32 v48, v48, v49")
    a("v_add_f32 v50, v50, v51")
    a("v_add_f32 v52, v52, v53")
    a("v_add_f32 v54, v54, v55")
    a("v_add_f32 v48, v48, v50")
    a("v_add_f32 v52, v52, v54")
    bf16r(a, 48, 48)
    bf16r(a, 52, 52)
    a("v_mul_f32 v49, 0xbfb8aa3b, v48")
    a("v_exp_f32 v49, v49")
    a("s_nop 0")
    a("v_add_f32 v49, 1.0, v49")
    a("v_rcp_f32 v49, v49")
    a("s_nop 0")
    a("v_mul_f32 v48, v48, v49")
    bf16r(a, 48, 48)
    a("v_mul_f32 v48, v48, v52")
    bf16r(a, 48, 48)
    a("s_nop 0")
    for j in range(8):
        a("v_readlane_b32 s%d, v48, %d" % (4 + j, j))
    a("v_mov_b32 v50, 0")
    a("v_mov_b32 v51, 0")
    for j in range(8):
        unpack(a, 52, 53, 216 + j)
        a("v_fmac_f32 v50, s%d, v52" % (4 + j))
        a("v_fmac_f32 v51, s%d, v53" % (4 + j))
    a("v_lshlrev_b32 v6, 3, v199")
    a("s_lshl_b32 s20, s66, 11")
    a("s_add_u32 s20, s20, %d" % YP_OFF)
    a("buffer_store_dwordx2 v[50:51], v6, s[68:71], s20 offen%s" % SC)
    stamp(a, 7)
    a("s_endpgm")

    a.label("kx_final")
    a("v_lshrrev_b32 v5, 4, v0")
    a("v_lshlrev_b32 v3, 2, v5")
    a("s_lshl_b32 s19, s66, 4")
    a("v_add_u32 v3, s19, v3")
    a("v_add_u32 v68, v67, v3")

    def hcond():
        a("v_max_u32 v4, v69, v75")
        a("v_cmp_eq_u32 vcc, -1, v4")
    poll(a, "kx_poll5", ["buffer_load_dword v75, v68, s[68:71], s20 offen%s" % SC,
                         "buffer_load_dword v69, v68, s[68:71], s20 offen offset:1024%s" % SC], hcond)
    a("v_and_b32 v52, 0xffff0000, v64")
    a("v_ashrrev_i32 v53, 31, v52")
    a("v_not_b32 v53, v53")
    a("v_and_b32 v53, 0x7fff0000, v53")
    a("v_or_b32 v53, 0x80000000, v53")
    a("v_xor_b32 v52, v52, v53")
    a("v_mul_f32 v53, 0xbfb8aa3b, v52")
    a("v_exp_f32 v53, v53")
    a("s_nop 0")
    a("v_add_f32 v53, 1.0, v53")
    a("v_rcp_f32 v53, v53")
    a("s_nop 0")
    bf16r(a, 44, 53)
    unpack(a, 40, 41, 69)
    unpack(a, 42, 43, 75)
    a("v_lshlrev_b32 v45, 10, v66")
    a("v_add_u32 v45, v45, v3")
    a("v_lshlrev_b32 v1, 11, v0")
    a("s_lshl_b32 s19, s66, 5")
    a("v_add_u32 v1, s19, v1")
    a("v_cmp_gt_u32 vcc, 32, v0")
    a("v_mov_b32 v6, 0x40000000")
    a("v_cndmask_b32 v6, v6, v1, vcc")
    for i in range(4):
        a("s_mov_b32 s%d, %d" % (24 + i, YP_OFF + 131072 * i))
    loads = []
    for i in range(4):
        vo = 1 if i < 3 else 6
        loads.append("buffer_load_dwordx4 v[%d:%d], v%d, s[68:71], s%d offen%s" % (8 + 8 * i, 11 + 8 * i, vo, 24 + i, SC))
        loads.append("buffer_load_dwordx4 v[%d:%d], v%d, s[68:71], s%d offen offset:16%s" % (12 + 8 * i, 15 + 8 * i, vo, 24 + i, SC))

    def ycond():
        a("v_max3_u32 v4, v8, v9, v10")
        for i in range(11, 39, 2):
            a("v_max3_u32 v4, v4, v%d, v%d" % (i, i + 1))
        a("v_max_u32 v4, v4, v39")
        a("v_cmp_eq_u32 vcc, -1, v4")
    poll(a, "kx_poll3", loads, ycond)
    for i in range(4):
        a("v_pk_add_f32 v[%d:%d], v[%d:%d], v[%d:%d]" % (8 + 2 * i, 9 + 2 * i, 8 + 2 * i, 9 + 2 * i, 16 + 2 * i, 17 + 2 * i))
        a("v_pk_add_f32 v[%d:%d], v[%d:%d], v[%d:%d]" % (24 + 2 * i, 25 + 2 * i, 24 + 2 * i, 25 + 2 * i, 32 + 2 * i, 33 + 2 * i))
    for i in range(4):
        a("v_pk_add_f32 v[%d:%d], v[%d:%d], v[%d:%d]" % (8 + 2 * i, 9 + 2 * i, 8 + 2 * i, 9 + 2 * i, 24 + 2 * i, 25 + 2 * i))
    a("s_nop 1")
    for i in range(4):
        a("v_permlane32_swap_b32 v%d, v%d" % (8 + i, 12 + i))
    a("s_nop 1")
    for i in range(4):
        a("v_add_f32 v%d, v%d, v%d" % (8 + i, 8 + i, 12 + i))
    a("s_nop 1")
    for i in range(2):
        a("v_permlane16_swap_b32 v%d, v%d" % (8 + i, 10 + i))
    a("s_nop 1")
    for i in range(2):
        a("v_add_f32 v%d, v%d, v%d" % (8 + i, 8 + i, 10 + i))
    for r in (8, 4, 2, 1):
        a("s_nop 1")
        for i in range(2):
            a("v_add_f32_dpp v%d, v%d, v%d row_ror:%d row_mask:0xf bank_mask:0xf" % (8 + i, 8 + i, 8 + i, r))
    for i in range(2):
        bf16r(a, 8 + i, 8 + i)
        a("v_mul_f32 v%d, v%d, v44" % (8 + i, 8 + i))
        bf16r(a, 8 + i, 8 + i)
        a("v_add_f32 v%d, v%d, v%d" % (8 + i, 8 + i, 42 + i))
        bf16r(a, 8 + i, 8 + i)
        a("v_add_f32 v%d, v%d, v%d" % (8 + i, 8 + i, 40 + i))
    a("v_cvt_pk_bf16_f32 v8, v8, v9")
    a("v_and_b32 v6, 15, v0")
    a("v_cmp_eq_u32 vcc, 0, v6")
    a("s_and_saveexec_b64 s[30:31], vcc")
    a("buffer_store_dword v8, v45, s[80:83], 0 offen")
    a("s_mov_b64 exec, -1")
    if gen.STAMPS:
        a("s_waitcnt vmcnt(0)")
    stamp(a, 7)
    a.label("kx_exit")
    a("s_endpgm")
    return name, 224


def main(out):
    head = open("cdna_kernels/%s.s.ref" % NAME).read().split("\n")
    a = A()
    for line in head:
        if line.startswith(";") and "@launch" not in line:
            a.raw(line)
    kname = "kx_kernel"
    a.raw("; @launch kernel=%s grid=(256,1,1) block=(512,1,1) lds=163840" % kname)
    a.raw('.amdgcn_target "amdgcn-amd-amdhsa--gfx950"')
    name, vg = kx(a, kname)
    kernel_desc(a, name, vg, 96)
    open(out, "w").write(a.text())


if __name__ == "__main__":
    args = [x for x in sys.argv[1:] if not x.startswith("--")]
    if "--stamps" in sys.argv:
        gen.STAMPS = True
    for x in sys.argv:
        if x.startswith("--exp="):
            gen.EXP = set(x[6:].split(","))
        if x.startswith("--sleep="):
            SLEEP = int(x[8:])
        if x.startswith("--pfn="):
            PFN = int(x[6:])
        if x == "--noq":
            NTQ = ""
        if x == "--nont":
            NT = ""
    main(args[0] if args else "cdna_kernels/%s.s" % NAME)
```

```python
import sys
import gen
from gen import (A, NAME, kernel_head, kernel_desc, srd, add64, bf16r, unpack, allreduce64, wave_split,
                 stamp, stampc, stamp_init, SLOT, NSLOT, ACC, FR, AP, AQ, KA_WS)

ABT_OFF = 0
PART_OFF = 4 << 20
FLAG0 = 12 << 20
FLAG1 = FLAG0 + 16384
KEYS = FLAG1 + 32768
STAT = 13 << 20
YP_OFF = 15 << 20
SELROW = 16 << 20
WS_SRD_SIZE = 32 << 20
NREP = 4
SC = " sc1"
SPIN_MAX = 1 << 20
SLEEP = 4
NT = ""
NTQ = ""
PFN = 16
STATS_LDS = 4 * SLOT
SUMW_LDS = STATS_LDS + 1024
NONCE_LDS = STATS_LDS + 2048


def poll(a, lbl, loads, cond):
    a("s_mov_b32 s31, 0")
    a.label(lbl)
    for l in loads:
        a(l)
    a("s_waitcnt vmcnt(0)")
    cond()
    a("s_add_u32 s31, s31, 1")
    a("s_nop 1")
    a("s_cmp_eq_u64 vcc, 0")
    a("s_cbranch_scc1 %s_done" % lbl)
    a("s_cmp_ge_u32 s31, %d" % SPIN_MAX)
    a("s_cbranch_scc1 %s_done" % lbl)
    a("s_sleep %d" % SLEEP)
    a("s_branch %s" % lbl)
    a.label(lbl + "_done")


def kx(a, name):
    gen.STV = 254
    EXP = gen.EXP
    def setup2(sfx):
        a("s_lshl_b32 s31, s16, 6")
        a("v_add_u32 v199, s31, v0")
        for r in range(4):
            a("v_mov_b32 v%d, -1" % (16 + r))
        a("v_lshlrev_b32 v4, 4, v0")
        a("s_and_b32 s21, s16, 1")
        a("s_lshl_b32 s21, s21, 10")
        a("s_cmp_lt_u32 s16, 2")
        a("s_cbranch_scc1 kx_c2a" + sfx)
        a("s_lshl_b32 s20, s64, 11")
        a("s_add_u32 s20, s20, s21")
        a("s_add_u32 s20, s20, %d" % SELROW)
        a("buffer_store_dwordx4 v[16:19], v4, s[68:71], s20 offen%s" % SC)
        a.label("kx_c2a" + sfx)
        a("s_cmp_ge_u32 s65, 28")
        a("s_cbranch_scc1 kx_c2final" + sfx)
        a("s_and_b32 s66, s59, 7")
        a("s_lshl_b32 s26, s65, 3")
        a("s_add_u32 s66, s66, s26")
        a("s_cmp_ge_u32 s16, 2")
        a("s_cbranch_scc1 kx_c2b" + sfx)
        a("s_lshl_b32 s20, s66, 11")
        a("s_add_u32 s20, s20, s21")
        a("s_add_u32 s20, s20, %d" % YP_OFF)
        a("buffer_store_dwordx4 v[16:19], v4, s[68:71], s20 offen%s" % SC)
        a.label("kx_c2b" + sfx)
        a("s_branch kx_c2done" + sfx)
        a.label("kx_c2final" + sfx)
        a("s_sub_u32 s66, s58, 4")
        a("s_lshl_b32 s66, s66, 3")
        a("s_add_u32 s66, s66, s59")
        a("s_sub_u32 s66, s66, 24")
        a("s_lshl_b32 s66, s66, 1")
        a("s_add_u32 s66, s66, s16")
        a.label("kx_c2done" + sfx)

    def ffnloads():
        srd(a, 4, 46, 47, 512 * 3584)
        srd(a, 8, 48, 49, 512 * 3584)
        srd(a, 12, 50, 51, 1792 * 1024)
        a("s_movk_i32 s26, 7168")
        a("v_mul_lo_u32 v5, v199, s26")
        a("s_lshl_b32 s26, s66, 4")
        a("v_add_u32 v5, s26, v5")
        a("v_lshlrev_b32 v4, 2, v199")
        a("s_lshl_b32 s20, s66, 13")
        a("s_add_u32 s21, s20, 4096")
        a("buffer_load_dwordx4 v[200:203], v5, s[4:7], 0 offen")
        a("buffer_load_dwordx4 v[204:207], v5, s[4:7], 0 offen offset:3584")
        a("buffer_load_dwordx4 v[208:211], v5, s[8:11], 0 offen")
        a("buffer_load_dwordx4 v[212:215], v5, s[8:11], 0 offen offset:3584")
        for j in range(4):
            a("buffer_load_dword v%d, v4, s[12:15], s20 offen offset:%d" % (216 + j, 1024 * j))
        for j in range(4):
            a("buffer_load_dword v%d, v4, s[12:15], s21 offen offset:%d" % (220 + j, 1024 * j))

    kernel_head(a, name)
    a("s_cmp_ge_u32 s2, 256")
    a("s_cbranch_scc1 kx_exit")
    a("s_load_dwordx16 s[32:47], s[0:1], 0")
    a("s_load_dwordx8 s[48:55], s[0:1], 64")
    a("s_load_dwordx2 s[56:57], s[0:1], %d" % KA_WS)
    wave_split(a)
    a("s_and_b32 s58, s2, 7")
    a("s_lshr_b32 s59, s2, 3")
    a("s_and_b32 s60, s58, 1")
    a("s_lshr_b32 s61, s58, 1")
    a("s_and_b32 s62, s59, 3")
    a("s_lshr_b32 s63, s59, 2")
    a("s_lshl_b32 s67, s60, 3")
    a("s_add_u32 s63, s63, s67")
    a("s_lshl_b32 s64, s63, 4")
    a("s_lshl_b32 s67, s62, 2")
    a("s_add_u32 s64, s64, s67")
    a("s_add_u32 s64, s64, s61")
    a("s_lshr_b32 s65, s59, 3")
    a("s_lshl_b32 s65, s65, 3")
    a("s_add_u32 s65, s65, s58")
    a("s_and_b32 s88, s61, 1")
    a("s_lshr_b32 s89, s61, 1")
    a("s_lshl_b32 s85, s88, 3")
    a("s_lshl_b32 s67, s60, 2")
    a("s_add_u32 s85, s85, s67")
    a("s_waitcnt lgkmcnt(0)")
    stamp_init(a, 0, 56, 57)
    stamp(a, 0)
    srd(a, 68, 56, 57, WS_SRD_SIZE)
    srd(a, 72, 54, 55, 256)
    a("v_mov_b32 v197, 0")
    a("s_cmp_lg_u32 s2, 128")
    a("s_cbranch_scc1 kx_nononce")
    a("s_cmp_lg_u32 s16, 0")
    a("s_cbranch_scc1 kx_nononce")
    a("s_memrealtime s[18:19]")
    a("s_waitcnt lgkmcnt(0)")
    a("s_or_b32 s84, s18, 1")
    a("v_mov_b32 v194, s84")
    a("s_mov_b64 exec, 1")
    a("buffer_store_dword v194, v197, s[72:75], 0 offen%s" % SC)
    a("s_mov_b64 exec, -1")
    a.label("kx_nononce")
    a("s_cmp_ge_u32 s59, 16")
    a("s_cbranch_scc1 kx_pref")
    a("s_add_u32 s85, s85, s62")
    a("s_lshr_b32 s86, s59, 2")
    a("s_lshl_b32 s87, s89, 2")
    a("s_add_u32 s87, s87, s86")
    a("s_cmp_ge_u32 s16, 4")
    a("s_cbranch_scc1 kx_loader1")
    a("s_mov_b32 s30, 0")
    a("s_mov_b32 s22, 8")

    a.label("kx_cons")
    a("s_lshr_b32 s17, s16, 1")
    a("s_and_b32 s18, s16, 1")
    a("v_and_b32 v1, 15, v0")
    a("v_lshrrev_b32 v2, 4, v0")
    a("v_lshrrev_b32 v3, 1, v1")
    a("v_lshlrev_b32 v4, 7, v1")
    a("s_lshl_b32 s19, s17, 13")
    a("s_lshl_b32 s20, s18, 13")
    a("s_add_u32 s20, s20, 16384")
    for j in range(2):
        a("v_add_u32 v5, %d, v2" % (4 * j))
        a("v_xor_b32 v5, v5, v3")
        a("v_lshlrev_b32 v5, 4, v5")
        a("v_add_u32 v5, v5, v4")
        a("v_add_u32 v%d, s19, v5" % (AP + j))
        a("v_add_u32 v%d, s20, v5" % (AQ + j))
    for r in range(32):
        a("v_mov_b64 v[%d:%d], 0" % (ACC + 2 * r, ACC + 2 * r + 1))
    a("s_mov_b32 s23, %d" % SLOT)
    a("s_mov_b32 s24, %d" % SLOT)
    a("s_mov_b32 s25, 1")
    a("s_mov_b32 s27, %d" % (-(NSLOT - 1) * SLOT))
    a("s_mov_b32 s28, %d" % SLOT)

    def rdlist(j):
        f = FR + 32 * j
        l = []
        for t in range(4):
            l.append("ds_read_b128 v[%d:%d], v%d offset:%d" % (f + 4 * t, f + 4 * t + 3, AP + j, 2048 * t))
            l.append("ds_read_b128 v[%d:%d], v%d offset:%d" % (f + 16 + 4 * t, f + 16 + 4 * t + 3, AQ + j, 2048 * t))
        return l

    book = ["s_mov_b32 s23, s24",
            "s_add_u32 s25, s25, 1",
            "s_cmp_eq_u32 s25, %d" % NSLOT,
            "s_cselect_b32 s26, %d, 0" % NSLOT,
            "s_sub_u32 s25, s25, s26",
            "s_cmp_eq_u32 s25, %d" % (NSLOT - 1),
            "s_cselect_b32 s24, s27, s28",
            "s_sub_u32 s22, s22, 1",
            "s_cmp_lt_u32 s22, 2"]
    a("s_barrier")
    if gen.STAMPS:
        a("s_cmp_lg_u32 s30, 0")
        a("s_cbranch_scc1 kx_st9")
        stamp(a, 8)
        a("s_branch kx_st9d")
        a.label("kx_st9")
        stamp(a, 9)
        a.label("kx_st9d")
    for r in rdlist(0):
        a(r)
    a("v_add_u32 v%d, s23, v%d" % (AP, AP))
    a("v_add_u32 v%d, s23, v%d" % (AQ, AQ))
    a.label("kx_cloop")
    for j in range(2):
        jn = 1 - j
        sd = 23 if j == 0 else 24
        f = FR + 32 * j
        rd = rdlist(jn)
        a("s_waitcnt lgkmcnt(0)")
        k = 0
        for ti in range(4):
            for tj in range(4):
                c = ACC + 4 * (4 * ti + tj)
                a("v_mfma_f32_16x16x32_bf16 v[%d:%d], v[%d:%d], v[%d:%d], v[%d:%d]" % (
                    c, c + 3, f + 4 * ti, f + 4 * ti + 3, f + 16 + 4 * tj, f + 16 + 4 * tj + 3, c, c + 3))
                if k < 8:
                    a(rd[k])
                if k == 8:
                    a("v_add_u32 v%d, s%d, v%d" % (AP + jn, sd, AP + jn))
                if k == 9:
                    a("v_add_u32 v%d, s%d, v%d" % (AQ + jn, sd, AQ + jn))
                if j == 1 and 10 <= k < 15:
                    for b in book[2 * (k - 10):2 * (k - 10) + 2]:
                        a(b)
                k += 1
    a("s_cbranch_scc1 kx_nobar")
    a("s_barrier")
    a.label("kx_nobar")
    a("s_cmp_lg_u32 s22, 0")
    a("s_cbranch_scc1 kx_cloop")
    a("s_waitcnt lgkmcnt(0)")
    a("s_cmp_lg_u32 s30, 0")
    a("s_cbranch_scc1 kx_epi2")

    stamp(a, 1)
    setup2("g")
    a("s_lshl_b32 s19, s17, 8")
    a("s_add_u32 s19, s19, %d" % STATS_LDS)
    a("v_lshlrev_b32 v7, 4, v2")
    a("v_add_u32 v7, s19, v7")
    a("s_lshl_b32 s19, s18, 8")
    a("s_add_u32 s19, s19, %d" % SUMW_LDS)
    a("v_lshlrev_b32 v6, 2, v1")
    a("v_add_u32 v6, s19, v6")
    a("v_mov_b32 v5, %d" % NONCE_LDS)
    a("s_barrier")
    a("ds_read_b32 v16, v5")
    for tj in range(4):
        a("ds_read_b32 v%d, v6 offset:%d" % (20 + 2 * tj, 64 * tj))
    for ti in range(4):
        a("ds_read_b128 v[%d:%d], v7 offset:%d" % (32 + 8 * ti, 35 + 8 * ti, 64 * ti))
        a("ds_read_b128 v[%d:%d], v7 offset:%d" % (36 + 8 * ti, 39 + 8 * ti, 64 * ti + 512))
    a("s_waitcnt lgkmcnt(0)")
    a("v_readfirstlane_b32 s84, v16")
    for ti in range(4):
        for tj in range(4):
            c = ACC + 4 * (4 * ti + tj)
            for h in range(2):
                a("v_pk_fma_f32 v[%d:%d], v[%d:%d], v[%d:%d], v[%d:%d] op_sel_hi:[1,0,1] neg_lo:[1,0,0] neg_hi:[1,0,0]" % (
                    c + 2 * h, c + 2 * h + 1, 32 + 8 * ti + 2 * h, 33 + 8 * ti + 2 * h, 20 + 2 * tj, 21 + 2 * tj, c + 2 * h, c + 2 * h + 1))
                a("v_pk_mul_f32 v[%d:%d], v[%d:%d], v[%d:%d]" % (
                    c + 2 * h, c + 2 * h + 1, c + 2 * h, c + 2 * h + 1, 36 + 8 * ti + 2 * h, 37 + 8 * ti + 2 * h))
    a("s_lshl_b32 s21, s16, 15")
    a("s_lshl_b32 s19, s87, 5")
    a("s_lshl_b32 s20, s85, 1")
    a("s_add_u32 s19, s19, s20")
    a("s_add_u32 s19, s19, s17")
    a("s_lshl_b32 s19, s19, 14")
    a("s_lshl_b32 s20, s18, 13")
    a("s_add_u32 s19, s19, s20")
    a("s_lshl_b32 s29, s87, 4")
    a("s_add_u32 s29, s29, s85")
    a("s_lshl_b32 s29, s29, 7")
    a("s_add_u32 s29, s29, %d" % FLAG0)
    a("s_branch kx_epi")
    a.label("kx_epi2")
    stamp(a, 3)
    a("s_mul_i32 s21, s16, 9216")
    a("s_add_u32 s21, s21, 32768")
    a("s_lshl_b32 s19, s64, 15")
    a("s_lshl_b32 s20, s16, 13")
    a("s_add_u32 s19, s19, s20")
    a("s_add_u32 s19, s19, %d" % PART_OFF)
    a("s_lshl_b32 s29, s64, 7")
    a("s_add_u32 s29, s29, %d" % FLAG1)
    a("s_nop 4")
    a.label("kx_epi")
    a("v_mul_u32_u24 v4, 144, v1")
    a("v_lshlrev_b32 v5, 3, v2")
    a("v_add3_u32 v4, v4, v5, s21")
    a("v_lshrrev_b32 v6, 3, v0")
    a("v_and_b32 v7, 7, v0")
    a("v_lshlrev_b32 v7, 4, v7")
    a("v_mul_u32_u24 v5, 144, v6")
    a("v_add3_u32 v5, v5, v7, s21")
    a("s_add_u32 s20, s19, 4096")
    a("v_lshlrev_b32 v6, 4, v0")
    n = 0
    for tj in range(4):
        for ti in range(4):
            c = ACC + 4 * (4 * ti + tj)
            d = FR + 2 * (n % 8)
            n += 1
            a("v_cvt_pk_bf16_f32 v%d, v%d, v%d" % (d, c, c + 1))
            a("v_cvt_pk_bf16_f32 v%d, v%d, v%d" % (d + 1, c + 2, c + 3))
            a("ds_write_b64 v4, v[%d:%d] offset:%d" % (d, d + 1, tj * 2304 + ti * 32))
    a("s_waitcnt lgkmcnt(0)")
    for i in range(8):
        a("ds_read_b128 v[%d:%d], v5 offset:%d" % (FR + 16 + 4 * i, FR + 19 + 4 * i, i * 1152))
    for i in range(8):
        a("s_waitcnt lgkmcnt(%d)" % (7 - i))
        a("buffer_store_dwordx4 v[%d:%d], v6, s[68:71], s%d offen offset:%d%s" % (FR + 16 + 4 * i, FR + 19 + 4 * i, 19 + (i >> 2), 1024 * (i & 3), SC))
    a("s_lshl_b32 s20, s16, 2")
    a("s_add_u32 s29, s29, s20")
    a("v_mov_b32 v4, 0")
    a("v_mov_b32 v5, s84")
    if gen.STAMPS:
        a("s_cmp_lg_u32 s30, 0")
        a("s_cbranch_scc1 kx_st11")
        stamp(a, 10)
        a("s_branch kx_st11d")
        a.label("kx_st11")
        stamp(a, 11)
        a.label("kx_st11d")
    a("s_cmp_lg_u32 s30, 0")
    a("s_cbranch_scc1 kx_noe1")
    a("s_barrier")
    a.label("kx_noe1")
    a("s_waitcnt vmcnt(0)")
    a("s_mov_b64 exec, 1")
    a("buffer_store_dword v5, v4, s[68:71], s29 offen%s" % SC)
    a("s_mov_b64 exec, -1")
    a("s_cmp_lg_u32 s30, 0")
    a("s_cbranch_scc1 kx_rows")
    stamp(a, 2)

    a.label("kx_cons2")
    a("s_cmp_ge_u32 s65, 28")
    a("s_cbranch_scc1 kx_c3")
    ffnloads()
    a.label("kx_c3")
    a("s_mov_b32 s30, 1")
    a("s_mov_b32 s22, 16")
    a("s_barrier")
    a("s_branch kx_cons")

    a.label("kx_loader1")
    a("s_lshl_b32 s19, s85, 17")
    a("s_add_u32 s22, s32, s19")
    a("s_addc_u32 s23, s33, 0")
    srd(a, 4, 22, 23, 131072)
    a("s_cmp_eq_u32 s89, 0")
    a("s_cselect_b32 s22, s38, s40")
    a("s_cselect_b32 s23, s39, s41")
    a("s_lshl_b32 s19, s86, 17")
    add64(a, 22, 23, "s19")
    srd(a, 8, 22, 23, 131072)
    a("s_sub_u32 s17, s16, 4")
    a("v_lshrrev_b32 v6, 3, v0")
    a("v_lshrrev_b32 v7, 4, v0")
    a("v_and_b32 v16, 7, v0")
    a("s_lshl_b32 s18, s17, 5")
    for j in range(4):
        a("v_add_u32 v18, %d, v7" % (4 * j))
        a("v_and_b32 v18, 7, v18")
        a("v_xor_b32 v18, v18, v16")
        a("v_lshlrev_b32 v18, 4, v18")
        a("v_add3_u32 v17, v6, s18, %d" % (8 * j))
        a("v_lshlrev_b32 v17, 10, v17")
        a("v_add_u32 v17, v17, v18")
        a("v_subrev_u32 v%d, %d, v17" % (8 + j, 1024 * j))
    a("s_lshl_b32 s21, s17, 12")
    a("s_mov_b32 s20, 0")
    a("s_mov_b32 s22, 0")
    a.label("kx_l1loop")
    a("s_mov_b32 m0, s21")
    a("s_add_u32 s19, s21, 16384")
    for j in range(4):
        a("buffer_load_dwordx4 v%d, s[4:7], s20 offen offset:%d%s lds" % (8 + j, 1024 * j, NT))
    a("s_mov_b32 m0, s19")
    a("s_add_u32 s22, s22, 1")
    for j in range(4):
        a("buffer_load_dwordx4 v%d, s[8:11], s20 offen offset:%d%s lds" % (8 + j, 1024 * j, NT))
    a("s_add_u32 s20, s20, 128")
    a("s_add_u32 s21, s21, %d" % SLOT)
    a("s_cmp_eq_u32 s22, %d" % NSLOT)
    a("s_cselect_b32 s19, %d, 0" % (SLOT * NSLOT))
    a("s_sub_u32 s21, s21, s19")
    a("s_cmp_lt_u32 s22, 4")
    a("s_cbranch_scc1 kx_l1loop")
    a("s_waitcnt vmcnt(16)")
    a("s_barrier")
    a("s_cmp_lt_u32 s22, 8")
    a("s_cbranch_scc1 kx_l1loop")
    a("s_lshl_b32 s19, s62, 7")
    a("s_lshl_b32 s24, s86, 7")
    a("s_add_u32 s24, s24, 480")
    a("v_mov_b32 v20, s19")
    a("v_mov_b32 v21, s24")
    a("v_cmp_gt_u32 vcc, 32, v0")
    a("v_add_u32 v22, s18, v0")
    a("v_cndmask_b32 v20, v21, v20, vcc")
    a("v_add_lshl_u32 v20, v20, v22, 3")
    a("s_lshl_b32 s24, s58, 13")
    a("s_add_u32 s24, s24, %d" % STAT)
    a("s_waitcnt vmcnt(8)")
    a("s_barrier")
    a("buffer_load_dword v194, v197, s[72:75], 0 offen%s" % SC)
    a("buffer_load_dwordx2 v[24:25], v20, s[68:71], s24 offen%s" % SC)
    a("s_waitcnt vmcnt(2)")
    a("s_barrier")
    a("v_lshlrev_b32 v22, 2, v22")
    a("v_add_u32 v22, %d, v22" % STATS_LDS)
    a("s_waitcnt vmcnt(0)")

    def stcond():
        a("v_cmp_ne_u32 vcc, v25, v194")
        a("v_cmp_eq_u32 s[26:27], 0, v194")
        a("s_nop 2")
        a("s_or_b64 vcc, vcc, s[26:27]")
    stcond()
    a("s_cmp_eq_u64 vcc, 0")
    a("s_cbranch_scc1 kx_polln_done")
    poll(a, "kx_polln", ["buffer_load_dword v194, v197, s[72:75], 0 offen%s" % SC,
                         "buffer_load_dwordx2 v[24:25], v20, s[68:71], s24 offen%s" % SC], stcond)
    a("v_readfirstlane_b32 s84, v194")
    a("v_lshlrev_b32 v26, 16, v24")
    a("v_rcp_f32 v26, v26")
    a("v_and_b32 v27, 0xffff0000, v24")
    a("v_mov_b32 v195, %d" % NONCE_LDS)
    a("s_mov_b32 exec_hi, 0")
    a("ds_write_b32 v22, v27 offset:%d" % 0)
    a("ds_write_b32 v22, v26 offset:%d" % 512)
    a("s_not_b64 exec, exec")
    a("ds_write_b32 v22, v24 offset:%d" % (1024 - 128))
    a("s_mov_b64 exec, -1")
    a("ds_write_b32 v195, v194")
    a("s_waitcnt lgkmcnt(0)")
    a("s_barrier")
    a("s_branch kx_loader2")

    a.label("kx_pref")
    a("s_sub_u32 s86, s59, 16")
    a("v_lshrrev_b32 v6, 3, v0")
    a("v_and_b32 v7, 7, v0")
    a("v_lshlrev_b32 v8, 12, v6")
    a("v_lshlrev_b32 v6, 10, v6")
    a("v_lshlrev_b32 v9, 7, v7")
    a("v_add_u32 v6, v6, v9")
    a("v_add_u32 v14, v8, v9")
    a("s_cmp_eq_u32 s89, 0")
    a("s_cselect_b32 s24, s38, s40")
    a("s_cselect_b32 s25, s39, s41")
    a("s_cselect_b32 s26, s34, s36")
    a("s_cselect_b32 s27, s35, s37")
    a("s_lshl_b32 s19, s85, 17")
    a("s_add_u32 s22, s32, s19")
    a("s_addc_u32 s23, s33, 0")
    a("s_cmp_lt_u32 s86, 8")
    a("s_cselect_b32 s22, s22, s24")
    a("s_cselect_b32 s23, s23, s25")
    srd(a, 4, 22, 23, 524288)
    a("s_and_b32 s19, s86, 7")
    a("s_lshl_b32 s19, s19, 16")
    a("s_lshl_b32 s20, s16, 13")
    a("s_add_u32 s19, s19, s20")
    a("v_lshlrev_b32 v11, 4, v0")
    a("s_add_u32 s29, s19, 4096")
    for i in range(8):
        a("buffer_load_dwordx4 v[%d:%d], v11, s[4:7], s%d offen offset:%d" % (64 + 4 * i, 67 + 4 * i, 19 if i < 4 else 29, 1024 * (i & 3)))
    a("s_lshl_b32 s19, s60, 22")
    a("s_lshl_b32 s20, s86, 18")
    a("s_add_u32 s19, s19, s20")
    a("s_lshl_b32 s20, s88, 11")
    a("s_add_u32 s19, s19, s20")
    a("s_lshl_b32 s20, s16, 15")
    a("s_add_u32 s19, s19, s20")
    add64(a, 26, 27, "s19")
    srd(a, 8, 26, 27, 7 * 4096 + 2048)
    if 8 < PFN < 16:
        a("v_cmp_gt_u32 vcc, %d, v7" % (PFN - 8))
        a("v_mov_b32 v15, 0x40000000")
        a("v_cndmask_b32 v15, v15, v14, vcc")
    else:
        a("v_mov_b32 v15, v14")
    a("s_lshl_b32 s19, s86, 3")
    a("s_add_u32 s19, s19, s16")
    a("s_mul_i32 s20, s19, 2731")
    a("s_lshr_b32 s20, s20, 16")
    a("s_mul_i32 s21, s20, 24")
    a("s_sub_u32 s21, s19, s21")
    a("s_lshl_b32 s20, s20, 3")
    a("s_add_u32 s20, s20, s58")
    a("s_movk_i32 s19, 3584")
    a("v_mul_lo_u32 v10, v0, s19")
    poll(a, "kx_pollp", ["buffer_load_dword v194, v197, s[72:75], 0 offen%s" % SC], lambda: a("v_cmp_eq_u32 vcc, 0, v194"))
    a("v_readfirstlane_b32 s84, v194")
    for i in range(8):
        for d in range(4):
            unpack(a, 16 + 2 * d, 17 + 2 * d, 64 + 4 * i + d)
        a("v_pk_add_f32 v[24:25], v[16:17], v[18:19]")
        a("v_pk_mul_f32 v[28:29], v[16:17], v[16:17]")
        a("v_pk_add_f32 v[26:27], v[20:21], v[22:23]")
        a("v_pk_fma_f32 v[28:29], v[18:19], v[18:19], v[28:29]")
        a("v_pk_add_f32 v[24:25], v[24:25], v[26:27]")
        a("v_pk_fma_f32 v[28:29], v[20:21], v[20:21], v[28:29]")
        a("v_add_f32 v%d, v24, v25" % (32 + i))
        a("v_pk_fma_f32 v[28:29], v[22:23], v[22:23], v[28:29]")
        a("v_add_f32 v%d, v28, v29" % (40 + i))
    a("s_nop 1")
    for i in range(8):
        a("v_permlane32_swap_b32 v%d, v%d" % (32 + i, 40 + i))
    a("s_nop 1")
    for i in range(8):
        a("v_add_f32 v%d, v%d, v%d" % (32 + i, 32 + i, 40 + i))
    a("s_nop 1")
    for i in range(4):
        a("v_permlane16_swap_b32 v%d, v%d" % (32 + i, 36 + i))
    a("s_nop 1")
    for i in range(4):
        a("v_add_f32 v%d, v%d, v%d" % (32 + i, 32 + i, 36 + i))
    for r in (8, 4, 2, 1):
        a("s_nop 0")
        for i in range(4):
            a("v_add_f32_dpp v%d, v%d, v%d row_ror:%d row_mask:0xf bank_mask:0xf" % (32 + i, 32 + i, 32 + i, r))
    a("v_and_b32 v16, 3, v0")
    a("v_cmp_eq_u32 s[22:23], 1, v16")
    a("v_cmp_eq_u32 s[24:25], 2, v16")
    a("v_cmp_eq_u32 s[26:27], 3, v16")
    a("v_lshrrev_b32 v17, 4, v0")
    a("v_cndmask_b32 v32, v32, v33, s[22:23]")
    a("v_cndmask_b32 v32, v32, v34, s[24:25]")
    a("v_cndmask_b32 v32, v32, v35, s[26:27]")
    a("v_mov_b32 v33, v32")
    a("v_lshl_add_u32 v16, v17, 2, v16")
    a("s_nop 0")
    a("v_permlane32_swap_b32 v32, v33")
    a("s_lshl_b32 s22, s86, 6")
    a("s_lshl_b32 s23, s16, 3")
    a("s_add_u32 s22, s22, s23")
    a("v_add_lshl_u32 v16, v16, s22, 3")
    a("v_mul_f32 v28, 0x3b000000, v32")
    a("v_mul_f32 v29, 0x3b000000, v33")
    a("v_fma_f32 v29, -v28, v28, v29")
    a("v_max_f32 v29, 0, v29")
    bf16r(a, 30, 28)
    bf16r(a, 29, 29)
    a("v_add_f32 v29, 0x3727c5ac, v29")
    bf16r(a, 29, 29)
    a("v_sqrt_f32 v29, v29")
    a("s_lshl_b32 s22, s58, 13")
    a("v_cvt_pk_bf16_f32 v29, v29, v29")
    a("v_and_b32 v29, 0xffff, v29")
    a("v_or_b32 v30, v30, v29")
    a("s_add_u32 s22, s22, %d" % STAT)
    a("s_cmp_lt_u32 s86, 8")
    a("s_cbranch_scc1 kx_pf_x")
    a("v_mov_b32 v30, v32")
    a.label("kx_pf_x")
    a("v_mov_b32 v31, s84")
    a("s_mov_b64 exec, 0x000f000f")
    a("buffer_store_dwordx2 v[30:31], v16, s[68:71], s22 offen%s" % SC)
    a("s_mov_b64 exec, -1")
    stamp(a, 8)
    a("s_cmp_ge_u32 s20, 28")
    a("s_cbranch_scc1 kx_pf_done")
    a("s_cmp_ge_u32 s21, 16")
    a("s_cbranch_scc1 kx_pf_wd")
    a("s_cmp_lt_u32 s21, 8")
    a("s_cselect_b32 s22, s46, s48")
    a("s_cselect_b32 s23, s47, s49")
    srd(a, 12, 22, 23, 512 * 3584)
    a("s_and_b32 s21, s21, 7")
    a("s_mul_i32 s19, s21, %d" % (64 * 3584))
    a("s_lshl_b32 s20, s20, 7")
    a("s_add_u32 s19, s19, s20")
    a("buffer_load_dword v61, v10, s[12:15], s19 offen" + NT)
    a("s_branch kx_pf_done")
    a.label("kx_pf_wd")
    srd(a, 12, 50, 51, 1792 * 1024)
    a("s_sub_u32 s21, s21, 16")
    a("s_lshl_b32 s19, s20, 16")
    a("s_lshl_b32 s21, s21, 13")
    a("s_add_u32 s19, s19, s21")
    a("buffer_load_dword v61, v6, s[12:15], s19 offen" + NT)
    a.label("kx_pf_done")
    if PFN > 0:
        a("buffer_load_dword v62, v14, s[8:11], 0 offen" + NT)
    if PFN > 8:
        a("buffer_load_dword v63, v15, s[8:11], 0 offen offset:1024" + NT)
    a("s_waitcnt vmcnt(0)")
    stamp(a, 1)
    a("s_cmp_ge_u32 s16, 4")
    a("s_cbranch_scc1 kx_loader2")
    setup2("p")
    a("s_barrier")
    a("s_branch kx_cons2")

    a.label("kx_loader2")
    a("s_lshl_b32 s19, s89, 2")
    a("s_add_u32 s19, s19, s62")
    a("s_lshl_b32 s24, s19, 11")
    a("s_lshl_b32 s19, s19, 19")
    a("s_lshl_b32 s20, s88, 18")
    a("s_add_u32 s19, s19, s20")
    a("s_add_u32 s22, s56, s19")
    a("s_addc_u32 s23, s57, 0")
    srd(a, 4, 22, 23, 16 * 16384)
    a("s_cmp_eq_u32 s89, 0")
    a("s_cselect_b32 s22, s34, s36")
    a("s_cselect_b32 s23, s35, s37")
    a("s_lshl_b32 s19, s63, 19")
    a("s_lshl_b32 s21, s88, 11")
    a("s_add_u32 s19, s19, s21")
    add64(a, 22, 23, "s19")
    srd(a, 8, 22, 23, 127 * 4096 + 2048)
    a("s_lshl_b32 s20, s88, 10")
    a("s_add_u32 s24, s24, s20")
    a("s_add_u32 s24, s24, %d" % FLAG0)
    a("s_sub_u32 s17, s16, 4")
    a("v_lshrrev_b32 v1, 3, v0")
    a("v_lshrrev_b32 v2, 4, v0")
    a("v_and_b32 v3, 7, v0")
    a("s_lshl_b32 s18, s17, 5")
    a("v_add_u32 v1, s18, v1")
    a("v_lshlrev_b32 v6, 7, v1")
    for j in range(4):
        a("v_add_u32 v4, %d, v1" % (8 * j))
        a("v_lshlrev_b32 v4, 12, v4")
        a("v_add_u32 v5, %d, v2" % (4 * j))
        a("v_and_b32 v5, 7, v5")
        a("v_xor_b32 v5, v5, v3")
        a("v_lshlrev_b32 v5, 4, v5")
        a("v_add_u32 v4, v4, v5")
        a("v_subrev_u32 v%d, %d, v4" % (8 + j, 1024 * j))
        a("v_add_u32 v%d, v6, v5" % (12 + j))
    a("s_lshl_b32 s21, s17, 12")
    a("s_barrier")
    a("s_mov_b32 s20, 0")
    a("s_add_u32 s19, s21, 16384")
    a.label("kx_l2q")
    a("s_mov_b32 m0, s19")
    a("s_add_u32 s19, s19, %d" % SLOT)
    for j in range(4):
        a("buffer_load_dwordx4 v%d, s[8:11], s20 offen offset:%d%s lds" % (8 + j, 1024 * j, NTQ))
    a("s_add_u32 s20, s20, 128")
    a("s_cmp_lt_u32 s20, 512")
    a("s_cbranch_scc1 kx_l2q")
    a("s_cmp_lg_u32 s16, 4")
    a("s_cbranch_scc1 kx_poll0_done")
    a("v_lshlrev_b32 v20, 7, v3")

    def f0cond():
        a("v_xor_b32 v24, s84, v24")
        a("v_xor_b32 v25, s84, v25")
        a("v_xor_b32 v26, s84, v26")
        a("v_xor_b32 v27, s84, v27")
        a("v_or3_b32 v24, v24, v25, v26")
        a("v_or_b32 v24, v24, v27")
        a("v_cmp_ne_u32 vcc, 0, v24")
    a("s_mov_b64 exec, 0xff")
    poll(a, "kx_poll0", ["buffer_load_dwordx4 v[24:27], v20, s[68:71], s24 offen%s" % SC], f0cond)
    a("s_mov_b64 exec, -1")
    stamp(a, 2)
    a("s_barrier")
    a("s_mov_b32 s26, 0")
    a("s_mov_b32 s19, s21")
    a.label("kx_l2p")
    a("s_mov_b32 m0, s19")
    a("s_add_u32 s19, s19, %d" % SLOT)
    for j in range(4):
        a("buffer_load_dwordx4 v%d, s[4:7], s26 offen offset:%d%s lds" % (12 + j, 1024 * j, SC))
    a("s_add_u32 s26, s26, 16384")
    a("s_cmp_lt_u32 s26, 65536")
    a("s_cbranch_scc1 kx_l2p")
    a("s_waitcnt vmcnt(8)")
    a("s_barrier")
    a("s_add_u32 s21, s21, %d" % (4 * SLOT))
    a("s_mov_b32 s25, 4")
    a("s_mov_b32 s22, 4")
    a.label("kx_l2loop")
    a("s_mov_b32 m0, s21")
    a("s_add_u32 s19, s21, 16384")
    for j in range(4):
        a("buffer_load_dwordx4 v%d, s[4:7], s26 offen offset:%d%s lds" % (12 + j, 1024 * j, SC))
    a("s_mov_b32 m0, s19")
    a("s_add_u32 s25, s25, 1")
    for j in range(4):
        a("buffer_load_dwordx4 v%d, s[8:11], s20 offen offset:%d%s lds" % (8 + j, 1024 * j, NTQ))
    a("s_add_u32 s20, s20, 128")
    a("s_add_u32 s26, s26, 16384")
    a("s_add_u32 s21, s21, %d" % SLOT)
    a("s_cmp_eq_u32 s25, %d" % NSLOT)
    a("s_cselect_b32 s19, %d, 0" % (SLOT * NSLOT))
    a("s_cselect_b32 s27, %d, 0" % NSLOT)
    a("s_sub_u32 s21, s21, s19")
    a("s_sub_u32 s25, s25, s27")
    a("s_add_u32 s22, s22, 1")
    a("s_cmp_lg_u32 s22, 5")
    a("s_cbranch_scc1 kx_l2w16")
    a("s_waitcnt vmcnt(12)")
    a.label("kx_l2w16")
    a("s_waitcnt vmcnt(16)")
    a("s_barrier")
    a("s_cmp_lt_u32 s22, 16")
    a("s_cbranch_scc1 kx_l2loop")
    a("s_waitcnt vmcnt(8)")
    a("s_barrier")
    a("s_waitcnt vmcnt(0)")
    a("s_barrier")
    stamp(a, 3)

    a.label("kx_rows")
    stamp(a, 12)
    srd(a, 72, 32, 33, 2 << 20)
    srd(a, 76, 44, 45, 1024)
    srd(a, 80, 52, 53, 2 << 20)
    a("s_lshl_b32 s18, s64, 3")
    a("s_add_u32 s18, s18, s16")
    a("v_lshlrev_b32 v2, 4, v0")
    a("s_lshl_b32 s19, s18, 10")
    a("buffer_load_dwordx4 v[24:27], v2, s[72:75], s19 offen")
    a("buffer_load_dwordx4 v[28:31], v2, s[76:79], 0 offen")
    a("v_lshrrev_b32 v5, 4, v0")
    a("v_lshlrev_b32 v5, 17, v5")
    a("v_and_b32 v6, 8, v0")
    a("v_lshlrev_b32 v6, 11, v6")
    a("v_and_b32 v7, 7, v0")
    a("v_lshlrev_b32 v7, 4, v7")
    a("v_add3_u32 v5, v5, v6, v7")
    a("s_lshl_b32 s21, s63, 19")
    a("s_and_b32 s22, s18, 64")
    a("s_lshl_b32 s22, s22, 7")
    a("s_add_u32 s21, s21, s22")
    a("s_and_b32 s22, s18, 63")
    a("s_lshl_b32 s22, s22, 7")
    a("s_add_u32 s21, s21, s22")
    a("s_add_u32 s21, s21, %d" % PART_OFF)
    a("v_and_b32 v3, 15, v0")
    a("v_lshlrev_b32 v3, 7, v3")
    a("s_lshl_b32 s20, s63, 11")
    a("s_add_u32 s20, s20, %d" % FLAG1)
    a("s_lshl_b32 s22, s16, 2")
    a("s_add_u32 s22, s22, 98304")
    a("v_mov_b32 v73, s22")
    a("v_mov_b32 v74, 98304")
    a("s_waitcnt vmcnt(0)")
    for i in range(4):
        unpack(a, 64 + 2 * i, 65 + 2 * i, 28 + i)
        unpack(a, 76 + 2 * i, 77 + 2 * i, 24 + i)
    a("v_pk_add_f32 v[48:49], v[64:65], v[66:67]")
    a("v_pk_add_f32 v[50:51], v[68:69], v[70:71]")
    a("v_pk_add_f32 v[48:49], v[48:49], v[50:51]")
    a("v_add_f32 v72, v48, v49")
    allreduce64(a, "add_f32", 72, 49)
    a("s_cmp_lg_u32 s16, 0")
    a("s_cbranch_scc1 kx_poll1_done")

    def f1cond():
        a("v_xor_b32 v8, s84, v8")
        a("v_xor_b32 v9, s84, v9")
        a("v_xor_b32 v10, s84, v10")
        a("v_xor_b32 v11, s84, v11")
        a("v_or3_b32 v8, v8, v9, v10")
        a("v_or_b32 v8, v8, v11")
        a("v_cmp_ne_u32 vcc, 0, v8")
    a("s_mov_b64 exec, 0xffff")
    poll(a, "kx_poll1", ["buffer_load_dwordx4 v[8:11], v3, s[68:71], s20 offen%s" % SC], f1cond)
    a("s_mov_b64 exec, -1")
    a("s_barrier")
    stamp(a, 4)
    for ks in range(4):
        a("s_add_u32 s20, s21, %d" % (ks * 32768))
        a("buffer_load_dwordx4 v[%d:%d], v5, s[68:71], s20 offen%s" % (8 + 4 * ks, 11 + 4 * ks, SC))
    a("s_waitcnt vmcnt(0)")
    stamp(a, 13)
    for i in range(4):
        unpack(a, 48, 49, 8 + i)
        unpack(a, 50, 51, 12 + i)
        unpack(a, 52, 53, 16 + i)
        unpack(a, 54, 55, 20 + i)
        a("v_pk_add_f32 v[48:49], v[48:49], v[50:51]")
        a("v_pk_add_f32 v[52:53], v[52:53], v[54:55]")
        a("v_pk_add_f32 v[48:49], v[48:49], v[%d:%d]" % (76 + 2 * i, 77 + 2 * i))
        a("v_pk_add_f32 v[48:49], v[48:49], v[52:53] neg_lo:[0,1] neg_hi:[0,1]")
        a("v_cvt_pk_bf16_f32 v%d, v48, v49" % (32 + i))
        unpack(a, 40 + 2 * i, 41 + 2 * i, 32 + i)
    a("v_pk_add_f32 v[48:49], v[40:41], v[42:43]")
    a("v_pk_mul_f32 v[50:51], v[40:41], v[40:41]")
    a("v_pk_mul_f32 v[52:53], v[40:41], v[64:65]")
    a("v_pk_add_f32 v[54:55], v[44:45], v[46:47]")
    for i in range(1, 4):
        a("v_pk_fma_f32 v[50:51], v[%d:%d], v[%d:%d], v[50:51]" % (40 + 2 * i, 41 + 2 * i, 40 + 2 * i, 41 + 2 * i))
        a("v_pk_fma_f32 v[52:53], v[%d:%d], v[%d:%d], v[52:53]" % (40 + 2 * i, 41 + 2 * i, 64 + 2 * i, 65 + 2 * i))
    a("v_pk_add_f32 v[48:49], v[48:49], v[54:55]")
    a("v_add_f32 v50, v50, v51")
    a("v_add_f32 v52, v52, v53")
    a("v_add_f32 v48, v48, v49")
    for r in (8, 4, 2, 1):
        for v in (50, 52, 48):
            a("v_add_f32_dpp v%d, v%d, v%d row_ror:%d row_mask:0xf bank_mask:0xf" % (v, v, v, r))
    for op in ("v_permlane16_swap_b32", "v_permlane32_swap_b32"):
        for v in (50, 52, 48):
            a("v_mov_b32 v%d, v%d" % (v + 1, v))
        a("s_nop 0")
        for v in (50, 52, 48):
            a("%s v%d, v%d" % (op, v, v + 1))
        a("s_nop 0")
        for v in (50, 52, 48):
            a("v_add_f32 v%d, v%d, v%d" % (v, v, v + 1))
    a("v_mul_f32 v58, 0x3b000000, v48")
    a("v_mul_f32 v50, 0x3b000000, v50")
    a("v_fma_f32 v50, -v58, v58, v50")
    a("v_max_f32 v50, 0, v50")
    bf16r(a, 60, 58)
    bf16r(a, 50, 50)
    a("v_add_f32 v50, 0x3727c5ac, v50")
    bf16r(a, 50, 50)
    a("v_sqrt_f32 v50, v50")
    a("v_fma_f32 v52, -v60, v72, v52")
    bf16r(a, 50, 50)
    a("v_rcp_f32 v58, v50")
    a("s_sub_u32 s20, 0xffff, s18")
    a("v_mul_f32 v48, v52, v58")
    a("v_cvt_pk_bf16_f32 v48, v48, v48")
    a("v_and_b32 v48, 0xffff0000, v48")
    a("v_ashrrev_i32 v49, 31, v48")
    a("v_and_b32 v49, 0x7fff0000, v49")
    a("v_or_b32 v49, 0x80000000, v49")
    a("v_xor_b32 v48, v48, v49")
    a("v_or_b32 v48, s20, v48")
    a("ds_write_b32 v73, v48")
    a("v_mov_b32 v49, s84")
    a("v_mul_f32 v62, v60, v58")
    a("v_sub_f32 v62, 0, v62")
    a("s_waitcnt lgkmcnt(0)")
    a("s_barrier")
    a("ds_read_b128 v[8:11], v74")
    a("ds_read_b128 v[12:15], v74 offset:16")
    a("s_lshl_b32 s20, s64, 11")
    a("s_add_u32 s20, s20, %d" % SELROW)
    a("s_lshr_b32 s21, s64, 2")
    a("s_lshl_b32 s21, s21, 7")
    a("s_and_b32 s22, s64, 3")
    a("s_lshl_b32 s22, s22, 3")
    a("s_add_u32 s21, s21, s22")
    a("s_add_u32 s21, s21, %d" % KEYS)
    a("v_lshlrev_b32 v5, 13, v0")
    a("s_waitcnt lgkmcnt(0)")
    a("v_max3_u32 v8, v8, v9, v10")
    a("v_max3_u32 v8, v8, v11, v12")
    a("v_max3_u32 v8, v8, v13, v14")
    a("v_max_u32 v63, v8, v15")
    a("v_cmp_eq_u32 vcc, v63, v48")
    a("s_nop 2")
    a("s_and_b64 s[22:23], vcc, %d" % ((1 << NREP) - 1))
    a("s_mov_b64 exec, s[22:23]")
    a("s_cbranch_execz kx_nokey")
    a("buffer_store_dwordx2 v[48:49], v5, s[68:71], s21 offen%s" % SC)
    a.label("kx_nokey")
    a("s_mov_b64 exec, -1")
    stamp(a, 14)
    for i in range(4):
        a("v_pk_fma_f32 v[50:51], v[%d:%d], v[58:59], v[62:63] op_sel_hi:[1,0,0]" % (40 + 2 * i, 41 + 2 * i))
        a("v_cvt_pk_bf16_f32 v%d, v50, v51" % (36 + i))
        unpack(a, 50, 51, 36 + i)
        a("v_pk_add_f32 v[50:51], v[%d:%d], v[50:51]" % (40 + 2 * i, 41 + 2 * i))
        a("v_cvt_pk_bf16_f32 v%d, v50, v51" % (24 + i))
    a("s_cmp_eq_u64 s[22:23], 0")
    a("s_cbranch_scc0 kx_best")
    a("buffer_store_dwordx4 v[24:27], v2, s[80:83], s19 offen")
    a("s_branch kx_notbest")
    a.label("kx_best")
    a("buffer_store_dwordx4 v[36:39], v2, s[68:71], s20 offen%s" % SC)
    a("buffer_store_dwordx4 v[32:35], v2, s[68:71], s20 offen offset:1024%s" % SC)
    a("ds_write_b128 v2, v[24:27] offset:32768")
    a("s_waitcnt lgkmcnt(0)")
    a.label("kx_notbest")
    a("s_cmp_ge_u32 s16, 4")
    a("s_cbranch_scc1 kx_exit")

    a("s_cmp_lt_u32 s65, 28")
    a("s_cbranch_scc1 kx_keys")
    a("s_cmp_ge_u32 s16, 2")
    a("s_cbranch_scc1 kx_exit")
    a.label("kx_keys")
    a("s_and_b32 s20, s64, %d" % (NREP - 1))
    a("s_lshl_b32 s20, s20, 13")
    a("s_add_u32 s20, s20, %d" % KEYS)
    a("v_lshlrev_b32 v3, 7, v0")
    a("v_mov_b32 v5, 98816")
    a("s_cmp_lg_u32 s16, 0")
    a("s_cbranch_scc1 kx_keywait")

    def keycond():
        a("v_xor_b32 v9, s84, v9")
        a("v_xor_b32 v11, s84, v11")
        a("v_xor_b32 v13, s84, v13")
        a("v_xor_b32 v15, s84, v15")
        a("v_or3_b32 v4, v9, v11, v13")
        a("v_or_b32 v4, v4, v15")
        a("v_cmp_ne_u32 vcc, 0, v4")
    poll(a, "kx_poll2", ["buffer_load_dwordx4 v[8:11], v3, s[68:71], s20 offen%s" % SC,
                         "buffer_load_dwordx4 v[12:15], v3, s[68:71], s20 offen offset:16%s" % SC], keycond)
    a("v_max_u32 v64, v8, v10")
    a("v_max3_u32 v64, v64, v12, v14")
    allreduce64(a, "max_u32", 64, 65)
    a("ds_write_b32 v5, v64")
    a("s_waitcnt lgkmcnt(0)")
    a.label("kx_keywait")
    a("s_barrier")
    a("ds_read_b32 v64, v5")
    a("ds_read_b128 v[24:27], v2 offset:32768")
    a("s_waitcnt lgkmcnt(0)")
    stamp(a, 5)
    a("v_and_b32 v66, 0xffff, v64")
    a("v_sub_u32 v66, 0xffff, v66")
    a("v_lshrrev_b32 v67, 3, v66")
    a("v_lshlrev_b32 v67, 11, v67")
    a("s_cmp_lg_u32 s16, 1")
    a("s_cbranch_scc1 kx_noparked")
    a("v_and_b32 v4, 0xffff, v63")
    a("v_sub_u32 v4, 0xffff, v4")
    a("v_lshlrev_b32 v4, 10, v4")
    a("v_add_u32 v4, v4, v2")
    a("v_cmp_ne_u32 vcc, v63, v64")
    a("s_and_saveexec_b64 s[22:23], vcc")
    a("s_cbranch_execz kx_parkskip")
    a("buffer_store_dwordx4 v[24:27], v4, s[80:83], 0 offen")
    a.label("kx_parkskip")
    a("s_mov_b64 exec, -1")
    a.label("kx_noparked")
    a("s_mov_b32 s20, %d" % SELROW)
    a("s_cmp_ge_u32 s65, 28")
    a("s_cbranch_scc1 kx_final")
    a("v_lshlrev_b32 v4, 2, v199")
    a("v_add_u32 v68, v67, v4")
    poll(a, "kx_poll4", ["buffer_load_dword v75, v68, s[68:71], s20 offen%s" % SC],
         lambda: a("v_cmp_eq_u32 vcc, -1, v75"))
    a("s_mov_b32 s22, 0x05040100")
    a("s_mov_b32 s23, 0x07060302")
    for m in range(2):
        for i in range(4):
            a("v_perm_b32 v%d, v%d, v%d, s22" % (32 + 8 * m + 2 * i, 204 + 8 * m + i, 200 + 8 * m + i))
            a("v_perm_b32 v%d, v%d, v%d, s23" % (33 + 8 * m + 2 * i, 204 + 8 * m + i, 200 + 8 * m + i))
    for i in range(16):
        a("v_dot2_f32_bf16 v%d, v%d, v75, 0" % (48 + i, 32 + i))
    a("s_nop 2")
    for i in range(8):
        a("v_permlane32_swap_b32 v%d, v%d" % (48 + i, 56 + i))
    a("s_nop 1")
    for i in range(8):
        a("v_add_f32 v%d, v%d, v%d" % (48 + i, 48 + i, 56 + i))
    a("s_nop 1")
    for i in range(4):
        a("v_permlane16_swap_b32 v%d, v%d" % (48 + i, 52 + i))
    a("s_nop 1")
    for i in range(4):
        a("v_add_f32 v%d, v%d, v%d" % (48 + i, 48 + i, 52 + i))
    for r in (8, 4, 2, 1):
        a("s_nop 0")
        for i in range(4):
            a("v_add_f32_dpp v%d, v%d, v%d row_ror:%d row_mask:0xf bank_mask:0xf" % (48 + i, 48 + i, 48 + i, r))
    a("s_lshl_b32 s21, s16, 6")
    a("s_add_u32 s21, s21, 98560")
    a("v_lshrrev_b32 v7, 4, v0")
    a("v_lshlrev_b32 v7, 4, v7")
    a("v_add_u32 v6, s21, v7")
    a("ds_write_b128 v6, v[48:51]")
    a("v_and_b32 v7, 7, v0")
    a("v_lshlrev_b32 v7, 2, v7")
    a("v_add_u32 v7, 98560, v7")
    a("s_waitcnt lgkmcnt(0)")
    a("s_barrier")
    for w in range(4):
        a("ds_read_b32 v%d, v7 offset:%d" % (48 + w, 64 * w))
        a("ds_read_b32 v%d, v7 offset:%d" % (52 + w, 64 * w + 32))
    a("s_waitcnt lgkmcnt(0)")
    a("v_add_f32 v48, v48, v49")
    a("v_add_f32 v50, v50, v51")
    a("v_add_f32 v52, v52, v53")
    a("v_add_f32 v54, v54, v55")
    a("v_add_f32 v48, v48, v50")
    a("v_add_f32 v52, v52, v54")
    bf16r(a, 48, 48)
    bf16r(a, 52, 52)
    a("v_mul_f32 v49, 0xbfb8aa3b, v48")
    a("v_exp_f32 v49, v49")
    a("s_nop 0")
    a("v_add_f32 v49, 1.0, v49")
    a("v_rcp_f32 v49, v49")
    a("s_nop 0")
    a("v_mul_f32 v48, v48, v49")
    bf16r(a, 48, 48)
    a("v_mul_f32 v48, v48, v52")
    bf16r(a, 48, 48)
    a("s_nop 0")
    for j in range(8):
        a("v_readlane_b32 s%d, v48, %d" % (4 + j, j))
    a("v_mov_b32 v50, 0")
    a("v_mov_b32 v51, 0")
    for j in range(8):
        unpack(a, 52, 53, 216 + j)
        a("v_fmac_f32 v50, s%d, v52" % (4 + j))
        a("v_fmac_f32 v51, s%d, v53" % (4 + j))
    a("v_lshlrev_b32 v6, 3, v199")
    a("s_lshl_b32 s20, s66, 11")
    a("s_add_u32 s20, s20, %d" % YP_OFF)
    a("buffer_store_dwordx2 v[50:51], v6, s[68:71], s20 offen%s" % SC)
    stamp(a, 7)
    a("s_endpgm")

    a.label("kx_final")
    a("v_lshrrev_b32 v5, 4, v0")
    a("v_lshlrev_b32 v3, 2, v5")
    a("s_lshl_b32 s19, s66, 4")
    a("v_add_u32 v3, s19, v3")
    a("v_add_u32 v68, v67, v3")

    def hcond():
        a("v_max_u32 v4, v69, v75")
        a("v_cmp_eq_u32 vcc, -1, v4")
    poll(a, "kx_poll5", ["buffer_load_dword v75, v68, s[68:71], s20 offen%s" % SC,
                         "buffer_load_dword v69, v68, s[68:71], s20 offen offset:1024%s" % SC], hcond)
    a("v_and_b32 v52, 0xffff0000, v64")
    a("v_ashrrev_i32 v53, 31, v52")
    a("v_not_b32 v53, v53")
    a("v_and_b32 v53, 0x7fff0000, v53")
    a("v_or_b32 v53, 0x80000000, v53")
    a("v_xor_b32 v52, v52, v53")
    a("v_mul_f32 v53, 0xbfb8aa3b, v52")
    a("v_exp_f32 v53, v53")
    a("s_nop 0")
    a("v_add_f32 v53, 1.0, v53")
    a("v_rcp_f32 v53, v53")
    a("s_nop 0")
    bf16r(a, 44, 53)
    unpack(a, 40, 41, 69)
    unpack(a, 42, 43, 75)
    a("v_lshlrev_b32 v45, 10, v66")
    a("v_add_u32 v45, v45, v3")
    a("v_lshlrev_b32 v1, 11, v0")
    a("s_lshl_b32 s19, s66, 5")
    a("v_add_u32 v1, s19, v1")
    a("v_cmp_gt_u32 vcc, 32, v0")
    a("v_mov_b32 v6, 0x40000000")
    a("v_cndmask_b32 v6, v6, v1, vcc")
    for i in range(4):
        a("s_mov_b32 s%d, %d" % (24 + i, YP_OFF + 131072 * i))
    loads = []
    for i in range(4):
        vo = 1 if i < 3 else 6
        loads.append("buffer_load_dwordx4 v[%d:%d], v%d, s[68:71], s%d offen%s" % (8 + 8 * i, 11 + 8 * i, vo, 24 + i, SC))
        loads.append("buffer_load_dwordx4 v[%d:%d], v%d, s[68:71], s%d offen offset:16%s" % (12 + 8 * i, 15 + 8 * i, vo, 24 + i, SC))

    def ycond():
        a("v_max3_u32 v4, v8, v9, v10")
        for i in range(11, 39, 2):
            a("v_max3_u32 v4, v4, v%d, v%d" % (i, i + 1))
        a("v_max_u32 v4, v4, v39")
        a("v_cmp_eq_u32 vcc, -1, v4")
    poll(a, "kx_poll3", loads, ycond)
    for i in range(4):
        a("v_pk_add_f32 v[%d:%d], v[%d:%d], v[%d:%d]" % (8 + 2 * i, 9 + 2 * i, 8 + 2 * i, 9 + 2 * i, 16 + 2 * i, 17 + 2 * i))
        a("v_pk_add_f32 v[%d:%d], v[%d:%d], v[%d:%d]" % (24 + 2 * i, 25 + 2 * i, 24 + 2 * i, 25 + 2 * i, 32 + 2 * i, 33 + 2 * i))
    for i in range(4):
        a("v_pk_add_f32 v[%d:%d], v[%d:%d], v[%d:%d]" % (8 + 2 * i, 9 + 2 * i, 8 + 2 * i, 9 + 2 * i, 24 + 2 * i, 25 + 2 * i))
    a("s_nop 1")
    for i in range(4):
        a("v_permlane32_swap_b32 v%d, v%d" % (8 + i, 12 + i))
    a("s_nop 1")
    for i in range(4):
        a("v_add_f32 v%d, v%d, v%d" % (8 + i, 8 + i, 12 + i))
    a("s_nop 1")
    for i in range(2):
        a("v_permlane16_swap_b32 v%d, v%d" % (8 + i, 10 + i))
    a("s_nop 1")
    for i in range(2):
        a("v_add_f32 v%d, v%d, v%d" % (8 + i, 8 + i, 10 + i))
    for r in (8, 4, 2, 1):
        a("s_nop 1")
        for i in range(2):
            a("v_add_f32_dpp v%d, v%d, v%d row_ror:%d row_mask:0xf bank_mask:0xf" % (8 + i, 8 + i, 8 + i, r))
    for i in range(2):
        bf16r(a, 8 + i, 8 + i)
        a("v_mul_f32 v%d, v%d, v44" % (8 + i, 8 + i))
        bf16r(a, 8 + i, 8 + i)
        a("v_add_f32 v%d, v%d, v%d" % (8 + i, 8 + i, 42 + i))
        bf16r(a, 8 + i, 8 + i)
        a("v_add_f32 v%d, v%d, v%d" % (8 + i, 8 + i, 40 + i))
    a("v_cvt_pk_bf16_f32 v8, v8, v9")
    a("v_and_b32 v6, 15, v0")
    a("v_cmp_eq_u32 vcc, 0, v6")
    a("s_and_saveexec_b64 s[30:31], vcc")
    a("buffer_store_dword v8, v45, s[80:83], 0 offen")
    a("s_mov_b64 exec, -1")
    if gen.STAMPS:
        a("s_waitcnt vmcnt(0)")
    stamp(a, 7)
    a.label("kx_exit")
    a("s_endpgm")
    return name, 224


def main(out):
    head = open("cdna_kernels/%s.s.ref" % NAME).read().split("\n")
    a = A()
    for line in head:
        if line.startswith(";") and "@launch" not in line:
            a.raw(line)
    kname = "kx_kernel"
    a.raw("; @launch kernel=%s grid=(256,1,1) block=(512,1,1) lds=163840" % kname)
    a.raw('.amdgcn_target "amdgcn-amd-amdhsa--gfx950"')
    name, vg = kx(a, kname)
    kernel_desc(a, name, vg, 96)
    open(out, "w").write(a.text())


if __name__ == "__main__":
    args = [x for x in sys.argv[1:] if not x.startswith("--")]
    if "--stamps" in sys.argv:
        gen.STAMPS = True
    for x in sys.argv:
        if x.startswith("--exp="):
            gen.EXP = set(x[6:].split(","))
        if x.startswith("--sleep="):
            SLEEP = int(x[8:])
        if x.startswith("--pfn="):
            PFN = int(x[6:])
        if x.startswith("--nrep="):
            NREP = int(x[7:])
        if x == "--noq":
            NTQ = ""
        if x == "--nont":
            NT = ""
    main(args[0] if args else "cdna_kernels/%s.s" % NAME)
```

```python
import sys
import gen
from gen import (A, NAME, kernel_head, kernel_desc, srd, add64, bf16r, unpack, allreduce64, wave_split,
                 stamp, stampc, stamp_init, SLOT, NSLOT, ACC, FR, AP, AQ, KA_WS)

ABT_OFF = 0
PART_OFF = 4 << 20
FLAG0 = 12 << 20
FLAG1 = FLAG0 + 16384
KEYS = FLAG1 + 32768
STAT = 13 << 20
YP_OFF = 15 << 20
SELROW = 16 << 20
WS_SRD_SIZE = 32 << 20
NREP = 4
SC = " sc1"
SPIN_MAX = 1 << 20
SLEEP = 4
NT = ""
NTQ = ""
PFN = 16
STATS_LDS = 4 * SLOT
SUMW_LDS = STATS_LDS + 1024
NONCE_LDS = STATS_LDS + 2048


def poll(a, lbl, loads, cond):
    a("s_mov_b32 s31, 0")
    a.label(lbl)
    for l in loads:
        a(l)
    a("s_waitcnt vmcnt(0)")
    cond()
    a("s_add_u32 s31, s31, 1")
    a("s_nop 1")
    a("s_cmp_eq_u64 vcc, 0")
    a("s_cbranch_scc1 %s_done" % lbl)
    a("s_cmp_ge_u32 s31, %d" % SPIN_MAX)
    a("s_cbranch_scc1 %s_done" % lbl)
    a("s_sleep %d" % SLEEP)
    a("s_branch %s" % lbl)
    a.label(lbl + "_done")


DBGSTAMP = False
DBGWG = 0
_dbgn = [0]


def dstamp(a, slot):
    _dbgn[0] += 1
    lbl = "kx_ds%d" % _dbgn[0]
    a("s_cmp_lg_u32 s2, %d" % (255 if slot == 7 else DBGWG))
    a("s_cbranch_scc1 %s" % lbl)
    a("s_cmp_lg_u32 s16, 0")
    a("s_cbranch_scc1 %s" % lbl)
    a("s_memrealtime s[98:99]")
    a("s_waitcnt lgkmcnt(0)")
    a("v_mov_b32 v254, s98")
    a("v_mov_b32 v255, %d" % (4 * (slot + 1)))
    a("s_mov_b64 s[100:101], exec")
    a("s_mov_b64 exec, 1")
    a("buffer_store_dword v254, v255, s[92:95], 0 offen")
    a("s_mov_b64 exec, s[100:101]")
    a.label(lbl)


def kx(a, name):
    global stamp, stamp_init
    gen.STV = 254
    EXP = gen.EXP
    if DBGSTAMP:
        stamp = dstamp
        stamp_init = lambda a, k, lo, hi: srd(a, 92, 54, 55, 256)
    def setup2(sfx):
        a("s_lshl_b32 s31, s16, 6")
        a("v_add_u32 v199, s31, v0")
        for r in range(4):
            a("v_mov_b32 v%d, -1" % (16 + r))
        a("v_lshlrev_b32 v4, 4, v0")
        a("s_and_b32 s21, s16, 1")
        a("s_lshl_b32 s21, s21, 10")
        a("s_cmp_lt_u32 s16, 2")
        a("s_cbranch_scc1 kx_c2a" + sfx)
        a("s_lshl_b32 s20, s64, 11")
        a("s_add_u32 s20, s20, s21")
        a("s_add_u32 s20, s20, %d" % SELROW)
        a("buffer_store_dwordx4 v[16:19], v4, s[68:71], s20 offen%s" % SC)
        a.label("kx_c2a" + sfx)
        a("s_cmp_ge_u32 s65, 28")
        a("s_cbranch_scc1 kx_c2final" + sfx)
        a("s_and_b32 s66, s59, 7")
        a("s_lshl_b32 s26, s65, 3")
        a("s_add_u32 s66, s66, s26")
        a("s_cmp_ge_u32 s16, 2")
        a("s_cbranch_scc1 kx_c2b" + sfx)
        a("s_lshl_b32 s20, s66, 11")
        a("s_add_u32 s20, s20, s21")
        a("s_add_u32 s20, s20, %d" % YP_OFF)
        a("buffer_store_dwordx4 v[16:19], v4, s[68:71], s20 offen%s" % SC)
        a.label("kx_c2b" + sfx)
        a("s_branch kx_c2done" + sfx)
        a.label("kx_c2final" + sfx)
        a("s_sub_u32 s66, s58, 4")
        a("s_lshl_b32 s66, s66, 3")
        a("s_add_u32 s66, s66, s59")
        a("s_sub_u32 s66, s66, 24")
        a("s_lshl_b32 s66, s66, 1")
        a("s_add_u32 s66, s66, s16")
        a.label("kx_c2done" + sfx)

    def ffnloads():
        srd(a, 4, 46, 47, 512 * 3584)
        srd(a, 8, 48, 49, 512 * 3584)
        srd(a, 12, 50, 51, 1792 * 1024)
        a("s_movk_i32 s26, 7168")
        a("v_mul_lo_u32 v5, v199, s26")
        a("s_lshl_b32 s26, s66, 4")
        a("v_add_u32 v5, s26, v5")
        a("v_lshlrev_b32 v4, 2, v199")
        a("s_lshl_b32 s20, s66, 13")
        a("s_add_u32 s21, s20, 4096")
        a("buffer_load_dwordx4 v[200:203], v5, s[4:7], 0 offen")
        a("buffer_load_dwordx4 v[204:207], v5, s[4:7], 0 offen offset:3584")
        a("buffer_load_dwordx4 v[208:211], v5, s[8:11], 0 offen")
        a("buffer_load_dwordx4 v[212:215], v5, s[8:11], 0 offen offset:3584")
        for j in range(4):
            a("buffer_load_dword v%d, v4, s[12:15], s20 offen offset:%d" % (216 + j, 1024 * j))
        for j in range(4):
            a("buffer_load_dword v%d, v4, s[12:15], s21 offen offset:%d" % (220 + j, 1024 * j))

    kernel_head(a, name)
    a("s_cmp_ge_u32 s2, 256")
    a("s_cbranch_scc1 kx_exit")
    a("s_load_dwordx16 s[32:47], s[0:1], 0")
    a("s_load_dwordx8 s[48:55], s[0:1], 64")
    a("s_load_dwordx2 s[56:57], s[0:1], %d" % KA_WS)
    wave_split(a)
    a("s_and_b32 s58, s2, 7")
    a("s_lshr_b32 s59, s2, 3")
    a("s_and_b32 s60, s58, 1")
    a("s_lshr_b32 s61, s58, 1")
    a("s_and_b32 s62, s59, 3")
    a("s_lshr_b32 s63, s59, 2")
    a("s_lshl_b32 s67, s60, 3")
    a("s_add_u32 s63, s63, s67")
    a("s_lshl_b32 s64, s63, 4")
    a("s_lshl_b32 s67, s62, 2")
    a("s_add_u32 s64, s64, s67")
    a("s_add_u32 s64, s64, s61")
    a("s_lshr_b32 s65, s59, 3")
    a("s_lshl_b32 s65, s65, 3")
    a("s_add_u32 s65, s65, s58")
    a("s_and_b32 s88, s61, 1")
    a("s_lshr_b32 s89, s61, 1")
    a("s_lshl_b32 s85, s88, 3")
    a("s_lshl_b32 s67, s60, 2")
    a("s_add_u32 s85, s85, s67")
    a("s_waitcnt lgkmcnt(0)")
    stamp_init(a, 0, 56, 57)
    stamp(a, 0)
    srd(a, 68, 56, 57, WS_SRD_SIZE)
    srd(a, 72, 54, 55, 256)
    a("v_mov_b32 v197, 0")
    a("s_cmp_lg_u32 s2, 128")
    a("s_cbranch_scc1 kx_nononce")
    a("s_cmp_lg_u32 s16, 0")
    a("s_cbranch_scc1 kx_nononce")
    a("s_memrealtime s[18:19]")
    a("s_waitcnt lgkmcnt(0)")
    a("s_or_b32 s84, s18, 1")
    a("v_mov_b32 v194, s84")
    a("s_mov_b64 exec, 1")
    a("buffer_store_dword v194, v197, s[72:75], 0 offen%s" % SC)
    a("s_mov_b64 exec, -1")
    a.label("kx_nononce")
    a("s_cmp_ge_u32 s59, 16")
    a("s_cbranch_scc1 kx_pref")
    a("s_add_u32 s85, s85, s62")
    a("s_lshr_b32 s86, s59, 2")
    a("s_lshl_b32 s87, s89, 2")
    a("s_add_u32 s87, s87, s86")
    a("s_cmp_ge_u32 s16, 4")
    a("s_cbranch_scc1 kx_loader1")
    a("s_mov_b32 s30, 0")
    a("s_mov_b32 s22, 8")

    a.label("kx_cons")
    a("s_lshr_b32 s17, s16, 1")
    a("s_and_b32 s18, s16, 1")
    a("v_and_b32 v1, 15, v0")
    a("v_lshrrev_b32 v2, 4, v0")
    a("v_lshrrev_b32 v3, 1, v1")
    a("v_lshlrev_b32 v4, 7, v1")
    a("s_lshl_b32 s19, s17, 13")
    a("s_lshl_b32 s20, s18, 13")
    a("s_add_u32 s20, s20, 16384")
    for j in range(2):
        a("v_add_u32 v5, %d, v2" % (4 * j))
        a("v_xor_b32 v5, v5, v3")
        a("v_lshlrev_b32 v5, 4, v5")
        a("v_add_u32 v5, v5, v4")
        a("v_add_u32 v%d, s19, v5" % (AP + j))
        a("v_add_u32 v%d, s20, v5" % (AQ + j))
    for r in range(32):
        a("v_mov_b64 v[%d:%d], 0" % (ACC + 2 * r, ACC + 2 * r + 1))
    a("s_mov_b32 s23, %d" % SLOT)
    a("s_mov_b32 s24, %d" % SLOT)
    a("s_mov_b32 s25, 1")
    a("s_mov_b32 s27, %d" % (-(NSLOT - 1) * SLOT))
    a("s_mov_b32 s28, %d" % SLOT)

    def rdlist(j):
        f = FR + 32 * j
        l = []
        for t in range(4):
            l.append("ds_read_b128 v[%d:%d], v%d offset:%d" % (f + 4 * t, f + 4 * t + 3, AP + j, 2048 * t))
            l.append("ds_read_b128 v[%d:%d], v%d offset:%d" % (f + 16 + 4 * t, f + 16 + 4 * t + 3, AQ + j, 2048 * t))
        return l

    book = ["s_mov_b32 s23, s24",
            "s_add_u32 s25, s25, 1",
            "s_cmp_eq_u32 s25, %d" % NSLOT,
            "s_cselect_b32 s26, %d, 0" % NSLOT,
            "s_sub_u32 s25, s25, s26",
            "s_cmp_eq_u32 s25, %d" % (NSLOT - 1),
            "s_cselect_b32 s24, s27, s28",
            "s_sub_u32 s22, s22, 1",
            "s_cmp_lt_u32 s22, 2"]
    a("s_barrier")
    if gen.STAMPS or DBGSTAMP:
        a("s_cmp_lg_u32 s30, 0")
        a("s_cbranch_scc1 kx_st9")
        stamp(a, 8)
        a("s_branch kx_st9d")
        a.label("kx_st9")
        stamp(a, 9)
        a.label("kx_st9d")
    for r in rdlist(0):
        a(r)
    a("v_add_u32 v%d, s23, v%d" % (AP, AP))
    a("v_add_u32 v%d, s23, v%d" % (AQ, AQ))
    a.label("kx_cloop")
    for j in range(2):
        jn = 1 - j
        sd = 23 if j == 0 else 24
        f = FR + 32 * j
        rd = rdlist(jn)
        a("s_waitcnt lgkmcnt(0)")
        k = 0
        for ti in range(4):
            for tj in range(4):
                c = ACC + 4 * (4 * ti + tj)
                a("v_mfma_f32_16x16x32_bf16 v[%d:%d], v[%d:%d], v[%d:%d], v[%d:%d]" % (
                    c, c + 3, f + 4 * ti, f + 4 * ti + 3, f + 16 + 4 * tj, f + 16 + 4 * tj + 3, c, c + 3))
                if k < 8:
                    a(rd[k])
                if k == 8:
                    a("v_add_u32 v%d, s%d, v%d" % (AP + jn, sd, AP + jn))
                if k == 9:
                    a("v_add_u32 v%d, s%d, v%d" % (AQ + jn, sd, AQ + jn))
                if j == 1 and 10 <= k < 15:
                    for b in book[2 * (k - 10):2 * (k - 10) + 2]:
                        a(b)
                k += 1
    a("s_cbranch_scc1 kx_nobar")
    a("s_barrier")
    a.label("kx_nobar")
    a("s_cmp_lg_u32 s22, 0")
    a("s_cbranch_scc1 kx_cloop")
    a("s_waitcnt lgkmcnt(0)")
    a("s_cmp_lg_u32 s30, 0")
    a("s_cbranch_scc1 kx_epi2")

    stamp(a, 1)
    setup2("g")
    a("s_lshl_b32 s19, s17, 8")
    a("s_add_u32 s19, s19, %d" % STATS_LDS)
    a("v_lshlrev_b32 v7, 4, v2")
    a("v_add_u32 v7, s19, v7")
    a("s_lshl_b32 s19, s18, 8")
    a("s_add_u32 s19, s19, %d" % SUMW_LDS)
    a("v_lshlrev_b32 v6, 2, v1")
    a("v_add_u32 v6, s19, v6")
    a("v_mov_b32 v5, %d" % NONCE_LDS)
    a("s_barrier")
    a("ds_read_b32 v16, v5")
    for tj in range(4):
        a("ds_read_b32 v%d, v6 offset:%d" % (20 + 2 * tj, 64 * tj))
    for ti in range(4):
        a("ds_read_b128 v[%d:%d], v7 offset:%d" % (32 + 8 * ti, 35 + 8 * ti, 64 * ti))
        a("ds_read_b128 v[%d:%d], v7 offset:%d" % (36 + 8 * ti, 39 + 8 * ti, 64 * ti + 512))
    a("s_waitcnt lgkmcnt(0)")
    a("v_readfirstlane_b32 s84, v16")
    for ti in range(4):
        for tj in range(4):
            c = ACC + 4 * (4 * ti + tj)
            for h in range(2):
                a("v_pk_fma_f32 v[%d:%d], v[%d:%d], v[%d:%d], v[%d:%d] op_sel_hi:[1,0,1] neg_lo:[1,0,0] neg_hi:[1,0,0]" % (
                    c + 2 * h, c + 2 * h + 1, 32 + 8 * ti + 2 * h, 33 + 8 * ti + 2 * h, 20 + 2 * tj, 21 + 2 * tj, c + 2 * h, c + 2 * h + 1))
                a("v_pk_mul_f32 v[%d:%d], v[%d:%d], v[%d:%d]" % (
                    c + 2 * h, c + 2 * h + 1, c + 2 * h, c + 2 * h + 1, 36 + 8 * ti + 2 * h, 37 + 8 * ti + 2 * h))
    a("s_lshl_b32 s21, s16, 15")
    a("s_lshl_b32 s19, s87, 5")
    a("s_lshl_b32 s20, s85, 1")
    a("s_add_u32 s19, s19, s20")
    a("s_add_u32 s19, s19, s17")
    a("s_lshl_b32 s19, s19, 14")
    a("s_lshl_b32 s20, s18, 13")
    a("s_add_u32 s19, s19, s20")
    a("s_lshl_b32 s29, s87, 4")
    a("s_add_u32 s29, s29, s85")
    a("s_lshl_b32 s29, s29, 7")
    a("s_add_u32 s29, s29, %d" % FLAG0)
    a("s_branch kx_epi")
    a.label("kx_epi2")
    stamp(a, 3)
    a("s_mul_i32 s21, s16, 9216")
    a("s_add_u32 s21, s21, 32768")
    a("s_lshl_b32 s19, s64, 15")
    a("s_lshl_b32 s20, s16, 13")
    a("s_add_u32 s19, s19, s20")
    a("s_add_u32 s19, s19, %d" % PART_OFF)
    a("s_lshl_b32 s29, s64, 7")
    a("s_add_u32 s29, s29, %d" % FLAG1)
    a("s_nop 4")
    a.label("kx_epi")
    a("v_mul_u32_u24 v4, 144, v1")
    a("v_lshlrev_b32 v5, 3, v2")
    a("v_add3_u32 v4, v4, v5, s21")
    a("v_lshrrev_b32 v6, 3, v0")
    a("v_and_b32 v7, 7, v0")
    a("v_lshlrev_b32 v7, 4, v7")
    a("v_mul_u32_u24 v5, 144, v6")
    a("v_add3_u32 v5, v5, v7, s21")
    a("s_add_u32 s20, s19, 4096")
    a("v_lshlrev_b32 v6, 4, v0")
    n = 0
    for tj in range(4):
        for ti in range(4):
            c = ACC + 4 * (4 * ti + tj)
            d = FR + 2 * (n % 8)
            n += 1
            a("v_cvt_pk_bf16_f32 v%d, v%d, v%d" % (d, c, c + 1))
            a("v_cvt_pk_bf16_f32 v%d, v%d, v%d" % (d + 1, c + 2, c + 3))
            a("ds_write_b64 v4, v[%d:%d] offset:%d" % (d, d + 1, tj * 2304 + ti * 32))
    a("s_waitcnt lgkmcnt(0)")
    for i in range(8):
        a("ds_read_b128 v[%d:%d], v5 offset:%d" % (FR + 16 + 4 * i, FR + 19 + 4 * i, i * 1152))
    for i in range(8):
        a("s_waitcnt lgkmcnt(%d)" % (7 - i))
        a("buffer_store_dwordx4 v[%d:%d], v6, s[68:71], s%d offen offset:%d%s" % (FR + 16 + 4 * i, FR + 19 + 4 * i, 19 + (i >> 2), 1024 * (i & 3), SC))
    a("s_lshl_b32 s20, s16, 2")
    a("s_add_u32 s29, s29, s20")
    a("v_mov_b32 v4, 0")
    a("v_mov_b32 v5, s84")
    if gen.STAMPS or DBGSTAMP:
        a("s_cmp_lg_u32 s30, 0")
        a("s_cbranch_scc1 kx_st11")
        stamp(a, 10)
        a("s_branch kx_st11d")
        a.label("kx_st11")
        stamp(a, 11)
        a.label("kx_st11d")
    a("s_cmp_lg_u32 s30, 0")
    a("s_cbranch_scc1 kx_noe1")
    a("s_barrier")
    a.label("kx_noe1")
    a("s_waitcnt vmcnt(0)")
    a("s_mov_b64 exec, 1")
    a("buffer_store_dword v5, v4, s[68:71], s29 offen%s" % SC)
    a("s_mov_b64 exec, -1")
    a("s_cmp_lg_u32 s30, 0")
    a("s_cbranch_scc1 kx_rows")
    stamp(a, 2)

    a.label("kx_cons2")
    a("s_cmp_ge_u32 s65, 28")
    a("s_cbranch_scc1 kx_c3")
    ffnloads()
    a.label("kx_c3")
    a("s_mov_b32 s30, 1")
    a("s_mov_b32 s22, 16")
    a("s_barrier")
    a("s_branch kx_cons")

    a.label("kx_loader1")
    a("s_lshl_b32 s19, s85, 17")
    a("s_add_u32 s22, s32, s19")
    a("s_addc_u32 s23, s33, 0")
    srd(a, 4, 22, 23, 131072)
    a("s_cmp_eq_u32 s89, 0")
    a("s_cselect_b32 s22, s38, s40")
    a("s_cselect_b32 s23, s39, s41")
    a("s_lshl_b32 s19, s86, 17")
    add64(a, 22, 23, "s19")
    srd(a, 8, 22, 23, 131072)
    a("s_sub_u32 s17, s16, 4")
    a("v_lshrrev_b32 v6, 3, v0")
    a("v_lshrrev_b32 v7, 4, v0")
    a("v_and_b32 v16, 7, v0")
    a("s_lshl_b32 s18, s17, 5")
    for j in range(4):
        a("v_add_u32 v18, %d, v7" % (4 * j))
        a("v_and_b32 v18, 7, v18")
        a("v_xor_b32 v18, v18, v16")
        a("v_lshlrev_b32 v18, 4, v18")
        a("v_add3_u32 v17, v6, s18, %d" % (8 * j))
        a("v_lshlrev_b32 v17, 10, v17")
        a("v_add_u32 v17, v17, v18")
        a("v_subrev_u32 v%d, %d, v17" % (8 + j, 1024 * j))
    a("s_lshl_b32 s21, s17, 12")
    a("s_mov_b32 s20, 0")
    a("s_mov_b32 s22, 0")
    a.label("kx_l1loop")
    a("s_mov_b32 m0, s21")
    a("s_add_u32 s19, s21, 16384")
    for j in range(4):
        a("buffer_load_dwordx4 v%d, s[4:7], s20 offen offset:%d%s lds" % (8 + j, 1024 * j, NT))
    a("s_mov_b32 m0, s19")
    a("s_add_u32 s22, s22, 1")
    for j in range(4):
        a("buffer_load_dwordx4 v%d, s[8:11], s20 offen offset:%d%s lds" % (8 + j, 1024 * j, NT))
    a("s_add_u32 s20, s20, 128")
    a("s_add_u32 s21, s21, %d" % SLOT)
    a("s_cmp_eq_u32 s22, %d" % NSLOT)
    a("s_cselect_b32 s19, %d, 0" % (SLOT * NSLOT))
    a("s_sub_u32 s21, s21, s19")
    a("s_cmp_lt_u32 s22, 4")
    a("s_cbranch_scc1 kx_l1loop")
    a("s_waitcnt vmcnt(16)")
    a("s_barrier")
    a("s_cmp_lt_u32 s22, 8")
    a("s_cbranch_scc1 kx_l1loop")
    a("s_lshl_b32 s19, s62, 7")
    a("s_lshl_b32 s24, s86, 7")
    a("s_add_u32 s24, s24, 480")
    a("v_mov_b32 v20, s19")
    a("v_mov_b32 v21, s24")
    a("v_cmp_gt_u32 vcc, 32, v0")
    a("v_add_u32 v22, s18, v0")
    a("v_cndmask_b32 v20, v21, v20, vcc")
    a("v_add_lshl_u32 v20, v20, v22, 3")
    a("s_lshl_b32 s24, s58, 13")
    a("s_add_u32 s24, s24, %d" % STAT)
    a("s_waitcnt vmcnt(8)")
    a("s_barrier")
    a("buffer_load_dword v194, v197, s[72:75], 0 offen%s" % SC)
    a("buffer_load_dwordx2 v[24:25], v20, s[68:71], s24 offen%s" % SC)
    a("s_waitcnt vmcnt(2)")
    a("s_barrier")
    a("v_lshlrev_b32 v22, 2, v22")
    a("v_add_u32 v22, %d, v22" % STATS_LDS)
    a("s_waitcnt vmcnt(0)")

    def stcond():
        a("v_cmp_ne_u32 vcc, v25, v194")
        a("v_cmp_eq_u32 s[26:27], 0, v194")
        a("s_nop 2")
        a("s_or_b64 vcc, vcc, s[26:27]")
    stcond()
    a("s_cmp_eq_u64 vcc, 0")
    a("s_cbranch_scc1 kx_polln_done")
    poll(a, "kx_polln", ["buffer_load_dword v194, v197, s[72:75], 0 offen%s" % SC,
                         "buffer_load_dwordx2 v[24:25], v20, s[68:71], s24 offen%s" % SC], stcond)
    a("v_readfirstlane_b32 s84, v194")
    a("v_lshlrev_b32 v26, 16, v24")
    a("v_rcp_f32 v26, v26")
    a("v_and_b32 v27, 0xffff0000, v24")
    a("v_mov_b32 v195, %d" % NONCE_LDS)
    a("s_mov_b32 exec_hi, 0")
    a("ds_write_b32 v22, v27 offset:%d" % 0)
    a("ds_write_b32 v22, v26 offset:%d" % 512)
    a("s_not_b64 exec, exec")
    a("ds_write_b32 v22, v24 offset:%d" % (1024 - 128))
    a("s_mov_b64 exec, -1")
    a("ds_write_b32 v195, v194")
    a("s_waitcnt lgkmcnt(0)")
    a("s_barrier")
    a("s_branch kx_loader2")

    a.label("kx_pref")
    a("s_sub_u32 s86, s59, 16")
    a("v_lshrrev_b32 v6, 3, v0")
    a("v_and_b32 v7, 7, v0")
    a("v_lshlrev_b32 v8, 12, v6")
    a("v_lshlrev_b32 v6, 10, v6")
    a("v_lshlrev_b32 v9, 7, v7")
    a("v_add_u32 v6, v6, v9")
    a("v_add_u32 v14, v8, v9")
    a("s_cmp_eq_u32 s89, 0")
    a("s_cselect_b32 s24, s38, s40")
    a("s_cselect_b32 s25, s39, s41")
    a("s_cselect_b32 s26, s34, s36")
    a("s_cselect_b32 s27, s35, s37")
    a("s_lshl_b32 s19, s85, 17")
    a("s_add_u32 s22, s32, s19")
    a("s_addc_u32 s23, s33, 0")
    a("s_cmp_lt_u32 s86, 8")
    a("s_cselect_b32 s22, s22, s24")
    a("s_cselect_b32 s23, s23, s25")
    srd(a, 4, 22, 23, 524288)
    a("s_and_b32 s19, s86, 7")
    a("s_lshl_b32 s19, s19, 16")
    a("s_lshl_b32 s20, s16, 13")
    a("s_add_u32 s19, s19, s20")
    a("v_lshlrev_b32 v11, 4, v0")
    a("s_add_u32 s29, s19, 4096")
    for i in range(8):
        a("buffer_load_dwordx4 v[%d:%d], v11, s[4:7], s%d offen offset:%d" % (64 + 4 * i, 67 + 4 * i, 19 if i < 4 else 29, 1024 * (i & 3)))
    a("s_lshl_b32 s19, s60, 22")
    a("s_lshl_b32 s20, s86, 18")
    a("s_add_u32 s19, s19, s20")
    a("s_lshl_b32 s20, s88, 11")
    a("s_add_u32 s19, s19, s20")
    a("s_lshl_b32 s20, s16, 15")
    a("s_add_u32 s19, s19, s20")
    add64(a, 26, 27, "s19")
    srd(a, 8, 26, 27, 7 * 4096 + 2048)
    if 8 < PFN < 16:
        a("v_cmp_gt_u32 vcc, %d, v7" % (PFN - 8))
        a("v_mov_b32 v15, 0x40000000")
        a("v_cndmask_b32 v15, v15, v14, vcc")
    else:
        a("v_mov_b32 v15, v14")
    a("s_lshl_b32 s19, s86, 3")
    a("s_add_u32 s19, s19, s16")
    a("s_mul_i32 s20, s19, 2731")
    a("s_lshr_b32 s20, s20, 16")
    a("s_mul_i32 s21, s20, 24")
    a("s_sub_u32 s21, s19, s21")
    a("s_lshl_b32 s20, s20, 3")
    a("s_add_u32 s20, s20, s58")
    a("s_movk_i32 s19, 3584")
    a("v_mul_lo_u32 v10, v0, s19")
    poll(a, "kx_pollp", ["buffer_load_dword v194, v197, s[72:75], 0 offen%s" % SC], lambda: a("v_cmp_eq_u32 vcc, 0, v194"))
    a("v_readfirstlane_b32 s84, v194")
    for i in range(8):
        for d in range(4):
            unpack(a, 16 + 2 * d, 17 + 2 * d, 64 + 4 * i + d)
        a("v_pk_add_f32 v[24:25], v[16:17], v[18:19]")
        a("v_pk_mul_f32 v[28:29], v[16:17], v[16:17]")
        a("v_pk_add_f32 v[26:27], v[20:21], v[22:23]")
        a("v_pk_fma_f32 v[28:29], v[18:19], v[18:19], v[28:29]")
        a("v_pk_add_f32 v[24:25], v[24:25], v[26:27]")
        a("v_pk_fma_f32 v[28:29], v[20:21], v[20:21], v[28:29]")
        a("v_add_f32 v%d, v24, v25" % (32 + i))
        a("v_pk_fma_f32 v[28:29], v[22:23], v[22:23], v[28:29]")
        a("v_add_f32 v%d, v28, v29" % (40 + i))
    a("s_nop 1")
    for i in range(8):
        a("v_permlane32_swap_b32 v%d, v%d" % (32 + i, 40 + i))
    a("s_nop 1")
    for i in range(8):
        a("v_add_f32 v%d, v%d, v%d" % (32 + i, 32 + i, 40 + i))
    a("s_nop 1")
    for i in range(4):
        a("v_permlane16_swap_b32 v%d, v%d" % (32 + i, 36 + i))
    a("s_nop 1")
    for i in range(4):
        a("v_add_f32 v%d, v%d, v%d" % (32 + i, 32 + i, 36 + i))
    for r in (8, 4, 2, 1):
        a("s_nop 0")
        for i in range(4):
            a("v_add_f32_dpp v%d, v%d, v%d row_ror:%d row_mask:0xf bank_mask:0xf" % (32 + i, 32 + i, 32 + i, r))
    a("v_and_b32 v16, 3, v0")
    a("v_cmp_eq_u32 s[22:23], 1, v16")
    a("v_cmp_eq_u32 s[24:25], 2, v16")
    a("v_cmp_eq_u32 s[26:27], 3, v16")
    a("v_lshrrev_b32 v17, 4, v0")
    a("v_cndmask_b32 v32, v32, v33, s[22:23]")
    a("v_cndmask_b32 v32, v32, v34, s[24:25]")
    a("v_cndmask_b32 v32, v32, v35, s[26:27]")
    a("v_mov_b32 v33, v32")
    a("v_lshl_add_u32 v16, v17, 2, v16")
    a("s_nop 0")
    a("v_permlane32_swap_b32 v32, v33")
    a("s_lshl_b32 s22, s86, 6")
    a("s_lshl_b32 s23, s16, 3")
    a("s_add_u32 s22, s22, s23")
    a("v_add_lshl_u32 v16, v16, s22, 3")
    a("v_mul_f32 v28, 0x3b000000, v32")
    a("v_mul_f32 v29, 0x3b000000, v33")
    a("v_fma_f32 v29, -v28, v28, v29")
    a("v_max_f32 v29, 0, v29")
    bf16r(a, 30, 28)
    bf16r(a, 29, 29)
    a("v_add_f32 v29, 0x3727c5ac, v29")
    bf16r(a, 29, 29)
    a("v_sqrt_f32 v29, v29")
    a("s_lshl_b32 s22, s58, 13")
    a("v_cvt_pk_bf16_f32 v29, v29, v29")
    a("v_and_b32 v29, 0xffff, v29")
    a("v_or_b32 v30, v30, v29")
    a("s_add_u32 s22, s22, %d" % STAT)
    a("s_cmp_lt_u32 s86, 8")
    a("s_cbranch_scc1 kx_pf_x")
    a("v_mov_b32 v30, v32")
    a.label("kx_pf_x")
    a("v_mov_b32 v31, s84")
    a("s_mov_b64 exec, 0x000f000f")
    a("buffer_store_dwordx2 v[30:31], v16, s[68:71], s22 offen%s" % SC)
    a("s_mov_b64 exec, -1")
    stamp(a, 8)
    a("s_cmp_ge_u32 s20, 28")
    a("s_cbranch_scc1 kx_pf_done")
    a("s_cmp_ge_u32 s21, 16")
    a("s_cbranch_scc1 kx_pf_wd")
    a("s_cmp_lt_u32 s21, 8")
    a("s_cselect_b32 s22, s46, s48")
    a("s_cselect_b32 s23, s47, s49")
    srd(a, 12, 22, 23, 512 * 3584)
    a("s_and_b32 s21, s21, 7")
    a("s_mul_i32 s19, s21, %d" % (64 * 3584))
    a("s_lshl_b32 s20, s20, 7")
    a("s_add_u32 s19, s19, s20")
    a("buffer_load_dword v61, v10, s[12:15], s19 offen" + NT)
    a("s_branch kx_pf_done")
    a.label("kx_pf_wd")
    srd(a, 12, 50, 51, 1792 * 1024)
    a("s_sub_u32 s21, s21, 16")
    a("s_lshl_b32 s19, s20, 16")
    a("s_lshl_b32 s21, s21, 13")
    a("s_add_u32 s19, s19, s21")
    a("buffer_load_dword v61, v6, s[12:15], s19 offen" + NT)
    a.label("kx_pf_done")
    if PFN > 0:
        a("buffer_load_dword v62, v14, s[8:11], 0 offen" + NT)
    if PFN > 8:
        a("buffer_load_dword v63, v15, s[8:11], 0 offen offset:1024" + NT)
    a("s_waitcnt vmcnt(0)")
    stamp(a, 1)
    a("s_cmp_ge_u32 s16, 4")
    a("s_cbranch_scc1 kx_loader2")
    setup2("p")
    a("s_barrier")
    a("s_branch kx_cons2")

    a.label("kx_loader2")
    a("s_lshl_b32 s19, s89, 2")
    a("s_add_u32 s19, s19, s62")
    a("s_lshl_b32 s24, s19, 11")
    a("s_lshl_b32 s19, s19, 19")
    a("s_lshl_b32 s20, s88, 18")
    a("s_add_u32 s19, s19, s20")
    a("s_add_u32 s22, s56, s19")
    a("s_addc_u32 s23, s57, 0")
    srd(a, 4, 22, 23, 16 * 16384)
    a("s_cmp_eq_u32 s89, 0")
    a("s_cselect_b32 s22, s34, s36")
    a("s_cselect_b32 s23, s35, s37")
    a("s_lshl_b32 s19, s63, 19")
    a("s_lshl_b32 s21, s88, 11")
    a("s_add_u32 s19, s19, s21")
    add64(a, 22, 23, "s19")
    srd(a, 8, 22, 23, 127 * 4096 + 2048)
    a("s_lshl_b32 s20, s88, 10")
    a("s_add_u32 s24, s24, s20")
    a("s_add_u32 s24, s24, %d" % FLAG0)
    a("s_sub_u32 s17, s16, 4")
    a("v_lshrrev_b32 v1, 3, v0")
    a("v_lshrrev_b32 v2, 4, v0")
    a("v_and_b32 v3, 7, v0")
    a("s_lshl_b32 s18, s17, 5")
    a("v_add_u32 v1, s18, v1")
    a("v_lshlrev_b32 v6, 7, v1")
    for j in range(4):
        a("v_add_u32 v4, %d, v1" % (8 * j))
        a("v_lshlrev_b32 v4, 12, v4")
        a("v_add_u32 v5, %d, v2" % (4 * j))
        a("v_and_b32 v5, 7, v5")
        a("v_xor_b32 v5, v5, v3")
        a("v_lshlrev_b32 v5, 4, v5")
        a("v_add_u32 v4, v4, v5")
        a("v_subrev_u32 v%d, %d, v4" % (8 + j, 1024 * j))
        a("v_add_u32 v%d, v6, v5" % (12 + j))
    a("s_lshl_b32 s21, s17, 12")
    a("s_barrier")
    a("s_mov_b32 s20, 0")
    a("s_add_u32 s19, s21, 16384")
    a.label("kx_l2q")
    a("s_mov_b32 m0, s19")
    a("s_add_u32 s19, s19, %d" % SLOT)
    for j in range(4):
        a("buffer_load_dwordx4 v%d, s[8:11], s20 offen offset:%d%s lds" % (8 + j, 1024 * j, NTQ))
    a("s_add_u32 s20, s20, 128")
    a("s_cmp_lt_u32 s20, 512")
    a("s_cbranch_scc1 kx_l2q")
    a("s_cmp_lg_u32 s16, 4")
    a("s_cbranch_scc1 kx_poll0_done")
    a("v_lshlrev_b32 v20, 7, v3")

    def f0cond():
        a("v_xor_b32 v24, s84, v24")
        a("v_xor_b32 v25, s84, v25")
        a("v_xor_b32 v26, s84, v26")
        a("v_xor_b32 v27, s84, v27")
        a("v_or3_b32 v24, v24, v25, v26")
        a("v_or_b32 v24, v24, v27")
        a("v_cmp_ne_u32 vcc, 0, v24")
    a("s_mov_b64 exec, 0xff")
    poll(a, "kx_poll0", ["buffer_load_dwordx4 v[24:27], v20, s[68:71], s24 offen%s" % SC], f0cond)
    a("s_mov_b64 exec, -1")
    stamp(a, 2)
    a("s_barrier")
    a("s_mov_b32 s26, 0")
    a("s_mov_b32 s19, s21")
    a.label("kx_l2p")
    a("s_mov_b32 m0, s19")
    a("s_add_u32 s19, s19, %d" % SLOT)
    for j in range(4):
        a("buffer_load_dwordx4 v%d, s[4:7], s26 offen offset:%d%s lds" % (12 + j, 1024 * j, SC))
    a("s_add_u32 s26, s26, 16384")
    a("s_cmp_lt_u32 s26, 65536")
    a("s_cbranch_scc1 kx_l2p")
    a("s_waitcnt vmcnt(8)")
    a("s_barrier")
    a("s_add_u32 s21, s21, %d" % (4 * SLOT))
    a("s_mov_b32 s25, 4")
    a("s_mov_b32 s22, 4")
    a.label("kx_l2loop")
    a("s_mov_b32 m0, s21")
    a("s_add_u32 s19, s21, 16384")
    for j in range(4):
        a("buffer_load_dwordx4 v%d, s[4:7], s26 offen offset:%d%s lds" % (12 + j, 1024 * j, SC))
    a("s_mov_b32 m0, s19")
    a("s_add_u32 s25, s25, 1")
    for j in range(4):
        a("buffer_load_dwordx4 v%d, s[8:11], s20 offen offset:%d%s lds" % (8 + j, 1024 * j, NTQ))
    a("s_add_u32 s20, s20, 128")
    a("s_add_u32 s26, s26, 16384")
    a("s_add_u32 s21, s21, %d" % SLOT)
    a("s_cmp_eq_u32 s25, %d" % NSLOT)
    a("s_cselect_b32 s19, %d, 0" % (SLOT * NSLOT))
    a("s_cselect_b32 s27, %d, 0" % NSLOT)
    a("s_sub_u32 s21, s21, s19")
    a("s_sub_u32 s25, s25, s27")
    a("s_add_u32 s22, s22, 1")
    a("s_cmp_lg_u32 s22, 5")
    a("s_cbranch_scc1 kx_l2w16")
    a("s_waitcnt vmcnt(12)")
    a.label("kx_l2w16")
    a("s_waitcnt vmcnt(16)")
    a("s_barrier")
    a("s_cmp_lt_u32 s22, 16")
    a("s_cbranch_scc1 kx_l2loop")
    a("s_waitcnt vmcnt(8)")
    a("s_barrier")
    a("s_waitcnt vmcnt(0)")
    a("s_barrier")
    stamp(a, 3)

    a.label("kx_rows")
    stamp(a, 12)
    srd(a, 72, 32, 33, 2 << 20)
    srd(a, 76, 44, 45, 1024)
    srd(a, 80, 52, 53, 2 << 20)
    a("s_lshl_b32 s18, s64, 3")
    a("s_add_u32 s18, s18, s16")
    a("v_lshlrev_b32 v2, 4, v0")
    a("s_lshl_b32 s19, s18, 10")
    a("buffer_load_dwordx4 v[24:27], v2, s[72:75], s19 offen")
    a("buffer_load_dwordx4 v[28:31], v2, s[76:79], 0 offen")
    a("v_lshrrev_b32 v5, 4, v0")
    a("v_lshlrev_b32 v5, 17, v5")
    a("v_and_b32 v6, 8, v0")
    a("v_lshlrev_b32 v6, 11, v6")
    a("v_and_b32 v7, 7, v0")
    a("v_lshlrev_b32 v7, 4, v7")
    a("v_add3_u32 v5, v5, v6, v7")
    a("s_lshl_b32 s21, s63, 19")
    a("s_and_b32 s22, s18, 64")
    a("s_lshl_b32 s22, s22, 7")
    a("s_add_u32 s21, s21, s22")
    a("s_and_b32 s22, s18, 63")
    a("s_lshl_b32 s22, s22, 7")
    a("s_add_u32 s21, s21, s22")
    a("s_add_u32 s21, s21, %d" % PART_OFF)
    a("v_and_b32 v3, 15, v0")
    a("v_lshlrev_b32 v3, 7, v3")
    a("s_lshl_b32 s20, s63, 11")
    a("s_add_u32 s20, s20, %d" % FLAG1)
    a("s_lshl_b32 s22, s16, 2")
    a("s_add_u32 s22, s22, 98304")
    a("v_mov_b32 v73, s22")
    a("v_mov_b32 v74, 98304")
    a("s_waitcnt vmcnt(0)")
    for i in range(4):
        unpack(a, 64 + 2 * i, 65 + 2 * i, 28 + i)
        unpack(a, 76 + 2 * i, 77 + 2 * i, 24 + i)
    a("v_pk_add_f32 v[48:49], v[64:65], v[66:67]")
    a("v_pk_add_f32 v[50:51], v[68:69], v[70:71]")
    a("v_pk_add_f32 v[48:49], v[48:49], v[50:51]")
    a("v_add_f32 v72, v48, v49")
    allreduce64(a, "add_f32", 72, 49)
    a("s_cmp_lg_u32 s16, 0")
    a("s_cbranch_scc1 kx_poll1_done")

    def f1cond():
        a("v_xor_b32 v8, s84, v8")
        a("v_xor_b32 v9, s84, v9")
        a("v_xor_b32 v10, s84, v10")
        a("v_xor_b32 v11, s84, v11")
        a("v_or3_b32 v8, v8, v9, v10")
        a("v_or_b32 v8, v8, v11")
        a("v_cmp_ne_u32 vcc, 0, v8")
    a("s_mov_b64 exec, 0xffff")
    poll(a, "kx_poll1", ["buffer_load_dwordx4 v[8:11], v3, s[68:71], s20 offen%s" % SC], f1cond)
    a("s_mov_b64 exec, -1")
    a("s_barrier")
    stamp(a, 4)
    for ks in range(4):
        a("s_add_u32 s20, s21, %d" % (ks * 32768))
        a("buffer_load_dwordx4 v[%d:%d], v5, s[68:71], s20 offen%s" % (8 + 4 * ks, 11 + 4 * ks, SC))
    a("s_waitcnt vmcnt(0)")
    stamp(a, 13)
    for i in range(4):
        unpack(a, 48, 49, 8 + i)
        unpack(a, 50, 51, 12 + i)
        unpack(a, 52, 53, 16 + i)
        unpack(a, 54, 55, 20 + i)
        a("v_pk_add_f32 v[48:49], v[48:49], v[50:51]")
        a("v_pk_add_f32 v[52:53], v[52:53], v[54:55]")
        a("v_pk_add_f32 v[48:49], v[48:49], v[%d:%d]" % (76 + 2 * i, 77 + 2 * i))
        a("v_pk_add_f32 v[48:49], v[48:49], v[52:53] neg_lo:[0,1] neg_hi:[0,1]")
        a("v_cvt_pk_bf16_f32 v%d, v48, v49" % (32 + i))
        unpack(a, 40 + 2 * i, 41 + 2 * i, 32 + i)
    a("v_pk_add_f32 v[48:49], v[40:41], v[42:43]")
    a("v_pk_mul_f32 v[50:51], v[40:41], v[40:41]")
    a("v_pk_mul_f32 v[52:53], v[40:41], v[64:65]")
    a("v_pk_add_f32 v[54:55], v[44:45], v[46:47]")
    for i in range(1, 4):
        a("v_pk_fma_f32 v[50:51], v[%d:%d], v[%d:%d], v[50:51]" % (40 + 2 * i, 41 + 2 * i, 40 + 2 * i, 41 + 2 * i))
        a("v_pk_fma_f32 v[52:53], v[%d:%d], v[%d:%d], v[52:53]" % (40 + 2 * i, 41 + 2 * i, 64 + 2 * i, 65 + 2 * i))
    a("v_pk_add_f32 v[48:49], v[48:49], v[54:55]")
    a("v_add_f32 v50, v50, v51")
    a("v_add_f32 v52, v52, v53")
    a("v_add_f32 v48, v48, v49")
    for r in (8, 4, 2, 1):
        for v in (50, 52, 48):
            a("v_add_f32_dpp v%d, v%d, v%d row_ror:%d row_mask:0xf bank_mask:0xf" % (v, v, v, r))
    for op in ("v_permlane16_swap_b32", "v_permlane32_swap_b32"):
        for v in (50, 52, 48):
            a("v_mov_b32 v%d, v%d" % (v + 1, v))
        a("s_nop 0")
        for v in (50, 52, 48):
            a("%s v%d, v%d" % (op, v, v + 1))
        a("s_nop 0")
        for v in (50, 52, 48):
            a("v_add_f32 v%d, v%d, v%d" % (v, v, v + 1))
    a("v_mul_f32 v58, 0x3b000000, v48")
    a("v_mul_f32 v50, 0x3b000000, v50")
    a("v_fma_f32 v50, -v58, v58, v50")
    a("v_max_f32 v50, 0, v50")
    bf16r(a, 60, 58)
    bf16r(a, 50, 50)
    a("v_add_f32 v50, 0x3727c5ac, v50")
    bf16r(a, 50, 50)
    a("v_sqrt_f32 v50, v50")
    a("v_fma_f32 v52, -v60, v72, v52")
    bf16r(a, 50, 50)
    a("v_rcp_f32 v58, v50")
    a("s_sub_u32 s20, 0xffff, s18")
    a("v_mul_f32 v48, v52, v58")
    a("v_cvt_pk_bf16_f32 v48, v48, v48")
    a("v_and_b32 v48, 0xffff0000, v48")
    a("v_ashrrev_i32 v49, 31, v48")
    a("v_and_b32 v49, 0x7fff0000, v49")
    a("v_or_b32 v49, 0x80000000, v49")
    a("v_xor_b32 v48, v48, v49")
    a("v_or_b32 v48, s20, v48")
    a("ds_write_b32 v73, v48")
    a("v_mov_b32 v49, s84")
    a("v_mul_f32 v62, v60, v58")
    a("v_sub_f32 v62, 0, v62")
    a("s_waitcnt lgkmcnt(0)")
    a("s_barrier")
    a("ds_read_b128 v[8:11], v74")
    a("ds_read_b128 v[12:15], v74 offset:16")
    a("s_lshl_b32 s20, s64, 11")
    a("s_add_u32 s20, s20, %d" % SELROW)
    a("s_lshr_b32 s21, s64, 2")
    a("s_lshl_b32 s21, s21, 7")
    a("s_and_b32 s22, s64, 3")
    a("s_lshl_b32 s22, s22, 3")
    a("s_add_u32 s21, s21, s22")
    a("s_add_u32 s21, s21, %d" % KEYS)
    a("v_lshlrev_b32 v5, 13, v0")
    a("s_waitcnt lgkmcnt(0)")
    a("v_max3_u32 v8, v8, v9, v10")
    a("v_max3_u32 v8, v8, v11, v12")
    a("v_max3_u32 v8, v8, v13, v14")
    a("v_max_u32 v63, v8, v15")
    a("v_cmp_eq_u32 vcc, v63, v48")
    a("s_nop 2")
    a("s_and_b64 s[22:23], vcc, %d" % ((1 << NREP) - 1))
    a("s_mov_b64 exec, s[22:23]")
    a("s_cbranch_execz kx_nokey")
    a("buffer_store_dwordx2 v[48:49], v5, s[68:71], s21 offen%s" % SC)
    a.label("kx_nokey")
    a("s_mov_b64 exec, -1")
    stamp(a, 14)
    for i in range(4):
        a("v_pk_fma_f32 v[50:51], v[%d:%d], v[58:59], v[62:63] op_sel_hi:[1,0,0]" % (40 + 2 * i, 41 + 2 * i))
        a("v_cvt_pk_bf16_f32 v%d, v50, v51" % (36 + i))
        unpack(a, 50, 51, 36 + i)
        a("v_pk_add_f32 v[50:51], v[%d:%d], v[50:51]" % (40 + 2 * i, 41 + 2 * i))
        a("v_cvt_pk_bf16_f32 v%d, v50, v51" % (24 + i))
    a("s_cmp_eq_u64 s[22:23], 0")
    a("s_cbranch_scc0 kx_best")
    a("buffer_store_dwordx4 v[24:27], v2, s[80:83], s19 offen")
    a("s_branch kx_notbest")
    a.label("kx_best")
    a("buffer_store_dwordx4 v[36:39], v2, s[68:71], s20 offen%s" % SC)
    a("buffer_store_dwordx4 v[32:35], v2, s[68:71], s20 offen offset:1024%s" % SC)
    a("ds_write_b128 v2, v[24:27] offset:32768")
    a("s_waitcnt lgkmcnt(0)")
    a.label("kx_notbest")
    a("s_cmp_ge_u32 s16, 4")
    a("s_cbranch_scc1 kx_exit")

    a("s_cmp_lt_u32 s65, 28")
    a("s_cbranch_scc1 kx_keys")
    a("s_cmp_ge_u32 s16, 2")
    a("s_cbranch_scc1 kx_exit")
    a.label("kx_keys")
    a("s_and_b32 s20, s64, %d" % (NREP - 1))
    a("s_lshl_b32 s20, s20, 13")
    a("s_add_u32 s20, s20, %d" % KEYS)
    a("v_lshlrev_b32 v3, 7, v0")
    a("v_mov_b32 v5, 98816")
    a("s_cmp_lg_u32 s16, 0")
    a("s_cbranch_scc1 kx_keywait")

    def keycond():
        a("v_xor_b32 v9, s84, v9")
        a("v_xor_b32 v11, s84, v11")
        a("v_xor_b32 v13, s84, v13")
        a("v_xor_b32 v15, s84, v15")
        a("v_or3_b32 v4, v9, v11, v13")
        a("v_or_b32 v4, v4, v15")
        a("v_cmp_ne_u32 vcc, 0, v4")
    poll(a, "kx_poll2", ["buffer_load_dwordx4 v[8:11], v3, s[68:71], s20 offen%s" % SC,
                         "buffer_load_dwordx4 v[12:15], v3, s[68:71], s20 offen offset:16%s" % SC], keycond)
    a("v_max_u32 v64, v8, v10")
    a("v_max3_u32 v64, v64, v12, v14")
    allreduce64(a, "max_u32", 64, 65)
    a("ds_write_b32 v5, v64")
    a("s_waitcnt lgkmcnt(0)")
    a.label("kx_keywait")
    a("s_barrier")
    a("ds_read_b32 v64, v5")
    a("ds_read_b128 v[24:27], v2 offset:32768")
    a("s_waitcnt lgkmcnt(0)")
    stamp(a, 5)
    a("v_and_b32 v66, 0xffff, v64")
    a("v_sub_u32 v66, 0xffff, v66")
    a("v_lshrrev_b32 v67, 3, v66")
    a("v_lshlrev_b32 v67, 11, v67")
    a("s_cmp_lg_u32 s16, 1")
    a("s_cbranch_scc1 kx_noparked")
    a("v_and_b32 v4, 0xffff, v63")
    a("v_sub_u32 v4, 0xffff, v4")
    a("v_lshlrev_b32 v4, 10, v4")
    a("v_add_u32 v4, v4, v2")
    a("v_cmp_ne_u32 vcc, v63, v64")
    a("s_and_saveexec_b64 s[22:23], vcc")
    a("s_cbranch_execz kx_parkskip")
    a("buffer_store_dwordx4 v[24:27], v4, s[80:83], 0 offen")
    a.label("kx_parkskip")
    a("s_mov_b64 exec, -1")
    a.label("kx_noparked")
    a("s_mov_b32 s20, %d" % SELROW)
    a("s_cmp_ge_u32 s65, 28")
    a("s_cbranch_scc1 kx_final")
    a("v_lshlrev_b32 v4, 2, v199")
    a("v_add_u32 v68, v67, v4")
    poll(a, "kx_poll4", ["buffer_load_dword v75, v68, s[68:71], s20 offen%s" % SC],
         lambda: a("v_cmp_eq_u32 vcc, -1, v75"))
    a("s_mov_b32 s22, 0x05040100")
    a("s_mov_b32 s23, 0x07060302")
    for m in range(2):
        for i in range(4):
            a("v_perm_b32 v%d, v%d, v%d, s22" % (32 + 8 * m + 2 * i, 204 + 8 * m + i, 200 + 8 * m + i))
            a("v_perm_b32 v%d, v%d, v%d, s23" % (33 + 8 * m + 2 * i, 204 + 8 * m + i, 200 + 8 * m + i))
    for i in range(16):
        a("v_dot2_f32_bf16 v%d, v%d, v75, 0" % (48 + i, 32 + i))
    a("s_nop 2")
    for i in range(8):
        a("v_permlane32_swap_b32 v%d, v%d" % (48 + i, 56 + i))
    a("s_nop 1")
    for i in range(8):
        a("v_add_f32 v%d, v%d, v%d" % (48 + i, 48 + i, 56 + i))
    a("s_nop 1")
    for i in range(4):
        a("v_permlane16_swap_b32 v%d, v%d" % (48 + i, 52 + i))
    a("s_nop 1")
    for i in range(4):
        a("v_add_f32 v%d, v%d, v%d" % (48 + i, 48 + i, 52 + i))
    for r in (8, 4, 2, 1):
        a("s_nop 0")
        for i in range(4):
            a("v_add_f32_dpp v%d, v%d, v%d row_ror:%d row_mask:0xf bank_mask:0xf" % (48 + i, 48 + i, 48 + i, r))
    a("s_lshl_b32 s21, s16, 6")
    a("s_add_u32 s21, s21, 98560")
    a("v_lshrrev_b32 v7, 4, v0")
    a("v_lshlrev_b32 v7, 4, v7")
    a("v_add_u32 v6, s21, v7")
    a("ds_write_b128 v6, v[48:51]")
    a("v_and_b32 v7, 7, v0")
    a("v_lshlrev_b32 v7, 2, v7")
    a("v_add_u32 v7, 98560, v7")
    a("s_waitcnt lgkmcnt(0)")
    a("s_barrier")
    for w in range(4):
        a("ds_read_b32 v%d, v7 offset:%d" % (48 + w, 64 * w))
        a("ds_read_b32 v%d, v7 offset:%d" % (52 + w, 64 * w + 32))
    a("s_waitcnt lgkmcnt(0)")
    a("v_add_f32 v48, v48, v49")
    a("v_add_f32 v50, v50, v51")
    a("v_add_f32 v52, v52, v53")
    a("v_add_f32 v54, v54, v55")
    a("v_add_f32 v48, v48, v50")
    a("v_add_f32 v52, v52, v54")
    bf16r(a, 48, 48)
    bf16r(a, 52, 52)
    a("v_mul_f32 v49, 0xbfb8aa3b, v48")
    a("v_exp_f32 v49, v49")
    a("s_nop 0")
    a("v_add_f32 v49, 1.0, v49")
    a("v_rcp_f32 v49, v49")
    a("s_nop 0")
    a("v_mul_f32 v48, v48, v49")
    bf16r(a, 48, 48)
    a("v_mul_f32 v48, v48, v52")
    bf16r(a, 48, 48)
    a("s_nop 0")
    for j in range(8):
        a("v_readlane_b32 s%d, v48, %d" % (4 + j, j))
    a("v_mov_b32 v50, 0")
    a("v_mov_b32 v51, 0")
    for j in range(8):
        unpack(a, 52, 53, 216 + j)
        a("v_fmac_f32 v50, s%d, v52" % (4 + j))
        a("v_fmac_f32 v51, s%d, v53" % (4 + j))
    a("v_lshlrev_b32 v6, 3, v199")
    a("s_lshl_b32 s20, s66, 11")
    a("s_add_u32 s20, s20, %d" % YP_OFF)
    a("buffer_store_dwordx2 v[50:51], v6, s[68:71], s20 offen%s" % SC)
    stamp(a, 7)
    a("s_endpgm")

    a.label("kx_final")
    a("v_lshrrev_b32 v5, 4, v0")
    a("v_lshlrev_b32 v3, 2, v5")
    a("s_lshl_b32 s19, s66, 4")
    a("v_add_u32 v3, s19, v3")
    a("v_add_u32 v68, v67, v3")

    def hcond():
        a("v_max_u32 v4, v69, v75")
        a("v_cmp_eq_u32 vcc, -1, v4")
    poll(a, "kx_poll5", ["buffer_load_dword v75, v68, s[68:71], s20 offen%s" % SC,
                         "buffer_load_dword v69, v68, s[68:71], s20 offen offset:1024%s" % SC], hcond)
    a("v_and_b32 v52, 0xffff0000, v64")
    a("v_ashrrev_i32 v53, 31, v52")
    a("v_not_b32 v53, v53")
    a("v_and_b32 v53, 0x7fff0000, v53")
    a("v_or_b32 v53, 0x80000000, v53")
    a("v_xor_b32 v52, v52, v53")
    a("v_mul_f32 v53, 0xbfb8aa3b, v52")
    a("v_exp_f32 v53, v53")
    a("s_nop 0")
    a("v_add_f32 v53, 1.0, v53")
    a("v_rcp_f32 v53, v53")
    a("s_nop 0")
    bf16r(a, 44, 53)
    unpack(a, 40, 41, 69)
    unpack(a, 42, 43, 75)
    a("v_lshlrev_b32 v45, 10, v66")
    a("v_add_u32 v45, v45, v3")
    a("v_lshlrev_b32 v1, 11, v0")
    a("s_lshl_b32 s19, s66, 5")
    a("v_add_u32 v1, s19, v1")
    a("v_cmp_gt_u32 vcc, 32, v0")
    a("v_mov_b32 v6, 0x40000000")
    a("v_cndmask_b32 v6, v6, v1, vcc")
    for i in range(4):
        a("s_mov_b32 s%d, %d" % (24 + i, YP_OFF + 131072 * i))
    loads = []
    for i in range(4):
        vo = 1 if i < 3 else 6
        loads.append("buffer_load_dwordx4 v[%d:%d], v%d, s[68:71], s%d offen%s" % (8 + 8 * i, 11 + 8 * i, vo, 24 + i, SC))
        loads.append("buffer_load_dwordx4 v[%d:%d], v%d, s[68:71], s%d offen offset:16%s" % (12 + 8 * i, 15 + 8 * i, vo, 24 + i, SC))

    def ycond():
        a("v_max3_u32 v4, v8, v9, v10")
        for i in range(11, 39, 2):
            a("v_max3_u32 v4, v4, v%d, v%d" % (i, i + 1))
        a("v_max_u32 v4, v4, v39")
        a("v_cmp_eq_u32 vcc, -1, v4")
    poll(a, "kx_poll3", loads, ycond)
    for i in range(4):
        a("v_pk_add_f32 v[%d:%d], v[%d:%d], v[%d:%d]" % (8 + 2 * i, 9 + 2 * i, 8 + 2 * i, 9 + 2 * i, 16 + 2 * i, 17 + 2 * i))
        a("v_pk_add_f32 v[%d:%d], v[%d:%d], v[%d:%d]" % (24 + 2 * i, 25 + 2 * i, 24 + 2 * i, 25 + 2 * i, 32 + 2 * i, 33 + 2 * i))
    for i in range(4):
        a("v_pk_add_f32 v[%d:%d], v[%d:%d], v[%d:%d]" % (8 + 2 * i, 9 + 2 * i, 8 + 2 * i, 9 + 2 * i, 24 + 2 * i, 25 + 2 * i))
    a("s_nop 1")
    for i in range(4):
        a("v_permlane32_swap_b32 v%d, v%d" % (8 + i, 12 + i))
    a("s_nop 1")
    for i in range(4):
        a("v_add_f32 v%d, v%d, v%d" % (8 + i, 8 + i, 12 + i))
    a("s_nop 1")
    for i in range(2):
        a("v_permlane16_swap_b32 v%d, v%d" % (8 + i, 10 + i))
    a("s_nop 1")
    for i in range(2):
        a("v_add_f32 v%d, v%d, v%d" % (8 + i, 8 + i, 10 + i))
    for r in (8, 4, 2, 1):
        a("s_nop 1")
        for i in range(2):
            a("v_add_f32_dpp v%d, v%d, v%d row_ror:%d row_mask:0xf bank_mask:0xf" % (8 + i, 8 + i, 8 + i, r))
    for i in range(2):
        bf16r(a, 8 + i, 8 + i)
        a("v_mul_f32 v%d, v%d, v44" % (8 + i, 8 + i))
        bf16r(a, 8 + i, 8 + i)
        a("v_add_f32 v%d, v%d, v%d" % (8 + i, 8 + i, 42 + i))
        bf16r(a, 8 + i, 8 + i)
        a("v_add_f32 v%d, v%d, v%d" % (8 + i, 8 + i, 40 + i))
    a("v_cvt_pk_bf16_f32 v8, v8, v9")
    a("v_and_b32 v6, 15, v0")
    a("v_cmp_eq_u32 vcc, 0, v6")
    a("s_and_saveexec_b64 s[30:31], vcc")
    a("buffer_store_dword v8, v45, s[80:83], 0 offen")
    a("s_mov_b64 exec, -1")
    if gen.STAMPS:
        a("s_waitcnt vmcnt(0)")
    stamp(a, 7)
    a.label("kx_exit")
    a("s_endpgm")
    return name, 224


def main(out):
    head = open("cdna_kernels/%s.s.ref" % NAME).read().split("\n")
    a = A()
    for line in head:
        if line.startswith(";") and "@launch" not in line:
            a.raw(line)
    kname = "kx_kernel"
    a.raw("; @launch kernel=%s grid=(256,1,1) block=(512,1,1) lds=163840" % kname)
    a.raw('.amdgcn_target "amdgcn-amd-amdhsa--gfx950"')
    name, vg = kx(a, kname)
    if DBGSTAMP:
        kernel_desc(a, name, 256, 102)
    else:
        kernel_desc(a, name, vg, 96)
    open(out, "w").write(a.text())


if __name__ == "__main__":
    args = [x for x in sys.argv[1:] if not x.startswith("--")]
    if "--stamps" in sys.argv:
        gen.STAMPS = True
    for x in sys.argv:
        if x.startswith("--exp="):
            gen.EXP = set(x[6:].split(","))
        if x.startswith("--sleep="):
            SLEEP = int(x[8:])
        if x.startswith("--pfn="):
            PFN = int(x[6:])
        if x.startswith("--nrep="):
            NREP = int(x[7:])
        if x == "--dbg":
            DBGSTAMP = True
        if x == "--noq":
            NTQ = ""
        if x == "--nont":
            NT = ""
    main(args[0] if args else "cdna_kernels/%s.s" % NAME)
```

```python
import sys
import gen
from gen import (A, NAME, kernel_head, kernel_desc, srd, add64, bf16r, unpack, allreduce64, wave_split,
                 stamp, stampc, stamp_init, SLOT, NSLOT, ACC, FR, AP, AQ, KA_WS)

ABT_OFF = 0
PART_OFF = 4 << 20
FLAG0 = 12 << 20
FLAG1 = FLAG0 + 16384
KEYS = FLAG1 + 32768
STAT = 13 << 20
YP_OFF = 15 << 20
SELROW = 16 << 20
WS_SRD_SIZE = 32 << 20
NREP = 4
SC = " sc1"
SPIN_MAX = 1 << 20
SLEEP = 4
NT = ""
NTQ = ""
PFN = 16
OUTF = ""
STATS_LDS = 4 * SLOT
SUMW_LDS = STATS_LDS + 1024
NONCE_LDS = STATS_LDS + 2048


def poll(a, lbl, loads, cond):
    a("s_mov_b32 s31, 0")
    a.label(lbl)
    for l in loads:
        a(l)
    a("s_waitcnt vmcnt(0)")
    cond()
    a("s_add_u32 s31, s31, 1")
    a("s_nop 1")
    a("s_cmp_eq_u64 vcc, 0")
    a("s_cbranch_scc1 %s_done" % lbl)
    a("s_cmp_ge_u32 s31, %d" % SPIN_MAX)
    a("s_cbranch_scc1 %s_done" % lbl)
    a("s_sleep %d" % SLEEP)
    a("s_branch %s" % lbl)
    a.label(lbl + "_done")


DBGSTAMP = False
DBGWG = 0
_dbgn = [0]


def dstamp(a, slot):
    _dbgn[0] += 1
    lbl = "kx_ds%d" % _dbgn[0]
    a("s_cmp_lg_u32 s2, %d" % (255 if slot == 7 else DBGWG))
    a("s_cbranch_scc1 %s" % lbl)
    a("s_cmp_lg_u32 s16, 0")
    a("s_cbranch_scc1 %s" % lbl)
    a("s_memrealtime s[98:99]")
    a("s_waitcnt lgkmcnt(0)")
    a("v_mov_b32 v254, s98")
    a("v_mov_b32 v255, %d" % (4 * (slot + 1)))
    a("s_mov_b64 s[100:101], exec")
    a("s_mov_b64 exec, 1")
    a("buffer_store_dword v254, v255, s[92:95], 0 offen")
    a("s_mov_b64 exec, s[100:101]")
    a.label(lbl)


def kx(a, name):
    global stamp, stamp_init
    gen.STV = 254
    EXP = gen.EXP
    if DBGSTAMP:
        stamp = dstamp
        stamp_init = lambda a, k, lo, hi: srd(a, 92, 54, 55, 256)
    def setup2(sfx):
        a("s_lshl_b32 s31, s16, 6")
        a("v_add_u32 v199, s31, v0")
        for r in range(4):
            a("v_mov_b32 v%d, -1" % (16 + r))
        a("v_lshlrev_b32 v4, 4, v0")
        a("s_and_b32 s21, s16, 1")
        a("s_lshl_b32 s21, s21, 10")
        a("s_cmp_lt_u32 s16, 2")
        a("s_cbranch_scc1 kx_c2a" + sfx)
        a("s_lshl_b32 s20, s64, 11")
        a("s_add_u32 s20, s20, s21")
        a("s_add_u32 s20, s20, %d" % SELROW)
        a("buffer_store_dwordx4 v[16:19], v4, s[68:71], s20 offen%s" % SC)
        a.label("kx_c2a" + sfx)
        a("s_cmp_ge_u32 s65, 28")
        a("s_cbranch_scc1 kx_c2final" + sfx)
        a("s_and_b32 s66, s59, 7")
        a("s_lshl_b32 s26, s65, 3")
        a("s_add_u32 s66, s66, s26")
        a("s_cmp_ge_u32 s16, 2")
        a("s_cbranch_scc1 kx_c2b" + sfx)
        a("s_lshl_b32 s20, s66, 11")
        a("s_add_u32 s20, s20, s21")
        a("s_add_u32 s20, s20, %d" % YP_OFF)
        a("buffer_store_dwordx4 v[16:19], v4, s[68:71], s20 offen%s" % SC)
        a.label("kx_c2b" + sfx)
        a("s_branch kx_c2done" + sfx)
        a.label("kx_c2final" + sfx)
        a("s_sub_u32 s66, s58, 4")
        a("s_lshl_b32 s66, s66, 3")
        a("s_add_u32 s66, s66, s59")
        a("s_sub_u32 s66, s66, 24")
        a("s_lshl_b32 s66, s66, 1")
        a("s_add_u32 s66, s66, s16")
        a.label("kx_c2done" + sfx)

    def ffnloads():
        srd(a, 4, 46, 47, 512 * 3584)
        srd(a, 8, 48, 49, 512 * 3584)
        srd(a, 12, 50, 51, 1792 * 1024)
        a("s_movk_i32 s26, 7168")
        a("v_mul_lo_u32 v5, v199, s26")
        a("s_lshl_b32 s26, s66, 4")
        a("v_add_u32 v5, s26, v5")
        a("v_lshlrev_b32 v4, 2, v199")
        a("s_lshl_b32 s20, s66, 13")
        a("s_add_u32 s21, s20, 4096")
        a("buffer_load_dwordx4 v[200:203], v5, s[4:7], 0 offen")
        a("buffer_load_dwordx4 v[204:207], v5, s[4:7], 0 offen offset:3584")
        a("buffer_load_dwordx4 v[208:211], v5, s[8:11], 0 offen")
        a("buffer_load_dwordx4 v[212:215], v5, s[8:11], 0 offen offset:3584")
        for j in range(4):
            a("buffer_load_dword v%d, v4, s[12:15], s20 offen offset:%d" % (216 + j, 1024 * j))
        for j in range(4):
            a("buffer_load_dword v%d, v4, s[12:15], s21 offen offset:%d" % (220 + j, 1024 * j))

    kernel_head(a, name)
    a("s_cmp_ge_u32 s2, 256")
    a("s_cbranch_scc1 kx_exit")
    a("s_load_dwordx16 s[32:47], s[0:1], 0")
    a("s_load_dwordx8 s[48:55], s[0:1], 64")
    a("s_load_dwordx2 s[56:57], s[0:1], %d" % KA_WS)
    wave_split(a)
    a("s_and_b32 s58, s2, 7")
    a("s_lshr_b32 s59, s2, 3")
    a("s_and_b32 s60, s58, 1")
    a("s_lshr_b32 s61, s58, 1")
    a("s_and_b32 s62, s59, 3")
    a("s_lshr_b32 s63, s59, 2")
    a("s_lshl_b32 s67, s60, 3")
    a("s_add_u32 s63, s63, s67")
    a("s_lshl_b32 s64, s63, 4")
    a("s_lshl_b32 s67, s62, 2")
    a("s_add_u32 s64, s64, s67")
    a("s_add_u32 s64, s64, s61")
    a("s_lshr_b32 s65, s59, 3")
    a("s_lshl_b32 s65, s65, 3")
    a("s_add_u32 s65, s65, s58")
    a("s_and_b32 s88, s61, 1")
    a("s_lshr_b32 s89, s61, 1")
    a("s_lshl_b32 s85, s88, 3")
    a("s_lshl_b32 s67, s60, 2")
    a("s_add_u32 s85, s85, s67")
    a("s_waitcnt lgkmcnt(0)")
    stamp_init(a, 0, 56, 57)
    stamp(a, 0)
    srd(a, 68, 56, 57, WS_SRD_SIZE)
    srd(a, 72, 54, 55, 256)
    a("v_mov_b32 v197, 0")
    a("s_cmp_lg_u32 s2, 128")
    a("s_cbranch_scc1 kx_nononce")
    a("s_cmp_lg_u32 s16, 0")
    a("s_cbranch_scc1 kx_nononce")
    a("s_memrealtime s[18:19]")
    a("s_waitcnt lgkmcnt(0)")
    a("s_or_b32 s84, s18, 1")
    a("v_mov_b32 v194, s84")
    a("s_mov_b64 exec, 1")
    a("buffer_store_dword v194, v197, s[72:75], 0 offen%s" % SC)
    a("s_mov_b64 exec, -1")
    a.label("kx_nononce")
    a("s_cmp_ge_u32 s59, 16")
    a("s_cbranch_scc1 kx_pref")
    a("s_add_u32 s85, s85, s62")
    a("s_lshr_b32 s86, s59, 2")
    a("s_lshl_b32 s87, s89, 2")
    a("s_add_u32 s87, s87, s86")
    a("s_cmp_ge_u32 s16, 4")
    a("s_cbranch_scc1 kx_loader1")
    a("s_mov_b32 s30, 0")
    a("s_mov_b32 s22, 8")

    a.label("kx_cons")
    a("s_lshr_b32 s17, s16, 1")
    a("s_and_b32 s18, s16, 1")
    a("v_and_b32 v1, 15, v0")
    a("v_lshrrev_b32 v2, 4, v0")
    a("v_lshrrev_b32 v3, 1, v1")
    a("v_lshlrev_b32 v4, 7, v1")
    a("s_lshl_b32 s19, s17, 13")
    a("s_lshl_b32 s20, s18, 13")
    a("s_add_u32 s20, s20, 16384")
    for j in range(2):
        a("v_add_u32 v5, %d, v2" % (4 * j))
        a("v_xor_b32 v5, v5, v3")
        a("v_lshlrev_b32 v5, 4, v5")
        a("v_add_u32 v5, v5, v4")
        a("v_add_u32 v%d, s19, v5" % (AP + j))
        a("v_add_u32 v%d, s20, v5" % (AQ + j))
    for r in range(32):
        a("v_mov_b64 v[%d:%d], 0" % (ACC + 2 * r, ACC + 2 * r + 1))
    a("s_mov_b32 s23, %d" % SLOT)
    a("s_mov_b32 s24, %d" % SLOT)
    a("s_mov_b32 s25, 1")
    a("s_mov_b32 s27, %d" % (-(NSLOT - 1) * SLOT))
    a("s_mov_b32 s28, %d" % SLOT)

    def rdlist(j):
        f = FR + 32 * j
        l = []
        for t in range(4):
            l.append("ds_read_b128 v[%d:%d], v%d offset:%d" % (f + 4 * t, f + 4 * t + 3, AP + j, 2048 * t))
            l.append("ds_read_b128 v[%d:%d], v%d offset:%d" % (f + 16 + 4 * t, f + 16 + 4 * t + 3, AQ + j, 2048 * t))
        return l

    book = ["s_mov_b32 s23, s24",
            "s_add_u32 s25, s25, 1",
            "s_cmp_eq_u32 s25, %d" % NSLOT,
            "s_cselect_b32 s26, %d, 0" % NSLOT,
            "s_sub_u32 s25, s25, s26",
            "s_cmp_eq_u32 s25, %d" % (NSLOT - 1),
            "s_cselect_b32 s24, s27, s28",
            "s_sub_u32 s22, s22, 1",
            "s_cmp_lt_u32 s22, 2"]
    a("s_barrier")
    if gen.STAMPS or DBGSTAMP:
        a("s_cmp_lg_u32 s30, 0")
        a("s_cbranch_scc1 kx_st9")
        stamp(a, 8)
        a("s_branch kx_st9d")
        a.label("kx_st9")
        stamp(a, 9)
        a.label("kx_st9d")
    for r in rdlist(0):
        a(r)
    a("v_add_u32 v%d, s23, v%d" % (AP, AP))
    a("v_add_u32 v%d, s23, v%d" % (AQ, AQ))
    a.label("kx_cloop")
    for j in range(2):
        jn = 1 - j
        sd = 23 if j == 0 else 24
        f = FR + 32 * j
        rd = rdlist(jn)
        a("s_waitcnt lgkmcnt(0)")
        k = 0
        for ti in range(4):
            for tj in range(4):
                c = ACC + 4 * (4 * ti + tj)
                a("v_mfma_f32_16x16x32_bf16 v[%d:%d], v[%d:%d], v[%d:%d], v[%d:%d]" % (
                    c, c + 3, f + 4 * ti, f + 4 * ti + 3, f + 16 + 4 * tj, f + 16 + 4 * tj + 3, c, c + 3))
                if k < 8:
                    a(rd[k])
                if k == 8:
                    a("v_add_u32 v%d, s%d, v%d" % (AP + jn, sd, AP + jn))
                if k == 9:
                    a("v_add_u32 v%d, s%d, v%d" % (AQ + jn, sd, AQ + jn))
                if j == 1 and 10 <= k < 15:
                    for b in book[2 * (k - 10):2 * (k - 10) + 2]:
                        a(b)
                k += 1
    a("s_cbranch_scc1 kx_nobar")
    a("s_barrier")
    a.label("kx_nobar")
    a("s_cmp_lg_u32 s22, 0")
    a("s_cbranch_scc1 kx_cloop")
    a("s_waitcnt lgkmcnt(0)")
    a("s_cmp_lg_u32 s30, 0")
    a("s_cbranch_scc1 kx_epi2")

    stamp(a, 1)
    setup2("g")
    a("s_lshl_b32 s19, s17, 8")
    a("s_add_u32 s19, s19, %d" % STATS_LDS)
    a("v_lshlrev_b32 v7, 4, v2")
    a("v_add_u32 v7, s19, v7")
    a("s_lshl_b32 s19, s18, 8")
    a("s_add_u32 s19, s19, %d" % SUMW_LDS)
    a("v_lshlrev_b32 v6, 2, v1")
    a("v_add_u32 v6, s19, v6")
    a("v_mov_b32 v5, %d" % NONCE_LDS)
    a("s_barrier")
    a("ds_read_b32 v16, v5")
    for tj in range(4):
        a("ds_read_b32 v%d, v6 offset:%d" % (20 + 2 * tj, 64 * tj))
    for ti in range(4):
        a("ds_read_b128 v[%d:%d], v7 offset:%d" % (32 + 8 * ti, 35 + 8 * ti, 64 * ti))
        a("ds_read_b128 v[%d:%d], v7 offset:%d" % (36 + 8 * ti, 39 + 8 * ti, 64 * ti + 512))
    a("s_waitcnt lgkmcnt(0)")
    a("v_readfirstlane_b32 s84, v16")
    for ti in range(4):
        for tj in range(4):
            c = ACC + 4 * (4 * ti + tj)
            for h in range(2):
                a("v_pk_fma_f32 v[%d:%d], v[%d:%d], v[%d:%d], v[%d:%d] op_sel_hi:[1,0,1] neg_lo:[1,0,0] neg_hi:[1,0,0]" % (
                    c + 2 * h, c + 2 * h + 1, 32 + 8 * ti + 2 * h, 33 + 8 * ti + 2 * h, 20 + 2 * tj, 21 + 2 * tj, c + 2 * h, c + 2 * h + 1))
                a("v_pk_mul_f32 v[%d:%d], v[%d:%d], v[%d:%d]" % (
                    c + 2 * h, c + 2 * h + 1, c + 2 * h, c + 2 * h + 1, 36 + 8 * ti + 2 * h, 37 + 8 * ti + 2 * h))
    a("s_lshl_b32 s21, s16, 15")
    a("s_lshl_b32 s19, s87, 5")
    a("s_lshl_b32 s20, s85, 1")
    a("s_add_u32 s19, s19, s20")
    a("s_add_u32 s19, s19, s17")
    a("s_lshl_b32 s19, s19, 14")
    a("s_lshl_b32 s20, s18, 13")
    a("s_add_u32 s19, s19, s20")
    a("s_lshl_b32 s29, s87, 4")
    a("s_add_u32 s29, s29, s85")
    a("s_lshl_b32 s29, s29, 7")
    a("s_add_u32 s29, s29, %d" % FLAG0)
    a("s_branch kx_epi")
    a.label("kx_epi2")
    stamp(a, 3)
    a("s_mul_i32 s21, s16, 9216")
    a("s_add_u32 s21, s21, 32768")
    a("s_lshl_b32 s19, s64, 15")
    a("s_lshl_b32 s20, s16, 13")
    a("s_add_u32 s19, s19, s20")
    a("s_add_u32 s19, s19, %d" % PART_OFF)
    a("s_lshl_b32 s29, s64, 7")
    a("s_add_u32 s29, s29, %d" % FLAG1)
    a("s_nop 4")
    a.label("kx_epi")
    a("v_mul_u32_u24 v4, 144, v1")
    a("v_lshlrev_b32 v5, 3, v2")
    a("v_add3_u32 v4, v4, v5, s21")
    a("v_lshrrev_b32 v6, 3, v0")
    a("v_and_b32 v7, 7, v0")
    a("v_lshlrev_b32 v7, 4, v7")
    a("v_mul_u32_u24 v5, 144, v6")
    a("v_add3_u32 v5, v5, v7, s21")
    a("s_add_u32 s20, s19, 4096")
    a("v_lshlrev_b32 v6, 4, v0")
    n = 0
    for tj in range(4):
        for ti in range(4):
            c = ACC + 4 * (4 * ti + tj)
            d = FR + 2 * (n % 8)
            n += 1
            a("v_cvt_pk_bf16_f32 v%d, v%d, v%d" % (d, c, c + 1))
            a("v_cvt_pk_bf16_f32 v%d, v%d, v%d" % (d + 1, c + 2, c + 3))
            a("ds_write_b64 v4, v[%d:%d] offset:%d" % (d, d + 1, tj * 2304 + ti * 32))
    a("s_waitcnt lgkmcnt(0)")
    for i in range(8):
        a("ds_read_b128 v[%d:%d], v5 offset:%d" % (FR + 16 + 4 * i, FR + 19 + 4 * i, i * 1152))
    for i in range(8):
        a("s_waitcnt lgkmcnt(%d)" % (7 - i))
        a("buffer_store_dwordx4 v[%d:%d], v6, s[68:71], s%d offen offset:%d%s" % (FR + 16 + 4 * i, FR + 19 + 4 * i, 19 + (i >> 2), 1024 * (i & 3), SC))
    a("s_lshl_b32 s20, s16, 2")
    a("s_add_u32 s29, s29, s20")
    a("v_mov_b32 v4, 0")
    a("v_mov_b32 v5, s84")
    if gen.STAMPS or DBGSTAMP:
        a("s_cmp_lg_u32 s30, 0")
        a("s_cbranch_scc1 kx_st11")
        stamp(a, 10)
        a("s_branch kx_st11d")
        a.label("kx_st11")
        stamp(a, 11)
        a.label("kx_st11d")
    a("s_cmp_lg_u32 s30, 0")
    a("s_cbranch_scc1 kx_noe1")
    a("s_barrier")
    a.label("kx_noe1")
    a("s_waitcnt vmcnt(0)")
    a("s_mov_b64 exec, 1")
    a("buffer_store_dword v5, v4, s[68:71], s29 offen%s" % SC)
    a("s_mov_b64 exec, -1")
    a("s_cmp_lg_u32 s30, 0")
    a("s_cbranch_scc1 kx_rows")
    stamp(a, 2)

    a.label("kx_cons2")
    a("s_cmp_ge_u32 s65, 28")
    a("s_cbranch_scc1 kx_c3")
    ffnloads()
    a.label("kx_c3")
    a("s_mov_b32 s30, 1")
    a("s_mov_b32 s22, 16")
    a("s_barrier")
    a("s_branch kx_cons")

    a.label("kx_loader1")
    a("s_lshl_b32 s19, s85, 17")
    a("s_add_u32 s22, s32, s19")
    a("s_addc_u32 s23, s33, 0")
    srd(a, 4, 22, 23, 131072)
    a("s_cmp_eq_u32 s89, 0")
    a("s_cselect_b32 s22, s38, s40")
    a("s_cselect_b32 s23, s39, s41")
    a("s_lshl_b32 s19, s86, 17")
    add64(a, 22, 23, "s19")
    srd(a, 8, 22, 23, 131072)
    a("s_sub_u32 s17, s16, 4")
    a("v_lshrrev_b32 v6, 3, v0")
    a("v_lshrrev_b32 v7, 4, v0")
    a("v_and_b32 v16, 7, v0")
    a("s_lshl_b32 s18, s17, 5")
    for j in range(4):
        a("v_add_u32 v18, %d, v7" % (4 * j))
        a("v_and_b32 v18, 7, v18")
        a("v_xor_b32 v18, v18, v16")
        a("v_lshlrev_b32 v18, 4, v18")
        a("v_add3_u32 v17, v6, s18, %d" % (8 * j))
        a("v_lshlrev_b32 v17, 10, v17")
        a("v_add_u32 v17, v17, v18")
        a("v_subrev_u32 v%d, %d, v17" % (8 + j, 1024 * j))
    a("s_lshl_b32 s21, s17, 12")
    a("s_mov_b32 s20, 0")
    a("s_mov_b32 s22, 0")
    a.label("kx_l1loop")
    a("s_mov_b32 m0, s21")
    a("s_add_u32 s19, s21, 16384")
    for j in range(4):
        a("buffer_load_dwordx4 v%d, s[4:7], s20 offen offset:%d%s lds" % (8 + j, 1024 * j, NT))
    a("s_mov_b32 m0, s19")
    a("s_add_u32 s22, s22, 1")
    for j in range(4):
        a("buffer_load_dwordx4 v%d, s[8:11], s20 offen offset:%d%s lds" % (8 + j, 1024 * j, NT))
    a("s_add_u32 s20, s20, 128")
    a("s_add_u32 s21, s21, %d" % SLOT)
    a("s_cmp_eq_u32 s22, %d" % NSLOT)
    a("s_cselect_b32 s19, %d, 0" % (SLOT * NSLOT))
    a("s_sub_u32 s21, s21, s19")
    a("s_cmp_lt_u32 s22, 4")
    a("s_cbranch_scc1 kx_l1loop")
    a("s_waitcnt vmcnt(16)")
    a("s_barrier")
    a("s_cmp_lt_u32 s22, 8")
    a("s_cbranch_scc1 kx_l1loop")
    a("s_lshl_b32 s19, s62, 7")
    a("s_lshl_b32 s24, s86, 7")
    a("s_add_u32 s24, s24, 480")
    a("v_mov_b32 v20, s19")
    a("v_mov_b32 v21, s24")
    a("v_cmp_gt_u32 vcc, 32, v0")
    a("v_add_u32 v22, s18, v0")
    a("v_cndmask_b32 v20, v21, v20, vcc")
    a("v_add_lshl_u32 v20, v20, v22, 3")
    a("s_lshl_b32 s24, s58, 13")
    a("s_add_u32 s24, s24, %d" % STAT)
    a("s_waitcnt vmcnt(8)")
    a("s_barrier")
    a("buffer_load_dword v194, v197, s[72:75], 0 offen%s" % SC)
    a("buffer_load_dwordx2 v[24:25], v20, s[68:71], s24 offen%s" % SC)
    a("s_waitcnt vmcnt(2)")
    a("s_barrier")
    a("v_lshlrev_b32 v22, 2, v22")
    a("v_add_u32 v22, %d, v22" % STATS_LDS)
    a("s_waitcnt vmcnt(0)")

    def stcond():
        a("v_cmp_ne_u32 vcc, v25, v194")
        a("v_cmp_eq_u32 s[26:27], 0, v194")
        a("s_nop 2")
        a("s_or_b64 vcc, vcc, s[26:27]")
    stcond()
    a("s_cmp_eq_u64 vcc, 0")
    a("s_cbranch_scc1 kx_polln_done")
    poll(a, "kx_polln", ["buffer_load_dword v194, v197, s[72:75], 0 offen%s" % SC,
                         "buffer_load_dwordx2 v[24:25], v20, s[68:71], s24 offen%s" % SC], stcond)
    a("v_readfirstlane_b32 s84, v194")
    a("v_lshlrev_b32 v26, 16, v24")
    a("v_rcp_f32 v26, v26")
    a("v_and_b32 v27, 0xffff0000, v24")
    a("v_mov_b32 v195, %d" % NONCE_LDS)
    a("s_mov_b32 exec_hi, 0")
    a("ds_write_b32 v22, v27 offset:%d" % 0)
    a("ds_write_b32 v22, v26 offset:%d" % 512)
    a("s_not_b64 exec, exec")
    a("ds_write_b32 v22, v24 offset:%d" % (1024 - 128))
    a("s_mov_b64 exec, -1")
    a("ds_write_b32 v195, v194")
    a("s_waitcnt lgkmcnt(0)")
    a("s_barrier")
    a("s_branch kx_loader2")

    a.label("kx_pref")
    a("s_sub_u32 s86, s59, 16")
    a("v_lshrrev_b32 v6, 3, v0")
    a("v_and_b32 v7, 7, v0")
    a("v_lshlrev_b32 v8, 12, v6")
    a("v_lshlrev_b32 v6, 10, v6")
    a("v_lshlrev_b32 v9, 7, v7")
    a("v_add_u32 v6, v6, v9")
    a("v_add_u32 v14, v8, v9")
    a("s_cmp_eq_u32 s89, 0")
    a("s_cselect_b32 s24, s38, s40")
    a("s_cselect_b32 s25, s39, s41")
    a("s_cselect_b32 s26, s34, s36")
    a("s_cselect_b32 s27, s35, s37")
    a("s_lshl_b32 s19, s85, 17")
    a("s_add_u32 s22, s32, s19")
    a("s_addc_u32 s23, s33, 0")
    a("s_cmp_lt_u32 s86, 8")
    a("s_cselect_b32 s22, s22, s24")
    a("s_cselect_b32 s23, s23, s25")
    srd(a, 4, 22, 23, 524288)
    a("s_and_b32 s19, s86, 7")
    a("s_lshl_b32 s19, s19, 16")
    a("s_lshl_b32 s20, s16, 13")
    a("s_add_u32 s19, s19, s20")
    a("v_lshlrev_b32 v11, 4, v0")
    a("s_add_u32 s29, s19, 4096")
    for i in range(8):
        a("buffer_load_dwordx4 v[%d:%d], v11, s[4:7], s%d offen offset:%d" % (64 + 4 * i, 67 + 4 * i, 19 if i < 4 else 29, 1024 * (i & 3)))
    a("s_lshl_b32 s19, s60, 22")
    a("s_lshl_b32 s20, s86, 18")
    a("s_add_u32 s19, s19, s20")
    a("s_lshl_b32 s20, s88, 11")
    a("s_add_u32 s19, s19, s20")
    a("s_lshl_b32 s20, s16, 15")
    a("s_add_u32 s19, s19, s20")
    add64(a, 26, 27, "s19")
    srd(a, 8, 26, 27, 7 * 4096 + 2048)
    if 8 < PFN < 16:
        a("v_cmp_gt_u32 vcc, %d, v7" % (PFN - 8))
        a("v_mov_b32 v15, 0x40000000")
        a("v_cndmask_b32 v15, v15, v14, vcc")
    else:
        a("v_mov_b32 v15, v14")
    a("s_lshl_b32 s19, s86, 3")
    a("s_add_u32 s19, s19, s16")
    a("s_mul_i32 s20, s19, 2731")
    a("s_lshr_b32 s20, s20, 16")
    a("s_mul_i32 s21, s20, 24")
    a("s_sub_u32 s21, s19, s21")
    a("s_lshl_b32 s20, s20, 3")
    a("s_add_u32 s20, s20, s58")
    a("s_movk_i32 s19, 3584")
    a("v_mul_lo_u32 v10, v0, s19")
    poll(a, "kx_pollp", ["buffer_load_dword v194, v197, s[72:75], 0 offen%s" % SC], lambda: a("v_cmp_eq_u32 vcc, 0, v194"))
    a("v_readfirstlane_b32 s84, v194")
    for i in range(8):
        for d in range(4):
            unpack(a, 16 + 2 * d, 17 + 2 * d, 64 + 4 * i + d)
        a("v_pk_add_f32 v[24:25], v[16:17], v[18:19]")
        a("v_pk_mul_f32 v[28:29], v[16:17], v[16:17]")
        a("v_pk_add_f32 v[26:27], v[20:21], v[22:23]")
        a("v_pk_fma_f32 v[28:29], v[18:19], v[18:19], v[28:29]")
        a("v_pk_add_f32 v[24:25], v[24:25], v[26:27]")
        a("v_pk_fma_f32 v[28:29], v[20:21], v[20:21], v[28:29]")
        a("v_add_f32 v%d, v24, v25" % (32 + i))
        a("v_pk_fma_f32 v[28:29], v[22:23], v[22:23], v[28:29]")
        a("v_add_f32 v%d, v28, v29" % (40 + i))
    a("s_nop 1")
    for i in range(8):
        a("v_permlane32_swap_b32 v%d, v%d" % (32 + i, 40 + i))
    a("s_nop 1")
    for i in range(8):
        a("v_add_f32 v%d, v%d, v%d" % (32 + i, 32 + i, 40 + i))
    a("s_nop 1")
    for i in range(4):
        a("v_permlane16_swap_b32 v%d, v%d" % (32 + i, 36 + i))
    a("s_nop 1")
    for i in range(4):
        a("v_add_f32 v%d, v%d, v%d" % (32 + i, 32 + i, 36 + i))
    for r in (8, 4, 2, 1):
        a("s_nop 0")
        for i in range(4):
            a("v_add_f32_dpp v%d, v%d, v%d row_ror:%d row_mask:0xf bank_mask:0xf" % (32 + i, 32 + i, 32 + i, r))
    a("v_and_b32 v16, 3, v0")
    a("v_cmp_eq_u32 s[22:23], 1, v16")
    a("v_cmp_eq_u32 s[24:25], 2, v16")
    a("v_cmp_eq_u32 s[26:27], 3, v16")
    a("v_lshrrev_b32 v17, 4, v0")
    a("v_cndmask_b32 v32, v32, v33, s[22:23]")
    a("v_cndmask_b32 v32, v32, v34, s[24:25]")
    a("v_cndmask_b32 v32, v32, v35, s[26:27]")
    a("v_mov_b32 v33, v32")
    a("v_lshl_add_u32 v16, v17, 2, v16")
    a("s_nop 0")
    a("v_permlane32_swap_b32 v32, v33")
    a("s_lshl_b32 s22, s86, 6")
    a("s_lshl_b32 s23, s16, 3")
    a("s_add_u32 s22, s22, s23")
    a("v_add_lshl_u32 v16, v16, s22, 3")
    a("v_mul_f32 v28, 0x3b000000, v32")
    a("v_mul_f32 v29, 0x3b000000, v33")
    a("v_fma_f32 v29, -v28, v28, v29")
    a("v_max_f32 v29, 0, v29")
    bf16r(a, 30, 28)
    bf16r(a, 29, 29)
    a("v_add_f32 v29, 0x3727c5ac, v29")
    bf16r(a, 29, 29)
    a("v_sqrt_f32 v29, v29")
    a("s_lshl_b32 s22, s58, 13")
    a("v_cvt_pk_bf16_f32 v29, v29, v29")
    a("v_and_b32 v29, 0xffff, v29")
    a("v_or_b32 v30, v30, v29")
    a("s_add_u32 s22, s22, %d" % STAT)
    a("s_cmp_lt_u32 s86, 8")
    a("s_cbranch_scc1 kx_pf_x")
    a("v_mov_b32 v30, v32")
    a.label("kx_pf_x")
    a("v_mov_b32 v31, s84")
    a("s_mov_b64 exec, 0x000f000f")
    a("buffer_store_dwordx2 v[30:31], v16, s[68:71], s22 offen%s" % SC)
    a("s_mov_b64 exec, -1")
    stamp(a, 8)
    a("s_cmp_ge_u32 s20, 28")
    a("s_cbranch_scc1 kx_pf_done")
    a("s_cmp_ge_u32 s21, 16")
    a("s_cbranch_scc1 kx_pf_wd")
    a("s_cmp_lt_u32 s21, 8")
    a("s_cselect_b32 s22, s46, s48")
    a("s_cselect_b32 s23, s47, s49")
    srd(a, 12, 22, 23, 512 * 3584)
    a("s_and_b32 s21, s21, 7")
    a("s_mul_i32 s19, s21, %d" % (64 * 3584))
    a("s_lshl_b32 s20, s20, 7")
    a("s_add_u32 s19, s19, s20")
    a("buffer_load_dword v61, v10, s[12:15], s19 offen" + NT)
    a("s_branch kx_pf_done")
    a.label("kx_pf_wd")
    srd(a, 12, 50, 51, 1792 * 1024)
    a("s_sub_u32 s21, s21, 16")
    a("s_lshl_b32 s19, s20, 16")
    a("s_lshl_b32 s21, s21, 13")
    a("s_add_u32 s19, s19, s21")
    a("buffer_load_dword v61, v6, s[12:15], s19 offen" + NT)
    a.label("kx_pf_done")
    if PFN > 0:
        a("buffer_load_dword v62, v14, s[8:11], 0 offen" + NT)
    if PFN > 8:
        a("buffer_load_dword v63, v15, s[8:11], 0 offen offset:1024" + NT)
    a("s_waitcnt vmcnt(0)")
    stamp(a, 1)
    a("s_cmp_ge_u32 s16, 4")
    a("s_cbranch_scc1 kx_loader2")
    setup2("p")
    a("s_barrier")
    a("s_branch kx_cons2")

    a.label("kx_loader2")
    a("s_lshl_b32 s19, s89, 2")
    a("s_add_u32 s19, s19, s62")
    a("s_lshl_b32 s24, s19, 11")
    a("s_lshl_b32 s19, s19, 19")
    a("s_lshl_b32 s20, s88, 18")
    a("s_add_u32 s19, s19, s20")
    a("s_add_u32 s22, s56, s19")
    a("s_addc_u32 s23, s57, 0")
    srd(a, 4, 22, 23, 16 * 16384)
    a("s_cmp_eq_u32 s89, 0")
    a("s_cselect_b32 s22, s34, s36")
    a("s_cselect_b32 s23, s35, s37")
    a("s_lshl_b32 s19, s63, 19")
    a("s_lshl_b32 s21, s88, 11")
    a("s_add_u32 s19, s19, s21")
    add64(a, 22, 23, "s19")
    srd(a, 8, 22, 23, 127 * 4096 + 2048)
    a("s_lshl_b32 s20, s88, 10")
    a("s_add_u32 s24, s24, s20")
    a("s_add_u32 s24, s24, %d" % FLAG0)
    a("s_sub_u32 s17, s16, 4")
    a("v_lshrrev_b32 v1, 3, v0")
    a("v_lshrrev_b32 v2, 4, v0")
    a("v_and_b32 v3, 7, v0")
    a("s_lshl_b32 s18, s17, 5")
    a("v_add_u32 v1, s18, v1")
    a("v_lshlrev_b32 v6, 7, v1")
    for j in range(4):
        a("v_add_u32 v4, %d, v1" % (8 * j))
        a("v_lshlrev_b32 v4, 12, v4")
        a("v_add_u32 v5, %d, v2" % (4 * j))
        a("v_and_b32 v5, 7, v5")
        a("v_xor_b32 v5, v5, v3")
        a("v_lshlrev_b32 v5, 4, v5")
        a("v_add_u32 v4, v4, v5")
        a("v_subrev_u32 v%d, %d, v4" % (8 + j, 1024 * j))
        a("v_add_u32 v%d, v6, v5" % (12 + j))
    a("s_lshl_b32 s21, s17, 12")
    a("s_barrier")
    a("s_mov_b32 s20, 0")
    a("s_add_u32 s19, s21, 16384")
    a.label("kx_l2q")
    a("s_mov_b32 m0, s19")
    a("s_add_u32 s19, s19, %d" % SLOT)
    for j in range(4):
        a("buffer_load_dwordx4 v%d, s[8:11], s20 offen offset:%d%s lds" % (8 + j, 1024 * j, NTQ))
    a("s_add_u32 s20, s20, 128")
    a("s_cmp_lt_u32 s20, 512")
    a("s_cbranch_scc1 kx_l2q")
    a("s_cmp_lg_u32 s16, 4")
    a("s_cbranch_scc1 kx_poll0_done")
    a("v_lshlrev_b32 v20, 7, v3")

    def f0cond():
        a("v_xor_b32 v24, s84, v24")
        a("v_xor_b32 v25, s84, v25")
        a("v_xor_b32 v26, s84, v26")
        a("v_xor_b32 v27, s84, v27")
        a("v_or3_b32 v24, v24, v25, v26")
        a("v_or_b32 v24, v24, v27")
        a("v_cmp_ne_u32 vcc, 0, v24")
    a("s_mov_b64 exec, 0xff")
    poll(a, "kx_poll0", ["buffer_load_dwordx4 v[24:27], v20, s[68:71], s24 offen%s" % SC], f0cond)
    a("s_mov_b64 exec, -1")
    stamp(a, 2)
    a("s_barrier")
    a("s_mov_b32 s26, 0")
    a("s_mov_b32 s19, s21")
    a.label("kx_l2p")
    a("s_mov_b32 m0, s19")
    a("s_add_u32 s19, s19, %d" % SLOT)
    for j in range(4):
        a("buffer_load_dwordx4 v%d, s[4:7], s26 offen offset:%d%s lds" % (12 + j, 1024 * j, SC))
    a("s_add_u32 s26, s26, 16384")
    a("s_cmp_lt_u32 s26, 65536")
    a("s_cbranch_scc1 kx_l2p")
    a("s_waitcnt vmcnt(8)")
    a("s_barrier")
    a("s_add_u32 s21, s21, %d" % (4 * SLOT))
    a("s_mov_b32 s25, 4")
    a("s_mov_b32 s22, 4")
    a.label("kx_l2loop")
    a("s_mov_b32 m0, s21")
    a("s_add_u32 s19, s21, 16384")
    for j in range(4):
        a("buffer_load_dwordx4 v%d, s[4:7], s26 offen offset:%d%s lds" % (12 + j, 1024 * j, SC))
    a("s_mov_b32 m0, s19")
    a("s_add_u32 s25, s25, 1")
    for j in range(4):
        a("buffer_load_dwordx4 v%d, s[8:11], s20 offen offset:%d%s lds" % (8 + j, 1024 * j, NTQ))
    a("s_add_u32 s20, s20, 128")
    a("s_add_u32 s26, s26, 16384")
    a("s_add_u32 s21, s21, %d" % SLOT)
    a("s_cmp_eq_u32 s25, %d" % NSLOT)
    a("s_cselect_b32 s19, %d, 0" % (SLOT * NSLOT))
    a("s_cselect_b32 s27, %d, 0" % NSLOT)
    a("s_sub_u32 s21, s21, s19")
    a("s_sub_u32 s25, s25, s27")
    a("s_add_u32 s22, s22, 1")
    a("s_cmp_lg_u32 s22, 5")
    a("s_cbranch_scc1 kx_l2w16")
    a("s_waitcnt vmcnt(12)")
    a.label("kx_l2w16")
    a("s_waitcnt vmcnt(16)")
    a("s_barrier")
    a("s_cmp_lt_u32 s22, 16")
    a("s_cbranch_scc1 kx_l2loop")
    a("s_waitcnt vmcnt(8)")
    a("s_barrier")
    a("s_waitcnt vmcnt(0)")
    a("s_barrier")
    stamp(a, 3)

    a.label("kx_rows")
    stamp(a, 12)
    srd(a, 72, 32, 33, 2 << 20)
    srd(a, 76, 44, 45, 1024)
    srd(a, 80, 52, 53, 2 << 20)
    a("s_lshl_b32 s18, s64, 3")
    a("s_add_u32 s18, s18, s16")
    a("v_lshlrev_b32 v2, 4, v0")
    a("s_lshl_b32 s19, s18, 10")
    a("buffer_load_dwordx4 v[24:27], v2, s[72:75], s19 offen")
    a("buffer_load_dwordx4 v[28:31], v2, s[76:79], 0 offen")
    a("v_lshrrev_b32 v5, 4, v0")
    a("v_lshlrev_b32 v5, 17, v5")
    a("v_and_b32 v6, 8, v0")
    a("v_lshlrev_b32 v6, 11, v6")
    a("v_and_b32 v7, 7, v0")
    a("v_lshlrev_b32 v7, 4, v7")
    a("v_add3_u32 v5, v5, v6, v7")
    a("s_lshl_b32 s21, s63, 19")
    a("s_and_b32 s22, s18, 64")
    a("s_lshl_b32 s22, s22, 7")
    a("s_add_u32 s21, s21, s22")
    a("s_and_b32 s22, s18, 63")
    a("s_lshl_b32 s22, s22, 7")
    a("s_add_u32 s21, s21, s22")
    a("s_add_u32 s21, s21, %d" % PART_OFF)
    a("v_and_b32 v3, 15, v0")
    a("v_lshlrev_b32 v3, 7, v3")
    a("s_lshl_b32 s20, s63, 11")
    a("s_add_u32 s20, s20, %d" % FLAG1)
    a("s_lshl_b32 s22, s16, 2")
    a("s_add_u32 s22, s22, 98304")
    a("v_mov_b32 v73, s22")
    a("v_mov_b32 v74, 98304")
    a("s_waitcnt vmcnt(0)")
    for i in range(4):
        unpack(a, 64 + 2 * i, 65 + 2 * i, 28 + i)
        unpack(a, 76 + 2 * i, 77 + 2 * i, 24 + i)
    a("v_pk_add_f32 v[48:49], v[64:65], v[66:67]")
    a("v_pk_add_f32 v[50:51], v[68:69], v[70:71]")
    a("v_pk_add_f32 v[48:49], v[48:49], v[50:51]")
    a("v_add_f32 v72, v48, v49")
    allreduce64(a, "add_f32", 72, 49)
    a("s_cmp_lg_u32 s16, 0")
    a("s_cbranch_scc1 kx_poll1_done")

    def f1cond():
        a("v_xor_b32 v8, s84, v8")
        a("v_xor_b32 v9, s84, v9")
        a("v_xor_b32 v10, s84, v10")
        a("v_xor_b32 v11, s84, v11")
        a("v_or3_b32 v8, v8, v9, v10")
        a("v_or_b32 v8, v8, v11")
        a("v_cmp_ne_u32 vcc, 0, v8")
    a("s_mov_b64 exec, 0xffff")
    poll(a, "kx_poll1", ["buffer_load_dwordx4 v[8:11], v3, s[68:71], s20 offen%s" % SC], f1cond)
    a("s_mov_b64 exec, -1")
    a("s_barrier")
    stamp(a, 4)
    for ks in range(4):
        a("s_add_u32 s20, s21, %d" % (ks * 32768))
        a("buffer_load_dwordx4 v[%d:%d], v5, s[68:71], s20 offen%s" % (8 + 4 * ks, 11 + 4 * ks, SC))
    a("s_waitcnt vmcnt(0)")
    stamp(a, 13)
    for i in range(4):
        unpack(a, 48, 49, 8 + i)
        unpack(a, 50, 51, 12 + i)
        unpack(a, 52, 53, 16 + i)
        unpack(a, 54, 55, 20 + i)
        a("v_pk_add_f32 v[48:49], v[48:49], v[50:51]")
        a("v_pk_add_f32 v[52:53], v[52:53], v[54:55]")
        a("v_pk_add_f32 v[48:49], v[48:49], v[%d:%d]" % (76 + 2 * i, 77 + 2 * i))
        a("v_pk_add_f32 v[48:49], v[48:49], v[52:53] neg_lo:[0,1] neg_hi:[0,1]")
        a("v_cvt_pk_bf16_f32 v%d, v48, v49" % (32 + i))
        unpack(a, 40 + 2 * i, 41 + 2 * i, 32 + i)
    a("v_pk_add_f32 v[48:49], v[40:41], v[42:43]")
    a("v_pk_mul_f32 v[50:51], v[40:41], v[40:41]")
    a("v_pk_mul_f32 v[52:53], v[40:41], v[64:65]")
    a("v_pk_add_f32 v[54:55], v[44:45], v[46:47]")
    for i in range(1, 4):
        a("v_pk_fma_f32 v[50:51], v[%d:%d], v[%d:%d], v[50:51]" % (40 + 2 * i, 41 + 2 * i, 40 + 2 * i, 41 + 2 * i))
        a("v_pk_fma_f32 v[52:53], v[%d:%d], v[%d:%d], v[52:53]" % (40 + 2 * i, 41 + 2 * i, 64 + 2 * i, 65 + 2 * i))
    a("v_pk_add_f32 v[48:49], v[48:49], v[54:55]")
    a("v_add_f32 v50, v50, v51")
    a("v_add_f32 v52, v52, v53")
    a("v_add_f32 v48, v48, v49")
    for r in (8, 4, 2, 1):
        for v in (50, 52, 48):
            a("v_add_f32_dpp v%d, v%d, v%d row_ror:%d row_mask:0xf bank_mask:0xf" % (v, v, v, r))
    for op in ("v_permlane16_swap_b32", "v_permlane32_swap_b32"):
        for v in (50, 52, 48):
            a("v_mov_b32 v%d, v%d" % (v + 1, v))
        a("s_nop 0")
        for v in (50, 52, 48):
            a("%s v%d, v%d" % (op, v, v + 1))
        a("s_nop 0")
        for v in (50, 52, 48):
            a("v_add_f32 v%d, v%d, v%d" % (v, v, v + 1))
    a("v_mul_f32 v58, 0x3b000000, v48")
    a("v_mul_f32 v50, 0x3b000000, v50")
    a("v_fma_f32 v50, -v58, v58, v50")
    a("v_max_f32 v50, 0, v50")
    bf16r(a, 60, 58)
    bf16r(a, 50, 50)
    a("v_add_f32 v50, 0x3727c5ac, v50")
    bf16r(a, 50, 50)
    a("v_sqrt_f32 v50, v50")
    a("v_fma_f32 v52, -v60, v72, v52")
    bf16r(a, 50, 50)
    a("v_rcp_f32 v58, v50")
    a("s_sub_u32 s20, 0xffff, s18")
    a("v_mul_f32 v48, v52, v58")
    a("v_cvt_pk_bf16_f32 v48, v48, v48")
    a("v_and_b32 v48, 0xffff0000, v48")
    a("v_ashrrev_i32 v49, 31, v48")
    a("v_and_b32 v49, 0x7fff0000, v49")
    a("v_or_b32 v49, 0x80000000, v49")
    a("v_xor_b32 v48, v48, v49")
    a("v_or_b32 v48, s20, v48")
    a("ds_write_b32 v73, v48")
    a("v_mov_b32 v49, s84")
    a("v_mul_f32 v62, v60, v58")
    a("v_sub_f32 v62, 0, v62")
    a("s_waitcnt lgkmcnt(0)")
    a("s_barrier")
    a("ds_read_b128 v[8:11], v74")
    a("ds_read_b128 v[12:15], v74 offset:16")
    a("s_lshl_b32 s20, s64, 11")
    a("s_add_u32 s20, s20, %d" % SELROW)
    a("s_lshr_b32 s21, s64, 2")
    a("s_lshl_b32 s21, s21, 7")
    a("s_and_b32 s22, s64, 3")
    a("s_lshl_b32 s22, s22, 3")
    a("s_add_u32 s21, s21, s22")
    a("s_add_u32 s21, s21, %d" % KEYS)
    a("v_lshlrev_b32 v5, 13, v0")
    a("s_waitcnt lgkmcnt(0)")
    a("v_max3_u32 v8, v8, v9, v10")
    a("v_max3_u32 v8, v8, v11, v12")
    a("v_max3_u32 v8, v8, v13, v14")
    a("v_max_u32 v63, v8, v15")
    a("v_cmp_eq_u32 vcc, v63, v48")
    a("s_nop 2")
    a("s_and_b64 s[22:23], vcc, %d" % ((1 << NREP) - 1))
    a("s_mov_b64 exec, s[22:23]")
    a("s_cbranch_execz kx_nokey")
    a("buffer_store_dwordx2 v[48:49], v5, s[68:71], s21 offen%s" % SC)
    a.label("kx_nokey")
    a("s_mov_b64 exec, -1")
    stamp(a, 14)
    for i in range(4):
        a("v_pk_fma_f32 v[50:51], v[%d:%d], v[58:59], v[62:63] op_sel_hi:[1,0,0]" % (40 + 2 * i, 41 + 2 * i))
        a("v_cvt_pk_bf16_f32 v%d, v50, v51" % (36 + i))
        unpack(a, 50, 51, 36 + i)
        a("v_pk_add_f32 v[50:51], v[%d:%d], v[50:51]" % (40 + 2 * i, 41 + 2 * i))
        a("v_cvt_pk_bf16_f32 v%d, v50, v51" % (24 + i))
    a("s_cmp_eq_u64 s[22:23], 0")
    a("s_cbranch_scc0 kx_best")
    a("buffer_store_dwordx4 v[24:27], v2, s[80:83], s19 offen" + OUTF)
    a("s_branch kx_notbest")
    a.label("kx_best")
    a("buffer_store_dwordx4 v[36:39], v2, s[68:71], s20 offen%s" % SC)
    a("buffer_store_dwordx4 v[32:35], v2, s[68:71], s20 offen offset:1024%s" % SC)
    a("ds_write_b128 v2, v[24:27] offset:32768")
    a("s_waitcnt lgkmcnt(0)")
    a.label("kx_notbest")
    a("s_cmp_ge_u32 s16, 4")
    a("s_cbranch_scc1 kx_exit")

    a("s_cmp_lt_u32 s65, 28")
    a("s_cbranch_scc1 kx_keys")
    a("s_cmp_ge_u32 s16, 2")
    a("s_cbranch_scc1 kx_exit")
    a.label("kx_keys")
    a("s_and_b32 s20, s64, %d" % (NREP - 1))
    a("s_lshl_b32 s20, s20, 13")
    a("s_add_u32 s20, s20, %d" % KEYS)
    a("v_lshlrev_b32 v3, 7, v0")
    a("v_mov_b32 v5, 98816")
    a("s_cmp_lg_u32 s16, 0")
    a("s_cbranch_scc1 kx_keywait")

    def keycond():
        a("v_xor_b32 v9, s84, v9")
        a("v_xor_b32 v11, s84, v11")
        a("v_xor_b32 v13, s84, v13")
        a("v_xor_b32 v15, s84, v15")
        a("v_or3_b32 v4, v9, v11, v13")
        a("v_or_b32 v4, v4, v15")
        a("v_cmp_ne_u32 vcc, 0, v4")
    poll(a, "kx_poll2", ["buffer_load_dwordx4 v[8:11], v3, s[68:71], s20 offen%s" % SC,
                         "buffer_load_dwordx4 v[12:15], v3, s[68:71], s20 offen offset:16%s" % SC], keycond)
    a("v_max_u32 v64, v8, v10")
    a("v_max3_u32 v64, v64, v12, v14")
    allreduce64(a, "max_u32", 64, 65)
    a("ds_write_b32 v5, v64")
    a("s_waitcnt lgkmcnt(0)")
    a.label("kx_keywait")
    a("s_barrier")
    a("ds_read_b32 v64, v5")
    a("ds_read_b128 v[24:27], v2 offset:32768")
    a("s_waitcnt lgkmcnt(0)")
    stamp(a, 5)
    a("v_and_b32 v66, 0xffff, v64")
    a("v_sub_u32 v66, 0xffff, v66")
    a("v_lshrrev_b32 v67, 3, v66")
    a("v_lshlrev_b32 v67, 11, v67")
    a("s_cmp_lg_u32 s16, 1")
    a("s_cbranch_scc1 kx_noparked")
    a("v_and_b32 v4, 0xffff, v63")
    a("v_sub_u32 v4, 0xffff, v4")
    a("v_lshlrev_b32 v4, 10, v4")
    a("v_add_u32 v4, v4, v2")
    a("v_cmp_ne_u32 vcc, v63, v64")
    a("s_and_saveexec_b64 s[22:23], vcc")
    a("s_cbranch_execz kx_parkskip")
    a("buffer_store_dwordx4 v[24:27], v4, s[80:83], 0 offen" + OUTF)
    a.label("kx_parkskip")
    a("s_mov_b64 exec, -1")
    a.label("kx_noparked")
    a("s_mov_b32 s20, %d" % SELROW)
    a("s_cmp_ge_u32 s65, 28")
    a("s_cbranch_scc1 kx_final")
    a("v_lshlrev_b32 v4, 2, v199")
    a("v_add_u32 v68, v67, v4")
    poll(a, "kx_poll4", ["buffer_load_dword v75, v68, s[68:71], s20 offen%s" % SC],
         lambda: a("v_cmp_eq_u32 vcc, -1, v75"))
    a("s_mov_b32 s22, 0x05040100")
    a("s_mov_b32 s23, 0x07060302")
    for m in range(2):
        for i in range(4):
            a("v_perm_b32 v%d, v%d, v%d, s22" % (32 + 8 * m + 2 * i, 204 + 8 * m + i, 200 + 8 * m + i))
            a("v_perm_b32 v%d, v%d, v%d, s23" % (33 + 8 * m + 2 * i, 204 + 8 * m + i, 200 + 8 * m + i))
    for i in range(16):
        a("v_dot2_f32_bf16 v%d, v%d, v75, 0" % (48 + i, 32 + i))
    a("s_nop 2")
    for i in range(8):
        a("v_permlane32_swap_b32 v%d, v%d" % (48 + i, 56 + i))
    a("s_nop 1")
    for i in range(8):
        a("v_add_f32 v%d, v%d, v%d" % (48 + i, 48 + i, 56 + i))
    a("s_nop 1")
    for i in range(4):
        a("v_permlane16_swap_b32 v%d, v%d" % (48 + i, 52 + i))
    a("s_nop 1")
    for i in range(4):
        a("v_add_f32 v%d, v%d, v%d" % (48 + i, 48 + i, 52 + i))
    for r in (8, 4, 2, 1):
        a("s_nop 0")
        for i in range(4):
            a("v_add_f32_dpp v%d, v%d, v%d row_ror:%d row_mask:0xf bank_mask:0xf" % (48 + i, 48 + i, 48 + i, r))
    a("s_lshl_b32 s21, s16, 6")
    a("s_add_u32 s21, s21, 98560")
    a("v_lshrrev_b32 v7, 4, v0")
    a("v_lshlrev_b32 v7, 4, v7")
    a("v_add_u32 v6, s21, v7")
    a("ds_write_b128 v6, v[48:51]")
    a("v_and_b32 v7, 7, v0")
    a("v_lshlrev_b32 v7, 2, v7")
    a("v_add_u32 v7, 98560, v7")
    a("s_waitcnt lgkmcnt(0)")
    a("s_barrier")
    for w in range(4):
        a("ds_read_b32 v%d, v7 offset:%d" % (48 + w, 64 * w))
        a("ds_read_b32 v%d, v7 offset:%d" % (52 + w, 64 * w + 32))
    a("s_waitcnt lgkmcnt(0)")
    a("v_add_f32 v48, v48, v49")
    a("v_add_f32 v50, v50, v51")
    a("v_add_f32 v52, v52, v53")
    a("v_add_f32 v54, v54, v55")
    a("v_add_f32 v48, v48, v50")
    a("v_add_f32 v52, v52, v54")
    bf16r(a, 48, 48)
    bf16r(a, 52, 52)
    a("v_mul_f32 v49, 0xbfb8aa3b, v48")
    a("v_exp_f32 v49, v49")
    a("s_nop 0")
    a("v_add_f32 v49, 1.0, v49")
    a("v_rcp_f32 v49, v49")
    a("s_nop 0")
    a("v_mul_f32 v48, v48, v49")
    bf16r(a, 48, 48)
    a("v_mul_f32 v48, v48, v52")
    bf16r(a, 48, 48)
    a("s_nop 0")
    for j in range(8):
        a("v_readlane_b32 s%d, v48, %d" % (4 + j, j))
    a("v_mov_b32 v50, 0")
    a("v_mov_b32 v51, 0")
    for j in range(8):
        unpack(a, 52, 53, 216 + j)
        a("v_fmac_f32 v50, s%d, v52" % (4 + j))
        a("v_fmac_f32 v51, s%d, v53" % (4 + j))
    a("v_lshlrev_b32 v6, 3, v199")
    a("s_lshl_b32 s20, s66, 11")
    a("s_add_u32 s20, s20, %d" % YP_OFF)
    a("buffer_store_dwordx2 v[50:51], v6, s[68:71], s20 offen%s" % SC)
    stamp(a, 7)
    a("s_endpgm")

    a.label("kx_final")
    a("v_lshrrev_b32 v5, 4, v0")
    a("v_lshlrev_b32 v3, 2, v5")
    a("s_lshl_b32 s19, s66, 4")
    a("v_add_u32 v3, s19, v3")
    a("v_add_u32 v68, v67, v3")

    def hcond():
        a("v_max_u32 v4, v69, v75")
        a("v_cmp_eq_u32 vcc, -1, v4")
    poll(a, "kx_poll5", ["buffer_load_dword v75, v68, s[68:71], s20 offen%s" % SC,
                         "buffer_load_dword v69, v68, s[68:71], s20 offen offset:1024%s" % SC], hcond)
    a("v_and_b32 v52, 0xffff0000, v64")
    a("v_ashrrev_i32 v53, 31, v52")
    a("v_not_b32 v53, v53")
    a("v_and_b32 v53, 0x7fff0000, v53")
    a("v_or_b32 v53, 0x80000000, v53")
    a("v_xor_b32 v52, v52, v53")
    a("v_mul_f32 v53, 0xbfb8aa3b, v52")
    a("v_exp_f32 v53, v53")
    a("s_nop 0")
    a("v_add_f32 v53, 1.0, v53")
    a("v_rcp_f32 v53, v53")
    a("s_nop 0")
    bf16r(a, 44, 53)
    unpack(a, 40, 41, 69)
    unpack(a, 42, 43, 75)
    a("v_lshlrev_b32 v45, 10, v66")
    a("v_add_u32 v45, v45, v3")
    a("v_lshlrev_b32 v1, 11, v0")
    a("s_lshl_b32 s19, s66, 5")
    a("v_add_u32 v1, s19, v1")
    a("v_cmp_gt_u32 vcc, 32, v0")
    a("v_mov_b32 v6, 0x40000000")
    a("v_cndmask_b32 v6, v6, v1, vcc")
    for i in range(4):
        a("s_mov_b32 s%d, %d" % (24 + i, YP_OFF + 131072 * i))
    loads = []
    for i in range(4):
        vo = 1 if i < 3 else 6
        loads.append("buffer_load_dwordx4 v[%d:%d], v%d, s[68:71], s%d offen%s" % (8 + 8 * i, 11 + 8 * i, vo, 24 + i, SC))
        loads.append("buffer_load_dwordx4 v[%d:%d], v%d, s[68:71], s%d offen offset:16%s" % (12 + 8 * i, 15 + 8 * i, vo, 24 + i, SC))

    def ycond():
        a("v_max3_u32 v4, v8, v9, v10")
        for i in range(11, 39, 2):
            a("v_max3_u32 v4, v4, v%d, v%d" % (i, i + 1))
        a("v_max_u32 v4, v4, v39")
        a("v_cmp_eq_u32 vcc, -1, v4")
    poll(a, "kx_poll3", loads, ycond)
    for i in range(4):
        a("v_pk_add_f32 v[%d:%d], v[%d:%d], v[%d:%d]" % (8 + 2 * i, 9 + 2 * i, 8 + 2 * i, 9 + 2 * i, 16 + 2 * i, 17 + 2 * i))
        a("v_pk_add_f32 v[%d:%d], v[%d:%d], v[%d:%d]" % (24 + 2 * i, 25 + 2 * i, 24 + 2 * i, 25 + 2 * i, 32 + 2 * i, 33 + 2 * i))
    for i in range(4):
        a("v_pk_add_f32 v[%d:%d], v[%d:%d], v[%d:%d]" % (8 + 2 * i, 9 + 2 * i, 8 + 2 * i, 9 + 2 * i, 24 + 2 * i, 25 + 2 * i))
    a("s_nop 1")
    for i in range(4):
        a("v_permlane32_swap_b32 v%d, v%d" % (8 + i, 12 + i))
    a("s_nop 1")
    for i in range(4):
        a("v_add_f32 v%d, v%d, v%d" % (8 + i, 8 + i, 12 + i))
    a("s_nop 1")
    for i in range(2):
        a("v_permlane16_swap_b32 v%d, v%d" % (8 + i, 10 + i))
    a("s_nop 1")
    for i in range(2):
        a("v_add_f32 v%d, v%d, v%d" % (8 + i, 8 + i, 10 + i))
    for r in (8, 4, 2, 1):
        a("s_nop 1")
        for i in range(2):
            a("v_add_f32_dpp v%d, v%d, v%d row_ror:%d row_mask:0xf bank_mask:0xf" % (8 + i, 8 + i, 8 + i, r))
    for i in range(2):
        bf16r(a, 8 + i, 8 + i)
        a("v_mul_f32 v%d, v%d, v44" % (8 + i, 8 + i))
        bf16r(a, 8 + i, 8 + i)
        a("v_add_f32 v%d, v%d, v%d" % (8 + i, 8 + i, 42 + i))
        bf16r(a, 8 + i, 8 + i)
        a("v_add_f32 v%d, v%d, v%d" % (8 + i, 8 + i, 40 + i))
    a("v_cvt_pk_bf16_f32 v8, v8, v9")
    a("v_and_b32 v6, 15, v0")
    a("v_cmp_eq_u32 vcc, 0, v6")
    a("s_and_saveexec_b64 s[30:31], vcc")
    a("buffer_store_dword v8, v45, s[80:83], 0 offen" + OUTF)
    a("s_mov_b64 exec, -1")
    if gen.STAMPS:
        a("s_waitcnt vmcnt(0)")
    stamp(a, 7)
    a.label("kx_exit")
    a("s_endpgm")
    return name, 224


def main(out):
    head = open("cdna_kernels/%s.s.ref" % NAME).read().split("\n")
    a = A()
    for line in head:
        if line.startswith(";") and "@launch" not in line:
            a.raw(line)
    kname = "kx_kernel"
    a.raw("; @launch kernel=%s grid=(256,1,1) block=(512,1,1) lds=163840" % kname)
    a.raw('.amdgcn_target "amdgcn-amd-amdhsa--gfx950"')
    name, vg = kx(a, kname)
    if DBGSTAMP:
        kernel_desc(a, name, 256, 102)
    else:
        kernel_desc(a, name, vg, 96)
    open(out, "w").write(a.text())


if __name__ == "__main__":
    args = [x for x in sys.argv[1:] if not x.startswith("--")]
    if "--stamps" in sys.argv:
        gen.STAMPS = True
    for x in sys.argv:
        if x.startswith("--exp="):
            gen.EXP = set(x[6:].split(","))
        if x.startswith("--sleep="):
            SLEEP = int(x[8:])
        if x.startswith("--pfn="):
            PFN = int(x[6:])
        if x.startswith("--nrep="):
            NREP = int(x[7:])
        if x == "--dbg":
            DBGSTAMP = True
        if x.startswith("--outf="):
            OUTF = " " + x[7:].replace(",", " ")
        if x == "--noq":
            NTQ = ""
        if x == "--nont":
            NT = ""
    main(args[0] if args else "cdna_kernels/%s.s" % NAME)
```

```python
import sys
import gen
from gen import (A, NAME, kernel_head, kernel_desc, srd, add64, bf16r, unpack, allreduce64, wave_split,
                 stamp, stampc, stamp_init, SLOT, NSLOT, ACC, FR, AP, AQ, KA_WS)

ABT_OFF = 0
PART_OFF = 4 << 20
FLAG0 = 12 << 20
FLAG1 = FLAG0 + 16384
KEYS = FLAG1 + 32768
STAT = 13 << 20
YP_OFF = 15 << 20
SELROW = 16 << 20
WS_SRD_SIZE = 32 << 20
NREP = 4
SC = " sc1"
SPIN_MAX = 1 << 20
SLEEP = 4
NT = ""
NTQ = ""
PFN = 16
OUTF = ""
STATS_LDS = 4 * SLOT
SUMW_LDS = STATS_LDS + 1024
NONCE_LDS = STATS_LDS + 2048


def poll(a, lbl, loads, cond):
    a("s_mov_b32 s31, 0")
    a.label(lbl)
    for l in loads:
        a(l)
    a("s_waitcnt vmcnt(0)")
    cond()
    a("s_add_u32 s31, s31, 1")
    a("s_nop 1")
    a("s_cmp_eq_u64 vcc, 0")
    a("s_cbranch_scc1 %s_done" % lbl)
    a("s_cmp_ge_u32 s31, %d" % SPIN_MAX)
    a("s_cbranch_scc1 %s_done" % lbl)
    a("s_sleep %d" % SLEEP)
    a("s_branch %s" % lbl)
    a.label(lbl + "_done")


DBGSTAMP = False
DBGWG = 0
_dbgn = [0]


def dstamp(a, slot):
    _dbgn[0] += 1
    lbl = "kx_ds%d" % _dbgn[0]
    a("s_cmp_lg_u32 s2, %d" % (255 if slot == 7 else DBGWG))
    a("s_cbranch_scc1 %s" % lbl)
    a("s_cmp_lg_u32 s16, 0")
    a("s_cbranch_scc1 %s" % lbl)
    a("s_memrealtime s[98:99]")
    a("s_waitcnt lgkmcnt(0)")
    a("v_mov_b32 v254, s98")
    a("v_mov_b32 v255, %d" % (4 * (slot + 1)))
    a("s_mov_b64 s[100:101], exec")
    a("s_mov_b64 exec, 1")
    a("buffer_store_dword v254, v255, s[92:95], 0 offen")
    a("s_mov_b64 exec, s[100:101]")
    a.label(lbl)


def kx(a, name):
    global stamp, stamp_init
    gen.STV = 254
    EXP = gen.EXP
    if DBGSTAMP:
        stamp = dstamp
        stamp_init = lambda a, k, lo, hi: srd(a, 92, 54, 55, 256)
    def setup2(sfx):
        a("s_lshl_b32 s31, s16, 6")
        a("v_add_u32 v199, s31, v0")
        for r in range(4):
            a("v_mov_b32 v%d, -1" % (16 + r))
        a("v_lshlrev_b32 v4, 4, v0")
        a("s_and_b32 s21, s16, 1")
        a("s_lshl_b32 s21, s21, 10")
        a("s_cmp_lt_u32 s16, 2")
        a("s_cbranch_scc1 kx_c2a" + sfx)
        a("s_lshl_b32 s20, s64, 11")
        a("s_add_u32 s20, s20, s21")
        a("s_add_u32 s20, s20, %d" % SELROW)
        a("buffer_store_dwordx4 v[16:19], v4, s[68:71], s20 offen%s" % SC)
        a.label("kx_c2a" + sfx)
        a("s_cmp_ge_u32 s65, 28")
        a("s_cbranch_scc1 kx_c2final" + sfx)
        a("s_and_b32 s66, s59, 7")
        a("s_lshl_b32 s26, s65, 3")
        a("s_add_u32 s66, s66, s26")
        a("s_cmp_ge_u32 s16, 2")
        a("s_cbranch_scc1 kx_c2b" + sfx)
        a("s_lshl_b32 s20, s66, 11")
        a("s_add_u32 s20, s20, s21")
        a("s_add_u32 s20, s20, %d" % YP_OFF)
        a("buffer_store_dwordx4 v[16:19], v4, s[68:71], s20 offen%s" % SC)
        a.label("kx_c2b" + sfx)
        a("s_branch kx_c2done" + sfx)
        a.label("kx_c2final" + sfx)
        a("s_sub_u32 s66, s58, 4")
        a("s_lshl_b32 s66, s66, 3")
        a("s_add_u32 s66, s66, s59")
        a("s_sub_u32 s66, s66, 24")
        a("s_lshl_b32 s66, s66, 1")
        a("s_add_u32 s66, s66, s16")
        a.label("kx_c2done" + sfx)

    def ffnloads():
        srd(a, 4, 46, 47, 512 * 3584)
        srd(a, 8, 48, 49, 512 * 3584)
        srd(a, 12, 50, 51, 1792 * 1024)
        a("s_movk_i32 s26, 7168")
        a("v_mul_lo_u32 v5, v199, s26")
        a("s_lshl_b32 s26, s66, 4")
        a("v_add_u32 v5, s26, v5")
        a("v_lshlrev_b32 v4, 2, v199")
        a("s_lshl_b32 s20, s66, 13")
        a("s_add_u32 s21, s20, 4096")
        a("buffer_load_dwordx4 v[200:203], v5, s[4:7], 0 offen")
        a("buffer_load_dwordx4 v[204:207], v5, s[4:7], 0 offen offset:3584")
        a("buffer_load_dwordx4 v[208:211], v5, s[8:11], 0 offen")
        a("buffer_load_dwordx4 v[212:215], v5, s[8:11], 0 offen offset:3584")
        for j in range(4):
            a("buffer_load_dword v%d, v4, s[12:15], s20 offen offset:%d" % (216 + j, 1024 * j))
        for j in range(4):
            a("buffer_load_dword v%d, v4, s[12:15], s21 offen offset:%d" % (220 + j, 1024 * j))

    kernel_head(a, name)
    a("s_cmp_ge_u32 s2, 256")
    a("s_cbranch_scc1 kx_exit")
    a("s_load_dwordx16 s[32:47], s[0:1], 0")
    a("s_load_dwordx8 s[48:55], s[0:1], 64")
    a("s_load_dwordx2 s[56:57], s[0:1], %d" % KA_WS)
    wave_split(a)
    a("s_and_b32 s58, s2, 7")
    a("s_lshr_b32 s59, s2, 3")
    a("s_and_b32 s60, s58, 1")
    a("s_lshr_b32 s61, s58, 1")
    a("s_and_b32 s62, s59, 3")
    a("s_lshr_b32 s63, s59, 2")
    a("s_lshl_b32 s67, s60, 3")
    a("s_add_u32 s63, s63, s67")
    a("s_lshl_b32 s64, s63, 4")
    a("s_lshl_b32 s67, s62, 2")
    a("s_add_u32 s64, s64, s67")
    a("s_add_u32 s64, s64, s61")
    a("s_lshr_b32 s65, s59, 3")
    a("s_lshl_b32 s65, s65, 3")
    a("s_add_u32 s65, s65, s58")
    a("s_and_b32 s88, s61, 1")
    a("s_lshr_b32 s89, s61, 1")
    a("s_lshl_b32 s85, s88, 3")
    a("s_lshl_b32 s67, s60, 2")
    a("s_add_u32 s85, s85, s67")
    a("s_waitcnt lgkmcnt(0)")
    stamp_init(a, 0, 56, 57)
    stamp(a, 0)
    srd(a, 68, 56, 57, WS_SRD_SIZE)
    srd(a, 72, 54, 55, 256)
    a("v_mov_b32 v197, 0")
    a("s_cmp_lg_u32 s2, 128")
    a("s_cbranch_scc1 kx_nononce")
    a("s_cmp_lg_u32 s16, 0")
    a("s_cbranch_scc1 kx_nononce")
    a("s_memrealtime s[18:19]")
    a("s_waitcnt lgkmcnt(0)")
    a("s_or_b32 s84, s18, 1")
    a("v_mov_b32 v194, s84")
    a("s_mov_b64 exec, 1")
    a("buffer_store_dword v194, v197, s[72:75], 0 offen%s" % SC)
    a("s_mov_b64 exec, -1")
    a.label("kx_nononce")
    a("s_cmp_ge_u32 s59, 16")
    a("s_cbranch_scc1 kx_pref")
    a("s_add_u32 s85, s85, s62")
    a("s_lshr_b32 s86, s59, 2")
    a("s_lshl_b32 s87, s89, 2")
    a("s_add_u32 s87, s87, s86")
    a("s_cmp_ge_u32 s16, 4")
    a("s_cbranch_scc1 kx_loader1")
    a("s_mov_b32 s30, 0")
    a("s_mov_b32 s22, 8")

    a.label("kx_cons")
    a("s_lshr_b32 s17, s16, 1")
    a("s_and_b32 s18, s16, 1")
    a("v_and_b32 v1, 15, v0")
    a("v_lshrrev_b32 v2, 4, v0")
    a("v_lshrrev_b32 v3, 1, v1")
    a("v_lshlrev_b32 v4, 7, v1")
    a("s_lshl_b32 s19, s17, 13")
    a("s_lshl_b32 s20, s18, 13")
    a("s_add_u32 s20, s20, 16384")
    for j in range(2):
        a("v_add_u32 v5, %d, v2" % (4 * j))
        a("v_xor_b32 v5, v5, v3")
        a("v_lshlrev_b32 v5, 4, v5")
        a("v_add_u32 v5, v5, v4")
        a("v_add_u32 v%d, s19, v5" % (AP + j))
        a("v_add_u32 v%d, s20, v5" % (AQ + j))
    for r in range(32):
        a("v_mov_b64 v[%d:%d], 0" % (ACC + 2 * r, ACC + 2 * r + 1))
    a("s_mov_b32 s23, %d" % SLOT)
    a("s_mov_b32 s24, %d" % SLOT)
    a("s_mov_b32 s25, 1")
    a("s_mov_b32 s27, %d" % (-(NSLOT - 1) * SLOT))
    a("s_mov_b32 s28, %d" % SLOT)

    def rdlist(j):
        f = FR + 32 * j
        l = []
        for t in range(4):
            l.append("ds_read_b128 v[%d:%d], v%d offset:%d" % (f + 4 * t, f + 4 * t + 3, AP + j, 2048 * t))
            l.append("ds_read_b128 v[%d:%d], v%d offset:%d" % (f + 16 + 4 * t, f + 16 + 4 * t + 3, AQ + j, 2048 * t))
        return l

    book = ["s_mov_b32 s23, s24",
            "s_add_u32 s25, s25, 1",
            "s_cmp_eq_u32 s25, %d" % NSLOT,
            "s_cselect_b32 s26, %d, 0" % NSLOT,
            "s_sub_u32 s25, s25, s26",
            "s_cmp_eq_u32 s25, %d" % (NSLOT - 1),
            "s_cselect_b32 s24, s27, s28",
            "s_sub_u32 s22, s22, 1",
            "s_cmp_lt_u32 s22, 2"]
    a("s_barrier")
    if gen.STAMPS or DBGSTAMP:
        a("s_cmp_lg_u32 s30, 0")
        a("s_cbranch_scc1 kx_st9")
        stamp(a, 8)
        a("s_branch kx_st9d")
        a.label("kx_st9")
        stamp(a, 9)
        a.label("kx_st9d")
    for r in rdlist(0):
        a(r)
    a("v_add_u32 v%d, s23, v%d" % (AP, AP))
    a("v_add_u32 v%d, s23, v%d" % (AQ, AQ))
    a.label("kx_cloop")
    for j in range(2):
        jn = 1 - j
        sd = 23 if j == 0 else 24
        f = FR + 32 * j
        rd = rdlist(jn)
        a("s_waitcnt lgkmcnt(0)")
        k = 0
        for ti in range(4):
            for tj in range(4):
                c = ACC + 4 * (4 * ti + tj)
                a("v_mfma_f32_16x16x32_bf16 v[%d:%d], v[%d:%d], v[%d:%d], v[%d:%d]" % (
                    c, c + 3, f + 4 * ti, f + 4 * ti + 3, f + 16 + 4 * tj, f + 16 + 4 * tj + 3, c, c + 3))
                if k < 8:
                    a(rd[k])
                if k == 8:
                    a("v_add_u32 v%d, s%d, v%d" % (AP + jn, sd, AP + jn))
                if k == 9:
                    a("v_add_u32 v%d, s%d, v%d" % (AQ + jn, sd, AQ + jn))
                if j == 1 and 10 <= k < 15:
                    for b in book[2 * (k - 10):2 * (k - 10) + 2]:
                        a(b)
                k += 1
    a("s_cbranch_scc1 kx_nobar")
    a("s_barrier")
    a.label("kx_nobar")
    a("s_cmp_lg_u32 s22, 0")
    a("s_cbranch_scc1 kx_cloop")
    a("s_waitcnt lgkmcnt(0)")
    a("s_cmp_lg_u32 s30, 0")
    a("s_cbranch_scc1 kx_epi2")

    stamp(a, 1)
    setup2("g")
    a("s_lshl_b32 s19, s17, 8")
    a("s_add_u32 s19, s19, %d" % STATS_LDS)
    a("v_lshlrev_b32 v7, 4, v2")
    a("v_add_u32 v7, s19, v7")
    a("s_lshl_b32 s19, s18, 8")
    a("s_add_u32 s19, s19, %d" % SUMW_LDS)
    a("v_lshlrev_b32 v6, 2, v1")
    a("v_add_u32 v6, s19, v6")
    a("v_mov_b32 v5, %d" % NONCE_LDS)
    a("s_barrier")
    a("ds_read_b32 v16, v5")
    for tj in range(4):
        a("ds_read_b32 v%d, v6 offset:%d" % (20 + 2 * tj, 64 * tj))
    for ti in range(4):
        a("ds_read_b128 v[%d:%d], v7 offset:%d" % (32 + 8 * ti, 35 + 8 * ti, 64 * ti))
        a("ds_read_b128 v[%d:%d], v7 offset:%d" % (36 + 8 * ti, 39 + 8 * ti, 64 * ti + 512))
    a("s_waitcnt lgkmcnt(0)")
    a("v_readfirstlane_b32 s84, v16")
    for ti in range(4):
        for tj in range(4):
            c = ACC + 4 * (4 * ti + tj)
            for h in range(2):
                a("v_pk_fma_f32 v[%d:%d], v[%d:%d], v[%d:%d], v[%d:%d] op_sel_hi:[1,0,1] neg_lo:[1,0,0] neg_hi:[1,0,0]" % (
                    c + 2 * h, c + 2 * h + 1, 32 + 8 * ti + 2 * h, 33 + 8 * ti + 2 * h, 20 + 2 * tj, 21 + 2 * tj, c + 2 * h, c + 2 * h + 1))
                a("v_pk_mul_f32 v[%d:%d], v[%d:%d], v[%d:%d]" % (
                    c + 2 * h, c + 2 * h + 1, c + 2 * h, c + 2 * h + 1, 36 + 8 * ti + 2 * h, 37 + 8 * ti + 2 * h))
    a("s_lshl_b32 s21, s16, 15")
    a("s_lshl_b32 s19, s87, 5")
    a("s_lshl_b32 s20, s85, 1")
    a("s_add_u32 s19, s19, s20")
    a("s_add_u32 s19, s19, s17")
    a("s_lshl_b32 s19, s19, 14")
    a("s_lshl_b32 s20, s18, 13")
    a("s_add_u32 s19, s19, s20")
    a("s_lshl_b32 s29, s87, 4")
    a("s_add_u32 s29, s29, s85")
    a("s_lshl_b32 s29, s29, 7")
    a("s_add_u32 s29, s29, %d" % FLAG0)
    a("s_branch kx_epi")
    a.label("kx_epi2")
    stamp(a, 3)
    a("s_mul_i32 s21, s16, 9216")
    a("s_add_u32 s21, s21, 32768")
    a("s_lshl_b32 s19, s64, 15")
    a("s_lshl_b32 s20, s16, 13")
    a("s_add_u32 s19, s19, s20")
    a("s_add_u32 s19, s19, %d" % PART_OFF)
    a("s_lshl_b32 s29, s64, 7")
    a("s_add_u32 s29, s29, %d" % FLAG1)
    a("s_nop 4")
    a.label("kx_epi")
    a("v_mul_u32_u24 v4, 144, v1")
    a("v_lshlrev_b32 v5, 3, v2")
    a("v_add3_u32 v4, v4, v5, s21")
    a("v_lshrrev_b32 v6, 3, v0")
    a("v_and_b32 v7, 7, v0")
    a("v_lshlrev_b32 v7, 4, v7")
    a("v_mul_u32_u24 v5, 144, v6")
    a("v_add3_u32 v5, v5, v7, s21")
    a("s_add_u32 s20, s19, 4096")
    a("v_lshlrev_b32 v6, 4, v0")
    n = 0
    for tj in range(4):
        for ti in range(4):
            c = ACC + 4 * (4 * ti + tj)
            d = FR + 2 * (n % 8)
            n += 1
            a("v_cvt_pk_bf16_f32 v%d, v%d, v%d" % (d, c, c + 1))
            a("v_cvt_pk_bf16_f32 v%d, v%d, v%d" % (d + 1, c + 2, c + 3))
            a("ds_write_b64 v4, v[%d:%d] offset:%d" % (d, d + 1, tj * 2304 + ti * 32))
    a("s_waitcnt lgkmcnt(0)")
    for i in range(8):
        a("ds_read_b128 v[%d:%d], v5 offset:%d" % (FR + 16 + 4 * i, FR + 19 + 4 * i, i * 1152))
    for i in range(8):
        a("s_waitcnt lgkmcnt(%d)" % (7 - i))
        a("buffer_store_dwordx4 v[%d:%d], v6, s[68:71], s%d offen offset:%d%s" % (FR + 16 + 4 * i, FR + 19 + 4 * i, 19 + (i >> 2), 1024 * (i & 3), SC))
    a("s_lshl_b32 s20, s16, 2")
    a("s_add_u32 s29, s29, s20")
    a("v_mov_b32 v4, 0")
    a("v_mov_b32 v5, s84")
    if gen.STAMPS or DBGSTAMP:
        a("s_cmp_lg_u32 s30, 0")
        a("s_cbranch_scc1 kx_st11")
        stamp(a, 10)
        a("s_branch kx_st11d")
        a.label("kx_st11")
        stamp(a, 11)
        a.label("kx_st11d")
    a("s_cmp_lg_u32 s30, 0")
    a("s_cbranch_scc1 kx_noe1")
    a("s_barrier")
    a.label("kx_noe1")
    a("s_waitcnt vmcnt(0)")
    a("s_mov_b64 exec, 1")
    a("buffer_store_dword v5, v4, s[68:71], s29 offen%s" % SC)
    a("s_mov_b64 exec, -1")
    a("s_cmp_lg_u32 s30, 0")
    a("s_cbranch_scc1 kx_rows")
    stamp(a, 2)

    a.label("kx_cons2")
    a("s_cmp_ge_u32 s65, 28")
    a("s_cbranch_scc1 kx_c3")
    ffnloads()
    a.label("kx_c3")
    a("s_mov_b32 s30, 1")
    a("s_mov_b32 s22, 16")
    a("s_barrier")
    a("s_branch kx_cons")

    a.label("kx_loader1")
    a("s_lshl_b32 s19, s85, 17")
    a("s_add_u32 s22, s32, s19")
    a("s_addc_u32 s23, s33, 0")
    srd(a, 4, 22, 23, 131072)
    a("s_cmp_eq_u32 s89, 0")
    a("s_cselect_b32 s22, s38, s40")
    a("s_cselect_b32 s23, s39, s41")
    a("s_lshl_b32 s19, s86, 17")
    add64(a, 22, 23, "s19")
    srd(a, 8, 22, 23, 131072)
    a("s_sub_u32 s17, s16, 4")
    a("v_lshrrev_b32 v6, 3, v0")
    a("v_lshrrev_b32 v7, 4, v0")
    a("v_and_b32 v16, 7, v0")
    a("s_lshl_b32 s18, s17, 5")
    for j in range(4):
        a("v_add_u32 v18, %d, v7" % (4 * j))
        a("v_and_b32 v18, 7, v18")
        a("v_xor_b32 v18, v18, v16")
        a("v_lshlrev_b32 v18, 4, v18")
        a("v_add3_u32 v17, v6, s18, %d" % (8 * j))
        a("v_lshlrev_b32 v17, 10, v17")
        a("v_add_u32 v17, v17, v18")
        a("v_subrev_u32 v%d, %d, v17" % (8 + j, 1024 * j))
    a("s_lshl_b32 s21, s17, 12")
    a("s_mov_b32 s20, 0")
    a("s_mov_b32 s22, 0")
    a.label("kx_l1loop")
    a("s_mov_b32 m0, s21")
    a("s_add_u32 s19, s21, 16384")
    for j in range(4):
        a("buffer_load_dwordx4 v%d, s[4:7], s20 offen offset:%d%s lds" % (8 + j, 1024 * j, NT))
    a("s_mov_b32 m0, s19")
    a("s_add_u32 s22, s22, 1")
    for j in range(4):
        a("buffer_load_dwordx4 v%d, s[8:11], s20 offen offset:%d%s lds" % (8 + j, 1024 * j, NT))
    a("s_add_u32 s20, s20, 128")
    a("s_add_u32 s21, s21, %d" % SLOT)
    a("s_cmp_eq_u32 s22, %d" % NSLOT)
    a("s_cselect_b32 s19, %d, 0" % (SLOT * NSLOT))
    a("s_sub_u32 s21, s21, s19")
    a("s_cmp_lt_u32 s22, 4")
    a("s_cbranch_scc1 kx_l1loop")
    a("s_waitcnt vmcnt(16)")
    a("s_barrier")
    a("s_cmp_lt_u32 s22, 8")
    a("s_cbranch_scc1 kx_l1loop")
    a("s_lshl_b32 s19, s62, 7")
    a("s_lshl_b32 s24, s86, 7")
    a("s_add_u32 s24, s24, 480")
    a("v_mov_b32 v20, s19")
    a("v_mov_b32 v21, s24")
    a("v_cmp_gt_u32 vcc, 32, v0")
    a("v_add_u32 v22, s18, v0")
    a("v_cndmask_b32 v20, v21, v20, vcc")
    a("v_add_lshl_u32 v20, v20, v22, 3")
    a("s_lshl_b32 s24, s58, 13")
    a("s_add_u32 s24, s24, %d" % STAT)
    a("s_waitcnt vmcnt(8)")
    a("s_barrier")
    a("buffer_load_dword v194, v197, s[72:75], 0 offen%s" % SC)
    a("buffer_load_dwordx2 v[24:25], v20, s[68:71], s24 offen%s" % SC)
    a("s_waitcnt vmcnt(2)")
    a("s_barrier")
    a("v_lshlrev_b32 v22, 2, v22")
    a("v_add_u32 v22, %d, v22" % STATS_LDS)
    a("s_waitcnt vmcnt(0)")

    def stcond():
        a("v_cmp_ne_u32 vcc, v25, v194")
        a("v_cmp_eq_u32 s[26:27], 0, v194")
        a("s_nop 2")
        a("s_or_b64 vcc, vcc, s[26:27]")
    stcond()
    a("s_cmp_eq_u64 vcc, 0")
    a("s_cbranch_scc1 kx_polln_done")
    poll(a, "kx_polln", ["buffer_load_dword v194, v197, s[72:75], 0 offen%s" % SC,
                         "buffer_load_dwordx2 v[24:25], v20, s[68:71], s24 offen%s" % SC], stcond)
    a("v_readfirstlane_b32 s84, v194")
    a("v_lshlrev_b32 v26, 16, v24")
    a("v_rcp_f32 v26, v26")
    a("v_and_b32 v27, 0xffff0000, v24")
    a("v_mov_b32 v195, %d" % NONCE_LDS)
    a("s_mov_b32 exec_hi, 0")
    a("ds_write_b32 v22, v27 offset:%d" % 0)
    a("ds_write_b32 v22, v26 offset:%d" % 512)
    a("s_not_b64 exec, exec")
    a("ds_write_b32 v22, v24 offset:%d" % (1024 - 128))
    a("s_mov_b64 exec, -1")
    a("ds_write_b32 v195, v194")
    a("s_waitcnt lgkmcnt(0)")
    a("s_barrier")
    a("s_branch kx_loader2")

    a.label("kx_pref")
    a("s_sub_u32 s86, s59, 16")
    if "codepf" in EXP:
        a("s_cmp_lg_u32 s86, 0")
        a("s_cbranch_scc1 kx_nocode")
        a("s_cmp_ge_u32 s16, (kx_end - %s + 8191) / 8192" % name)
        a("s_cbranch_scc1 kx_nocode")
        a("s_getpc_b64 s[22:23]")
        a.label("kx_pc")
        a("s_sub_u32 s22, s22, kx_pc - %s" % name)
        a("s_subb_u32 s23, s23, 0")
        a("v_lshlrev_b32 v11, 7, v0")
        a("s_lshl_b32 s19, s16, 13")
        a("v_add_u32 v11, s19, v11")
        a("v_min_u32 v11, kx_end - %s - 4, v11" % name)
        a("global_load_dword v59, v11, s[22:23]")
        a.label("kx_nocode")
    a("v_lshrrev_b32 v6, 3, v0")
    a("v_and_b32 v7, 7, v0")
    a("v_lshlrev_b32 v8, 12, v6")
    a("v_lshlrev_b32 v6, 10, v6")
    a("v_lshlrev_b32 v9, 7, v7")
    a("v_add_u32 v6, v6, v9")
    a("v_add_u32 v14, v8, v9")
    a("s_cmp_eq_u32 s89, 0")
    a("s_cselect_b32 s24, s38, s40")
    a("s_cselect_b32 s25, s39, s41")
    a("s_cselect_b32 s26, s34, s36")
    a("s_cselect_b32 s27, s35, s37")
    a("s_lshl_b32 s19, s85, 17")
    a("s_add_u32 s22, s32, s19")
    a("s_addc_u32 s23, s33, 0")
    a("s_cmp_lt_u32 s86, 8")
    a("s_cselect_b32 s22, s22, s24")
    a("s_cselect_b32 s23, s23, s25")
    srd(a, 4, 22, 23, 524288)
    a("s_and_b32 s19, s86, 7")
    a("s_lshl_b32 s19, s19, 16")
    a("s_lshl_b32 s20, s16, 13")
    a("s_add_u32 s19, s19, s20")
    a("v_lshlrev_b32 v11, 4, v0")
    a("s_add_u32 s29, s19, 4096")
    for i in range(8):
        a("buffer_load_dwordx4 v[%d:%d], v11, s[4:7], s%d offen offset:%d" % (64 + 4 * i, 67 + 4 * i, 19 if i < 4 else 29, 1024 * (i & 3)))
    a("s_lshl_b32 s19, s60, 22")
    a("s_lshl_b32 s20, s86, 18")
    a("s_add_u32 s19, s19, s20")
    a("s_lshl_b32 s20, s88, 11")
    a("s_add_u32 s19, s19, s20")
    a("s_lshl_b32 s20, s16, 15")
    a("s_add_u32 s19, s19, s20")
    add64(a, 26, 27, "s19")
    srd(a, 8, 26, 27, 7 * 4096 + 2048)
    if 8 < PFN < 16:
        a("v_cmp_gt_u32 vcc, %d, v7" % (PFN - 8))
        a("v_mov_b32 v15, 0x40000000")
        a("v_cndmask_b32 v15, v15, v14, vcc")
    else:
        a("v_mov_b32 v15, v14")
    a("s_lshl_b32 s19, s86, 3")
    a("s_add_u32 s19, s19, s16")
    a("s_mul_i32 s20, s19, 2731")
    a("s_lshr_b32 s20, s20, 16")
    a("s_mul_i32 s21, s20, 24")
    a("s_sub_u32 s21, s19, s21")
    a("s_lshl_b32 s20, s20, 3")
    a("s_add_u32 s20, s20, s58")
    a("s_movk_i32 s19, 3584")
    a("v_mul_lo_u32 v10, v0, s19")
    poll(a, "kx_pollp", ["buffer_load_dword v194, v197, s[72:75], 0 offen%s" % SC], lambda: a("v_cmp_eq_u32 vcc, 0, v194"))
    a("v_readfirstlane_b32 s84, v194")
    for i in range(8):
        for d in range(4):
            unpack(a, 16 + 2 * d, 17 + 2 * d, 64 + 4 * i + d)
        a("v_pk_add_f32 v[24:25], v[16:17], v[18:19]")
        a("v_pk_mul_f32 v[28:29], v[16:17], v[16:17]")
        a("v_pk_add_f32 v[26:27], v[20:21], v[22:23]")
        a("v_pk_fma_f32 v[28:29], v[18:19], v[18:19], v[28:29]")
        a("v_pk_add_f32 v[24:25], v[24:25], v[26:27]")
        a("v_pk_fma_f32 v[28:29], v[20:21], v[20:21], v[28:29]")
        a("v_add_f32 v%d, v24, v25" % (32 + i))
        a("v_pk_fma_f32 v[28:29], v[22:23], v[22:23], v[28:29]")
        a("v_add_f32 v%d, v28, v29" % (40 + i))
    a("s_nop 1")
    for i in range(8):
        a("v_permlane32_swap_b32 v%d, v%d" % (32 + i, 40 + i))
    a("s_nop 1")
    for i in range(8):
        a("v_add_f32 v%d, v%d, v%d" % (32 + i, 32 + i, 40 + i))
    a("s_nop 1")
    for i in range(4):
        a("v_permlane16_swap_b32 v%d, v%d" % (32 + i, 36 + i))
    a("s_nop 1")
    for i in range(4):
        a("v_add_f32 v%d, v%d, v%d" % (32 + i, 32 + i, 36 + i))
    for r in (8, 4, 2, 1):
        a("s_nop 0")
        for i in range(4):
            a("v_add_f32_dpp v%d, v%d, v%d row_ror:%d row_mask:0xf bank_mask:0xf" % (32 + i, 32 + i, 32 + i, r))
    a("v_and_b32 v16, 3, v0")
    a("v_cmp_eq_u32 s[22:23], 1, v16")
    a("v_cmp_eq_u32 s[24:25], 2, v16")
    a("v_cmp_eq_u32 s[26:27], 3, v16")
    a("v_lshrrev_b32 v17, 4, v0")
    a("v_cndmask_b32 v32, v32, v33, s[22:23]")
    a("v_cndmask_b32 v32, v32, v34, s[24:25]")
    a("v_cndmask_b32 v32, v32, v35, s[26:27]")
    a("v_mov_b32 v33, v32")
    a("v_lshl_add_u32 v16, v17, 2, v16")
    a("s_nop 0")
    a("v_permlane32_swap_b32 v32, v33")
    a("s_lshl_b32 s22, s86, 6")
    a("s_lshl_b32 s23, s16, 3")
    a("s_add_u32 s22, s22, s23")
    a("v_add_lshl_u32 v16, v16, s22, 3")
    a("v_mul_f32 v28, 0x3b000000, v32")
    a("v_mul_f32 v29, 0x3b000000, v33")
    a("v_fma_f32 v29, -v28, v28, v29")
    a("v_max_f32 v29, 0, v29")
    bf16r(a, 30, 28)
    bf16r(a, 29, 29)
    a("v_add_f32 v29, 0x3727c5ac, v29")
    bf16r(a, 29, 29)
    a("v_sqrt_f32 v29, v29")
    a("s_lshl_b32 s22, s58, 13")
    a("v_cvt_pk_bf16_f32 v29, v29, v29")
    a("v_and_b32 v29, 0xffff, v29")
    a("v_or_b32 v30, v30, v29")
    a("s_add_u32 s22, s22, %d" % STAT)
    a("s_cmp_lt_u32 s86, 8")
    a("s_cbranch_scc1 kx_pf_x")
    a("v_mov_b32 v30, v32")
    a.label("kx_pf_x")
    a("v_mov_b32 v31, s84")
    a("s_mov_b64 exec, 0x000f000f")
    a("buffer_store_dwordx2 v[30:31], v16, s[68:71], s22 offen%s" % SC)
    a("s_mov_b64 exec, -1")
    stamp(a, 8)
    a("s_cmp_ge_u32 s20, 28")
    a("s_cbranch_scc1 kx_pf_done")
    a("s_cmp_ge_u32 s21, 16")
    a("s_cbranch_scc1 kx_pf_wd")
    a("s_cmp_lt_u32 s21, 8")
    a("s_cselect_b32 s22, s46, s48")
    a("s_cselect_b32 s23, s47, s49")
    srd(a, 12, 22, 23, 512 * 3584)
    a("s_and_b32 s21, s21, 7")
    a("s_mul_i32 s19, s21, %d" % (64 * 3584))
    a("s_lshl_b32 s20, s20, 7")
    a("s_add_u32 s19, s19, s20")
    a("buffer_load_dword v61, v10, s[12:15], s19 offen" + NT)
    a("s_branch kx_pf_done")
    a.label("kx_pf_wd")
    srd(a, 12, 50, 51, 1792 * 1024)
    a("s_sub_u32 s21, s21, 16")
    a("s_lshl_b32 s19, s20, 16")
    a("s_lshl_b32 s21, s21, 13")
    a("s_add_u32 s19, s19, s21")
    a("buffer_load_dword v61, v6, s[12:15], s19 offen" + NT)
    a.label("kx_pf_done")
    if PFN > 0:
        a("buffer_load_dword v62, v14, s[8:11], 0 offen" + NT)
    if PFN > 8:
        a("buffer_load_dword v63, v15, s[8:11], 0 offen offset:1024" + NT)
    a("s_waitcnt vmcnt(0)")
    stamp(a, 1)
    a("s_cmp_ge_u32 s16, 4")
    a("s_cbranch_scc1 kx_loader2")
    setup2("p")
    a("s_barrier")
    a("s_branch kx_cons2")

    a.label("kx_loader2")
    a("s_lshl_b32 s19, s89, 2")
    a("s_add_u32 s19, s19, s62")
    a("s_lshl_b32 s24, s19, 11")
    a("s_lshl_b32 s19, s19, 19")
    a("s_lshl_b32 s20, s88, 18")
    a("s_add_u32 s19, s19, s20")
    a("s_add_u32 s22, s56, s19")
    a("s_addc_u32 s23, s57, 0")
    srd(a, 4, 22, 23, 16 * 16384)
    a("s_cmp_eq_u32 s89, 0")
    a("s_cselect_b32 s22, s34, s36")
    a("s_cselect_b32 s23, s35, s37")
    a("s_lshl_b32 s19, s63, 19")
    a("s_lshl_b32 s21, s88, 11")
    a("s_add_u32 s19, s19, s21")
    add64(a, 22, 23, "s19")
    srd(a, 8, 22, 23, 127 * 4096 + 2048)
    a("s_lshl_b32 s20, s88, 10")
    a("s_add_u32 s24, s24, s20")
    a("s_add_u32 s24, s24, %d" % FLAG0)
    a("s_sub_u32 s17, s16, 4")
    a("v_lshrrev_b32 v1, 3, v0")
    a("v_lshrrev_b32 v2, 4, v0")
    a("v_and_b32 v3, 7, v0")
    a("s_lshl_b32 s18, s17, 5")
    a("v_add_u32 v1, s18, v1")
    a("v_lshlrev_b32 v6, 7, v1")
    for j in range(4):
        a("v_add_u32 v4, %d, v1" % (8 * j))
        a("v_lshlrev_b32 v4, 12, v4")
        a("v_add_u32 v5, %d, v2" % (4 * j))
        a("v_and_b32 v5, 7, v5")
        a("v_xor_b32 v5, v5, v3")
        a("v_lshlrev_b32 v5, 4, v5")
        a("v_add_u32 v4, v4, v5")
        a("v_subrev_u32 v%d, %d, v4" % (8 + j, 1024 * j))
        a("v_add_u32 v%d, v6, v5" % (12 + j))
    a("s_lshl_b32 s21, s17, 12")
    a("s_barrier")
    a("s_mov_b32 s20, 0")
    a("s_add_u32 s19, s21, 16384")
    a.label("kx_l2q")
    a("s_mov_b32 m0, s19")
    a("s_add_u32 s19, s19, %d" % SLOT)
    for j in range(4):
        a("buffer_load_dwordx4 v%d, s[8:11], s20 offen offset:%d%s lds" % (8 + j, 1024 * j, NTQ))
    a("s_add_u32 s20, s20, 128")
    a("s_cmp_lt_u32 s20, 512")
    a("s_cbranch_scc1 kx_l2q")
    a("s_cmp_lg_u32 s16, 4")
    a("s_cbranch_scc1 kx_poll0_done")
    a("v_lshlrev_b32 v20, 7, v3")

    def f0cond():
        a("v_xor_b32 v24, s84, v24")
        a("v_xor_b32 v25, s84, v25")
        a("v_xor_b32 v26, s84, v26")
        a("v_xor_b32 v27, s84, v27")
        a("v_or3_b32 v24, v24, v25, v26")
        a("v_or_b32 v24, v24, v27")
        a("v_cmp_ne_u32 vcc, 0, v24")
    a("s_mov_b64 exec, 0xff")
    poll(a, "kx_poll0", ["buffer_load_dwordx4 v[24:27], v20, s[68:71], s24 offen%s" % SC], f0cond)
    a("s_mov_b64 exec, -1")
    stamp(a, 2)
    a("s_barrier")
    a("s_mov_b32 s26, 0")
    a("s_mov_b32 s19, s21")
    a.label("kx_l2p")
    a("s_mov_b32 m0, s19")
    a("s_add_u32 s19, s19, %d" % SLOT)
    for j in range(4):
        a("buffer_load_dwordx4 v%d, s[4:7], s26 offen offset:%d%s lds" % (12 + j, 1024 * j, SC))
    a("s_add_u32 s26, s26, 16384")
    a("s_cmp_lt_u32 s26, 65536")
    a("s_cbranch_scc1 kx_l2p")
    a("s_waitcnt vmcnt(8)")
    a("s_barrier")
    a("s_add_u32 s21, s21, %d" % (4 * SLOT))
    a("s_mov_b32 s25, 4")
    a("s_mov_b32 s22, 4")
    a.label("kx_l2loop")
    a("s_mov_b32 m0, s21")
    a("s_add_u32 s19, s21, 16384")
    for j in range(4):
        a("buffer_load_dwordx4 v%d, s[4:7], s26 offen offset:%d%s lds" % (12 + j, 1024 * j, SC))
    a("s_mov_b32 m0, s19")
    a("s_add_u32 s25, s25, 1")
    for j in range(4):
        a("buffer_load_dwordx4 v%d, s[8:11], s20 offen offset:%d%s lds" % (8 + j, 1024 * j, NTQ))
    a("s_add_u32 s20, s20, 128")
    a("s_add_u32 s26, s26, 16384")
    a("s_add_u32 s21, s21, %d" % SLOT)
    a("s_cmp_eq_u32 s25, %d" % NSLOT)
    a("s_cselect_b32 s19, %d, 0" % (SLOT * NSLOT))
    a("s_cselect_b32 s27, %d, 0" % NSLOT)
    a("s_sub_u32 s21, s21, s19")
    a("s_sub_u32 s25, s25, s27")
    a("s_add_u32 s22, s22, 1")
    a("s_cmp_lg_u32 s22, 5")
    a("s_cbranch_scc1 kx_l2w16")
    a("s_waitcnt vmcnt(12)")
    a.label("kx_l2w16")
    a("s_waitcnt vmcnt(16)")
    a("s_barrier")
    a("s_cmp_lt_u32 s22, 16")
    a("s_cbranch_scc1 kx_l2loop")
    a("s_waitcnt vmcnt(8)")
    a("s_barrier")
    a("s_waitcnt vmcnt(0)")
    a("s_barrier")
    stamp(a, 3)

    a.label("kx_rows")
    stamp(a, 12)
    srd(a, 72, 32, 33, 2 << 20)
    srd(a, 76, 44, 45, 1024)
    srd(a, 80, 52, 53, 2 << 20)
    a("s_lshl_b32 s18, s64, 3")
    a("s_add_u32 s18, s18, s16")
    a("v_lshlrev_b32 v2, 4, v0")
    a("s_lshl_b32 s19, s18, 10")
    a("buffer_load_dwordx4 v[24:27], v2, s[72:75], s19 offen")
    a("buffer_load_dwordx4 v[28:31], v2, s[76:79], 0 offen")
    a("v_lshrrev_b32 v5, 4, v0")
    a("v_lshlrev_b32 v5, 17, v5")
    a("v_and_b32 v6, 8, v0")
    a("v_lshlrev_b32 v6, 11, v6")
    a("v_and_b32 v7, 7, v0")
    a("v_lshlrev_b32 v7, 4, v7")
    a("v_add3_u32 v5, v5, v6, v7")
    a("s_lshl_b32 s21, s63, 19")
    a("s_and_b32 s22, s18, 64")
    a("s_lshl_b32 s22, s22, 7")
    a("s_add_u32 s21, s21, s22")
    a("s_and_b32 s22, s18, 63")
    a("s_lshl_b32 s22, s22, 7")
    a("s_add_u32 s21, s21, s22")
    a("s_add_u32 s21, s21, %d" % PART_OFF)
    a("v_and_b32 v3, 15, v0")
    a("v_lshlrev_b32 v3, 7, v3")
    a("s_lshl_b32 s20, s63, 11")
    a("s_add_u32 s20, s20, %d" % FLAG1)
    a("s_lshl_b32 s22, s16, 2")
    a("s_add_u32 s22, s22, 98304")
    a("v_mov_b32 v73, s22")
    a("v_mov_b32 v74, 98304")
    a("s_waitcnt vmcnt(0)")
    for i in range(4):
        unpack(a, 64 + 2 * i, 65 + 2 * i, 28 + i)
        unpack(a, 76 + 2 * i, 77 + 2 * i, 24 + i)
    a("v_pk_add_f32 v[48:49], v[64:65], v[66:67]")
    a("v_pk_add_f32 v[50:51], v[68:69], v[70:71]")
    a("v_pk_add_f32 v[48:49], v[48:49], v[50:51]")
    a("v_add_f32 v72, v48, v49")
    allreduce64(a, "add_f32", 72, 49)
    a("s_cmp_lg_u32 s16, 0")
    a("s_cbranch_scc1 kx_poll1_done")

    def f1cond():
        a("v_xor_b32 v8, s84, v8")
        a("v_xor_b32 v9, s84, v9")
        a("v_xor_b32 v10, s84, v10")
        a("v_xor_b32 v11, s84, v11")
        a("v_or3_b32 v8, v8, v9, v10")
        a("v_or_b32 v8, v8, v11")
        a("v_cmp_ne_u32 vcc, 0, v8")
    a("s_mov_b64 exec, 0xffff")
    poll(a, "kx_poll1", ["buffer_load_dwordx4 v[8:11], v3, s[68:71], s20 offen%s" % SC], f1cond)
    a("s_mov_b64 exec, -1")
    a("s_barrier")
    stamp(a, 4)
    for ks in range(4):
        a("s_add_u32 s20, s21, %d" % (ks * 32768))
        a("buffer_load_dwordx4 v[%d:%d], v5, s[68:71], s20 offen%s" % (8 + 4 * ks, 11 + 4 * ks, SC))
    a("s_waitcnt vmcnt(0)")
    stamp(a, 13)
    for i in range(4):
        unpack(a, 48, 49, 8 + i)
        unpack(a, 50, 51, 12 + i)
        unpack(a, 52, 53, 16 + i)
        unpack(a, 54, 55, 20 + i)
        a("v_pk_add_f32 v[48:49], v[48:49], v[50:51]")
        a("v_pk_add_f32 v[52:53], v[52:53], v[54:55]")
        a("v_pk_add_f32 v[48:49], v[48:49], v[%d:%d]" % (76 + 2 * i, 77 + 2 * i))
        a("v_pk_add_f32 v[48:49], v[48:49], v[52:53] neg_lo:[0,1] neg_hi:[0,1]")
        a("v_cvt_pk_bf16_f32 v%d, v48, v49" % (32 + i))
        unpack(a, 40 + 2 * i, 41 + 2 * i, 32 + i)
    a("v_pk_add_f32 v[48:49], v[40:41], v[42:43]")
    a("v_pk_mul_f32 v[50:51], v[40:41], v[40:41]")
    a("v_pk_mul_f32 v[52:53], v[40:41], v[64:65]")
    a("v_pk_add_f32 v[54:55], v[44:45], v[46:47]")
    for i in range(1, 4):
        a("v_pk_fma_f32 v[50:51], v[%d:%d], v[%d:%d], v[50:51]" % (40 + 2 * i, 41 + 2 * i, 40 + 2 * i, 41 + 2 * i))
        a("v_pk_fma_f32 v[52:53], v[%d:%d], v[%d:%d], v[52:53]" % (40 + 2 * i, 41 + 2 * i, 64 + 2 * i, 65 + 2 * i))
    a("v_pk_add_f32 v[48:49], v[48:49], v[54:55]")
    a("v_add_f32 v50, v50, v51")
    a("v_add_f32 v52, v52, v53")
    a("v_add_f32 v48, v48, v49")
    for r in (8, 4, 2, 1):
        for v in (50, 52, 48):
            a("v_add_f32_dpp v%d, v%d, v%d row_ror:%d row_mask:0xf bank_mask:0xf" % (v, v, v, r))
    for op in ("v_permlane16_swap_b32", "v_permlane32_swap_b32"):
        for v in (50, 52, 48):
            a("v_mov_b32 v%d, v%d" % (v + 1, v))
        a("s_nop 0")
        for v in (50, 52, 48):
            a("%s v%d, v%d" % (op, v, v + 1))
        a("s_nop 0")
        for v in (50, 52, 48):
            a("v_add_f32 v%d, v%d, v%d" % (v, v, v + 1))
    a("v_mul_f32 v58, 0x3b000000, v48")
    a("v_mul_f32 v50, 0x3b000000, v50")
    a("v_fma_f32 v50, -v58, v58, v50")
    a("v_max_f32 v50, 0, v50")
    bf16r(a, 60, 58)
    bf16r(a, 50, 50)
    a("v_add_f32 v50, 0x3727c5ac, v50")
    bf16r(a, 50, 50)
    a("v_sqrt_f32 v50, v50")
    a("v_fma_f32 v52, -v60, v72, v52")
    bf16r(a, 50, 50)
    a("v_rcp_f32 v58, v50")
    a("s_sub_u32 s20, 0xffff, s18")
    a("v_mul_f32 v48, v52, v58")
    a("v_cvt_pk_bf16_f32 v48, v48, v48")
    a("v_and_b32 v48, 0xffff0000, v48")
    a("v_ashrrev_i32 v49, 31, v48")
    a("v_and_b32 v49, 0x7fff0000, v49")
    a("v_or_b32 v49, 0x80000000, v49")
    a("v_xor_b32 v48, v48, v49")
    a("v_or_b32 v48, s20, v48")
    a("ds_write_b32 v73, v48")
    a("v_mov_b32 v49, s84")
    a("v_mul_f32 v62, v60, v58")
    a("v_sub_f32 v62, 0, v62")
    a("s_waitcnt lgkmcnt(0)")
    a("s_barrier")
    a("ds_read_b128 v[8:11], v74")
    a("ds_read_b128 v[12:15], v74 offset:16")
    a("s_lshl_b32 s20, s64, 11")
    a("s_add_u32 s20, s20, %d" % SELROW)
    a("s_lshr_b32 s21, s64, 2")
    a("s_lshl_b32 s21, s21, 7")
    a("s_and_b32 s22, s64, 3")
    a("s_lshl_b32 s22, s22, 3")
    a("s_add_u32 s21, s21, s22")
    a("s_add_u32 s21, s21, %d" % KEYS)
    a("v_lshlrev_b32 v5, 13, v0")
    a("s_waitcnt lgkmcnt(0)")
    a("v_max3_u32 v8, v8, v9, v10")
    a("v_max3_u32 v8, v8, v11, v12")
    a("v_max3_u32 v8, v8, v13, v14")
    a("v_max_u32 v63, v8, v15")
    a("v_cmp_eq_u32 vcc, v63, v48")
    a("s_nop 2")
    a("s_and_b64 s[22:23], vcc, %d" % ((1 << NREP) - 1))
    a("s_mov_b64 exec, s[22:23]")
    a("s_cbranch_execz kx_nokey")
    a("buffer_store_dwordx2 v[48:49], v5, s[68:71], s21 offen%s" % SC)
    a.label("kx_nokey")
    a("s_mov_b64 exec, -1")
    stamp(a, 14)
    for i in range(4):
        a("v_pk_fma_f32 v[50:51], v[%d:%d], v[58:59], v[62:63] op_sel_hi:[1,0,0]" % (40 + 2 * i, 41 + 2 * i))
        a("v_cvt_pk_bf16_f32 v%d, v50, v51" % (36 + i))
        unpack(a, 50, 51, 36 + i)
        a("v_pk_add_f32 v[50:51], v[%d:%d], v[50:51]" % (40 + 2 * i, 41 + 2 * i))
        a("v_cvt_pk_bf16_f32 v%d, v50, v51" % (24 + i))
    a("s_cmp_eq_u64 s[22:23], 0")
    a("s_cbranch_scc0 kx_best")
    a("buffer_store_dwordx4 v[24:27], v2, s[80:83], s19 offen" + OUTF)
    a("s_branch kx_notbest")
    a.label("kx_best")
    a("buffer_store_dwordx4 v[36:39], v2, s[68:71], s20 offen%s" % SC)
    a("buffer_store_dwordx4 v[32:35], v2, s[68:71], s20 offen offset:1024%s" % SC)
    a("ds_write_b128 v2, v[24:27] offset:32768")
    a("s_waitcnt lgkmcnt(0)")
    a.label("kx_notbest")
    a("s_cmp_ge_u32 s16, 4")
    a("s_cbranch_scc1 kx_exit")

    a("s_cmp_lt_u32 s65, 28")
    a("s_cbranch_scc1 kx_keys")
    a("s_cmp_ge_u32 s16, 2")
    a("s_cbranch_scc1 kx_exit")
    a.label("kx_keys")
    a("s_and_b32 s20, s64, %d" % (NREP - 1))
    a("s_lshl_b32 s20, s20, 13")
    a("s_add_u32 s20, s20, %d" % KEYS)
    a("v_lshlrev_b32 v3, 7, v0")
    a("v_mov_b32 v5, 98816")
    a("s_cmp_lg_u32 s16, 0")
    a("s_cbranch_scc1 kx_keywait")

    def keycond():
        a("v_xor_b32 v9, s84, v9")
        a("v_xor_b32 v11, s84, v11")
        a("v_xor_b32 v13, s84, v13")
        a("v_xor_b32 v15, s84, v15")
        a("v_or3_b32 v4, v9, v11, v13")
        a("v_or_b32 v4, v4, v15")
        a("v_cmp_ne_u32 vcc, 0, v4")
    poll(a, "kx_poll2", ["buffer_load_dwordx4 v[8:11], v3, s[68:71], s20 offen%s" % SC,
                         "buffer_load_dwordx4 v[12:15], v3, s[68:71], s20 offen offset:16%s" % SC], keycond)
    a("v_max_u32 v64, v8, v10")
    a("v_max3_u32 v64, v64, v12, v14")
    allreduce64(a, "max_u32", 64, 65)
    a("ds_write_b32 v5, v64")
    a("s_waitcnt lgkmcnt(0)")
    a.label("kx_keywait")
    a("s_barrier")
    a("ds_read_b32 v64, v5")
    a("ds_read_b128 v[24:27], v2 offset:32768")
    a("s_waitcnt lgkmcnt(0)")
    stamp(a, 5)
    a("v_and_b32 v66, 0xffff, v64")
    a("v_sub_u32 v66, 0xffff, v66")
    a("v_lshrrev_b32 v67, 3, v66")
    a("v_lshlrev_b32 v67, 11, v67")
    a("s_cmp_lg_u32 s16, 1")
    a("s_cbranch_scc1 kx_noparked")
    a("v_and_b32 v4, 0xffff, v63")
    a("v_sub_u32 v4, 0xffff, v4")
    a("v_lshlrev_b32 v4, 10, v4")
    a("v_add_u32 v4, v4, v2")
    a("v_cmp_ne_u32 vcc, v63, v64")
    a("s_and_saveexec_b64 s[22:23], vcc")
    a("s_cbranch_execz kx_parkskip")
    a("buffer_store_dwordx4 v[24:27], v4, s[80:83], 0 offen" + OUTF)
    a.label("kx_parkskip")
    a("s_mov_b64 exec, -1")
    a.label("kx_noparked")
    a("s_mov_b32 s20, %d" % SELROW)
    a("s_cmp_ge_u32 s65, 28")
    a("s_cbranch_scc1 kx_final")
    a("v_lshlrev_b32 v4, 2, v199")
    a("v_add_u32 v68, v67, v4")
    poll(a, "kx_poll4", ["buffer_load_dword v75, v68, s[68:71], s20 offen%s" % SC],
         lambda: a("v_cmp_eq_u32 vcc, -1, v75"))
    a("s_mov_b32 s22, 0x05040100")
    a("s_mov_b32 s23, 0x07060302")
    for m in range(2):
        for i in range(4):
            a("v_perm_b32 v%d, v%d, v%d, s22" % (32 + 8 * m + 2 * i, 204 + 8 * m + i, 200 + 8 * m + i))
            a("v_perm_b32 v%d, v%d, v%d, s23" % (33 + 8 * m + 2 * i, 204 + 8 * m + i, 200 + 8 * m + i))
    for i in range(16):
        a("v_dot2_f32_bf16 v%d, v%d, v75, 0" % (48 + i, 32 + i))
    a("s_nop 2")
    for i in range(8):
        a("v_permlane32_swap_b32 v%d, v%d" % (48 + i, 56 + i))
    a("s_nop 1")
    for i in range(8):
        a("v_add_f32 v%d, v%d, v%d" % (48 + i, 48 + i, 56 + i))
    a("s_nop 1")
    for i in range(4):
        a("v_permlane16_swap_b32 v%d, v%d" % (48 + i, 52 + i))
    a("s_nop 1")
    for i in range(4):
        a("v_add_f32 v%d, v%d, v%d" % (48 + i, 48 + i, 52 + i))
    for r in (8, 4, 2, 1):
        a("s_nop 0")
        for i in range(4):
            a("v_add_f32_dpp v%d, v%d, v%d row_ror:%d row_mask:0xf bank_mask:0xf" % (48 + i, 48 + i, 48 + i, r))
    a("s_lshl_b32 s21, s16, 6")
    a("s_add_u32 s21, s21, 98560")
    a("v_lshrrev_b32 v7, 4, v0")
    a("v_lshlrev_b32 v7, 4, v7")
    a("v_add_u32 v6, s21, v7")
    a("ds_write_b128 v6, v[48:51]")
    a("v_and_b32 v7, 7, v0")
    a("v_lshlrev_b32 v7, 2, v7")
    a("v_add_u32 v7, 98560, v7")
    a("s_waitcnt lgkmcnt(0)")
    a("s_barrier")
    for w in range(4):
        a("ds_read_b32 v%d, v7 offset:%d" % (48 + w, 64 * w))
        a("ds_read_b32 v%d, v7 offset:%d" % (52 + w, 64 * w + 32))
    a("s_waitcnt lgkmcnt(0)")
    a("v_add_f32 v48, v48, v49")
    a("v_add_f32 v50, v50, v51")
    a("v_add_f32 v52, v52, v53")
    a("v_add_f32 v54, v54, v55")
    a("v_add_f32 v48, v48, v50")
    a("v_add_f32 v52, v52, v54")
    bf16r(a, 48, 48)
    bf16r(a, 52, 52)
    a("v_mul_f32 v49, 0xbfb8aa3b, v48")
    a("v_exp_f32 v49, v49")
    a("s_nop 0")
    a("v_add_f32 v49, 1.0, v49")
    a("v_rcp_f32 v49, v49")
    a("s_nop 0")
    a("v_mul_f32 v48, v48, v49")
    bf16r(a, 48, 48)
    a("v_mul_f32 v48, v48, v52")
    bf16r(a, 48, 48)
    a("s_nop 0")
    for j in range(8):
        a("v_readlane_b32 s%d, v48, %d" % (4 + j, j))
    a("v_mov_b32 v50, 0")
    a("v_mov_b32 v51, 0")
    for j in range(8):
        unpack(a, 52, 53, 216 + j)
        a("v_fmac_f32 v50, s%d, v52" % (4 + j))
        a("v_fmac_f32 v51, s%d, v53" % (4 + j))
    a("v_lshlrev_b32 v6, 3, v199")
    a("s_lshl_b32 s20, s66, 11")
    a("s_add_u32 s20, s20, %d" % YP_OFF)
    a("buffer_store_dwordx2 v[50:51], v6, s[68:71], s20 offen%s" % SC)
    stamp(a, 7)
    a("s_endpgm")

    a.label("kx_final")
    a("v_lshrrev_b32 v5, 4, v0")
    a("v_lshlrev_b32 v3, 2, v5")
    a("s_lshl_b32 s19, s66, 4")
    a("v_add_u32 v3, s19, v3")
    a("v_add_u32 v68, v67, v3")

    def hcond():
        a("v_max_u32 v4, v69, v75")
        a("v_cmp_eq_u32 vcc, -1, v4")
    poll(a, "kx_poll5", ["buffer_load_dword v75, v68, s[68:71], s20 offen%s" % SC,
                         "buffer_load_dword v69, v68, s[68:71], s20 offen offset:1024%s" % SC], hcond)
    a("v_and_b32 v52, 0xffff0000, v64")
    a("v_ashrrev_i32 v53, 31, v52")
    a("v_not_b32 v53, v53")
    a("v_and_b32 v53, 0x7fff0000, v53")
    a("v_or_b32 v53, 0x80000000, v53")
    a("v_xor_b32 v52, v52, v53")
    a("v_mul_f32 v53, 0xbfb8aa3b, v52")
    a("v_exp_f32 v53, v53")
    a("s_nop 0")
    a("v_add_f32 v53, 1.0, v53")
    a("v_rcp_f32 v53, v53")
    a("s_nop 0")
    bf16r(a, 44, 53)
    unpack(a, 40, 41, 69)
    unpack(a, 42, 43, 75)
    a("v_lshlrev_b32 v45, 10, v66")
    a("v_add_u32 v45, v45, v3")
    a("v_lshlrev_b32 v1, 11, v0")
    a("s_lshl_b32 s19, s66, 5")
    a("v_add_u32 v1, s19, v1")
    a("v_cmp_gt_u32 vcc, 32, v0")
    a("v_mov_b32 v6, 0x40000000")
    a("v_cndmask_b32 v6, v6, v1, vcc")
    for i in range(4):
        a("s_mov_b32 s%d, %d" % (24 + i, YP_OFF + 131072 * i))
    loads = []
    for i in range(4):
        vo = 1 if i < 3 else 6
        loads.append("buffer_load_dwordx4 v[%d:%d], v%d, s[68:71], s%d offen%s" % (8 + 8 * i, 11 + 8 * i, vo, 24 + i, SC))
        loads.append("buffer_load_dwordx4 v[%d:%d], v%d, s[68:71], s%d offen offset:16%s" % (12 + 8 * i, 15 + 8 * i, vo, 24 + i, SC))

    def ycond():
        a("v_max3_u32 v4, v8, v9, v10")
        for i in range(11, 39, 2):
            a("v_max3_u32 v4, v4, v%d, v%d" % (i, i + 1))
        a("v_max_u32 v4, v4, v39")
        a("v_cmp_eq_u32 vcc, -1, v4")
    poll(a, "kx_poll3", loads, ycond)
    for i in range(4):
        a("v_pk_add_f32 v[%d:%d], v[%d:%d], v[%d:%d]" % (8 + 2 * i, 9 + 2 * i, 8 + 2 * i, 9 + 2 * i, 16 + 2 * i, 17 + 2 * i))
        a("v_pk_add_f32 v[%d:%d], v[%d:%d], v[%d:%d]" % (24 + 2 * i, 25 + 2 * i, 24 + 2 * i, 25 + 2 * i, 32 + 2 * i, 33 + 2 * i))
    for i in range(4):
        a("v_pk_add_f32 v[%d:%d], v[%d:%d], v[%d:%d]" % (8 + 2 * i, 9 + 2 * i, 8 + 2 * i, 9 + 2 * i, 24 + 2 * i, 25 + 2 * i))
    a("s_nop 1")
    for i in range(4):
        a("v_permlane32_swap_b32 v%d, v%d" % (8 + i, 12 + i))
    a("s_nop 1")
    for i in range(4):
        a("v_add_f32 v%d, v%d, v%d" % (8 + i, 8 + i, 12 + i))
    a("s_nop 1")
    for i in range(2):
        a("v_permlane16_swap_b32 v%d, v%d" % (8 + i, 10 + i))
    a("s_nop 1")
    for i in range(2):
        a("v_add_f32 v%d, v%d, v%d" % (8 + i, 8 + i, 10 + i))
    for r in (8, 4, 2, 1):
        a("s_nop 1")
        for i in range(2):
            a("v_add_f32_dpp v%d, v%d, v%d row_ror:%d row_mask:0xf bank_mask:0xf" % (8 + i, 8 + i, 8 + i, r))
    for i in range(2):
        bf16r(a, 8 + i, 8 + i)
        a("v_mul_f32 v%d, v%d, v44" % (8 + i, 8 + i))
        bf16r(a, 8 + i, 8 + i)
        a("v_add_f32 v%d, v%d, v%d" % (8 + i, 8 + i, 42 + i))
        bf16r(a, 8 + i, 8 + i)
        a("v_add_f32 v%d, v%d, v%d" % (8 + i, 8 + i, 40 + i))
    a("v_cvt_pk_bf16_f32 v8, v8, v9")
    a("v_and_b32 v6, 15, v0")
    a("v_cmp_eq_u32 vcc, 0, v6")
    a("s_and_saveexec_b64 s[30:31], vcc")
    a("buffer_store_dword v8, v45, s[80:83], 0 offen" + OUTF)
    a("s_mov_b64 exec, -1")
    if gen.STAMPS:
        a("s_waitcnt vmcnt(0)")
    stamp(a, 7)
    a.label("kx_exit")
    a("s_endpgm")
    a.label("kx_end")
    return name, 224


def main(out):
    head = open("cdna_kernels/%s.s.ref" % NAME).read().split("\n")
    a = A()
    for line in head:
        if line.startswith(";") and "@launch" not in line:
            a.raw(line)
    kname = "kx_kernel"
    a.raw("; @launch kernel=%s grid=(256,1,1) block=(512,1,1) lds=163840" % kname)
    a.raw('.amdgcn_target "amdgcn-amd-amdhsa--gfx950"')
    name, vg = kx(a, kname)
    if DBGSTAMP:
        kernel_desc(a, name, 256, 102)
    else:
        kernel_desc(a, name, vg, 96)
    open(out, "w").write(a.text())


if __name__ == "__main__":
    args = [x for x in sys.argv[1:] if not x.startswith("--")]
    if "--stamps" in sys.argv:
        gen.STAMPS = True
    for x in sys.argv:
        if x.startswith("--exp="):
            gen.EXP = set(x[6:].split(","))
        if x.startswith("--sleep="):
            SLEEP = int(x[8:])
        if x.startswith("--pfn="):
            PFN = int(x[6:])
        if x.startswith("--nrep="):
            NREP = int(x[7:])
        if x == "--dbg":
            DBGSTAMP = True
        if x.startswith("--outf="):
            OUTF = " " + x[7:].replace(",", " ")
        if x == "--noq":
            NTQ = ""
        if x == "--nont":
            NT = ""
    main(args[0] if args else "cdna_kernels/%s.s" % NAME)
```

```python
import sys
import gen
from gen import (A, NAME, kernel_head, kernel_desc, srd, add64, bf16r, unpack, allreduce64, wave_split,
                 stamp, stampc, stamp_init, SLOT, NSLOT, ACC, FR, AP, AQ, KA_WS)

ABT_OFF = 0
PART_OFF = 4 << 20
FLAG0 = 12 << 20
FLAG1 = FLAG0 + 16384
KEYS = FLAG1 + 32768
STAT = 13 << 20
YP_OFF = 15 << 20
SELROW = 16 << 20
WS_SRD_SIZE = 32 << 20
NREP = 4
SC = " sc1"
SPIN_MAX = 1 << 20
SLEEP = 4
NT = ""
NTQ = ""
PFN = 16
OUTF = ""
STATS_LDS = 4 * SLOT
SUMW_LDS = STATS_LDS + 1024
NONCE_LDS = STATS_LDS + 2048


def poll(a, lbl, loads, cond):
    a("s_mov_b32 s31, 0")
    a.label(lbl)
    for l in loads:
        a(l)
    a("s_waitcnt vmcnt(0)")
    cond()
    a("s_add_u32 s31, s31, 1")
    a("s_nop 1")
    a("s_cmp_eq_u64 vcc, 0")
    a("s_cbranch_scc1 %s_done" % lbl)
    a("s_cmp_ge_u32 s31, %d" % SPIN_MAX)
    a("s_cbranch_scc1 %s_done" % lbl)
    a("s_sleep %d" % SLEEP)
    a("s_branch %s" % lbl)
    a.label(lbl + "_done")


DBGSTAMP = False
DBGWG = 0
_dbgn = [0]


def dstamp(a, slot):
    _dbgn[0] += 1
    lbl = "kx_ds%d" % _dbgn[0]
    a("s_cmp_lg_u32 s2, %d" % (255 if slot == 7 else DBGWG))
    a("s_cbranch_scc1 %s" % lbl)
    a("s_cmp_lg_u32 s16, 0")
    a("s_cbranch_scc1 %s" % lbl)
    a("s_memrealtime s[98:99]")
    a("s_waitcnt lgkmcnt(0)")
    a("v_mov_b32 v254, s98")
    a("v_mov_b32 v255, %d" % (4 * (slot + 1)))
    a("s_mov_b64 s[100:101], exec")
    a("s_mov_b64 exec, 1")
    a("buffer_store_dword v254, v255, s[92:95], 0 offen")
    a("s_mov_b64 exec, s[100:101]")
    a.label(lbl)


def kx(a, name):
    global stamp, stamp_init
    gen.STV = 254
    EXP = gen.EXP
    if DBGSTAMP:
        stamp = dstamp
        stamp_init = lambda a, k, lo, hi: srd(a, 92, 54, 55, 256)
    def setup2(sfx):
        a("s_lshl_b32 s31, s16, 6")
        a("v_add_u32 v199, s31, v0")
        for r in range(4):
            a("v_mov_b32 v%d, -1" % (16 + r))
        a("v_lshlrev_b32 v4, 4, v0")
        a("s_and_b32 s21, s16, 1")
        a("s_lshl_b32 s21, s21, 10")
        a("s_cmp_lt_u32 s16, 2")
        a("s_cbranch_scc1 kx_c2a" + sfx)
        a("s_lshl_b32 s20, s64, 11")
        a("s_add_u32 s20, s20, s21")
        a("s_add_u32 s20, s20, %d" % SELROW)
        a("buffer_store_dwordx4 v[16:19], v4, s[68:71], s20 offen%s" % SC)
        a.label("kx_c2a" + sfx)
        a("s_cmp_ge_u32 s65, 28")
        a("s_cbranch_scc1 kx_c2final" + sfx)
        a("s_and_b32 s66, s59, 7")
        a("s_lshl_b32 s26, s65, 3")
        a("s_add_u32 s66, s66, s26")
        a("s_cmp_ge_u32 s16, 2")
        a("s_cbranch_scc1 kx_c2b" + sfx)
        a("s_lshl_b32 s20, s66, 11")
        a("s_add_u32 s20, s20, s21")
        a("s_add_u32 s20, s20, %d" % YP_OFF)
        a("buffer_store_dwordx4 v[16:19], v4, s[68:71], s20 offen%s" % SC)
        a.label("kx_c2b" + sfx)
        a("s_branch kx_c2done" + sfx)
        a.label("kx_c2final" + sfx)
        a("s_sub_u32 s66, s58, 4")
        a("s_lshl_b32 s66, s66, 3")
        a("s_add_u32 s66, s66, s59")
        a("s_sub_u32 s66, s66, 24")
        a("s_lshl_b32 s66, s66, 1")
        a("s_add_u32 s66, s66, s16")
        a.label("kx_c2done" + sfx)

    def ffnloads():
        srd(a, 4, 46, 47, 512 * 3584)
        srd(a, 8, 48, 49, 512 * 3584)
        srd(a, 12, 50, 51, 1792 * 1024)
        a("s_movk_i32 s26, 7168")
        a("v_mul_lo_u32 v5, v199, s26")
        a("s_lshl_b32 s26, s66, 4")
        a("v_add_u32 v5, s26, v5")
        a("v_lshlrev_b32 v4, 2, v199")
        a("s_lshl_b32 s20, s66, 13")
        a("s_add_u32 s21, s20, 4096")
        a("buffer_load_dwordx4 v[200:203], v5, s[4:7], 0 offen")
        a("buffer_load_dwordx4 v[204:207], v5, s[4:7], 0 offen offset:3584")
        a("buffer_load_dwordx4 v[208:211], v5, s[8:11], 0 offen")
        a("buffer_load_dwordx4 v[212:215], v5, s[8:11], 0 offen offset:3584")
        for j in range(4):
            a("buffer_load_dword v%d, v4, s[12:15], s20 offen offset:%d" % (216 + j, 1024 * j))
        for j in range(4):
            a("buffer_load_dword v%d, v4, s[12:15], s21 offen offset:%d" % (220 + j, 1024 * j))

    kernel_head(a, name)
    a("s_cmp_ge_u32 s2, 256")
    a("s_cbranch_scc1 kx_exit")
    a("s_load_dwordx16 s[32:47], s[0:1], 0")
    a("s_load_dwordx8 s[48:55], s[0:1], 64")
    a("s_load_dwordx2 s[56:57], s[0:1], %d" % KA_WS)
    wave_split(a)
    a("s_and_b32 s58, s2, 7")
    a("s_lshr_b32 s59, s2, 3")
    a("s_and_b32 s60, s58, 1")
    a("s_lshr_b32 s61, s58, 1")
    a("s_and_b32 s62, s59, 3")
    a("s_lshr_b32 s63, s59, 2")
    a("s_lshl_b32 s67, s60, 3")
    a("s_add_u32 s63, s63, s67")
    a("s_lshl_b32 s64, s63, 4")
    a("s_lshl_b32 s67, s62, 2")
    a("s_add_u32 s64, s64, s67")
    a("s_add_u32 s64, s64, s61")
    a("s_lshr_b32 s65, s59, 3")
    a("s_lshl_b32 s65, s65, 3")
    a("s_add_u32 s65, s65, s58")
    a("s_and_b32 s88, s61, 1")
    a("s_lshr_b32 s89, s61, 1")
    a("s_lshl_b32 s85, s88, 3")
    a("s_lshl_b32 s67, s60, 2")
    a("s_add_u32 s85, s85, s67")
    a("s_waitcnt lgkmcnt(0)")
    stamp_init(a, 0, 56, 57)
    stamp(a, 0)
    srd(a, 68, 56, 57, WS_SRD_SIZE)
    srd(a, 72, 54, 55, 256)
    a("v_mov_b32 v197, 0")
    a("s_cmp_lg_u32 s2, 128")
    a("s_cbranch_scc1 kx_nononce")
    a("s_cmp_lg_u32 s16, 0")
    a("s_cbranch_scc1 kx_nononce")
    a("s_memrealtime s[18:19]")
    a("s_waitcnt lgkmcnt(0)")
    a("s_or_b32 s84, s18, 1")
    a("v_mov_b32 v194, s84")
    a("s_mov_b64 exec, 1")
    a("buffer_store_dword v194, v197, s[72:75], 0 offen%s" % SC)
    a("s_mov_b64 exec, -1")
    a.label("kx_nononce")
    a("s_cmp_ge_u32 s59, 16")
    a("s_cbranch_scc1 kx_pref")
    a("s_add_u32 s85, s85, s62")
    a("s_lshr_b32 s86, s59, 2")
    a("s_lshl_b32 s87, s89, 2")
    a("s_add_u32 s87, s87, s86")
    a("s_cmp_ge_u32 s16, 4")
    a("s_cbranch_scc1 kx_loader1")
    a("s_mov_b32 s30, 0")
    a("s_mov_b32 s22, 8")

    a.label("kx_cons")
    a("s_lshr_b32 s17, s16, 1")
    a("s_and_b32 s18, s16, 1")
    a("v_and_b32 v1, 15, v0")
    a("v_lshrrev_b32 v2, 4, v0")
    a("v_lshrrev_b32 v3, 1, v1")
    a("v_lshlrev_b32 v4, 7, v1")
    a("s_lshl_b32 s19, s17, 13")
    a("s_lshl_b32 s20, s18, 13")
    a("s_add_u32 s20, s20, 16384")
    for j in range(2):
        a("v_add_u32 v5, %d, v2" % (4 * j))
        a("v_xor_b32 v5, v5, v3")
        a("v_lshlrev_b32 v5, 4, v5")
        a("v_add_u32 v5, v5, v4")
        a("v_add_u32 v%d, s19, v5" % (AP + j))
        a("v_add_u32 v%d, s20, v5" % (AQ + j))
    for r in range(32):
        a("v_mov_b64 v[%d:%d], 0" % (ACC + 2 * r, ACC + 2 * r + 1))
    a("s_mov_b32 s23, %d" % SLOT)
    a("s_mov_b32 s24, %d" % SLOT)
    a("s_mov_b32 s25, 1")
    a("s_mov_b32 s27, %d" % (-(NSLOT - 1) * SLOT))
    a("s_mov_b32 s28, %d" % SLOT)

    def rdlist(j):
        f = FR + 32 * j
        l = []
        for t in range(4):
            l.append("ds_read_b128 v[%d:%d], v%d offset:%d" % (f + 4 * t, f + 4 * t + 3, AP + j, 2048 * t))
            l.append("ds_read_b128 v[%d:%d], v%d offset:%d" % (f + 16 + 4 * t, f + 16 + 4 * t + 3, AQ + j, 2048 * t))
        return l

    book = ["s_mov_b32 s23, s24",
            "s_add_u32 s25, s25, 1",
            "s_cmp_eq_u32 s25, %d" % NSLOT,
            "s_cselect_b32 s26, %d, 0" % NSLOT,
            "s_sub_u32 s25, s25, s26",
            "s_cmp_eq_u32 s25, %d" % (NSLOT - 1),
            "s_cselect_b32 s24, s27, s28",
            "s_sub_u32 s22, s22, 1",
            "s_cmp_lt_u32 s22, 2"]
    a("s_barrier")
    if gen.STAMPS or DBGSTAMP:
        a("s_cmp_lg_u32 s30, 0")
        a("s_cbranch_scc1 kx_st9")
        stamp(a, 8)
        a("s_branch kx_st9d")
        a.label("kx_st9")
        stamp(a, 9)
        a.label("kx_st9d")
    for r in rdlist(0):
        a(r)
    a("v_add_u32 v%d, s23, v%d" % (AP, AP))
    a("v_add_u32 v%d, s23, v%d" % (AQ, AQ))
    a.label("kx_cloop")
    for j in range(2):
        jn = 1 - j
        sd = 23 if j == 0 else 24
        f = FR + 32 * j
        rd = rdlist(jn)
        a("s_waitcnt lgkmcnt(0)")
        k = 0
        for ti in range(4):
            for tj in range(4):
                c = ACC + 4 * (4 * ti + tj)
                a("v_mfma_f32_16x16x32_bf16 v[%d:%d], v[%d:%d], v[%d:%d], v[%d:%d]" % (
                    c, c + 3, f + 4 * ti, f + 4 * ti + 3, f + 16 + 4 * tj, f + 16 + 4 * tj + 3, c, c + 3))
                if k < 8:
                    a(rd[k])
                if k == 8:
                    a("v_add_u32 v%d, s%d, v%d" % (AP + jn, sd, AP + jn))
                if k == 9:
                    a("v_add_u32 v%d, s%d, v%d" % (AQ + jn, sd, AQ + jn))
                if j == 1 and 10 <= k < 15:
                    for b in book[2 * (k - 10):2 * (k - 10) + 2]:
                        a(b)
                k += 1
    a("s_cbranch_scc1 kx_nobar")
    a("s_barrier")
    a.label("kx_nobar")
    a("s_cmp_lg_u32 s22, 0")
    a("s_cbranch_scc1 kx_cloop")
    a("s_waitcnt lgkmcnt(0)")
    a("s_cmp_lg_u32 s30, 0")
    a("s_cbranch_scc1 kx_epi2")

    stamp(a, 1)
    setup2("g")
    a("s_lshl_b32 s19, s17, 8")
    a("s_add_u32 s19, s19, %d" % STATS_LDS)
    a("v_lshlrev_b32 v7, 4, v2")
    a("v_add_u32 v7, s19, v7")
    a("s_lshl_b32 s19, s18, 8")
    a("s_add_u32 s19, s19, %d" % SUMW_LDS)
    a("v_lshlrev_b32 v6, 2, v1")
    a("v_add_u32 v6, s19, v6")
    a("v_mov_b32 v5, %d" % NONCE_LDS)
    a("s_barrier")
    a("ds_read_b32 v16, v5")
    for tj in range(4):
        a("ds_read_b32 v%d, v6 offset:%d" % (20 + 2 * tj, 64 * tj))
    for ti in range(4):
        a("ds_read_b128 v[%d:%d], v7 offset:%d" % (32 + 8 * ti, 35 + 8 * ti, 64 * ti))
        a("ds_read_b128 v[%d:%d], v7 offset:%d" % (36 + 8 * ti, 39 + 8 * ti, 64 * ti + 512))
    a("s_waitcnt lgkmcnt(0)")
    a("v_readfirstlane_b32 s84, v16")
    for ti in range(4):
        for tj in range(4):
            c = ACC + 4 * (4 * ti + tj)
            for h in range(2):
                a("v_pk_fma_f32 v[%d:%d], v[%d:%d], v[%d:%d], v[%d:%d] op_sel_hi:[1,0,1] neg_lo:[1,0,0] neg_hi:[1,0,0]" % (
                    c + 2 * h, c + 2 * h + 1, 32 + 8 * ti + 2 * h, 33 + 8 * ti + 2 * h, 20 + 2 * tj, 21 + 2 * tj, c + 2 * h, c + 2 * h + 1))
                a("v_pk_mul_f32 v[%d:%d], v[%d:%d], v[%d:%d]" % (
                    c + 2 * h, c + 2 * h + 1, c + 2 * h, c + 2 * h + 1, 36 + 8 * ti + 2 * h, 37 + 8 * ti + 2 * h))
    a("s_lshl_b32 s21, s16, 15")
    a("s_lshl_b32 s19, s87, 5")
    a("s_lshl_b32 s20, s85, 1")
    a("s_add_u32 s19, s19, s20")
    a("s_add_u32 s19, s19, s17")
    a("s_lshl_b32 s19, s19, 14")
    a("s_lshl_b32 s20, s18, 13")
    a("s_add_u32 s19, s19, s20")
    a("s_lshl_b32 s29, s87, 4")
    a("s_add_u32 s29, s29, s85")
    a("s_lshl_b32 s29, s29, 7")
    a("s_add_u32 s29, s29, %d" % FLAG0)
    a("s_branch kx_epi")
    a.label("kx_epi2")
    stamp(a, 3)
    a("s_mul_i32 s21, s16, 9216")
    a("s_add_u32 s21, s21, 32768")
    a("s_lshl_b32 s19, s64, 15")
    a("s_lshl_b32 s20, s16, 13")
    a("s_add_u32 s19, s19, s20")
    a("s_add_u32 s19, s19, %d" % PART_OFF)
    a("s_lshl_b32 s29, s64, 7")
    a("s_add_u32 s29, s29, %d" % FLAG1)
    a("s_nop 4")
    a.label("kx_epi")
    a("v_mul_u32_u24 v4, 144, v1")
    a("v_lshlrev_b32 v5, 3, v2")
    a("v_add3_u32 v4, v4, v5, s21")
    a("v_lshrrev_b32 v6, 3, v0")
    a("v_and_b32 v7, 7, v0")
    a("v_lshlrev_b32 v7, 4, v7")
    a("v_mul_u32_u24 v5, 144, v6")
    a("v_add3_u32 v5, v5, v7, s21")
    a("s_add_u32 s20, s19, 4096")
    a("v_lshlrev_b32 v6, 4, v0")
    n = 0
    for tj in range(4):
        for ti in range(4):
            c = ACC + 4 * (4 * ti + tj)
            d = FR + 2 * (n % 8)
            n += 1
            a("v_cvt_pk_bf16_f32 v%d, v%d, v%d" % (d, c, c + 1))
            a("v_cvt_pk_bf16_f32 v%d, v%d, v%d" % (d + 1, c + 2, c + 3))
            a("ds_write_b64 v4, v[%d:%d] offset:%d" % (d, d + 1, tj * 2304 + ti * 32))
    a("s_waitcnt lgkmcnt(0)")
    for i in range(8):
        a("ds_read_b128 v[%d:%d], v5 offset:%d" % (FR + 16 + 4 * i, FR + 19 + 4 * i, i * 1152))
    for i in range(8):
        a("s_waitcnt lgkmcnt(%d)" % (7 - i))
        a("buffer_store_dwordx4 v[%d:%d], v6, s[68:71], s%d offen offset:%d%s" % (FR + 16 + 4 * i, FR + 19 + 4 * i, 19 + (i >> 2), 1024 * (i & 3), SC))
    a("s_lshl_b32 s20, s16, 2")
    a("s_add_u32 s29, s29, s20")
    a("v_mov_b32 v4, 0")
    a("v_mov_b32 v5, s84")
    if gen.STAMPS or DBGSTAMP:
        a("s_cmp_lg_u32 s30, 0")
        a("s_cbranch_scc1 kx_st11")
        stamp(a, 10)
        a("s_branch kx_st11d")
        a.label("kx_st11")
        stamp(a, 11)
        a.label("kx_st11d")
    a("s_cmp_lg_u32 s30, 0")
    a("s_cbranch_scc1 kx_noe1")
    a("s_barrier")
    a.label("kx_noe1")
    a("s_waitcnt vmcnt(0)")
    a("s_mov_b64 exec, 1")
    a("buffer_store_dword v5, v4, s[68:71], s29 offen%s" % SC)
    a("s_mov_b64 exec, -1")
    a("s_cmp_lg_u32 s30, 0")
    a("s_cbranch_scc1 kx_rows")
    stamp(a, 2)

    a.label("kx_cons2")
    a("s_cmp_ge_u32 s65, 28")
    a("s_cbranch_scc1 kx_c3")
    ffnloads()
    a.label("kx_c3")
    a("s_mov_b32 s30, 1")
    a("s_mov_b32 s22, 16")
    a("s_barrier")
    a("s_branch kx_cons")

    a.label("kx_loader1")
    a("s_lshl_b32 s19, s85, 17")
    a("s_add_u32 s22, s32, s19")
    a("s_addc_u32 s23, s33, 0")
    srd(a, 4, 22, 23, 131072)
    a("s_cmp_eq_u32 s89, 0")
    a("s_cselect_b32 s22, s38, s40")
    a("s_cselect_b32 s23, s39, s41")
    a("s_lshl_b32 s19, s86, 17")
    add64(a, 22, 23, "s19")
    srd(a, 8, 22, 23, 131072)
    a("s_sub_u32 s17, s16, 4")
    a("v_lshrrev_b32 v6, 3, v0")
    a("v_lshrrev_b32 v7, 4, v0")
    a("v_and_b32 v16, 7, v0")
    a("s_lshl_b32 s18, s17, 5")
    for j in range(4):
        a("v_add_u32 v18, %d, v7" % (4 * j))
        a("v_and_b32 v18, 7, v18")
        a("v_xor_b32 v18, v18, v16")
        a("v_lshlrev_b32 v18, 4, v18")
        a("v_add3_u32 v17, v6, s18, %d" % (8 * j))
        a("v_lshlrev_b32 v17, 10, v17")
        a("v_add_u32 v17, v17, v18")
        a("v_subrev_u32 v%d, %d, v17" % (8 + j, 1024 * j))
    a("s_lshl_b32 s21, s17, 12")
    a("s_mov_b32 s20, 0")
    a("s_mov_b32 s22, 0")
    a.label("kx_l1loop")
    a("s_mov_b32 m0, s21")
    a("s_add_u32 s19, s21, 16384")
    for j in range(4):
        a("buffer_load_dwordx4 v%d, s[4:7], s20 offen offset:%d%s lds" % (8 + j, 1024 * j, NT))
    a("s_mov_b32 m0, s19")
    a("s_add_u32 s22, s22, 1")
    for j in range(4):
        a("buffer_load_dwordx4 v%d, s[8:11], s20 offen offset:%d%s lds" % (8 + j, 1024 * j, NT))
    a("s_add_u32 s20, s20, 128")
    a("s_add_u32 s21, s21, %d" % SLOT)
    a("s_cmp_eq_u32 s22, %d" % NSLOT)
    a("s_cselect_b32 s19, %d, 0" % (SLOT * NSLOT))
    a("s_sub_u32 s21, s21, s19")
    a("s_cmp_lt_u32 s22, 4")
    a("s_cbranch_scc1 kx_l1loop")
    a("s_waitcnt vmcnt(16)")
    a("s_barrier")
    a("s_cmp_lt_u32 s22, 8")
    a("s_cbranch_scc1 kx_l1loop")
    a("s_lshl_b32 s19, s62, 7")
    a("s_lshl_b32 s24, s86, 7")
    a("s_add_u32 s24, s24, 480")
    a("v_mov_b32 v20, s19")
    a("v_mov_b32 v21, s24")
    a("v_cmp_gt_u32 vcc, 32, v0")
    a("v_add_u32 v22, s18, v0")
    a("v_cndmask_b32 v20, v21, v20, vcc")
    a("v_add_lshl_u32 v20, v20, v22, 3")
    a("s_lshl_b32 s24, s58, 13")
    a("s_add_u32 s24, s24, %d" % STAT)
    a("s_waitcnt vmcnt(8)")
    a("s_barrier")
    a("buffer_load_dword v194, v197, s[72:75], 0 offen%s" % SC)
    a("buffer_load_dwordx2 v[24:25], v20, s[68:71], s24 offen%s" % SC)
    a("s_waitcnt vmcnt(2)")
    a("s_barrier")
    a("v_lshlrev_b32 v22, 2, v22")
    a("v_add_u32 v22, %d, v22" % STATS_LDS)
    a("s_waitcnt vmcnt(0)")

    def stcond():
        a("v_cmp_ne_u32 vcc, v25, v194")
        a("v_cmp_eq_u32 s[26:27], 0, v194")
        a("s_nop 2")
        a("s_or_b64 vcc, vcc, s[26:27]")
    stcond()
    a("s_cmp_eq_u64 vcc, 0")
    a("s_cbranch_scc1 kx_polln_done")
    poll(a, "kx_polln", ["buffer_load_dword v194, v197, s[72:75], 0 offen%s" % SC,
                         "buffer_load_dwordx2 v[24:25], v20, s[68:71], s24 offen%s" % SC], stcond)
    a("v_readfirstlane_b32 s84, v194")
    a("v_lshlrev_b32 v26, 16, v24")
    a("v_rcp_f32 v26, v26")
    a("v_and_b32 v27, 0xffff0000, v24")
    a("v_mov_b32 v195, %d" % NONCE_LDS)
    a("s_mov_b32 exec_hi, 0")
    a("ds_write_b32 v22, v27 offset:%d" % 0)
    a("ds_write_b32 v22, v26 offset:%d" % 512)
    a("s_not_b64 exec, exec")
    a("ds_write_b32 v22, v24 offset:%d" % (1024 - 128))
    a("s_mov_b64 exec, -1")
    a("ds_write_b32 v195, v194")
    a("s_waitcnt lgkmcnt(0)")
    a("s_barrier")
    a("s_branch kx_loader2")

    a.label("kx_pref")
    a("s_sub_u32 s86, s59, 16")
    if "codepf" in EXP:
        a("s_cmp_lg_u32 s86, 0")
        a("s_cbranch_scc1 kx_nocode")
        a("s_cmp_ge_u32 s16, (kx_end - %s + 8191) / 8192" % name)
        a("s_cbranch_scc1 kx_nocode")
        a("s_getpc_b64 s[22:23]")
        a.label("kx_pc")
        a("s_sub_u32 s22, s22, kx_pc - %s" % name)
        a("s_subb_u32 s23, s23, 0")
        a("v_lshlrev_b32 v11, 7, v0")
        a("s_lshl_b32 s19, s16, 13")
        a("v_add_u32 v11, s19, v11")
        a("v_min_u32 v11, kx_end - %s - 4, v11" % name)
        a("global_load_dword v59, v11, s[22:23]")
        a.label("kx_nocode")
    a("v_lshrrev_b32 v6, 3, v0")
    a("v_and_b32 v7, 7, v0")
    a("v_lshlrev_b32 v8, 12, v6")
    a("v_lshlrev_b32 v6, 10, v6")
    a("v_lshlrev_b32 v9, 7, v7")
    a("v_add_u32 v6, v6, v9")
    a("v_add_u32 v14, v8, v9")
    a("s_cmp_eq_u32 s89, 0")
    a("s_cselect_b32 s24, s38, s40")
    a("s_cselect_b32 s25, s39, s41")
    a("s_cselect_b32 s26, s34, s36")
    a("s_cselect_b32 s27, s35, s37")
    a("s_lshl_b32 s19, s85, 17")
    a("s_add_u32 s22, s32, s19")
    a("s_addc_u32 s23, s33, 0")
    a("s_cmp_lt_u32 s86, 8")
    a("s_cselect_b32 s22, s22, s24")
    a("s_cselect_b32 s23, s23, s25")
    srd(a, 4, 22, 23, 524288)
    a("s_and_b32 s19, s86, 7")
    a("s_lshl_b32 s19, s19, 16")
    a("s_lshl_b32 s20, s16, 13")
    a("s_add_u32 s19, s19, s20")
    a("v_lshlrev_b32 v11, 4, v0")
    a("s_add_u32 s29, s19, 4096")
    for i in range(8):
        a("buffer_load_dwordx4 v[%d:%d], v11, s[4:7], s%d offen offset:%d" % (64 + 4 * i, 67 + 4 * i, 19 if i < 4 else 29, 1024 * (i & 3)))
    a("s_lshl_b32 s19, s60, 22")
    a("s_lshl_b32 s20, s86, 18")
    a("s_add_u32 s19, s19, s20")
    a("s_lshl_b32 s20, s88, 11")
    a("s_add_u32 s19, s19, s20")
    a("s_lshl_b32 s20, s16, 15")
    a("s_add_u32 s19, s19, s20")
    add64(a, 26, 27, "s19")
    srd(a, 8, 26, 27, 7 * 4096 + 2048)
    if 8 < PFN < 16:
        a("v_cmp_gt_u32 vcc, %d, v7" % (PFN - 8))
        a("v_mov_b32 v15, 0x40000000")
        a("v_cndmask_b32 v15, v15, v14, vcc")
    else:
        a("v_mov_b32 v15, v14")
    a("s_lshl_b32 s19, s86, 3")
    a("s_add_u32 s19, s19, s16")
    a("s_mul_i32 s20, s19, 2731")
    a("s_lshr_b32 s20, s20, 16")
    a("s_mul_i32 s21, s20, 24")
    a("s_sub_u32 s21, s19, s21")
    a("s_lshl_b32 s20, s20, 3")
    a("s_add_u32 s20, s20, s58")
    a("s_movk_i32 s19, 3584")
    a("v_mul_lo_u32 v10, v0, s19")
    poll(a, "kx_pollp", ["buffer_load_dword v194, v197, s[72:75], 0 offen%s" % SC], lambda: a("v_cmp_eq_u32 vcc, 0, v194"))
    a("v_readfirstlane_b32 s84, v194")
    for i in range(8):
        for d in range(4):
            unpack(a, 16 + 2 * d, 17 + 2 * d, 64 + 4 * i + d)
        a("v_pk_add_f32 v[24:25], v[16:17], v[18:19]")
        a("v_pk_mul_f32 v[28:29], v[16:17], v[16:17]")
        a("v_pk_add_f32 v[26:27], v[20:21], v[22:23]")
        a("v_pk_fma_f32 v[28:29], v[18:19], v[18:19], v[28:29]")
        a("v_pk_add_f32 v[24:25], v[24:25], v[26:27]")
        a("v_pk_fma_f32 v[28:29], v[20:21], v[20:21], v[28:29]")
        a("v_add_f32 v%d, v24, v25" % (32 + i))
        a("v_pk_fma_f32 v[28:29], v[22:23], v[22:23], v[28:29]")
        a("v_add_f32 v%d, v28, v29" % (40 + i))
    a("s_nop 1")
    for i in range(8):
        a("v_permlane32_swap_b32 v%d, v%d" % (32 + i, 40 + i))
    a("s_nop 1")
    for i in range(8):
        a("v_add_f32 v%d, v%d, v%d" % (32 + i, 32 + i, 40 + i))
    a("s_nop 1")
    for i in range(4):
        a("v_permlane16_swap_b32 v%d, v%d" % (32 + i, 36 + i))
    a("s_nop 1")
    for i in range(4):
        a("v_add_f32 v%d, v%d, v%d" % (32 + i, 32 + i, 36 + i))
    for r in (8, 4, 2, 1):
        a("s_nop 0")
        for i in range(4):
            a("v_add_f32_dpp v%d, v%d, v%d row_ror:%d row_mask:0xf bank_mask:0xf" % (32 + i, 32 + i, 32 + i, r))
    a("v_and_b32 v16, 3, v0")
    a("v_cmp_eq_u32 s[22:23], 1, v16")
    a("v_cmp_eq_u32 s[24:25], 2, v16")
    a("v_cmp_eq_u32 s[26:27], 3, v16")
    a("v_lshrrev_b32 v17, 4, v0")
    a("v_cndmask_b32 v32, v32, v33, s[22:23]")
    a("v_cndmask_b32 v32, v32, v34, s[24:25]")
    a("v_cndmask_b32 v32, v32, v35, s[26:27]")
    a("v_mov_b32 v33, v32")
    a("v_lshl_add_u32 v16, v17, 2, v16")
    a("s_nop 0")
    a("v_permlane32_swap_b32 v32, v33")
    a("s_lshl_b32 s22, s86, 6")
    a("s_lshl_b32 s23, s16, 3")
    a("s_add_u32 s22, s22, s23")
    a("v_add_lshl_u32 v16, v16, s22, 3")
    a("v_mul_f32 v28, 0x3b000000, v32")
    a("v_mul_f32 v29, 0x3b000000, v33")
    a("v_fma_f32 v29, -v28, v28, v29")
    a("v_max_f32 v29, 0, v29")
    bf16r(a, 30, 28)
    bf16r(a, 29, 29)
    a("v_add_f32 v29, 0x3727c5ac, v29")
    bf16r(a, 29, 29)
    a("v_sqrt_f32 v29, v29")
    a("s_lshl_b32 s22, s58, 13")
    a("v_cvt_pk_bf16_f32 v29, v29, v29")
    a("v_and_b32 v29, 0xffff, v29")
    a("v_or_b32 v30, v30, v29")
    a("s_add_u32 s22, s22, %d" % STAT)
    a("s_cmp_lt_u32 s86, 8")
    a("s_cbranch_scc1 kx_pf_x")
    a("v_mov_b32 v30, v32")
    a.label("kx_pf_x")
    a("v_mov_b32 v31, s84")
    a("s_mov_b64 exec, 0x000f000f")
    a("buffer_store_dwordx2 v[30:31], v16, s[68:71], s22 offen%s" % SC)
    a("s_mov_b64 exec, -1")
    stamp(a, 8)
    a("s_cmp_ge_u32 s20, 28")
    a("s_cbranch_scc1 kx_pf_done")
    a("s_cmp_ge_u32 s21, 16")
    a("s_cbranch_scc1 kx_pf_wd")
    a("s_cmp_lt_u32 s21, 8")
    a("s_cselect_b32 s22, s46, s48")
    a("s_cselect_b32 s23, s47, s49")
    srd(a, 12, 22, 23, 512 * 3584)
    a("s_and_b32 s21, s21, 7")
    a("s_mul_i32 s19, s21, %d" % (64 * 3584))
    a("s_lshl_b32 s20, s20, 7")
    a("s_add_u32 s19, s19, s20")
    a("buffer_load_dword v61, v10, s[12:15], s19 offen" + NT)
    a("s_branch kx_pf_done")
    a.label("kx_pf_wd")
    srd(a, 12, 50, 51, 1792 * 1024)
    a("s_sub_u32 s21, s21, 16")
    a("s_lshl_b32 s19, s20, 16")
    a("s_lshl_b32 s21, s21, 13")
    a("s_add_u32 s19, s19, s21")
    a("buffer_load_dword v61, v6, s[12:15], s19 offen" + NT)
    a.label("kx_pf_done")
    if PFN > 0:
        a("buffer_load_dword v62, v14, s[8:11], 0 offen" + NT)
    if PFN > 8:
        a("buffer_load_dword v63, v15, s[8:11], 0 offen offset:1024" + NT)
    a("s_waitcnt vmcnt(0)")
    stamp(a, 1)
    a("s_cmp_ge_u32 s16, 4")
    a("s_cbranch_scc1 kx_loader2")
    setup2("p")
    a("s_barrier")
    a("s_branch kx_cons2")

    a.label("kx_loader2")
    a("s_lshl_b32 s19, s89, 2")
    a("s_add_u32 s19, s19, s62")
    a("s_lshl_b32 s24, s19, 11")
    a("s_lshl_b32 s19, s19, 19")
    a("s_lshl_b32 s20, s88, 18")
    a("s_add_u32 s19, s19, s20")
    a("s_add_u32 s22, s56, s19")
    a("s_addc_u32 s23, s57, 0")
    srd(a, 4, 22, 23, 16 * 16384)
    a("s_cmp_eq_u32 s89, 0")
    a("s_cselect_b32 s22, s34, s36")
    a("s_cselect_b32 s23, s35, s37")
    a("s_lshl_b32 s19, s63, 19")
    a("s_lshl_b32 s21, s88, 11")
    a("s_add_u32 s19, s19, s21")
    add64(a, 22, 23, "s19")
    srd(a, 8, 22, 23, 127 * 4096 + 2048)
    a("s_lshl_b32 s20, s88, 10")
    a("s_add_u32 s24, s24, s20")
    a("s_add_u32 s24, s24, %d" % FLAG0)
    a("s_sub_u32 s17, s16, 4")
    a("v_lshrrev_b32 v1, 3, v0")
    a("v_lshrrev_b32 v2, 4, v0")
    a("v_and_b32 v3, 7, v0")
    a("s_lshl_b32 s18, s17, 5")
    a("v_add_u32 v1, s18, v1")
    a("v_lshlrev_b32 v6, 7, v1")
    for j in range(4):
        a("v_add_u32 v4, %d, v1" % (8 * j))
        a("v_lshlrev_b32 v4, 12, v4")
        a("v_add_u32 v5, %d, v2" % (4 * j))
        a("v_and_b32 v5, 7, v5")
        a("v_xor_b32 v5, v5, v3")
        a("v_lshlrev_b32 v5, 4, v5")
        a("v_add_u32 v4, v4, v5")
        a("v_subrev_u32 v%d, %d, v4" % (8 + j, 1024 * j))
        a("v_add_u32 v%d, v6, v5" % (12 + j))
    a("s_lshl_b32 s21, s17, 12")
    a("s_barrier")
    a("s_mov_b32 s20, 0")
    a("s_add_u32 s19, s21, 16384")
    a.label("kx_l2q")
    a("s_mov_b32 m0, s19")
    a("s_add_u32 s19, s19, %d" % SLOT)
    for j in range(4):
        a("buffer_load_dwordx4 v%d, s[8:11], s20 offen offset:%d%s lds" % (8 + j, 1024 * j, NTQ))
    a("s_add_u32 s20, s20, 128")
    a("s_cmp_lt_u32 s20, 512")
    a("s_cbranch_scc1 kx_l2q")
    a("s_cmp_lg_u32 s16, 4")
    a("s_cbranch_scc1 kx_poll0_done")
    a("v_lshlrev_b32 v20, 7, v3")

    def f0cond():
        a("v_xor_b32 v24, s84, v24")
        a("v_xor_b32 v25, s84, v25")
        a("v_xor_b32 v26, s84, v26")
        a("v_xor_b32 v27, s84, v27")
        a("v_or3_b32 v24, v24, v25, v26")
        a("v_or_b32 v24, v24, v27")
        a("v_cmp_ne_u32 vcc, 0, v24")
    a("s_mov_b64 exec, 0xff")
    poll(a, "kx_poll0", ["buffer_load_dwordx4 v[24:27], v20, s[68:71], s24 offen%s" % SC], f0cond)
    a("s_mov_b64 exec, -1")
    stamp(a, 2)
    a("s_barrier")
    a("s_mov_b32 s26, 0")
    a("s_mov_b32 s19, s21")
    a.label("kx_l2p")
    a("s_mov_b32 m0, s19")
    a("s_add_u32 s19, s19, %d" % SLOT)
    for j in range(4):
        a("buffer_load_dwordx4 v%d, s[4:7], s26 offen offset:%d%s lds" % (12 + j, 1024 * j, SC))
    a("s_add_u32 s26, s26, 16384")
    a("s_cmp_lt_u32 s26, 65536")
    a("s_cbranch_scc1 kx_l2p")
    a("s_waitcnt vmcnt(8)")
    a("s_barrier")
    a("s_add_u32 s21, s21, %d" % (4 * SLOT))
    a("s_mov_b32 s25, 4")
    a("s_mov_b32 s22, 4")
    a.label("kx_l2loop")
    a("s_mov_b32 m0, s21")
    a("s_add_u32 s19, s21, 16384")
    for j in range(4):
        a("buffer_load_dwordx4 v%d, s[4:7], s26 offen offset:%d%s lds" % (12 + j, 1024 * j, SC))
    a("s_mov_b32 m0, s19")
    a("s_add_u32 s25, s25, 1")
    for j in range(4):
        a("buffer_load_dwordx4 v%d, s[8:11], s20 offen offset:%d%s lds" % (8 + j, 1024 * j, NTQ))
    a("s_add_u32 s20, s20, 128")
    a("s_add_u32 s26, s26, 16384")
    a("s_add_u32 s21, s21, %d" % SLOT)
    a("s_cmp_eq_u32 s25, %d" % NSLOT)
    a("s_cselect_b32 s19, %d, 0" % (SLOT * NSLOT))
    a("s_cselect_b32 s27, %d, 0" % NSLOT)
    a("s_sub_u32 s21, s21, s19")
    a("s_sub_u32 s25, s25, s27")
    a("s_add_u32 s22, s22, 1")
    a("s_cmp_lg_u32 s22, 5")
    a("s_cbranch_scc1 kx_l2w16")
    a("s_waitcnt vmcnt(12)")
    a.label("kx_l2w16")
    a("s_waitcnt vmcnt(16)")
    a("s_barrier")
    a("s_cmp_lt_u32 s22, 16")
    a("s_cbranch_scc1 kx_l2loop")
    a("s_waitcnt vmcnt(8)")
    a("s_barrier")
    a("s_waitcnt vmcnt(0)")
    a("s_barrier")
    stamp(a, 3)

    a.label("kx_rows")
    stamp(a, 12)
    srd(a, 72, 32, 33, 2 << 20)
    srd(a, 76, 44, 45, 1024)
    srd(a, 80, 52, 53, 2 << 20)
    a("s_lshl_b32 s18, s64, 3")
    a("s_add_u32 s18, s18, s16")
    a("v_lshlrev_b32 v2, 4, v0")
    a("s_lshl_b32 s19, s18, 10")
    a("buffer_load_dwordx4 v[24:27], v2, s[72:75], s19 offen")
    a("buffer_load_dwordx4 v[28:31], v2, s[76:79], 0 offen")
    a("v_lshrrev_b32 v5, 4, v0")
    a("v_lshlrev_b32 v5, 17, v5")
    a("v_and_b32 v6, 8, v0")
    a("v_lshlrev_b32 v6, 11, v6")
    a("v_and_b32 v7, 7, v0")
    a("v_lshlrev_b32 v7, 4, v7")
    a("v_add3_u32 v5, v5, v6, v7")
    a("s_lshl_b32 s21, s63, 19")
    a("s_and_b32 s22, s18, 64")
    a("s_lshl_b32 s22, s22, 7")
    a("s_add_u32 s21, s21, s22")
    a("s_and_b32 s22, s18, 63")
    a("s_lshl_b32 s22, s22, 7")
    a("s_add_u32 s21, s21, s22")
    a("s_add_u32 s21, s21, %d" % PART_OFF)
    a("v_and_b32 v3, 15, v0")
    a("v_lshlrev_b32 v3, 7, v3")
    a("s_lshl_b32 s20, s63, 11")
    a("s_add_u32 s20, s20, %d" % FLAG1)
    a("s_lshl_b32 s22, s16, 2")
    a("s_add_u32 s22, s22, 98304")
    a("v_mov_b32 v73, s22")
    a("v_mov_b32 v74, 98304")
    a("s_waitcnt vmcnt(0)")
    for i in range(4):
        unpack(a, 64 + 2 * i, 65 + 2 * i, 28 + i)
        unpack(a, 76 + 2 * i, 77 + 2 * i, 24 + i)
    a("v_pk_add_f32 v[48:49], v[64:65], v[66:67]")
    a("v_pk_add_f32 v[50:51], v[68:69], v[70:71]")
    a("v_pk_add_f32 v[48:49], v[48:49], v[50:51]")
    a("v_add_f32 v72, v48, v49")
    allreduce64(a, "add_f32", 72, 49)
    a("s_cmp_lg_u32 s16, 0")
    a("s_cbranch_scc1 kx_poll1_done")

    def f1cond():
        a("v_xor_b32 v8, s84, v8")
        a("v_xor_b32 v9, s84, v9")
        a("v_xor_b32 v10, s84, v10")
        a("v_xor_b32 v11, s84, v11")
        a("v_or3_b32 v8, v8, v9, v10")
        a("v_or_b32 v8, v8, v11")
        a("v_cmp_ne_u32 vcc, 0, v8")
    a("s_mov_b64 exec, 0xffff")
    poll(a, "kx_poll1", ["buffer_load_dwordx4 v[8:11], v3, s[68:71], s20 offen%s" % SC], f1cond)
    a("s_mov_b64 exec, -1")
    a("s_barrier")
    stamp(a, 4)
    for ks in range(4):
        a("s_add_u32 s20, s21, %d" % (ks * 32768))
        a("buffer_load_dwordx4 v[%d:%d], v5, s[68:71], s20 offen%s" % (8 + 4 * ks, 11 + 4 * ks, SC))
    a("s_waitcnt vmcnt(0)")
    stamp(a, 13)
    for i in range(4):
        unpack(a, 48, 49, 8 + i)
        unpack(a, 50, 51, 12 + i)
        unpack(a, 52, 53, 16 + i)
        unpack(a, 54, 55, 20 + i)
        a("v_pk_add_f32 v[48:49], v[48:49], v[50:51]")
        a("v_pk_add_f32 v[52:53], v[52:53], v[54:55]")
        a("v_pk_add_f32 v[48:49], v[48:49], v[%d:%d]" % (76 + 2 * i, 77 + 2 * i))
        a("v_pk_add_f32 v[48:49], v[48:49], v[52:53] neg_lo:[0,1] neg_hi:[0,1]")
        a("v_cvt_pk_bf16_f32 v%d, v48, v49" % (32 + i))
        unpack(a, 40 + 2 * i, 41 + 2 * i, 32 + i)
    a("v_pk_add_f32 v[48:49], v[40:41], v[42:43]")
    a("v_pk_mul_f32 v[50:51], v[40:41], v[40:41]")
    a("v_pk_mul_f32 v[52:53], v[40:41], v[64:65]")
    a("v_pk_add_f32 v[54:55], v[44:45], v[46:47]")
    for i in range(1, 4):
        a("v_pk_fma_f32 v[50:51], v[%d:%d], v[%d:%d], v[50:51]" % (40 + 2 * i, 41 + 2 * i, 40 + 2 * i, 41 + 2 * i))
        a("v_pk_fma_f32 v[52:53], v[%d:%d], v[%d:%d], v[52:53]" % (40 + 2 * i, 41 + 2 * i, 64 + 2 * i, 65 + 2 * i))
    a("v_pk_add_f32 v[48:49], v[48:49], v[54:55]")
    a("v_add_f32 v50, v50, v51")
    a("v_add_f32 v52, v52, v53")
    a("v_add_f32 v48, v48, v49")
    for r in (8, 4, 2, 1):
        for v in (50, 52, 48):
            a("v_add_f32_dpp v%d, v%d, v%d row_ror:%d row_mask:0xf bank_mask:0xf" % (v, v, v, r))
    for op in ("v_permlane16_swap_b32", "v_permlane32_swap_b32"):
        for v in (50, 52, 48):
            a("v_mov_b32 v%d, v%d" % (v + 1, v))
        a("s_nop 0")
        for v in (50, 52, 48):
            a("%s v%d, v%d" % (op, v, v + 1))
        a("s_nop 0")
        for v in (50, 52, 48):
            a("v_add_f32 v%d, v%d, v%d" % (v, v, v + 1))
    a("v_mul_f32 v58, 0x3b000000, v48")
    a("v_mul_f32 v50, 0x3b000000, v50")
    a("v_fma_f32 v50, -v58, v58, v50")
    a("v_max_f32 v50, 0, v50")
    bf16r(a, 60, 58)
    bf16r(a, 50, 50)
    a("v_add_f32 v50, 0x3727c5ac, v50")
    bf16r(a, 50, 50)
    a("v_sqrt_f32 v50, v50")
    a("v_fma_f32 v52, -v60, v72, v52")
    bf16r(a, 50, 50)
    a("v_rcp_f32 v58, v50")
    a("s_sub_u32 s20, 0xffff, s18")
    a("v_mul_f32 v48, v52, v58")
    a("v_cvt_pk_bf16_f32 v48, v48, v48")
    a("v_and_b32 v48, 0xffff0000, v48")
    a("v_ashrrev_i32 v49, 31, v48")
    a("v_and_b32 v49, 0x7fff0000, v49")
    a("v_or_b32 v49, 0x80000000, v49")
    a("v_xor_b32 v48, v48, v49")
    a("v_or_b32 v48, s20, v48")
    a("ds_write_b32 v73, v48")
    a("v_mov_b32 v49, s84")
    a("v_mul_f32 v62, v60, v58")
    a("v_sub_f32 v62, 0, v62")
    a("s_waitcnt lgkmcnt(0)")
    a("s_barrier")
    a("ds_read_b128 v[8:11], v74")
    a("ds_read_b128 v[12:15], v74 offset:16")
    a("s_lshl_b32 s20, s64, 11")
    a("s_add_u32 s20, s20, %d" % SELROW)
    a("s_lshr_b32 s21, s64, 2")
    a("s_lshl_b32 s21, s21, 7")
    a("s_and_b32 s22, s64, 3")
    a("s_lshl_b32 s22, s22, 3")
    a("s_add_u32 s21, s21, s22")
    a("s_add_u32 s21, s21, %d" % KEYS)
    a("v_lshlrev_b32 v5, 13, v0")
    a("s_waitcnt lgkmcnt(0)")
    a("v_max3_u32 v8, v8, v9, v10")
    a("v_max3_u32 v8, v8, v11, v12")
    a("v_max3_u32 v8, v8, v13, v14")
    a("v_max_u32 v63, v8, v15")
    a("v_cmp_eq_u32 vcc, v63, v48")
    a("s_nop 2")
    a("s_and_b64 s[22:23], vcc, %d" % ((1 << NREP) - 1))
    a("s_mov_b64 exec, s[22:23]")
    a("s_cbranch_execz kx_nokey")
    a("buffer_store_dwordx2 v[48:49], v5, s[68:71], s21 offen%s" % SC)
    a.label("kx_nokey")
    a("s_mov_b64 exec, -1")
    stamp(a, 14)
    for i in range(4):
        a("v_pk_fma_f32 v[50:51], v[%d:%d], v[58:59], v[62:63] op_sel_hi:[1,0,0]" % (40 + 2 * i, 41 + 2 * i))
        a("v_cvt_pk_bf16_f32 v%d, v50, v51" % (36 + i))
        unpack(a, 50, 51, 36 + i)
        a("v_pk_add_f32 v[50:51], v[%d:%d], v[50:51]" % (40 + 2 * i, 41 + 2 * i))
        a("v_cvt_pk_bf16_f32 v%d, v50, v51" % (24 + i))
    a("s_cmp_eq_u64 s[22:23], 0")
    a("s_cbranch_scc0 kx_best")
    a("buffer_store_dwordx4 v[24:27], v2, s[80:83], s19 offen" + OUTF)
    a("s_branch kx_notbest")
    a.label("kx_best")
    a("buffer_store_dwordx4 v[36:39], v2, s[68:71], s20 offen%s" % SC)
    a("buffer_store_dwordx4 v[32:35], v2, s[68:71], s20 offen offset:1024%s" % SC)
    a("ds_write_b128 v2, v[24:27] offset:32768")
    a("s_waitcnt lgkmcnt(0)")
    a.label("kx_notbest")
    a("s_cmp_ge_u32 s16, 4")
    a("s_cbranch_scc1 kx_exit")

    a("s_cmp_lt_u32 s65, 28")
    a("s_cbranch_scc1 kx_keys")
    a("s_cmp_ge_u32 s16, 2")
    a("s_cbranch_scc1 kx_exit")
    a.label("kx_keys")
    a("s_and_b32 s20, s64, %d" % (NREP - 1))
    a("s_lshl_b32 s20, s20, 13")
    a("s_add_u32 s20, s20, %d" % KEYS)
    a("v_lshlrev_b32 v3, 7, v0")
    a("v_mov_b32 v5, 98816")
    a("s_cmp_lg_u32 s16, 0")
    a("s_cbranch_scc1 kx_keywait")

    def keycond():
        a("v_xor_b32 v9, s84, v9")
        a("v_xor_b32 v11, s84, v11")
        a("v_xor_b32 v13, s84, v13")
        a("v_xor_b32 v15, s84, v15")
        a("v_or3_b32 v4, v9, v11, v13")
        a("v_or_b32 v4, v4, v15")
        a("v_cmp_ne_u32 vcc, 0, v4")
    poll(a, "kx_poll2", ["buffer_load_dwordx4 v[8:11], v3, s[68:71], s20 offen%s" % SC,
                         "buffer_load_dwordx4 v[12:15], v3, s[68:71], s20 offen offset:16%s" % SC], keycond)
    a("v_max_u32 v64, v8, v10")
    a("v_max3_u32 v64, v64, v12, v14")
    allreduce64(a, "max_u32", 64, 65)
    a("ds_write_b32 v5, v64")
    a("s_waitcnt lgkmcnt(0)")
    a.label("kx_keywait")
    a("s_barrier")
    a("ds_read_b32 v64, v5")
    a("ds_read_b128 v[24:27], v2 offset:32768")
    a("s_waitcnt lgkmcnt(0)")
    stamp(a, 5)
    a("v_and_b32 v66, 0xffff, v64")
    a("v_sub_u32 v66, 0xffff, v66")
    a("v_lshrrev_b32 v67, 3, v66")
    a("v_lshlrev_b32 v67, 11, v67")
    a("s_cmp_lg_u32 s16, 1")
    a("s_cbranch_scc1 kx_noparked")
    a("v_and_b32 v4, 0xffff, v63")
    a("v_sub_u32 v4, 0xffff, v4")
    a("v_lshlrev_b32 v4, 10, v4")
    a("v_add_u32 v4, v4, v2")
    a("v_cmp_ne_u32 vcc, v63, v64")
    a("s_and_saveexec_b64 s[22:23], vcc")
    a("s_cbranch_execz kx_parkskip")
    a("buffer_store_dwordx4 v[24:27], v4, s[80:83], 0 offen" + OUTF)
    a.label("kx_parkskip")
    a("s_mov_b64 exec, -1")
    a.label("kx_noparked")
    a("s_mov_b32 s20, %d" % SELROW)
    a("s_cmp_ge_u32 s65, 28")
    a("s_cbranch_scc1 kx_final")
    a("v_lshlrev_b32 v4, 2, v199")
    a("v_add_u32 v68, v67, v4")
    poll(a, "kx_poll4", ["buffer_load_dword v75, v68, s[68:71], s20 offen%s" % SC],
         lambda: a("v_cmp_eq_u32 vcc, -1, v75"))
    a("s_mov_b32 s22, 0x05040100")
    a("s_mov_b32 s23, 0x07060302")
    for m in range(2):
        for i in range(4):
            a("v_perm_b32 v%d, v%d, v%d, s22" % (32 + 8 * m + 2 * i, 204 + 8 * m + i, 200 + 8 * m + i))
            a("v_perm_b32 v%d, v%d, v%d, s23" % (33 + 8 * m + 2 * i, 204 + 8 * m + i, 200 + 8 * m + i))
    for i in range(16):
        a("v_dot2_f32_bf16 v%d, v%d, v75, 0" % (48 + i, 32 + i))
    a("s_nop 2")
    for i in range(8):
        a("v_permlane32_swap_b32 v%d, v%d" % (48 + i, 56 + i))
    a("s_nop 1")
    for i in range(8):
        a("v_add_f32 v%d, v%d, v%d" % (48 + i, 48 + i, 56 + i))
    a("s_nop 1")
    for i in range(4):
        a("v_permlane16_swap_b32 v%d, v%d" % (48 + i, 52 + i))
    a("s_nop 1")
    for i in range(4):
        a("v_add_f32 v%d, v%d, v%d" % (48 + i, 48 + i, 52 + i))
    for r in (8, 4, 2, 1):
        a("s_nop 0")
        for i in range(4):
            a("v_add_f32_dpp v%d, v%d, v%d row_ror:%d row_mask:0xf bank_mask:0xf" % (48 + i, 48 + i, 48 + i, r))
    a("s_lshl_b32 s21, s16, 6")
    a("s_add_u32 s21, s21, 98560")
    a("v_lshrrev_b32 v7, 4, v0")
    a("v_lshlrev_b32 v7, 4, v7")
    a("v_add_u32 v6, s21, v7")
    a("ds_write_b128 v6, v[48:51]")
    a("v_and_b32 v7, 7, v0")
    a("v_lshlrev_b32 v7, 2, v7")
    a("v_add_u32 v7, 98560, v7")
    a("s_waitcnt lgkmcnt(0)")
    a("s_barrier")
    for w in range(4):
        a("ds_read_b32 v%d, v7 offset:%d" % (48 + w, 64 * w))
        a("ds_read_b32 v%d, v7 offset:%d" % (52 + w, 64 * w + 32))
    a("s_waitcnt lgkmcnt(0)")
    a("v_add_f32 v48, v48, v49")
    a("v_add_f32 v50, v50, v51")
    a("v_add_f32 v52, v52, v53")
    a("v_add_f32 v54, v54, v55")
    a("v_add_f32 v48, v48, v50")
    a("v_add_f32 v52, v52, v54")
    bf16r(a, 48, 48)
    bf16r(a, 52, 52)
    a("v_mul_f32 v49, 0xbfb8aa3b, v48")
    a("v_exp_f32 v49, v49")
    a("s_nop 0")
    a("v_add_f32 v49, 1.0, v49")
    a("v_rcp_f32 v49, v49")
    a("s_nop 0")
    a("v_mul_f32 v48, v48, v49")
    bf16r(a, 48, 48)
    a("v_mul_f32 v48, v48, v52")
    bf16r(a, 48, 48)
    a("s_nop 0")
    for j in range(8):
        a("v_readlane_b32 s%d, v48, %d" % (4 + j, j))
    a("v_mov_b32 v50, 0")
    a("v_mov_b32 v51, 0")
    for j in range(8):
        unpack(a, 52, 53, 216 + j)
        a("v_fmac_f32 v50, s%d, v52" % (4 + j))
        a("v_fmac_f32 v51, s%d, v53" % (4 + j))
    a("v_lshlrev_b32 v6, 3, v199")
    a("s_lshl_b32 s20, s66, 11")
    a("s_add_u32 s20, s20, %d" % YP_OFF)
    a("buffer_store_dwordx2 v[50:51], v6, s[68:71], s20 offen%s" % SC)
    stamp(a, 7)
    a("s_endpgm")

    a.label("kx_final")
    a("v_lshrrev_b32 v5, 4, v0")
    a("v_lshlrev_b32 v3, 2, v5")
    a("s_lshl_b32 s19, s66, 4")
    a("v_add_u32 v3, s19, v3")
    a("v_add_u32 v68, v67, v3")

    def hcond():
        a("v_max_u32 v4, v69, v75")
        a("v_cmp_eq_u32 vcc, -1, v4")
    poll(a, "kx_poll5", ["buffer_load_dword v75, v68, s[68:71], s20 offen%s" % SC,
                         "buffer_load_dword v69, v68, s[68:71], s20 offen offset:1024%s" % SC], hcond)
    a("v_and_b32 v52, 0xffff0000, v64")
    a("v_ashrrev_i32 v53, 31, v52")
    a("v_not_b32 v53, v53")
    a("v_and_b32 v53, 0x7fff0000, v53")
    a("v_or_b32 v53, 0x80000000, v53")
    a("v_xor_b32 v52, v52, v53")
    a("v_mul_f32 v53, 0xbfb8aa3b, v52")
    a("v_exp_f32 v53, v53")
    a("s_nop 0")
    a("v_add_f32 v53, 1.0, v53")
    a("v_rcp_f32 v53, v53")
    a("s_nop 0")
    bf16r(a, 44, 53)
    unpack(a, 40, 41, 69)
    unpack(a, 42, 43, 75)
    a("v_lshlrev_b32 v45, 10, v66")
    a("v_add_u32 v45, v45, v3")
    a("v_lshlrev_b32 v1, 11, v0")
    a("s_lshl_b32 s19, s66, 5")
    a("v_add_u32 v1, s19, v1")
    a("v_cmp_gt_u32 vcc, 32, v0")
    a("v_mov_b32 v6, 0x40000000")
    a("v_cndmask_b32 v6, v6, v1, vcc")
    for i in range(4):
        a("s_mov_b32 s%d, %d" % (24 + i, YP_OFF + 131072 * i))
    loads = []
    for i in range(4):
        vo = 1 if i < 3 else 6
        loads.append("buffer_load_dwordx4 v[%d:%d], v%d, s[68:71], s%d offen%s" % (8 + 8 * i, 11 + 8 * i, vo, 24 + i, SC))
        loads.append("buffer_load_dwordx4 v[%d:%d], v%d, s[68:71], s%d offen offset:16%s" % (12 + 8 * i, 15 + 8 * i, vo, 24 + i, SC))

    def ycond():
        a("v_max3_u32 v4, v8, v9, v10")
        for i in range(11, 39, 2):
            a("v_max3_u32 v4, v4, v%d, v%d" % (i, i + 1))
        a("v_max_u32 v4, v4, v39")
        a("v_cmp_eq_u32 vcc, -1, v4")
    poll(a, "kx_poll3", loads, ycond)
    for i in range(4):
        a("v_pk_add_f32 v[%d:%d], v[%d:%d], v[%d:%d]" % (8 + 2 * i, 9 + 2 * i, 8 + 2 * i, 9 + 2 * i, 16 + 2 * i, 17 + 2 * i))
        a("v_pk_add_f32 v[%d:%d], v[%d:%d], v[%d:%d]" % (24 + 2 * i, 25 + 2 * i, 24 + 2 * i, 25 + 2 * i, 32 + 2 * i, 33 + 2 * i))
    for i in range(4):
        a("v_pk_add_f32 v[%d:%d], v[%d:%d], v[%d:%d]" % (8 + 2 * i, 9 + 2 * i, 8 + 2 * i, 9 + 2 * i, 24 + 2 * i, 25 + 2 * i))
    a("s_nop 1")
    for i in range(4):
        a("v_permlane32_swap_b32 v%d, v%d" % (8 + i, 12 + i))
    a("s_nop 1")
    for i in range(4):
        a("v_add_f32 v%d, v%d, v%d" % (8 + i, 8 + i, 12 + i))
    a("s_nop 1")
    for i in range(2):
        a("v_permlane16_swap_b32 v%d, v%d" % (8 + i, 10 + i))
    a("s_nop 1")
    for i in range(2):
        a("v_add_f32 v%d, v%d, v%d" % (8 + i, 8 + i, 10 + i))
    for r in (8, 4, 2, 1):
        a("s_nop 1")
        for i in range(2):
            a("v_add_f32_dpp v%d, v%d, v%d row_ror:%d row_mask:0xf bank_mask:0xf" % (8 + i, 8 + i, 8 + i, r))
    for i in range(2):
        bf16r(a, 8 + i, 8 + i)
        a("v_mul_f32 v%d, v%d, v44" % (8 + i, 8 + i))
        bf16r(a, 8 + i, 8 + i)
        a("v_add_f32 v%d, v%d, v%d" % (8 + i, 8 + i, 42 + i))
        bf16r(a, 8 + i, 8 + i)
        a("v_add_f32 v%d, v%d, v%d" % (8 + i, 8 + i, 40 + i))
    a("v_cvt_pk_bf16_f32 v8, v8, v9")
    a("v_and_b32 v6, 15, v0")
    a("v_cmp_eq_u32 vcc, 0, v6")
    a("s_and_saveexec_b64 s[30:31], vcc")
    a("buffer_store_dword v8, v45, s[80:83], 0 offen" + OUTF)
    a("s_mov_b64 exec, -1")
    if gen.STAMPS:
        a("s_waitcnt vmcnt(0)")
    stamp(a, 7)
    a.label("kx_exit")
    a("s_endpgm")
    a.label("kx_end")
    return name, 224


def main(out):
    head = open("cdna_kernels/%s.s.ref" % NAME).read().split("\n")
    a = A()
    for line in head:
        if line.startswith(";") and "@launch" not in line:
            a.raw(line)
    if "--plain" in sys.argv:
        kname = NAME + "_kernel"
        a.raw("; @launch grid=(256,1,1) block=(512,1,1) lds=163840")
    else:
        kname = "kx_kernel"
        a.raw("; @launch kernel=%s grid=(256,1,1) block=(512,1,1) lds=163840" % kname)
    a.raw('.amdgcn_target "amdgcn-amd-amdhsa--gfx950"')
    name, vg = kx(a, kname)
    if DBGSTAMP:
        kernel_desc(a, name, 256, 102)
    else:
        kernel_desc(a, name, vg, 96)
    open(out, "w").write(a.text())


if __name__ == "__main__":
    args = [x for x in sys.argv[1:] if not x.startswith("--")]
    if "--stamps" in sys.argv:
        gen.STAMPS = True
    for x in sys.argv:
        if x.startswith("--exp="):
            gen.EXP = set(x[6:].split(","))
        if x.startswith("--sleep="):
            SLEEP = int(x[8:])
        if x.startswith("--pfn="):
            PFN = int(x[6:])
        if x.startswith("--nrep="):
            NREP = int(x[7:])
        if x == "--dbg":
            DBGSTAMP = True
        if x.startswith("--outf="):
            OUTF = " " + x[7:].replace(",", " ")
        if x == "--noq":
            NTQ = ""
        if x == "--nont":
            NT = ""
    main(args[0] if args else "cdna_kernels/%s.s" % NAME)
```

```python
import sys
import gen
from gen import (A, NAME, kernel_head, kernel_desc, srd, add64, bf16r, unpack, allreduce64, wave_split,
                 stamp, stampc, stamp_init, SLOT, NSLOT, ACC, FR, AP, AQ, KA_WS)

ABT_OFF = 0
PART_OFF = 4 << 20
FLAG0 = 12 << 20
FLAG1 = FLAG0 + 16384
KEYS = FLAG1 + 32768
STAT = 13 << 20
YP_OFF = 15 << 20
SELROW = 16 << 20
WS_SRD_SIZE = 32 << 20
NREP = 4
SC = " sc1"
SPIN_MAX = 1 << 20
SLEEP = 4
NT = ""
NTQ = ""
PFN = 12
PF0 = 4
FFNST = 99
OUTF = ""
STATS_LDS = 4 * SLOT
SUMW_LDS = STATS_LDS + 1024
NONCE_LDS = STATS_LDS + 2048


def poll(a, lbl, loads, cond):
    a("s_mov_b32 s31, 0")
    a.label(lbl)
    for l in loads:
        a(l)
    a("s_waitcnt vmcnt(0)")
    cond()
    a("s_add_u32 s31, s31, 1")
    a("s_nop 1")
    a("s_cmp_eq_u64 vcc, 0")
    a("s_cbranch_scc1 %s_done" % lbl)
    a("s_cmp_ge_u32 s31, %d" % SPIN_MAX)
    a("s_cbranch_scc1 %s_done" % lbl)
    a("s_sleep %d" % SLEEP)
    a("s_branch %s" % lbl)
    a.label(lbl + "_done")


DBGSTAMP = False
DBGWG = 0
_dbgn = [0]


def dstamp(a, slot):
    _dbgn[0] += 1
    lbl = "kx_ds%d" % _dbgn[0]
    a("s_cmp_lg_u32 s2, %d" % (255 if slot == 7 else DBGWG))
    a("s_cbranch_scc1 %s" % lbl)
    a("s_cmp_lg_u32 s16, 0")
    a("s_cbranch_scc1 %s" % lbl)
    a("s_memrealtime s[98:99]")
    a("s_waitcnt lgkmcnt(0)")
    a("v_mov_b32 v254, s98")
    a("v_mov_b32 v255, %d" % (4 * (slot + 1)))
    a("s_mov_b64 s[100:101], exec")
    a("s_mov_b64 exec, 1")
    a("buffer_store_dword v254, v255, s[92:95], 0 offen")
    a("s_mov_b64 exec, s[100:101]")
    a.label(lbl)


def kx(a, name):
    global stamp, stamp_init
    gen.STV = 254
    EXP = gen.EXP
    if DBGSTAMP:
        stamp = dstamp
        stamp_init = lambda a, k, lo, hi: srd(a, 92, 54, 55, 256)
    def setup2(sfx):
        a("s_lshl_b32 s31, s16, 6")
        a("v_add_u32 v199, s31, v0")
        for r in range(4):
            a("v_mov_b32 v%d, -1" % (16 + r))
        a("v_lshlrev_b32 v4, 4, v0")
        a("s_and_b32 s21, s16, 1")
        a("s_lshl_b32 s21, s21, 10")
        a("s_cmp_lt_u32 s16, 2")
        a("s_cbranch_scc1 kx_c2a" + sfx)
        a("s_lshl_b32 s20, s64, 11")
        a("s_add_u32 s20, s20, s21")
        a("s_add_u32 s20, s20, %d" % SELROW)
        a("buffer_store_dwordx4 v[16:19], v4, s[68:71], s20 offen%s" % SC)
        a.label("kx_c2a" + sfx)
        a("s_cmp_ge_u32 s65, 28")
        a("s_cbranch_scc1 kx_c2final" + sfx)
        a("s_and_b32 s66, s59, 7")
        a("s_lshl_b32 s26, s65, 3")
        a("s_add_u32 s66, s66, s26")
        a("s_cmp_ge_u32 s16, 2")
        a("s_cbranch_scc1 kx_c2b" + sfx)
        a("s_lshl_b32 s20, s66, 11")
        a("s_add_u32 s20, s20, s21")
        a("s_add_u32 s20, s20, %d" % YP_OFF)
        a("buffer_store_dwordx4 v[16:19], v4, s[68:71], s20 offen%s" % SC)
        a.label("kx_c2b" + sfx)
        a("s_branch kx_c2done" + sfx)
        a.label("kx_c2final" + sfx)
        a("s_sub_u32 s66, s58, 4")
        a("s_lshl_b32 s66, s66, 3")
        a("s_add_u32 s66, s66, s59")
        a("s_sub_u32 s66, s66, 24")
        a("s_lshl_b32 s66, s66, 1")
        a("s_add_u32 s66, s66, s16")
        a.label("kx_c2done" + sfx)

    def ffnloads():
        srd(a, 12, 46, 47, 512 * 3584)
        srd(a, 72, 48, 49, 512 * 3584)
        srd(a, 76, 50, 51, 1792 * 1024)
        a("s_movk_i32 s31, 7168")
        a("v_mul_lo_u32 v5, v199, s31")
        a("s_lshl_b32 s31, s66, 4")
        a("v_add_u32 v5, s31, v5")
        a("v_lshlrev_b32 v4, 2, v199")
        a("s_lshl_b32 s28, s66, 13")
        a("s_add_u32 s29, s28, 4096")
        a("buffer_load_dwordx4 v[200:203], v5, s[12:15], 0 offen")
        a("buffer_load_dwordx4 v[204:207], v5, s[12:15], 0 offen offset:3584")
        a("buffer_load_dwordx4 v[208:211], v5, s[72:75], 0 offen")
        a("buffer_load_dwordx4 v[212:215], v5, s[72:75], 0 offen offset:3584")
        for j in range(4):
            a("buffer_load_dword v%d, v4, s[76:79], s28 offen offset:%d" % (216 + j, 1024 * j))
        for j in range(4):
            a("buffer_load_dword v%d, v4, s[76:79], s29 offen offset:%d" % (220 + j, 1024 * j))

    kernel_head(a, name)
    a("s_cmp_ge_u32 s2, 256")
    a("s_cbranch_scc1 kx_exit")
    a("s_load_dwordx16 s[32:47], s[0:1], 0")
    a("s_load_dwordx8 s[48:55], s[0:1], 64")
    a("s_load_dwordx2 s[56:57], s[0:1], %d" % KA_WS)
    wave_split(a)
    a("s_and_b32 s58, s2, 7")
    a("s_lshr_b32 s59, s2, 3")
    a("s_and_b32 s60, s58, 1")
    a("s_lshr_b32 s61, s58, 1")
    a("s_and_b32 s62, s59, 3")
    a("s_lshr_b32 s63, s59, 2")
    a("s_lshl_b32 s67, s60, 3")
    a("s_add_u32 s63, s63, s67")
    a("s_lshl_b32 s64, s63, 4")
    a("s_lshl_b32 s67, s62, 2")
    a("s_add_u32 s64, s64, s67")
    a("s_add_u32 s64, s64, s61")
    a("s_lshr_b32 s65, s59, 3")
    a("s_lshl_b32 s65, s65, 3")
    a("s_add_u32 s65, s65, s58")
    a("s_and_b32 s88, s61, 1")
    a("s_lshr_b32 s89, s61, 1")
    a("s_lshl_b32 s85, s88, 3")
    a("s_lshl_b32 s67, s60, 2")
    a("s_add_u32 s85, s85, s67")
    a("s_waitcnt lgkmcnt(0)")
    stamp_init(a, 0, 56, 57)
    stamp(a, 0)
    srd(a, 68, 56, 57, WS_SRD_SIZE)
    srd(a, 72, 54, 55, 256)
    a("v_mov_b32 v197, 0")
    a("s_cmp_lg_u32 s2, 128")
    a("s_cbranch_scc1 kx_nononce")
    a("s_cmp_lg_u32 s16, 0")
    a("s_cbranch_scc1 kx_nononce")
    a("s_memrealtime s[18:19]")
    a("s_waitcnt lgkmcnt(0)")
    a("s_or_b32 s84, s18, 1")
    a("v_mov_b32 v194, s84")
    a("s_mov_b64 exec, 1")
    a("buffer_store_dword v194, v197, s[72:75], 0 offen%s" % SC)
    a("s_mov_b64 exec, -1")
    a.label("kx_nononce")
    a("s_cmp_ge_u32 s59, 16")
    a("s_cbranch_scc1 kx_pref")
    a("s_add_u32 s85, s85, s62")
    a("s_lshr_b32 s86, s59, 2")
    a("s_lshl_b32 s87, s89, 2")
    a("s_add_u32 s87, s87, s86")
    a("s_cmp_ge_u32 s16, 4")
    a("s_cbranch_scc1 kx_loader1")
    a("s_mov_b32 s30, 0")
    a("s_mov_b32 s22, 8")

    a.label("kx_cons")
    if "cprio" in EXP:
        a("s_setprio 2")
    a("s_lshr_b32 s17, s16, 1")
    a("s_and_b32 s18, s16, 1")
    a("v_and_b32 v1, 15, v0")
    a("v_lshrrev_b32 v2, 4, v0")
    a("v_lshrrev_b32 v3, 1, v1")
    a("v_lshlrev_b32 v4, 7, v1")
    a("s_lshl_b32 s19, s17, 13")
    a("s_lshl_b32 s20, s18, 13")
    a("s_add_u32 s20, s20, 16384")
    for j in range(2):
        a("v_add_u32 v5, %d, v2" % (4 * j))
        a("v_xor_b32 v5, v5, v3")
        a("v_lshlrev_b32 v5, 4, v5")
        a("v_add_u32 v5, v5, v4")
        a("v_add_u32 v%d, s19, v5" % (AP + j))
        a("v_add_u32 v%d, s20, v5" % (AQ + j))
    a("s_cmp_eq_u32 s30, 0")
    a("s_cbranch_scc1 kx_apdone")
    a("v_and_b32 v5, 1, v2")
    a("v_lshlrev_b32 v5, 9, v5")
    a("v_lshrrev_b32 v6, 1, v2")
    a("v_lshlrev_b32 v6, 8, v6")
    a("v_lshlrev_b32 v7, 4, v1")
    a("v_add3_u32 v5, v5, v6, v7")
    a("v_add_u32 v%d, s19, v5" % AP)
    a("v_add_u32 v%d, 1024, v%d" % (AP + 1, AP))
    a.label("kx_apdone")
    for r in range(32):
        a("v_mov_b64 v[%d:%d], 0" % (ACC + 2 * r, ACC + 2 * r + 1))
    a("s_mov_b32 s23, %d" % SLOT)
    a("s_mov_b32 s24, %d" % SLOT)
    a("s_mov_b32 s25, 1")
    a("s_mov_b32 s27, %d" % (-(NSLOT - 1) * SLOT))
    a("s_mov_b32 s28, %d" % SLOT)

    def rdlist(j):
        f = FR + 32 * j
        l = []
        for t in range(4):
            l.append("ds_read_b128 v[%d:%d], v%d offset:%d" % (f + 4 * t, f + 4 * t + 3, AP + j, 2048 * t))
            l.append("ds_read_b128 v[%d:%d], v%d offset:%d" % (f + 16 + 4 * t, f + 16 + 4 * t + 3, AQ + j, 2048 * t))
        return l

    book = ["s_mov_b32 s23, s24",
            "s_add_u32 s25, s25, 1",
            "s_cmp_eq_u32 s25, %d" % NSLOT,
            "s_cselect_b32 s26, %d, 0" % NSLOT,
            "s_sub_u32 s25, s25, s26",
            "s_cmp_eq_u32 s25, %d" % (NSLOT - 1),
            "s_cselect_b32 s24, s27, s28",
            "s_sub_u32 s22, s22, 1",
            "s_cmp_lt_u32 s22, 2"]
    a("s_barrier")
    if gen.STAMPS or DBGSTAMP:
        a("s_cmp_lg_u32 s30, 0")
        a("s_cbranch_scc1 kx_st9")
        stamp(a, 8)
        a("s_branch kx_st9d")
        a.label("kx_st9")
        stamp(a, 9)
        a.label("kx_st9d")
    for r in rdlist(0):
        a(r)
    a("v_add_u32 v%d, s23, v%d" % (AP, AP))
    a("v_add_u32 v%d, s23, v%d" % (AQ, AQ))
    a.label("kx_cloop")
    for j in range(2):
        jn = 1 - j
        sd = 23 if j == 0 else 24
        f = FR + 32 * j
        rd = rdlist(jn)
        a("s_waitcnt lgkmcnt(0)")
        k = 0
        for ti in range(4):
            for tj in range(4):
                c = ACC + 4 * (4 * ti + tj)
                a("v_mfma_f32_16x16x32_bf16 v[%d:%d], v[%d:%d], v[%d:%d], v[%d:%d]" % (
                    c, c + 3, f + 4 * ti, f + 4 * ti + 3, f + 16 + 4 * tj, f + 16 + 4 * tj + 3, c, c + 3))
                if k < 8:
                    a(rd[k])
                if k == 8:
                    a("v_add_u32 v%d, s%d, v%d" % (AP + jn, sd, AP + jn))
                if k == 9:
                    a("v_add_u32 v%d, s%d, v%d" % (AQ + jn, sd, AQ + jn))
                if j == 1 and 10 <= k < 15:
                    for b in book[2 * (k - 10):2 * (k - 10) + 2]:
                        a(b)
                k += 1
    a("s_cbranch_scc1 kx_nobar")
    a("s_barrier")
    a.label("kx_nobar")
    a("s_cmp_lg_u32 s22, 0")
    a("s_cbranch_scc1 kx_cloop")
    a("s_waitcnt lgkmcnt(0)")
    a("s_cmp_lg_u32 s30, 0")
    a("s_cbranch_scc1 kx_epi2")

    stamp(a, 1)
    a("s_lshl_b32 s19, s17, 8")
    a("s_add_u32 s19, s19, %d" % STATS_LDS)
    a("v_lshlrev_b32 v7, 4, v2")
    a("v_add_u32 v7, s19, v7")
    a("s_lshl_b32 s19, s18, 8")
    a("s_add_u32 s19, s19, %d" % SUMW_LDS)
    a("v_lshlrev_b32 v6, 2, v1")
    a("v_add_u32 v6, s19, v6")
    a("v_mov_b32 v5, %d" % NONCE_LDS)
    a("s_barrier")
    a("ds_read_b32 v16, v5")
    for tj in range(4):
        a("ds_read_b32 v%d, v6 offset:%d" % (20 + 2 * tj, 64 * tj))
    for ti in range(4):
        a("ds_read_b128 v[%d:%d], v7 offset:%d" % (32 + 8 * ti, 35 + 8 * ti, 64 * ti))
        a("ds_read_b128 v[%d:%d], v7 offset:%d" % (36 + 8 * ti, 39 + 8 * ti, 64 * ti + 512))
    a("s_lshl_b32 s19, s87, 5")
    a("s_lshl_b32 s20, s85, 1")
    a("s_add_u32 s19, s19, s20")
    a("s_add_u32 s19, s19, s17")
    a("s_lshl_b32 s19, s19, 14")
    a("s_lshl_b32 s20, s18, 13")
    a("s_add_u32 s19, s19, s20")
    a("s_add_u32 s20, s19, 4096")
    a("s_lshl_b32 s29, s87, 4")
    a("s_add_u32 s29, s29, s85")
    a("s_lshl_b32 s29, s29, 7")
    a("s_lshl_b32 s21, s16, 2")
    a("s_add_u32 s29, s29, s21")
    a("s_add_u32 s29, s29, %d" % FLAG0)
    a("v_lshlrev_b32 v6, 4, v0")
    a("s_waitcnt lgkmcnt(0)")
    a("v_readfirstlane_b32 s84, v16")
    n = 0
    for tj in range(4):
        for tp in range(2):
            d = FR + 4 * n
            for k in range(2):
                ti = 2 * tp + k
                c = ACC + 4 * (4 * ti + tj)
                for h in range(2):
                    a("v_pk_fma_f32 v[%d:%d], v[%d:%d], v[%d:%d], v[%d:%d] op_sel_hi:[1,0,1] neg_lo:[1,0,0] neg_hi:[1,0,0]" % (
                        c + 2 * h, c + 2 * h + 1, 32 + 8 * ti + 2 * h, 33 + 8 * ti + 2 * h, 20 + 2 * tj, 21 + 2 * tj, c + 2 * h, c + 2 * h + 1))
                for h in range(2):
                    a("v_pk_mul_f32 v[%d:%d], v[%d:%d], v[%d:%d]" % (
                        c + 2 * h, c + 2 * h + 1, c + 2 * h, c + 2 * h + 1, 36 + 8 * ti + 2 * h, 37 + 8 * ti + 2 * h))
                for h in range(2):
                    a("v_cvt_pk_bf16_f32 v%d, v%d, v%d" % (d + 2 * k + h, c + 2 * h, c + 2 * h + 1))
            a("s_nop 1")
            a("v_permlane16_swap_b32 v%d, v%d" % (d, d + 2))
            a("v_permlane16_swap_b32 v%d, v%d" % (d + 1, d + 3))
            a("s_nop 0")
            a("buffer_store_dwordx4 v[%d:%d], v6, s[68:71], s%d offen offset:%d%s" % (d, d + 3, 19 + (n >> 2), 1024 * (n & 3), SC))
            n += 1
    a("v_mov_b32 v4, 0")
    a("v_mov_b32 v5, s84")
    stamp(a, 10)
    a("s_barrier")
    a("s_waitcnt vmcnt(0)")
    a("s_mov_b64 exec, 1")
    a("buffer_store_dword v5, v4, s[68:71], s29 offen%s" % SC)
    a("s_mov_b64 exec, -1")
    stamp(a, 2)
    setup2("g")
    a("s_branch kx_cons2")
    a.label("kx_epi2")
    stamp(a, 3)
    a("s_lshl_b32 s19, s64, 15")
    a("s_lshl_b32 s20, s16, 13")
    a("s_add_u32 s19, s19, s20")
    a("s_add_u32 s19, s19, %d" % PART_OFF)
    a("s_add_u32 s20, s19, 4096")
    a("s_lshl_b32 s29, s64, 7")
    a("s_lshl_b32 s21, s16, 2")
    a("s_add_u32 s29, s29, s21")
    a("s_add_u32 s29, s29, %d" % FLAG1)
    a("v_lshlrev_b32 v6, 4, v0")
    n = 0
    for tj in range(4):
        for tp in range(2):
            d = FR + 4 * n
            for k in range(2):
                c = ACC + 4 * (4 * (2 * tp + k) + tj)
                a("v_cvt_pk_bf16_f32 v%d, v%d, v%d" % (d + 2 * k, c, c + 1))
                a("v_cvt_pk_bf16_f32 v%d, v%d, v%d" % (d + 2 * k + 1, c + 2, c + 3))
            a("s_nop 1")
            a("v_permlane16_swap_b32 v%d, v%d" % (d, d + 2))
            a("v_permlane16_swap_b32 v%d, v%d" % (d + 1, d + 3))
            a("s_nop 0")
            a("buffer_store_dwordx4 v[%d:%d], v6, s[68:71], s%d offen offset:%d%s" % (d, d + 3, 19 + (n >> 2), 1024 * (n & 3), SC))
            n += 1
    a("v_mov_b32 v4, 0")
    a("v_mov_b32 v5, s84")
    stamp(a, 11)
    a("s_waitcnt vmcnt(0)")
    a("s_mov_b64 exec, 1")
    a("buffer_store_dword v5, v4, s[68:71], s29 offen%s" % SC)
    a("s_mov_b64 exec, -1")
    a("s_branch kx_rows")

    a.label("kx_cons2")
    a("s_mov_b32 s30, 1")
    a("s_mov_b32 s22, 16")
    a("s_barrier")
    a("s_branch kx_cons")

    a.label("kx_loader1")
    if "lprio" in EXP:
        a("s_setprio 2")
    a("s_lshl_b32 s19, s85, 17")
    a("s_add_u32 s22, s32, s19")
    a("s_addc_u32 s23, s33, 0")
    srd(a, 4, 22, 23, 131072)
    a("s_cmp_eq_u32 s89, 0")
    a("s_cselect_b32 s22, s38, s40")
    a("s_cselect_b32 s23, s39, s41")
    a("s_lshl_b32 s19, s86, 17")
    add64(a, 22, 23, "s19")
    srd(a, 8, 22, 23, 131072)
    a("s_sub_u32 s17, s16, 4")
    a("v_lshrrev_b32 v6, 3, v0")
    a("v_lshrrev_b32 v7, 4, v0")
    a("v_and_b32 v16, 7, v0")
    a("s_lshl_b32 s18, s17, 5")
    for j in range(4):
        a("v_add_u32 v18, %d, v7" % (4 * j))
        a("v_and_b32 v18, 7, v18")
        a("v_xor_b32 v18, v18, v16")
        a("v_lshlrev_b32 v18, 4, v18")
        a("v_add3_u32 v17, v6, s18, %d" % (8 * j))
        a("v_lshlrev_b32 v17, 10, v17")
        a("v_add_u32 v17, v17, v18")
        a("v_subrev_u32 v%d, %d, v17" % (8 + j, 1024 * j))
    a("s_lshl_b32 s21, s17, 12")
    a("s_mov_b32 s20, 0")
    a("s_mov_b32 s22, 0")
    a.label("kx_l1loop")
    a("s_mov_b32 m0, s21")
    a("s_add_u32 s19, s21, 16384")
    for j in range(4):
        a("buffer_load_dwordx4 v%d, s[4:7], s20 offen offset:%d%s lds" % (8 + j, 1024 * j, NT))
    a("s_mov_b32 m0, s19")
    a("s_add_u32 s22, s22, 1")
    for j in range(4):
        a("buffer_load_dwordx4 v%d, s[8:11], s20 offen offset:%d%s lds" % (8 + j, 1024 * j, NT))
    a("s_add_u32 s20, s20, 128")
    a("s_add_u32 s21, s21, %d" % SLOT)
    a("s_cmp_eq_u32 s22, %d" % NSLOT)
    a("s_cselect_b32 s19, %d, 0" % (SLOT * NSLOT))
    a("s_sub_u32 s21, s21, s19")
    a("s_cmp_lt_u32 s22, 4")
    a("s_cbranch_scc1 kx_l1loop")
    a("s_waitcnt vmcnt(16)")
    a("s_barrier")
    a("s_cmp_lt_u32 s22, 8")
    a("s_cbranch_scc1 kx_l1loop")
    a("s_lshl_b32 s19, s62, 7")
    a("s_lshl_b32 s24, s86, 7")
    a("s_add_u32 s24, s24, 480")
    a("v_mov_b32 v20, s19")
    a("v_mov_b32 v21, s24")
    a("v_cmp_gt_u32 vcc, 32, v0")
    a("v_add_u32 v22, s18, v0")
    a("v_cndmask_b32 v20, v21, v20, vcc")
    a("v_add_lshl_u32 v20, v20, v22, 3")
    a("s_lshl_b32 s24, s58, 13")
    a("s_add_u32 s24, s24, %d" % STAT)
    a("buffer_load_dword v194, v197, s[72:75], 0 offen%s" % SC)
    a("buffer_load_dwordx2 v[24:25], v20, s[68:71], s24 offen%s" % SC)
    a("s_waitcnt vmcnt(10)")
    a("s_barrier")
    a("s_waitcnt vmcnt(2)")
    a("s_barrier")
    a("v_lshlrev_b32 v22, 2, v22")
    a("v_add_u32 v22, %d, v22" % STATS_LDS)
    a("s_waitcnt vmcnt(0)")

    def stcond():
        a("v_cmp_ne_u32 vcc, v25, v194")
        a("v_cmp_eq_u32 s[26:27], 0, v194")
        a("s_nop 2")
        a("s_or_b64 vcc, vcc, s[26:27]")
    stcond()
    a("s_cmp_eq_u64 vcc, 0")
    a("s_cbranch_scc1 kx_polln_done")
    poll(a, "kx_polln", ["buffer_load_dword v194, v197, s[72:75], 0 offen%s" % SC,
                         "buffer_load_dwordx2 v[24:25], v20, s[68:71], s24 offen%s" % SC], stcond)
    a("v_readfirstlane_b32 s84, v194")
    a("v_lshlrev_b32 v26, 16, v24")
    a("v_rcp_f32 v26, v26")
    a("v_and_b32 v27, 0xffff0000, v24")
    a("v_mov_b32 v195, %d" % NONCE_LDS)
    a("s_mov_b32 exec_hi, 0")
    a("ds_write_b32 v22, v27 offset:%d" % 0)
    a("ds_write_b32 v22, v26 offset:%d" % 512)
    a("s_not_b64 exec, exec")
    a("ds_write_b32 v22, v24 offset:%d" % (1024 - 128))
    a("s_mov_b64 exec, -1")
    a("ds_write_b32 v195, v194")
    a("s_waitcnt lgkmcnt(0)")
    a("s_barrier")
    a("s_branch kx_loader2")

    a.label("kx_pref")
    a("s_sub_u32 s86, s59, 16")
    if "codepf" in EXP:
        a("s_cmp_lg_u32 s86, 0")
        a("s_cbranch_scc1 kx_nocode")
        a("s_cmp_ge_u32 s16, (kx_end - %s + 8191) / 8192" % name)
        a("s_cbranch_scc1 kx_nocode")
        a("s_getpc_b64 s[22:23]")
        a.label("kx_pc")
        a("s_sub_u32 s22, s22, kx_pc - %s" % name)
        a("s_subb_u32 s23, s23, 0")
        a("v_lshlrev_b32 v11, 7, v0")
        a("s_lshl_b32 s19, s16, 13")
        a("v_add_u32 v11, s19, v11")
        a("v_min_u32 v11, kx_end - %s - 4, v11" % name)
        a("global_load_dword v59, v11, s[22:23]")
        a.label("kx_nocode")
    a("v_lshrrev_b32 v6, 3, v0")
    a("v_and_b32 v7, 7, v0")
    a("v_lshlrev_b32 v8, 12, v6")
    a("v_lshlrev_b32 v6, 10, v6")
    a("v_lshlrev_b32 v9, 7, v7")
    a("v_add_u32 v6, v6, v9")
    a("v_add_u32 v14, v8, v9")
    a("s_cmp_eq_u32 s89, 0")
    a("s_cselect_b32 s24, s38, s40")
    a("s_cselect_b32 s25, s39, s41")
    a("s_cselect_b32 s26, s34, s36")
    a("s_cselect_b32 s27, s35, s37")
    a("s_lshl_b32 s19, s85, 17")
    a("s_add_u32 s22, s32, s19")
    a("s_addc_u32 s23, s33, 0")
    a("s_cmp_lt_u32 s86, 8")
    a("s_cselect_b32 s22, s22, s24")
    a("s_cselect_b32 s23, s23, s25")
    srd(a, 4, 22, 23, 524288)
    a("s_and_b32 s19, s86, 7")
    a("s_lshl_b32 s19, s19, 16")
    a("s_lshl_b32 s20, s16, 13")
    a("s_add_u32 s19, s19, s20")
    a("v_lshlrev_b32 v11, 4, v0")
    a("s_add_u32 s29, s19, 4096")
    for i in range(8):
        a("buffer_load_dwordx4 v[%d:%d], v11, s[4:7], s%d offen offset:%d" % (64 + 4 * i, 67 + 4 * i, 19 if i < 4 else 29, 1024 * (i & 3)))
    a("s_lshl_b32 s19, s60, 22")
    a("s_lshl_b32 s20, s86, 18")
    a("s_add_u32 s19, s19, s20")
    a("s_lshl_b32 s20, s88, 11")
    a("s_add_u32 s19, s19, s20")
    a("s_lshl_b32 s20, s16, 15")
    a("s_add_u32 s19, s19, s20")
    add64(a, 26, 27, "s19")
    srd(a, 8, 26, 27, 7 * 4096 + 2048)
    if PFN - PF0 < 16:
        a("v_cmp_gt_u32 vcc, %d, v7" % max(PFN - PF0 - 8, 0))
        a("v_mov_b32 v15, 0x40000000")
        a("v_cndmask_b32 v15, v15, v14, vcc")
    else:
        a("v_mov_b32 v15, v14")
    a("s_lshl_b32 s19, s86, 3")
    a("s_add_u32 s19, s19, s16")
    a("s_mul_i32 s20, s19, 2731")
    a("s_lshr_b32 s20, s20, 16")
    a("s_mul_i32 s21, s20, 24")
    a("s_sub_u32 s21, s19, s21")
    a("s_lshl_b32 s20, s20, 3")
    a("s_add_u32 s20, s20, s58")
    a("s_movk_i32 s19, 3584")
    a("v_mul_lo_u32 v10, v0, s19")
    poll(a, "kx_pollp", ["buffer_load_dword v194, v197, s[72:75], 0 offen%s" % SC], lambda: a("v_cmp_eq_u32 vcc, 0, v194"))
    a("v_readfirstlane_b32 s84, v194")
    for i in range(8):
        for d in range(4):
            unpack(a, 16 + 2 * d, 17 + 2 * d, 64 + 4 * i + d)
        a("v_pk_add_f32 v[24:25], v[16:17], v[18:19]")
        a("v_pk_mul_f32 v[28:29], v[16:17], v[16:17]")
        a("v_pk_add_f32 v[26:27], v[20:21], v[22:23]")
        a("v_pk_fma_f32 v[28:29], v[18:19], v[18:19], v[28:29]")
        a("v_pk_add_f32 v[24:25], v[24:25], v[26:27]")
        a("v_pk_fma_f32 v[28:29], v[20:21], v[20:21], v[28:29]")
        a("v_add_f32 v%d, v24, v25" % (32 + i))
        a("v_pk_fma_f32 v[28:29], v[22:23], v[22:23], v[28:29]")
        a("v_add_f32 v%d, v28, v29" % (40 + i))
    a("s_nop 1")
    for i in range(8):
        a("v_permlane32_swap_b32 v%d, v%d" % (32 + i, 40 + i))
    a("s_nop 1")
    for i in range(8):
        a("v_add_f32 v%d, v%d, v%d" % (32 + i, 32 + i, 40 + i))
    a("s_nop 1")
    for i in range(4):
        a("v_permlane16_swap_b32 v%d, v%d" % (32 + i, 36 + i))
    a("s_nop 1")
    for i in range(4):
        a("v_add_f32 v%d, v%d, v%d" % (32 + i, 32 + i, 36 + i))
    for r in (8, 4, 2, 1):
        a("s_nop 0")
        for i in range(4):
            a("v_add_f32_dpp v%d, v%d, v%d row_ror:%d row_mask:0xf bank_mask:0xf" % (32 + i, 32 + i, 32 + i, r))
    a("v_and_b32 v16, 3, v0")
    a("v_cmp_eq_u32 s[22:23], 1, v16")
    a("v_cmp_eq_u32 s[24:25], 2, v16")
    a("v_cmp_eq_u32 s[26:27], 3, v16")
    a("v_lshrrev_b32 v17, 4, v0")
    a("v_cndmask_b32 v32, v32, v33, s[22:23]")
    a("v_cndmask_b32 v32, v32, v34, s[24:25]")
    a("v_cndmask_b32 v32, v32, v35, s[26:27]")
    a("v_mov_b32 v33, v32")
    a("v_lshl_add_u32 v16, v17, 2, v16")
    a("s_nop 0")
    a("v_permlane32_swap_b32 v32, v33")
    a("s_lshl_b32 s22, s86, 6")
    a("s_lshl_b32 s23, s16, 3")
    a("s_add_u32 s22, s22, s23")
    a("v_add_lshl_u32 v16, v16, s22, 3")
    a("v_mul_f32 v28, 0x3b000000, v32")
    a("v_mul_f32 v29, 0x3b000000, v33")
    a("v_fma_f32 v29, -v28, v28, v29")
    a("v_max_f32 v29, 0, v29")
    bf16r(a, 30, 28)
    bf16r(a, 29, 29)
    a("v_add_f32 v29, 0x3727c5ac, v29")
    bf16r(a, 29, 29)
    a("v_sqrt_f32 v29, v29")
    a("s_lshl_b32 s22, s58, 13")
    a("v_cvt_pk_bf16_f32 v29, v29, v29")
    a("v_and_b32 v29, 0xffff, v29")
    a("v_or_b32 v30, v30, v29")
    a("s_add_u32 s22, s22, %d" % STAT)
    a("s_cmp_lt_u32 s86, 8")
    a("s_cbranch_scc1 kx_pf_x")
    a("v_mov_b32 v30, v32")
    a.label("kx_pf_x")
    a("v_mov_b32 v31, s84")
    a("s_mov_b64 exec, 0x000f000f")
    a("buffer_store_dwordx2 v[30:31], v16, s[68:71], s22 offen%s" % SC)
    a("s_mov_b64 exec, -1")
    stamp(a, 8)
    a("s_cmp_ge_u32 s20, %d" % (0 if "noffnpf" in EXP else 28))
    a("s_cbranch_scc1 kx_pf_done")
    a("s_cmp_ge_u32 s21, 16")
    a("s_cbranch_scc1 kx_pf_wd")
    a("s_cmp_lt_u32 s21, 8")
    a("s_cselect_b32 s22, s46, s48")
    a("s_cselect_b32 s23, s47, s49")
    srd(a, 12, 22, 23, 512 * 3584)
    a("s_and_b32 s21, s21, 7")
    a("s_mul_i32 s19, s21, %d" % (64 * 3584))
    a("s_lshl_b32 s20, s20, 7")
    a("s_add_u32 s19, s19, s20")
    a("buffer_load_dword v61, v10, s[12:15], s19 offen" + NT)
    a("s_branch kx_pf_done")
    a.label("kx_pf_wd")
    srd(a, 12, 50, 51, 1792 * 1024)
    a("s_sub_u32 s21, s21, 16")
    a("s_lshl_b32 s19, s20, 16")
    a("s_lshl_b32 s21, s21, 13")
    a("s_add_u32 s19, s19, s21")
    a("buffer_load_dword v61, v6, s[12:15], s19 offen" + NT)
    a.label("kx_pf_done")
    if PFN - PF0 < 8:
        a("v_cmp_gt_u32 vcc, %d, v7" % (PFN - PF0))
        a("v_mov_b32 v15, 0x40000000")
        a("v_cndmask_b32 v14, v15, v14, vcc")
    a("buffer_load_dword v62, v14, s[8:11], 0 offen offset:%d" % (128 * PF0) + NT)
    if PFN - PF0 > 8:
        a("buffer_load_dword v63, v15, s[8:11], 0 offen offset:%d" % (128 * PF0 + 1024) + NT)
    a("s_waitcnt vmcnt(0)")
    stamp(a, 1)
    a("s_cmp_ge_u32 s16, 4")
    a("s_cbranch_scc1 kx_loader2")
    setup2("p")
    a("s_barrier")
    a("s_branch kx_cons2")

    a.label("kx_loader2")
    if "lprio" in EXP:
        a("s_setprio 2")
    a("s_lshl_b32 s19, s89, 2")
    a("s_add_u32 s19, s19, s62")
    a("s_lshl_b32 s24, s19, 11")
    a("s_lshl_b32 s19, s19, 19")
    a("s_lshl_b32 s20, s88, 18")
    a("s_add_u32 s19, s19, s20")
    a("s_add_u32 s22, s56, s19")
    a("s_addc_u32 s23, s57, 0")
    srd(a, 4, 22, 23, 16 * 16384)
    a("s_cmp_eq_u32 s89, 0")
    a("s_cselect_b32 s22, s34, s36")
    a("s_cselect_b32 s23, s35, s37")
    a("s_lshl_b32 s19, s63, 19")
    a("s_lshl_b32 s21, s88, 11")
    a("s_add_u32 s19, s19, s21")
    add64(a, 22, 23, "s19")
    srd(a, 8, 22, 23, 127 * 4096 + 2048)
    a("s_lshl_b32 s20, s88, 10")
    a("s_add_u32 s24, s24, s20")
    a("s_add_u32 s24, s24, %d" % FLAG0)
    a("s_sub_u32 s17, s16, 4")
    a("v_lshrrev_b32 v1, 3, v0")
    a("v_lshrrev_b32 v2, 4, v0")
    a("v_and_b32 v3, 7, v0")
    a("s_lshl_b32 s18, s17, 5")
    a("v_add_u32 v1, s18, v1")
    a("v_lshlrev_b32 v6, 7, v1")
    for j in range(4):
        a("v_add_u32 v4, %d, v1" % (8 * j))
        a("v_lshlrev_b32 v4, 12, v4")
        a("v_add_u32 v5, %d, v2" % (4 * j))
        a("v_and_b32 v5, 7, v5")
        a("v_xor_b32 v5, v5, v3")
        a("v_lshlrev_b32 v5, 4, v5")
        a("v_add_u32 v4, v4, v5")
        a("v_subrev_u32 v%d, %d, v4" % (8 + j, 1024 * j))
        if j == 0:
            a("v_lshlrev_b32 v12, 4, v0")
            a("s_lshl_b32 s19, s17, 12")
            a("v_add_u32 v12, s19, v12")
    a("s_lshl_b32 s21, s17, 12")
    a("s_lshl_b32 s31, s17, 6")
    a("v_add_u32 v199, s31, v0")
    a("s_and_b32 s66, s59, 7")
    a("s_lshl_b32 s31, s65, 3")
    a("s_add_u32 s66, s66, s31")
    a("s_sub_u32 s31, s58, 4")
    a("s_lshl_b32 s31, s31, 3")
    a("s_add_u32 s31, s31, s59")
    a("s_sub_u32 s31, s31, 24")
    a("s_lshl_b32 s31, s31, 1")
    a("s_add_u32 s31, s31, s17")
    a("s_cmp_lt_u32 s65, 28")
    a("s_cselect_b32 s66, s66, s31")
    a("s_cselect_b32 s30, %d, 99" % FFNST)
    a("s_barrier")
    a("s_mov_b32 s20, 0")
    a("s_add_u32 s19, s21, 16384")
    a.label("kx_l2q")
    a("s_mov_b32 m0, s19")
    a("s_add_u32 s19, s19, %d" % SLOT)
    for j in range(4):
        a("buffer_load_dwordx4 v%d, s[8:11], s20 offen offset:%d%s lds" % (8 + j, 1024 * j, NTQ))
    a("s_add_u32 s20, s20, 128")
    a("s_cmp_lt_u32 s20, 512")
    a("s_cbranch_scc1 kx_l2q")
    a("s_cmp_lg_u32 s16, 4")
    a("s_cbranch_scc1 kx_poll0_done")
    a("v_lshlrev_b32 v20, 7, v3")

    def f0cond():
        a("v_xor_b32 v24, s84, v24")
        a("v_xor_b32 v25, s84, v25")
        a("v_xor_b32 v26, s84, v26")
        a("v_xor_b32 v27, s84, v27")
        a("v_or3_b32 v24, v24, v25, v26")
        a("v_or_b32 v24, v24, v27")
        a("v_cmp_ne_u32 vcc, 0, v24")
    a("s_mov_b64 exec, 0xff")
    poll(a, "kx_poll0", ["buffer_load_dwordx4 v[24:27], v20, s[68:71], s24 offen%s" % SC], f0cond)
    a("s_mov_b64 exec, -1")
    stamp(a, 2)
    a("s_barrier")
    a("s_mov_b32 s26, 0")
    a("s_mov_b32 s19, s21")
    a.label("kx_l2p")
    a("s_mov_b32 m0, s19")
    a("s_add_u32 s19, s19, %d" % SLOT)
    for j in range(4):
        a("buffer_load_dwordx4 v12, s[4:7], s26 offen offset:%d%s lds" % (1024 * j, SC))
    a("s_add_u32 s26, s26, 16384")
    a("s_cmp_lt_u32 s26, 65536")
    a("s_cbranch_scc1 kx_l2p")
    a("s_waitcnt vmcnt(8)")
    a("s_barrier")
    a("s_add_u32 s21, s21, %d" % (4 * SLOT))
    a("s_mov_b32 s25, 4")
    a("s_mov_b32 s22, 4")
    a.label("kx_l2loop")
    a("s_mov_b32 m0, s21")
    a("s_add_u32 s19, s21, 16384")
    for j in range(4):
        a("buffer_load_dwordx4 v12, s[4:7], s26 offen offset:%d%s lds" % (1024 * j, SC))
    a("s_mov_b32 m0, s19")
    a("s_add_u32 s25, s25, 1")
    for j in range(4):
        a("buffer_load_dwordx4 v%d, s[8:11], s20 offen offset:%d%s lds" % (8 + j, 1024 * j, NTQ))
    a("s_add_u32 s20, s20, 128")
    a("s_add_u32 s26, s26, 16384")
    a("s_add_u32 s21, s21, %d" % SLOT)
    a("s_cmp_eq_u32 s25, %d" % NSLOT)
    a("s_cselect_b32 s19, %d, 0" % (SLOT * NSLOT))
    a("s_cselect_b32 s27, %d, 0" % NSLOT)
    a("s_sub_u32 s21, s21, s19")
    a("s_sub_u32 s25, s25, s27")
    a("s_add_u32 s22, s22, 1")
    a("s_sub_u32 s31, s22, s30")
    a("s_sub_u32 s31, s31, 1")
    a("s_cmp_lt_u32 s31, 1")
    a("s_cbranch_scc1 kx_l2w28")
    a("s_cmp_lg_u32 s22, 5")
    a("s_cbranch_scc1 kx_l2w16")
    a("s_waitcnt vmcnt(12)")
    a.label("kx_l2w16")
    a("s_waitcnt vmcnt(16)")
    a.label("kx_l2w28")
    a("s_waitcnt vmcnt(28)")
    a("s_barrier")
    if FFNST <= 16:
        a("s_cmp_lg_u32 s22, s30")
        a("s_cbranch_scc1 kx_l2noffn")
        ffnloads()
        a.label("kx_l2noffn")
    a("s_cmp_lt_u32 s22, 16")
    a("s_cbranch_scc1 kx_l2loop")
    if "ffn12" in EXP:
        a("s_cmp_ge_u32 s65, 28")
        a("s_cbranch_scc1 kx_l2tail")
        ffnloads()
        a("s_waitcnt vmcnt(20)")
        a("s_barrier")
        a("s_waitcnt vmcnt(12)")
        a("s_barrier")
        a("s_branch kx_rows")
        a.label("kx_l2tail")
    a("s_waitcnt vmcnt(8)")
    a("s_barrier")
    a("s_waitcnt vmcnt(0)")
    a("s_barrier")
    if "ffn12" not in EXP:
        a("s_cmp_ge_u32 s65, 28")
        a("s_cbranch_scc1 kx_rows")
        ffnloads()

    a.label("kx_rows")
    stamp(a, 12)
    srd(a, 72, 32, 33, 2 << 20)
    srd(a, 76, 44, 45, 1024)
    srd(a, 80, 52, 53, 2 << 20)
    a("v_lshlrev_b32 v2, 4, v0")
    a("v_and_b32 v1, 7, v0")
    a("v_lshrrev_b32 v3, 3, v0")
    a("v_lshlrev_b32 v5, 8, v3")
    a("v_lshl_add_u32 v5, v1, 4, v5")
    a("v_and_b32 v6, 4, v3")
    a("v_lshlrev_b32 v6, 4, v6")
    a("v_and_b32 v7, 1, v3")
    a("v_lshl_add_u32 v6, v7, 5, v6")
    a("v_and_b32 v7, 2, v3")
    a("v_lshl_add_u32 v6, v7, 3, v6")
    a("s_lshl_b32 s18, s16, 7")
    a("v_add_u32 v6, s18, v6")
    a("v_lshl_add_u32 v7, v1, 10, v6")
    a("s_lshl_b32 s19, s64, 13")
    a("buffer_load_dwordx4 v[24:27], v7, s[72:75], s19 offen")
    a("buffer_load_dwordx4 v[28:31], v6, s[76:79], 0 offen")
    a("buffer_load_dwordx4 v[8:11], v2, s[76:79], 0 offen")
    a("s_lshl_b32 s21, s63, 19")
    a("s_lshr_b32 s22, s16, 1")
    a("s_lshl_b32 s22, s22, 17")
    a("s_add_u32 s21, s21, s22")
    a("s_and_b32 s22, s16, 1")
    a("s_lshl_b32 s22, s22, 14")
    a("s_add_u32 s21, s21, s22")
    a("s_and_b32 s22, s64, 14")
    a("s_lshl_b32 s22, s22, 10")
    a("s_add_u32 s21, s21, s22")
    a("s_and_b32 s22, s64, 1")
    a("s_lshl_b32 s22, s22, 7")
    a("s_add_u32 s21, s21, s22")
    a("s_add_u32 s21, s21, %d" % PART_OFF)
    a("v_and_b32 v3, 15, v0")
    a("v_lshlrev_b32 v3, 7, v3")
    a("s_lshl_b32 s20, s63, 11")
    a("s_add_u32 s20, s20, %d" % FLAG1)
    a("v_lshlrev_b32 v74, 5, v1")
    a("v_add_u32 v74, 98304, v74")
    a("s_lshl_b32 s22, s16, 2")
    a("v_add_u32 v73, s22, v74")
    a("s_lshl_b32 s22, s64, 3")
    a("s_sub_u32 s22, 0xffff, s22")
    a("v_sub_u32 v75, s22, v1")
    a("s_waitcnt vmcnt(0)")
    for i in range(4):
        unpack(a, 64 + 2 * i, 65 + 2 * i, 28 + i)
        unpack(a, 76 + 2 * i, 77 + 2 * i, 24 + i)
        unpack(a, 48 + 2 * i, 49 + 2 * i, 8 + i)
    a("v_pk_add_f32 v[48:49], v[48:49], v[50:51]")
    a("v_pk_add_f32 v[52:53], v[52:53], v[54:55]")
    a("v_pk_add_f32 v[48:49], v[48:49], v[52:53]")
    a("v_add_f32 v72, v48, v49")
    allreduce64(a, "add_f32", 72, 49)
    a("s_cmp_lg_u32 s16, 0")
    a("s_cbranch_scc1 kx_poll1_done")

    def f1cond():
        a("v_xor_b32 v8, s84, v8")
        a("v_xor_b32 v9, s84, v9")
        a("v_xor_b32 v10, s84, v10")
        a("v_xor_b32 v11, s84, v11")
        a("v_or3_b32 v8, v8, v9, v10")
        a("v_or_b32 v8, v8, v11")
        a("v_cmp_ne_u32 vcc, 0, v8")
    a("s_mov_b64 exec, 0xffff")
    poll(a, "kx_poll1", ["buffer_load_dwordx4 v[8:11], v3, s[68:71], s20 offen%s" % SC], f1cond)
    a("s_mov_b64 exec, -1")
    a("s_barrier")
    stamp(a, 4)
    for ks in range(4):
        a("s_add_u32 s20, s21, %d" % (ks * 32768))
        a("buffer_load_dwordx4 v[%d:%d], v5, s[68:71], s20 offen%s" % (8 + 4 * ks, 11 + 4 * ks, SC))
    a("s_lshl_b32 s20, s64, 11")
    a("s_add_u32 s20, s20, %d" % SELROW)
    a("s_lshr_b32 s21, s64, 2")
    a("s_lshl_b32 s21, s21, 7")
    a("s_and_b32 s22, s64, 3")
    a("s_lshl_b32 s22, s22, 3")
    a("s_add_u32 s21, s21, s22")
    a("s_add_u32 s21, s21, %d" % KEYS)
    a("v_lshlrev_b32 v5, 13, v0")
    a("s_waitcnt vmcnt(0)")
    stamp(a, 13)
    for i in range(4):
        unpack(a, 48, 49, 8 + i)
        unpack(a, 50, 51, 12 + i)
        unpack(a, 52, 53, 16 + i)
        unpack(a, 54, 55, 20 + i)
        a("v_pk_add_f32 v[48:49], v[48:49], v[50:51]")
        a("v_pk_add_f32 v[52:53], v[52:53], v[54:55]")
        a("v_pk_add_f32 v[48:49], v[48:49], v[%d:%d]" % (76 + 2 * i, 77 + 2 * i))
        a("v_pk_add_f32 v[48:49], v[48:49], v[52:53] neg_lo:[0,1] neg_hi:[0,1]")
        a("v_cvt_pk_bf16_f32 v%d, v48, v49" % (32 + i))
        unpack(a, 40 + 2 * i, 41 + 2 * i, 32 + i)
    a("v_pk_add_f32 v[48:49], v[40:41], v[42:43]")
    a("v_pk_mul_f32 v[50:51], v[40:41], v[40:41]")
    a("v_pk_mul_f32 v[52:53], v[40:41], v[64:65]")
    a("v_pk_add_f32 v[54:55], v[44:45], v[46:47]")
    for i in range(1, 4):
        a("v_pk_fma_f32 v[50:51], v[%d:%d], v[%d:%d], v[50:51]" % (40 + 2 * i, 41 + 2 * i, 40 + 2 * i, 41 + 2 * i))
        a("v_pk_fma_f32 v[52:53], v[%d:%d], v[%d:%d], v[52:53]" % (40 + 2 * i, 41 + 2 * i, 64 + 2 * i, 65 + 2 * i))
    a("v_pk_add_f32 v[48:49], v[48:49], v[54:55]")
    a("v_add_f32 v50, v50, v51")
    a("v_add_f32 v52, v52, v53")
    a("v_add_f32 v48, v48, v49")
    for v in (50, 52, 48):
        a("v_add_f32_dpp v%d, v%d, v%d row_ror:8 row_mask:0xf bank_mask:0xf" % (v, v, v))
    for op in ("v_permlane16_swap_b32", "v_permlane32_swap_b32"):
        for v in (50, 52, 48):
            a("v_mov_b32 v%d, v%d" % (v + 1, v))
        a("s_nop 0")
        for v in (50, 52, 48):
            a("%s v%d, v%d" % (op, v, v + 1))
        a("s_nop 0")
        for v in (50, 52, 48):
            a("v_add_f32 v%d, v%d, v%d" % (v, v, v + 1))
    a("s_mov_b64 exec, 0xff")
    a("ds_write_b32 v73, v48")
    a("ds_write_b32 v73, v50 offset:256")
    a("ds_write_b32 v73, v52 offset:512")
    a("s_mov_b64 exec, -1")
    a("s_waitcnt lgkmcnt(0)")
    a("s_barrier")
    for k in range(3):
        a("ds_read_b128 v[%d:%d], v74 offset:%d" % (8 + 8 * k, 11 + 8 * k, 256 * k))
        a("ds_read_b128 v[%d:%d], v74 offset:%d" % (12 + 8 * k, 15 + 8 * k, 256 * k + 16))
    for k in range(3):
        b = 8 + 8 * k
        a("s_waitcnt lgkmcnt(%d)" % (4 - 2 * k))
        a("v_pk_add_f32 v[%d:%d], v[%d:%d], v[%d:%d]" % (b, b + 1, b, b + 1, b + 2, b + 3))
        a("v_pk_add_f32 v[%d:%d], v[%d:%d], v[%d:%d]" % (b + 4, b + 5, b + 4, b + 5, b + 6, b + 7))
        a("v_pk_add_f32 v[%d:%d], v[%d:%d], v[%d:%d]" % (b, b + 1, b, b + 1, b + 4, b + 5))
        a("v_add_f32 v%d, v%d, v%d" % (48 + 2 * k, b, b + 1))
    a("v_mul_f32 v58, 0x3b000000, v48")
    a("v_mul_f32 v50, 0x3b000000, v50")
    a("v_fma_f32 v50, -v58, v58, v50")
    a("v_max_f32 v50, 0, v50")
    bf16r(a, 60, 58)
    bf16r(a, 50, 50)
    a("v_add_f32 v50, 0x3727c5ac, v50")
    bf16r(a, 50, 50)
    a("v_sqrt_f32 v50, v50")
    a("v_fma_f32 v52, -v60, v72, v52")
    bf16r(a, 50, 50)
    a("v_rcp_f32 v58, v50")
    a("v_mov_b32 v57, s84")
    a("v_mul_f32 v48, v52, v58")
    a("v_cvt_pk_bf16_f32 v48, v48, v48")
    a("v_and_b32 v48, 0xffff0000, v48")
    a("v_ashrrev_i32 v49, 31, v48")
    a("v_and_b32 v49, 0x7fff0000, v49")
    a("v_or_b32 v49, 0x80000000, v49")
    a("v_xor_b32 v48, v48, v49")
    a("v_or_b32 v48, v75, v48")
    a("v_mul_f32 v62, v60, v58")
    a("v_sub_f32 v62, 0, v62")
    a("v_max_u32_dpp v56, v48, v48 quad_perm:[1,0,3,2] row_mask:0xf bank_mask:0xf")
    a("s_nop 1")
    a("v_max_u32_dpp v56, v56, v56 quad_perm:[2,3,0,1] row_mask:0xf bank_mask:0xf")
    a("s_nop 1")
    a("v_max_u32_dpp v56, v56, v56 row_half_mirror row_mask:0xf bank_mask:0xf")
    a("s_cmp_lg_u32 s16, 0")
    a("s_cbranch_scc1 kx_nokey")
    a("s_mov_b64 exec, %d" % ((1 << NREP) - 1))
    a("buffer_store_dwordx2 v[56:57], v5, s[68:71], s21 offen%s" % SC)
    a("s_mov_b64 exec, -1")
    a.label("kx_nokey")
    stamp(a, 14)
    a("v_mov_b32 v63, v56")
    a("v_cmp_eq_u32 s[22:23], v56, v48")
    for i in range(4):
        a("v_pk_fma_f32 v[50:51], v[%d:%d], v[58:59], v[62:63] op_sel_hi:[1,0,0]" % (40 + 2 * i, 41 + 2 * i))
        a("v_cvt_pk_bf16_f32 v%d, v50, v51" % (36 + i))
        unpack(a, 50, 51, 36 + i)
        a("v_pk_add_f32 v[50:51], v[%d:%d], v[50:51]" % (40 + 2 * i, 41 + 2 * i))
        a("v_cvt_pk_bf16_f32 v%d, v50, v51" % (24 + i))
    a("s_mov_b64 exec, s[22:23]")
    a("buffer_store_dwordx4 v[36:39], v6, s[68:71], s20 offen%s" % SC)
    a("buffer_store_dwordx4 v[32:35], v6, s[68:71], s20 offen offset:1024%s" % SC)
    a("ds_write_b128 v6, v[24:27] offset:32768")
    a("s_not_b64 exec, exec")
    a("buffer_store_dwordx4 v[24:27], v7, s[80:83], s19 offen" + OUTF)
    a("s_mov_b64 exec, -1")
    a("s_waitcnt lgkmcnt(0)")
    a.label("kx_notbest")
    a("s_cmp_lt_u32 s16, 4")
    a("s_cbranch_scc1 kx_exit")

    a("s_cmp_lt_u32 s65, 28")
    a("s_cbranch_scc1 kx_keys")
    a("s_cmp_ge_u32 s16, 6")
    a("s_cbranch_scc1 kx_exit")
    a.label("kx_keys")
    a("s_and_b32 s20, s64, %d" % (NREP - 1))
    a("s_lshl_b32 s20, s20, 13")
    a("s_add_u32 s20, s20, %d" % KEYS)
    a("v_lshlrev_b32 v3, 7, v0")
    a("v_mov_b32 v5, 98816")
    a("s_cmp_lg_u32 s16, 4")
    a("s_cbranch_scc1 kx_keywait")

    def keycond():
        a("v_xor_b32 v9, s84, v9")
        a("v_xor_b32 v11, s84, v11")
        a("v_xor_b32 v13, s84, v13")
        a("v_xor_b32 v15, s84, v15")
        a("v_or3_b32 v4, v9, v11, v13")
        a("v_or_b32 v4, v4, v15")
        a("v_cmp_ne_u32 vcc, 0, v4")
    poll(a, "kx_poll2", ["buffer_load_dwordx4 v[8:11], v3, s[68:71], s20 offen%s" % SC,
                         "buffer_load_dwordx4 v[12:15], v3, s[68:71], s20 offen offset:16%s" % SC], keycond)
    a("v_max_u32 v64, v8, v10")
    a("v_max3_u32 v64, v64, v12, v14")
    allreduce64(a, "max_u32", 64, 65)
    a("ds_write_b32 v5, v64")
    a("s_waitcnt lgkmcnt(0)")
    a.label("kx_keywait")
    a("s_barrier")
    a("ds_read_b32 v64, v5")
    a("ds_read_b128 v[24:27], v2 offset:32768")
    a("s_waitcnt lgkmcnt(0)")
    stamp(a, 5)
    a("v_and_b32 v66, 0xffff, v64")
    a("v_sub_u32 v66, 0xffff, v66")
    a("v_lshrrev_b32 v67, 3, v66")
    a("v_lshlrev_b32 v67, 11, v67")
    a("s_cmp_lg_u32 s16, 5")
    a("s_cbranch_scc1 kx_noparked")
    a("v_and_b32 v4, 0xffff, v63")
    a("v_sub_u32 v4, 0xffff, v4")
    a("v_lshlrev_b32 v4, 10, v4")
    a("v_add_u32 v4, v4, v2")
    a("v_cmp_ne_u32 vcc, v63, v64")
    a("s_and_saveexec_b64 s[22:23], vcc")
    a("s_cbranch_execz kx_parkskip")
    a("buffer_store_dwordx4 v[24:27], v4, s[80:83], 0 offen" + OUTF)
    a.label("kx_parkskip")
    a("s_mov_b64 exec, -1")
    a.label("kx_noparked")
    a("s_mov_b32 s20, %d" % SELROW)
    a("s_cmp_ge_u32 s65, 28")
    a("s_cbranch_scc1 kx_final")
    a("v_lshlrev_b32 v4, 2, v199")
    a("v_add_u32 v68, v67, v4")
    poll(a, "kx_poll4", ["buffer_load_dword v75, v68, s[68:71], s20 offen%s" % SC],
         lambda: a("v_cmp_eq_u32 vcc, -1, v75"))
    a("s_mov_b32 s22, 0x05040100")
    a("s_mov_b32 s23, 0x07060302")
    for m in range(2):
        for i in range(4):
            a("v_perm_b32 v%d, v%d, v%d, s22" % (32 + 8 * m + 2 * i, 204 + 8 * m + i, 200 + 8 * m + i))
            a("v_perm_b32 v%d, v%d, v%d, s23" % (33 + 8 * m + 2 * i, 204 + 8 * m + i, 200 + 8 * m + i))
    for i in range(16):
        a("v_dot2_f32_bf16 v%d, v%d, v75, 0" % (48 + i, 32 + i))
    a("s_nop 2")
    for i in range(8):
        a("v_permlane32_swap_b32 v%d, v%d" % (48 + i, 56 + i))
    a("s_nop 1")
    for i in range(8):
        a("v_add_f32 v%d, v%d, v%d" % (48 + i, 48 + i, 56 + i))
    a("s_nop 1")
    for i in range(4):
        a("v_permlane16_swap_b32 v%d, v%d" % (48 + i, 52 + i))
    a("s_nop 1")
    for i in range(4):
        a("v_add_f32 v%d, v%d, v%d" % (48 + i, 48 + i, 52 + i))
    for r in (8, 4, 2, 1):
        a("s_nop 0")
        for i in range(4):
            a("v_add_f32_dpp v%d, v%d, v%d row_ror:%d row_mask:0xf bank_mask:0xf" % (48 + i, 48 + i, 48 + i, r))
    a("s_lshl_b32 s21, s17, 6")
    a("s_add_u32 s21, s21, 98560")
    a("v_lshrrev_b32 v7, 4, v0")
    a("v_lshlrev_b32 v7, 4, v7")
    a("v_add_u32 v6, s21, v7")
    a("ds_write_b128 v6, v[48:51]")
    a("v_and_b32 v7, 7, v0")
    a("v_lshlrev_b32 v7, 2, v7")
    a("v_add_u32 v7, 98560, v7")
    a("s_waitcnt lgkmcnt(0)")
    a("s_barrier")
    for w in range(4):
        a("ds_read_b32 v%d, v7 offset:%d" % (48 + w, 64 * w))
        a("ds_read_b32 v%d, v7 offset:%d" % (52 + w, 64 * w + 32))
    a("s_waitcnt lgkmcnt(0)")
    a("v_add_f32 v48, v48, v49")
    a("v_add_f32 v50, v50, v51")
    a("v_add_f32 v52, v52, v53")
    a("v_add_f32 v54, v54, v55")
    a("v_add_f32 v48, v48, v50")
    a("v_add_f32 v52, v52, v54")
    bf16r(a, 48, 48)
    bf16r(a, 52, 52)
    a("v_mul_f32 v49, 0xbfb8aa3b, v48")
    a("v_exp_f32 v49, v49")
    a("s_nop 0")
    a("v_add_f32 v49, 1.0, v49")
    a("v_rcp_f32 v49, v49")
    a("s_nop 0")
    a("v_mul_f32 v48, v48, v49")
    bf16r(a, 48, 48)
    a("v_mul_f32 v48, v48, v52")
    bf16r(a, 48, 48)
    a("s_nop 0")
    for j in range(8):
        a("v_readlane_b32 s%d, v48, %d" % (4 + j, j))
    a("v_mov_b32 v50, 0")
    a("v_mov_b32 v51, 0")
    for j in range(8):
        unpack(a, 52, 53, 216 + j)
        a("v_fmac_f32 v50, s%d, v52" % (4 + j))
        a("v_fmac_f32 v51, s%d, v53" % (4 + j))
    a("v_lshlrev_b32 v6, 3, v199")
    a("s_lshl_b32 s20, s66, 11")
    a("s_add_u32 s20, s20, %d" % YP_OFF)
    a("buffer_store_dwordx2 v[50:51], v6, s[68:71], s20 offen%s" % SC)
    stamp(a, 7)
    a("s_endpgm")

    a.label("kx_final")
    a("v_lshrrev_b32 v5, 4, v0")
    a("v_lshlrev_b32 v3, 2, v5")
    a("s_lshl_b32 s19, s66, 4")
    a("v_add_u32 v3, s19, v3")
    a("v_add_u32 v68, v67, v3")

    def hcond():
        a("v_max_u32 v4, v69, v75")
        a("v_cmp_eq_u32 vcc, -1, v4")
    poll(a, "kx_poll5", ["buffer_load_dword v75, v68, s[68:71], s20 offen%s" % SC,
                         "buffer_load_dword v69, v68, s[68:71], s20 offen offset:1024%s" % SC], hcond)
    a("v_and_b32 v52, 0xffff0000, v64")
    a("v_ashrrev_i32 v53, 31, v52")
    a("v_not_b32 v53, v53")
    a("v_and_b32 v53, 0x7fff0000, v53")
    a("v_or_b32 v53, 0x80000000, v53")
    a("v_xor_b32 v52, v52, v53")
    a("v_mul_f32 v53, 0xbfb8aa3b, v52")
    a("v_exp_f32 v53, v53")
    a("s_nop 0")
    a("v_add_f32 v53, 1.0, v53")
    a("v_rcp_f32 v53, v53")
    a("s_nop 0")
    bf16r(a, 44, 53)
    unpack(a, 40, 41, 69)
    unpack(a, 42, 43, 75)
    a("v_lshlrev_b32 v45, 10, v66")
    a("v_add_u32 v45, v45, v3")
    a("v_lshlrev_b32 v1, 11, v0")
    a("s_lshl_b32 s19, s66, 5")
    a("v_add_u32 v1, s19, v1")
    a("v_cmp_gt_u32 vcc, 32, v0")
    a("v_mov_b32 v6, 0x40000000")
    a("v_cndmask_b32 v6, v6, v1, vcc")
    for i in range(4):
        a("s_mov_b32 s%d, %d" % (24 + i, YP_OFF + 131072 * i))
    loads = []
    for i in range(4):
        vo = 1 if i < 3 else 6
        loads.append("buffer_load_dwordx4 v[%d:%d], v%d, s[68:71], s%d offen%s" % (8 + 8 * i, 11 + 8 * i, vo, 24 + i, SC))
        loads.append("buffer_load_dwordx4 v[%d:%d], v%d, s[68:71], s%d offen offset:16%s" % (12 + 8 * i, 15 + 8 * i, vo, 24 + i, SC))

    def ycond():
        a("v_max3_u32 v4, v8, v9, v10")
        for i in range(11, 39, 2):
            a("v_max3_u32 v4, v4, v%d, v%d" % (i, i + 1))
        a("v_max_u32 v4, v4, v39")
        a("v_cmp_eq_u32 vcc, -1, v4")
    poll(a, "kx_poll3", loads, ycond)
    for i in range(4):
        a("v_pk_add_f32 v[%d:%d], v[%d:%d], v[%d:%d]" % (8 + 2 * i, 9 + 2 * i, 8 + 2 * i, 9 + 2 * i, 16 + 2 * i, 17 + 2 * i))
        a("v_pk_add_f32 v[%d:%d], v[%d:%d], v[%d:%d]" % (24 + 2 * i, 25 + 2 * i, 24 + 2 * i, 25 + 2 * i, 32 + 2 * i, 33 + 2 * i))
    for i in range(4):
        a("v_pk_add_f32 v[%d:%d], v[%d:%d], v[%d:%d]" % (8 + 2 * i, 9 + 2 * i, 8 + 2 * i, 9 + 2 * i, 24 + 2 * i, 25 + 2 * i))
    a("s_nop 1")
    for i in range(4):
        a("v_permlane32_swap_b32 v%d, v%d" % (8 + i, 12 + i))
    a("s_nop 1")
    for i in range(4):
        a("v_add_f32 v%d, v%d, v%d" % (8 + i, 8 + i, 12 + i))
    a("s_nop 1")
    for i in range(2):
        a("v_permlane16_swap_b32 v%d, v%d" % (8 + i, 10 + i))
    a("s_nop 1")
    for i in range(2):
        a("v_add_f32 v%d, v%d, v%d" % (8 + i, 8 + i, 10 + i))
    for r in (8, 4, 2, 1):
        a("s_nop 1")
        for i in range(2):
            a("v_add_f32_dpp v%d, v%d, v%d row_ror:%d row_mask:0xf bank_mask:0xf" % (8 + i, 8 + i, 8 + i, r))
    for i in range(2):
        bf16r(a, 8 + i, 8 + i)
        a("v_mul_f32 v%d, v%d, v44" % (8 + i, 8 + i))
        bf16r(a, 8 + i, 8 + i)
        a("v_add_f32 v%d, v%d, v%d" % (8 + i, 8 + i, 42 + i))
        bf16r(a, 8 + i, 8 + i)
        a("v_add_f32 v%d, v%d, v%d" % (8 + i, 8 + i, 40 + i))
    a("v_cvt_pk_bf16_f32 v8, v8, v9")
    a("v_and_b32 v6, 15, v0")
    a("v_cmp_eq_u32 vcc, 0, v6")
    a("s_and_saveexec_b64 s[30:31], vcc")
    a("buffer_store_dword v8, v45, s[80:83], 0 offen" + OUTF)
    a("s_mov_b64 exec, -1")
    if gen.STAMPS:
        a("s_waitcnt vmcnt(0)")
    stamp(a, 7)
    a.label("kx_exit")
    a("s_endpgm")
    a.label("kx_end")
    return name, 224


def main(out):
    head = open("cdna_kernels/%s.s.ref" % NAME).read().split("\n")
    a = A()
    for line in head:
        if line.startswith(";") and "@launch" not in line:
            a.raw(line)
    if "--plain" in sys.argv:
        kname = NAME + "_kernel"
        a.raw("; @launch grid=(256,1,1) block=(512,1,1) lds=163840")
    else:
        kname = "kx_kernel"
        a.raw("; @launch kernel=%s grid=(256,1,1) block=(512,1,1) lds=163840" % kname)
    a.raw('.amdgcn_target "amdgcn-amd-amdhsa--gfx950"')
    name, vg = kx(a, kname)
    if DBGSTAMP:
        kernel_desc(a, name, 256, 102)
    else:
        kernel_desc(a, name, vg, 96)
    open(out, "w").write(a.text())


if __name__ == "__main__":
    args = [x for x in sys.argv[1:] if not x.startswith("--")]
    if "--stamps" in sys.argv:
        gen.STAMPS = True
    for x in sys.argv:
        if x.startswith("--exp="):
            gen.EXP = set(x[6:].split(","))
        if x.startswith("--sleep="):
            SLEEP = int(x[8:])
        if x.startswith("--ffnst="):
            FFNST = int(x[8:])
        if x.startswith("--pf0="):
            PF0 = int(x[6:])
        if x.startswith("--pfn="):
            PFN = int(x[6:])
        if x.startswith("--nrep="):
            NREP = int(x[7:])
        if x == "--dbg":
            DBGSTAMP = True
        if x.startswith("--outf="):
            OUTF = " " + x[7:].replace(",", " ")
        if x == "--noq":
            NTQ = ""
        if x == "--nont":
            NT = ""
    main(args[0] if args else "cdna_kernels/%s.s" % NAME)
```

```python
import sys
import gen
from gen import (A, NAME, kernel_head, kernel_desc, srd, add64, bf16r, unpack, allreduce64, wave_split,
                 stamp, stampc, stamp_init, SLOT, NSLOT, ACC, FR, AP, AQ, KA_WS)

ABT_OFF = 0
PART_OFF = 4 << 20
FLAG0 = 12 << 20
FLAG1 = FLAG0 + 16384
KEYS = FLAG1 + 32768
STAT = 13 << 20
YP_OFF = 15 << 20
SELROW = 16 << 20
WS_SRD_SIZE = 32 << 20
NREP = 4
SC = " sc1"
SPIN_MAX = 1 << 20
SLEEP = 4
NT = ""
NTQ = ""
PFN = 12
PF0 = 4
FFNST = 99
OUTF = ""
STATS_LDS = 4 * SLOT
SUMW_LDS = STATS_LDS + 1024
NONCE_LDS = STATS_LDS + 2048


def poll(a, lbl, loads, cond):
    a("s_mov_b32 s31, 0")
    a.label(lbl)
    for l in loads:
        a(l)
    a("s_waitcnt vmcnt(0)")
    cond()
    a("s_add_u32 s31, s31, 1")
    a("s_nop 1")
    a("s_cmp_eq_u64 vcc, 0")
    a("s_cbranch_scc1 %s_done" % lbl)
    a("s_cmp_ge_u32 s31, %d" % SPIN_MAX)
    a("s_cbranch_scc1 %s_done" % lbl)
    a("s_sleep %d" % SLEEP)
    a("s_branch %s" % lbl)
    a.label(lbl + "_done")


DBGSTAMP = False
DBGWG = 0
_dbgn = [0]


def dstamp(a, slot):
    _dbgn[0] += 1
    lbl = "kx_ds%d" % _dbgn[0]
    a("s_cmp_lg_u32 s2, %d" % (255 if slot == 7 else DBGWG))
    a("s_cbranch_scc1 %s" % lbl)
    a("s_cmp_lg_u32 s16, 0")
    a("s_cbranch_scc1 %s" % lbl)
    a("s_memrealtime s[98:99]")
    a("s_waitcnt lgkmcnt(0)")
    a("v_mov_b32 v254, s98")
    a("v_mov_b32 v255, %d" % (4 * (slot + 1)))
    a("s_mov_b64 s[100:101], exec")
    a("s_mov_b64 exec, 1")
    a("buffer_store_dword v254, v255, s[92:95], 0 offen")
    a("s_mov_b64 exec, s[100:101]")
    a.label(lbl)


def kx(a, name):
    global stamp, stamp_init
    gen.STV = 254
    EXP = gen.EXP
    if DBGSTAMP:
        stamp = dstamp
        stamp_init = lambda a, k, lo, hi: srd(a, 92, 54, 55, 256)
    def setup2(sfx):
        a("s_lshl_b32 s31, s16, 6")
        a("v_add_u32 v199, s31, v0")
        for r in range(4):
            a("v_mov_b32 v%d, -1" % (16 + r))
        a("v_lshlrev_b32 v4, 4, v0")
        a("s_and_b32 s21, s16, 1")
        a("s_lshl_b32 s21, s21, 10")
        a("s_cmp_lt_u32 s16, 2")
        a("s_cbranch_scc1 kx_c2a" + sfx)
        a("s_lshl_b32 s20, s64, 11")
        a("s_add_u32 s20, s20, s21")
        a("s_add_u32 s20, s20, %d" % SELROW)
        a("buffer_store_dwordx4 v[16:19], v4, s[68:71], s20 offen%s" % SC)
        a.label("kx_c2a" + sfx)
        a("s_cmp_ge_u32 s65, 28")
        a("s_cbranch_scc1 kx_c2final" + sfx)
        a("s_and_b32 s66, s59, 7")
        a("s_lshl_b32 s26, s65, 3")
        a("s_add_u32 s66, s66, s26")
        a("s_cmp_ge_u32 s16, 2")
        a("s_cbranch_scc1 kx_c2b" + sfx)
        a("s_lshl_b32 s20, s66, 11")
        a("s_add_u32 s20, s20, s21")
        a("s_add_u32 s20, s20, %d" % YP_OFF)
        a("buffer_store_dwordx4 v[16:19], v4, s[68:71], s20 offen%s" % SC)
        a.label("kx_c2b" + sfx)
        a("s_branch kx_c2done" + sfx)
        a.label("kx_c2final" + sfx)
        a("s_sub_u32 s66, s58, 4")
        a("s_lshl_b32 s66, s66, 3")
        a("s_add_u32 s66, s66, s59")
        a("s_sub_u32 s66, s66, 24")
        a("s_lshl_b32 s66, s66, 1")
        a("s_add_u32 s66, s66, s16")
        a.label("kx_c2done" + sfx)

    def ffnloads():
        srd(a, 12, 46, 47, 512 * 3584)
        srd(a, 72, 48, 49, 512 * 3584)
        srd(a, 76, 50, 51, 1792 * 1024)
        a("s_movk_i32 s31, 7168")
        a("v_mul_lo_u32 v5, v199, s31")
        a("s_lshl_b32 s31, s66, 4")
        a("v_add_u32 v5, s31, v5")
        a("v_lshlrev_b32 v4, 2, v199")
        a("s_lshl_b32 s28, s66, 13")
        a("s_add_u32 s29, s28, 4096")
        a("buffer_load_dwordx4 v[200:203], v5, s[12:15], 0 offen")
        a("buffer_load_dwordx4 v[204:207], v5, s[12:15], 0 offen offset:3584")
        a("buffer_load_dwordx4 v[208:211], v5, s[72:75], 0 offen")
        a("buffer_load_dwordx4 v[212:215], v5, s[72:75], 0 offen offset:3584")
        for j in range(4):
            a("buffer_load_dword v%d, v4, s[76:79], s28 offen offset:%d" % (216 + j, 1024 * j))
        for j in range(4):
            a("buffer_load_dword v%d, v4, s[76:79], s29 offen offset:%d" % (220 + j, 1024 * j))

    kernel_head(a, name)
    a("s_cmp_ge_u32 s2, 256")
    a("s_cbranch_scc1 kx_exit")
    a("s_load_dwordx16 s[32:47], s[0:1], 0")
    a("s_load_dwordx8 s[48:55], s[0:1], 64")
    a("s_load_dwordx2 s[56:57], s[0:1], %d" % KA_WS)
    wave_split(a)
    a("s_and_b32 s58, s2, 7")
    a("s_lshr_b32 s59, s2, 3")
    a("s_and_b32 s60, s58, 1")
    a("s_lshr_b32 s61, s58, 1")
    a("s_and_b32 s62, s59, 3")
    a("s_lshr_b32 s63, s59, 2")
    a("s_lshl_b32 s67, s60, 3")
    a("s_add_u32 s63, s63, s67")
    a("s_lshl_b32 s64, s63, 4")
    a("s_lshl_b32 s67, s62, 2")
    a("s_add_u32 s64, s64, s67")
    a("s_add_u32 s64, s64, s61")
    a("s_lshr_b32 s65, s59, 3")
    a("s_lshl_b32 s65, s65, 3")
    a("s_add_u32 s65, s65, s58")
    a("s_and_b32 s88, s61, 1")
    a("s_lshr_b32 s89, s61, 1")
    a("s_lshl_b32 s85, s88, 3")
    a("s_lshl_b32 s67, s60, 2")
    a("s_add_u32 s85, s85, s67")
    a("s_waitcnt lgkmcnt(0)")
    stamp_init(a, 0, 56, 57)
    stamp(a, 0)
    srd(a, 68, 56, 57, WS_SRD_SIZE)
    srd(a, 72, 54, 55, 256)
    a("v_mov_b32 v197, 0")
    a("s_cmp_lg_u32 s2, %d" % (0 if ("ilv" in EXP or "hfirst" in EXP or "n0" in EXP) else 128))
    a("s_cbranch_scc1 kx_nononce")
    a("s_cmp_lg_u32 s16, 0")
    a("s_cbranch_scc1 kx_nononce")
    a("s_memrealtime s[18:19]")
    a("s_waitcnt lgkmcnt(0)")
    a("s_or_b32 s84, s18, 1")
    a("v_mov_b32 v194, s84")
    a("s_mov_b64 exec, 1")
    a("buffer_store_dword v194, v197, s[72:75], 0 offen%s" % SC)
    a("s_mov_b64 exec, -1")
    a.label("kx_nononce")
    if "ilv" in EXP:
        a("s_lshr_b32 s86, s59, 1")
        a("s_bitcmp1_b32 s59, 0")
        a("s_cbranch_scc1 kx_pref")
    elif "hfirst" in EXP:
        a("s_and_b32 s86, s59, 15")
        a("s_cmp_lt_u32 s59, 16")
        a("s_cbranch_scc1 kx_pref")
    else:
        a("s_and_b32 s86, s59, 15")
        a("s_cmp_ge_u32 s59, 16")
        a("s_cbranch_scc1 kx_pref")
    a("s_and_b32 s3, s86, 3")
    a("s_add_u32 s85, s85, s3")
    a("s_lshr_b32 s86, s86, 2")
    a("s_lshl_b32 s87, s89, 2")
    a("s_add_u32 s87, s87, s86")
    a("s_cmp_ge_u32 s16, 4")
    a("s_cbranch_scc1 kx_loader1")
    a("s_mov_b32 s30, 0")
    a("s_mov_b32 s22, 8")

    a.label("kx_cons")
    if "cprio" in EXP:
        a("s_setprio 2")
    a("s_lshr_b32 s17, s16, 1")
    a("s_and_b32 s18, s16, 1")
    a("v_and_b32 v1, 15, v0")
    a("v_lshrrev_b32 v2, 4, v0")
    a("v_lshrrev_b32 v3, 1, v1")
    a("v_lshlrev_b32 v4, 7, v1")
    a("s_lshl_b32 s19, s17, 13")
    a("s_lshl_b32 s20, s18, 13")
    a("s_add_u32 s20, s20, 16384")
    for j in range(2):
        a("v_add_u32 v5, %d, v2" % (4 * j))
        a("v_xor_b32 v5, v5, v3")
        a("v_lshlrev_b32 v5, 4, v5")
        a("v_add_u32 v5, v5, v4")
        a("v_add_u32 v%d, s19, v5" % (AP + j))
        a("v_add_u32 v%d, s20, v5" % (AQ + j))
    a("s_cmp_eq_u32 s30, 0")
    a("s_cbranch_scc1 kx_apdone")
    a("v_and_b32 v5, 1, v2")
    a("v_lshlrev_b32 v5, 9, v5")
    a("v_lshrrev_b32 v6, 1, v2")
    a("v_lshlrev_b32 v6, 8, v6")
    a("v_lshlrev_b32 v7, 4, v1")
    a("v_add3_u32 v5, v5, v6, v7")
    a("v_add_u32 v%d, s19, v5" % AP)
    a("v_add_u32 v%d, 1024, v%d" % (AP + 1, AP))
    a.label("kx_apdone")
    for r in range(32):
        a("v_mov_b64 v[%d:%d], 0" % (ACC + 2 * r, ACC + 2 * r + 1))
    a("s_mov_b32 s23, %d" % SLOT)
    a("s_mov_b32 s24, %d" % SLOT)
    a("s_mov_b32 s25, 1")
    a("s_mov_b32 s27, %d" % (-(NSLOT - 1) * SLOT))
    a("s_mov_b32 s28, %d" % SLOT)

    def rdlist(j):
        f = FR + 32 * j
        l = []
        for t in range(4):
            l.append("ds_read_b128 v[%d:%d], v%d offset:%d" % (f + 4 * t, f + 4 * t + 3, AP + j, 2048 * t))
            l.append("ds_read_b128 v[%d:%d], v%d offset:%d" % (f + 16 + 4 * t, f + 16 + 4 * t + 3, AQ + j, 2048 * t))
        return l

    book = ["s_mov_b32 s23, s24",
            "s_add_u32 s25, s25, 1",
            "s_cmp_eq_u32 s25, %d" % NSLOT,
            "s_cselect_b32 s26, %d, 0" % NSLOT,
            "s_sub_u32 s25, s25, s26",
            "s_cmp_eq_u32 s25, %d" % (NSLOT - 1),
            "s_cselect_b32 s24, s27, s28",
            "s_sub_u32 s22, s22, 1",
            "s_cmp_lt_u32 s22, 2"]
    a("s_barrier")
    if gen.STAMPS or DBGSTAMP:
        a("s_cmp_lg_u32 s30, 0")
        a("s_cbranch_scc1 kx_st9")
        stamp(a, 8)
        a("s_branch kx_st9d")
        a.label("kx_st9")
        stamp(a, 9)
        a.label("kx_st9d")
    for r in rdlist(0):
        a(r)
    a("v_add_u32 v%d, s23, v%d" % (AP, AP))
    a("v_add_u32 v%d, s23, v%d" % (AQ, AQ))
    a.label("kx_cloop")
    for j in range(2):
        jn = 1 - j
        sd = 23 if j == 0 else 24
        f = FR + 32 * j
        rd = rdlist(jn)
        a("s_waitcnt lgkmcnt(0)")
        k = 0
        for ti in range(4):
            for tj in range(4):
                c = ACC + 4 * (4 * ti + tj)
                a("v_mfma_f32_16x16x32_bf16 v[%d:%d], v[%d:%d], v[%d:%d], v[%d:%d]" % (
                    c, c + 3, f + 4 * ti, f + 4 * ti + 3, f + 16 + 4 * tj, f + 16 + 4 * tj + 3, c, c + 3))
                if k < 8:
                    a(rd[k])
                if k == 8:
                    a("v_add_u32 v%d, s%d, v%d" % (AP + jn, sd, AP + jn))
                if k == 9:
                    a("v_add_u32 v%d, s%d, v%d" % (AQ + jn, sd, AQ + jn))
                if j == 1 and 10 <= k < 15:
                    for b in book[2 * (k - 10):2 * (k - 10) + 2]:
                        a(b)
                k += 1
    a("s_cbranch_scc1 kx_nobar")
    a("s_barrier")
    a.label("kx_nobar")
    a("s_cmp_lg_u32 s22, 0")
    a("s_cbranch_scc1 kx_cloop")
    a("s_waitcnt lgkmcnt(0)")
    a("s_cmp_lg_u32 s30, 0")
    a("s_cbranch_scc1 kx_epi2")

    stamp(a, 1)
    a("s_lshl_b32 s19, s17, 8")
    a("s_add_u32 s19, s19, %d" % STATS_LDS)
    a("v_lshlrev_b32 v7, 4, v2")
    a("v_add_u32 v7, s19, v7")
    a("s_lshl_b32 s19, s18, 8")
    a("s_add_u32 s19, s19, %d" % SUMW_LDS)
    a("v_lshlrev_b32 v6, 2, v1")
    a("v_add_u32 v6, s19, v6")
    a("v_mov_b32 v5, %d" % NONCE_LDS)
    a("s_barrier")
    a("ds_read_b32 v16, v5")
    for tj in range(4):
        a("ds_read_b32 v%d, v6 offset:%d" % (20 + 2 * tj, 64 * tj))
    for ti in range(4):
        a("ds_read_b128 v[%d:%d], v7 offset:%d" % (32 + 8 * ti, 35 + 8 * ti, 64 * ti))
        a("ds_read_b128 v[%d:%d], v7 offset:%d" % (36 + 8 * ti, 39 + 8 * ti, 64 * ti + 512))
    a("s_lshl_b32 s19, s87, 5")
    a("s_lshl_b32 s20, s85, 1")
    a("s_add_u32 s19, s19, s20")
    a("s_add_u32 s19, s19, s17")
    a("s_lshl_b32 s19, s19, 14")
    a("s_lshl_b32 s20, s18, 13")
    a("s_add_u32 s19, s19, s20")
    a("s_add_u32 s20, s19, 4096")
    a("s_lshl_b32 s29, s87, 4")
    a("s_add_u32 s29, s29, s85")
    a("s_lshl_b32 s29, s29, 7")
    a("s_lshl_b32 s21, s16, 2")
    a("s_add_u32 s29, s29, s21")
    a("s_add_u32 s29, s29, %d" % FLAG0)
    a("v_lshlrev_b32 v6, 4, v0")
    a("s_waitcnt lgkmcnt(0)")
    a("v_readfirstlane_b32 s84, v16")
    n = 0
    for tj in range(4):
        for tp in range(2):
            d = FR + 4 * n
            for k in range(2):
                ti = 2 * tp + k
                c = ACC + 4 * (4 * ti + tj)
                for h in range(2):
                    a("v_pk_fma_f32 v[%d:%d], v[%d:%d], v[%d:%d], v[%d:%d] op_sel_hi:[1,0,1] neg_lo:[1,0,0] neg_hi:[1,0,0]" % (
                        c + 2 * h, c + 2 * h + 1, 32 + 8 * ti + 2 * h, 33 + 8 * ti + 2 * h, 20 + 2 * tj, 21 + 2 * tj, c + 2 * h, c + 2 * h + 1))
                for h in range(2):
                    a("v_pk_mul_f32 v[%d:%d], v[%d:%d], v[%d:%d]" % (
                        c + 2 * h, c + 2 * h + 1, c + 2 * h, c + 2 * h + 1, 36 + 8 * ti + 2 * h, 37 + 8 * ti + 2 * h))
                for h in range(2):
                    a("v_cvt_pk_bf16_f32 v%d, v%d, v%d" % (d + 2 * k + h, c + 2 * h, c + 2 * h + 1))
            a("s_nop 1")
            a("v_permlane16_swap_b32 v%d, v%d" % (d, d + 2))
            a("v_permlane16_swap_b32 v%d, v%d" % (d + 1, d + 3))
            a("s_nop 0")
            a("buffer_store_dwordx4 v[%d:%d], v6, s[68:71], s%d offen offset:%d%s" % (d, d + 3, 19 + (n >> 2), 1024 * (n & 3), SC))
            n += 1
    a("v_mov_b32 v4, 0")
    a("v_mov_b32 v5, s84")
    stamp(a, 10)
    a("s_barrier")
    a("s_waitcnt vmcnt(0)")
    a("s_mov_b64 exec, 1")
    a("buffer_store_dword v5, v4, s[68:71], s29 offen%s" % SC)
    a("s_mov_b64 exec, -1")
    stamp(a, 2)
    setup2("g")
    a("s_branch kx_cons2")
    a.label("kx_epi2")
    stamp(a, 3)
    a("s_lshl_b32 s19, s64, 15")
    a("s_lshl_b32 s20, s16, 13")
    a("s_add_u32 s19, s19, s20")
    a("s_add_u32 s19, s19, %d" % PART_OFF)
    a("s_add_u32 s20, s19, 4096")
    a("s_lshl_b32 s29, s64, 7")
    a("s_lshl_b32 s21, s16, 2")
    a("s_add_u32 s29, s29, s21")
    a("s_add_u32 s29, s29, %d" % FLAG1)
    a("v_lshlrev_b32 v6, 4, v0")
    n = 0
    for tj in range(4):
        for tp in range(2):
            d = FR + 4 * n
            for k in range(2):
                c = ACC + 4 * (4 * (2 * tp + k) + tj)
                a("v_cvt_pk_bf16_f32 v%d, v%d, v%d" % (d + 2 * k, c, c + 1))
                a("v_cvt_pk_bf16_f32 v%d, v%d, v%d" % (d + 2 * k + 1, c + 2, c + 3))
            a("s_nop 1")
            a("v_permlane16_swap_b32 v%d, v%d" % (d, d + 2))
            a("v_permlane16_swap_b32 v%d, v%d" % (d + 1, d + 3))
            a("s_nop 0")
            a("buffer_store_dwordx4 v[%d:%d], v6, s[68:71], s%d offen offset:%d%s" % (d, d + 3, 19 + (n >> 2), 1024 * (n & 3), SC))
            n += 1
    a("v_mov_b32 v4, 0")
    a("v_mov_b32 v5, s84")
    stamp(a, 11)
    a("s_waitcnt vmcnt(0)")
    a("s_mov_b64 exec, 1")
    a("buffer_store_dword v5, v4, s[68:71], s29 offen%s" % SC)
    a("s_mov_b64 exec, -1")
    a("s_branch kx_rows")

    a.label("kx_cons2")
    a("s_mov_b32 s30, 1")
    a("s_mov_b32 s22, 16")
    a("s_barrier")
    a("s_branch kx_cons")

    a.label("kx_loader1")
    if "lprio" in EXP:
        a("s_setprio 2")
    a("s_lshl_b32 s19, s85, 17")
    a("s_add_u32 s22, s32, s19")
    a("s_addc_u32 s23, s33, 0")
    srd(a, 4, 22, 23, 131072)
    a("s_cmp_eq_u32 s89, 0")
    a("s_cselect_b32 s22, s38, s40")
    a("s_cselect_b32 s23, s39, s41")
    a("s_lshl_b32 s19, s86, 17")
    add64(a, 22, 23, "s19")
    srd(a, 8, 22, 23, 131072)
    a("s_sub_u32 s17, s16, 4")
    a("v_lshrrev_b32 v6, 3, v0")
    a("v_lshrrev_b32 v7, 4, v0")
    a("v_and_b32 v16, 7, v0")
    a("s_lshl_b32 s18, s17, 5")
    for j in range(4):
        a("v_add_u32 v18, %d, v7" % (4 * j))
        a("v_and_b32 v18, 7, v18")
        a("v_xor_b32 v18, v18, v16")
        a("v_lshlrev_b32 v18, 4, v18")
        a("v_add3_u32 v17, v6, s18, %d" % (8 * j))
        a("v_lshlrev_b32 v17, 10, v17")
        a("v_add_u32 v17, v17, v18")
        a("v_subrev_u32 v%d, %d, v17" % (8 + j, 1024 * j))
    a("s_lshl_b32 s21, s17, 12")
    a("s_mov_b32 s20, 0")
    a("s_mov_b32 s22, 0")
    a.label("kx_l1loop")
    a("s_mov_b32 m0, s21")
    a("s_add_u32 s19, s21, 16384")
    for j in range(4):
        a("buffer_load_dwordx4 v%d, s[4:7], s20 offen offset:%d%s lds" % (8 + j, 1024 * j, NT))
    a("s_mov_b32 m0, s19")
    a("s_add_u32 s22, s22, 1")
    for j in range(4):
        a("buffer_load_dwordx4 v%d, s[8:11], s20 offen offset:%d%s lds" % (8 + j, 1024 * j, NT))
    a("s_add_u32 s20, s20, 128")
    a("s_add_u32 s21, s21, %d" % SLOT)
    a("s_cmp_eq_u32 s22, %d" % NSLOT)
    a("s_cselect_b32 s19, %d, 0" % (SLOT * NSLOT))
    a("s_sub_u32 s21, s21, s19")
    if "early1" in EXP:
        a("s_cmp_lt_u32 s22, 2")
        a("s_cbranch_scc1 kx_l1loop")
        a("s_cmp_lg_u32 s22, 2")
        a("s_cbranch_scc1 kx_l1n2")
        a("s_waitcnt vmcnt(0)")
        a("s_barrier")
        a("s_branch kx_l1loop")
        a.label("kx_l1n2")
        a("s_cmp_lt_u32 s22, 5")
        a("s_cbranch_scc1 kx_l1loop")
    else:
        a("s_cmp_lt_u32 s22, 4")
        a("s_cbranch_scc1 kx_l1loop")
    a("s_waitcnt vmcnt(16)")
    a("s_barrier")
    a("s_cmp_lt_u32 s22, 8")
    a("s_cbranch_scc1 kx_l1loop")
    a("s_lshl_b32 s19, s3, 7")
    a("s_lshl_b32 s24, s86, 7")
    a("s_add_u32 s24, s24, 480")
    a("v_mov_b32 v20, s19")
    a("v_mov_b32 v21, s24")
    a("v_cmp_gt_u32 vcc, 32, v0")
    a("v_add_u32 v22, s18, v0")
    a("v_cndmask_b32 v20, v21, v20, vcc")
    a("v_add_lshl_u32 v20, v20, v22, 3")
    a("s_lshl_b32 s24, s58, 13")
    a("s_add_u32 s24, s24, %d" % STAT)
    a("buffer_load_dword v194, v197, s[72:75], 0 offen%s" % SC)
    a("buffer_load_dwordx2 v[24:25], v20, s[68:71], s24 offen%s" % SC)
    a("s_waitcnt vmcnt(10)")
    a("s_barrier")
    a("s_waitcnt vmcnt(2)")
    a("s_barrier")
    a("v_lshlrev_b32 v22, 2, v22")
    a("v_add_u32 v22, %d, v22" % STATS_LDS)
    a("s_waitcnt vmcnt(0)")

    def stcond():
        a("v_cmp_ne_u32 vcc, v25, v194")
        a("v_cmp_eq_u32 s[26:27], 0, v194")
        a("s_nop 2")
        a("s_or_b64 vcc, vcc, s[26:27]")
    stcond()
    a("s_cmp_eq_u64 vcc, 0")
    a("s_cbranch_scc1 kx_polln_done")
    poll(a, "kx_polln", ["buffer_load_dword v194, v197, s[72:75], 0 offen%s" % SC,
                         "buffer_load_dwordx2 v[24:25], v20, s[68:71], s24 offen%s" % SC], stcond)
    a("v_readfirstlane_b32 s84, v194")
    a("v_lshlrev_b32 v26, 16, v24")
    a("v_rcp_f32 v26, v26")
    a("v_and_b32 v27, 0xffff0000, v24")
    a("v_mov_b32 v195, %d" % NONCE_LDS)
    a("s_mov_b32 exec_hi, 0")
    a("ds_write_b32 v22, v27 offset:%d" % 0)
    a("ds_write_b32 v22, v26 offset:%d" % 512)
    a("s_not_b64 exec, exec")
    a("ds_write_b32 v22, v24 offset:%d" % (1024 - 128))
    a("s_mov_b64 exec, -1")
    a("ds_write_b32 v195, v194")
    a("s_waitcnt lgkmcnt(0)")
    a("s_barrier")
    a("s_branch kx_loader2")

    a.label("kx_pref")
    if "codepf" in EXP:
        a("s_cmp_lg_u32 s86, 0")
        a("s_cbranch_scc1 kx_nocode")
        a("s_cmp_ge_u32 s16, (kx_end - %s + 8191) / 8192" % name)
        a("s_cbranch_scc1 kx_nocode")
        a("s_getpc_b64 s[22:23]")
        a.label("kx_pc")
        a("s_sub_u32 s22, s22, kx_pc - %s" % name)
        a("s_subb_u32 s23, s23, 0")
        a("v_lshlrev_b32 v11, 7, v0")
        a("s_lshl_b32 s19, s16, 13")
        a("v_add_u32 v11, s19, v11")
        a("v_min_u32 v11, kx_end - %s - 4, v11" % name)
        a("global_load_dword v59, v11, s[22:23]")
        a.label("kx_nocode")
    a("v_lshrrev_b32 v6, 3, v0")
    a("v_and_b32 v7, 7, v0")
    a("v_lshlrev_b32 v8, 12, v6")
    a("v_lshlrev_b32 v6, 10, v6")
    a("v_lshlrev_b32 v9, 7, v7")
    a("v_add_u32 v6, v6, v9")
    a("v_add_u32 v14, v8, v9")
    a("s_cmp_eq_u32 s89, 0")
    a("s_cselect_b32 s24, s38, s40")
    a("s_cselect_b32 s25, s39, s41")
    a("s_cselect_b32 s26, s34, s36")
    a("s_cselect_b32 s27, s35, s37")
    a("s_lshl_b32 s19, s85, 17")
    a("s_add_u32 s22, s32, s19")
    a("s_addc_u32 s23, s33, 0")
    a("s_cmp_lt_u32 s86, 8")
    a("s_cselect_b32 s22, s22, s24")
    a("s_cselect_b32 s23, s23, s25")
    srd(a, 4, 22, 23, 524288)
    a("s_and_b32 s19, s86, 7")
    a("s_lshl_b32 s19, s19, 16")
    a("s_lshl_b32 s20, s16, 13")
    a("s_add_u32 s19, s19, s20")
    a("v_lshlrev_b32 v11, 4, v0")
    a("s_add_u32 s29, s19, 4096")
    for i in range(8):
        a("buffer_load_dwordx4 v[%d:%d], v11, s[4:7], s%d offen offset:%d" % (64 + 4 * i, 67 + 4 * i, 19 if i < 4 else 29, 1024 * (i & 3)))
    a("s_lshl_b32 s19, s60, 22")
    a("s_lshl_b32 s20, s86, 18")
    a("s_add_u32 s19, s19, s20")
    a("s_lshl_b32 s20, s88, 11")
    a("s_add_u32 s19, s19, s20")
    a("s_lshl_b32 s20, s16, 15")
    a("s_add_u32 s19, s19, s20")
    add64(a, 26, 27, "s19")
    srd(a, 8, 26, 27, 7 * 4096 + 2048)
    if PFN - PF0 < 16:
        a("v_cmp_gt_u32 vcc, %d, v7" % max(PFN - PF0 - 8, 0))
        a("v_mov_b32 v15, 0x40000000")
        a("v_cndmask_b32 v15, v15, v14, vcc")
    else:
        a("v_mov_b32 v15, v14")
    a("s_lshl_b32 s19, s86, 3")
    a("s_add_u32 s19, s19, s16")
    a("s_mul_i32 s20, s19, 2731")
    a("s_lshr_b32 s20, s20, 16")
    a("s_mul_i32 s21, s20, 24")
    a("s_sub_u32 s21, s19, s21")
    a("s_lshl_b32 s20, s20, 3")
    a("s_add_u32 s20, s20, s58")
    a("s_movk_i32 s19, 3584")
    a("v_mul_lo_u32 v10, v0, s19")
    poll(a, "kx_pollp", ["buffer_load_dword v194, v197, s[72:75], 0 offen%s" % SC], lambda: a("v_cmp_eq_u32 vcc, 0, v194"))
    a("v_readfirstlane_b32 s84, v194")
    for i in range(8):
        for d in range(4):
            unpack(a, 16 + 2 * d, 17 + 2 * d, 64 + 4 * i + d)
        a("v_pk_add_f32 v[24:25], v[16:17], v[18:19]")
        a("v_pk_mul_f32 v[28:29], v[16:17], v[16:17]")
        a("v_pk_add_f32 v[26:27], v[20:21], v[22:23]")
        a("v_pk_fma_f32 v[28:29], v[18:19], v[18:19], v[28:29]")
        a("v_pk_add_f32 v[24:25], v[24:25], v[26:27]")
        a("v_pk_fma_f32 v[28:29], v[20:21], v[20:21], v[28:29]")
        a("v_add_f32 v%d, v24, v25" % (32 + i))
        a("v_pk_fma_f32 v[28:29], v[22:23], v[22:23], v[28:29]")
        a("v_add_f32 v%d, v28, v29" % (40 + i))
    a("s_nop 1")
    for i in range(8):
        a("v_permlane32_swap_b32 v%d, v%d" % (32 + i, 40 + i))
    a("s_nop 1")
    for i in range(8):
        a("v_add_f32 v%d, v%d, v%d" % (32 + i, 32 + i, 40 + i))
    a("s_nop 1")
    for i in range(4):
        a("v_permlane16_swap_b32 v%d, v%d" % (32 + i, 36 + i))
    a("s_nop 1")
    for i in range(4):
        a("v_add_f32 v%d, v%d, v%d" % (32 + i, 32 + i, 36 + i))
    for r in (8, 4, 2, 1):
        a("s_nop 0")
        for i in range(4):
            a("v_add_f32_dpp v%d, v%d, v%d row_ror:%d row_mask:0xf bank_mask:0xf" % (32 + i, 32 + i, 32 + i, r))
    a("v_and_b32 v16, 3, v0")
    a("v_cmp_eq_u32 s[22:23], 1, v16")
    a("v_cmp_eq_u32 s[24:25], 2, v16")
    a("v_cmp_eq_u32 s[26:27], 3, v16")
    a("v_lshrrev_b32 v17, 4, v0")
    a("v_cndmask_b32 v32, v32, v33, s[22:23]")
    a("v_cndmask_b32 v32, v32, v34, s[24:25]")
    a("v_cndmask_b32 v32, v32, v35, s[26:27]")
    a("v_mov_b32 v33, v32")
    a("v_lshl_add_u32 v16, v17, 2, v16")
    a("s_nop 0")
    a("v_permlane32_swap_b32 v32, v33")
    a("s_lshl_b32 s22, s86, 6")
    a("s_lshl_b32 s23, s16, 3")
    a("s_add_u32 s22, s22, s23")
    a("v_add_lshl_u32 v16, v16, s22, 3")
    a("v_mul_f32 v28, 0x3b000000, v32")
    a("v_mul_f32 v29, 0x3b000000, v33")
    a("v_fma_f32 v29, -v28, v28, v29")
    a("v_max_f32 v29, 0, v29")
    bf16r(a, 30, 28)
    bf16r(a, 29, 29)
    a("v_add_f32 v29, 0x3727c5ac, v29")
    bf16r(a, 29, 29)
    a("v_sqrt_f32 v29, v29")
    a("s_lshl_b32 s22, s58, 13")
    a("v_cvt_pk_bf16_f32 v29, v29, v29")
    a("v_and_b32 v29, 0xffff, v29")
    a("v_or_b32 v30, v30, v29")
    a("s_add_u32 s22, s22, %d" % STAT)
    a("s_cmp_lt_u32 s86, 8")
    a("s_cbranch_scc1 kx_pf_x")
    a("v_mov_b32 v30, v32")
    a.label("kx_pf_x")
    a("v_mov_b32 v31, s84")
    a("s_mov_b64 exec, 0x000f000f")
    a("buffer_store_dwordx2 v[30:31], v16, s[68:71], s22 offen%s" % SC)
    a("s_mov_b64 exec, -1")
    stamp(a, 8)
    a("s_cmp_ge_u32 s20, %d" % (0 if "noffnpf" in EXP else 28))
    a("s_cbranch_scc1 kx_pf_done")
    a("s_cmp_ge_u32 s21, 16")
    a("s_cbranch_scc1 kx_pf_wd")
    a("s_cmp_lt_u32 s21, 8")
    a("s_cselect_b32 s22, s46, s48")
    a("s_cselect_b32 s23, s47, s49")
    srd(a, 12, 22, 23, 512 * 3584)
    a("s_and_b32 s21, s21, 7")
    a("s_mul_i32 s19, s21, %d" % (64 * 3584))
    a("s_lshl_b32 s20, s20, 7")
    a("s_add_u32 s19, s19, s20")
    a("buffer_load_dword v61, v10, s[12:15], s19 offen" + NT)
    a("s_branch kx_pf_done")
    a.label("kx_pf_wd")
    srd(a, 12, 50, 51, 1792 * 1024)
    a("s_sub_u32 s21, s21, 16")
    a("s_lshl_b32 s19, s20, 16")
    a("s_lshl_b32 s21, s21, 13")
    a("s_add_u32 s19, s19, s21")
    a("buffer_load_dword v61, v6, s[12:15], s19 offen" + NT)
    a.label("kx_pf_done")
    if PFN - PF0 < 8:
        a("v_cmp_gt_u32 vcc, %d, v7" % (PFN - PF0))
        a("v_mov_b32 v15, 0x40000000")
        a("v_cndmask_b32 v14, v15, v14, vcc")
    a("buffer_load_dword v62, v14, s[8:11], 0 offen offset:%d" % (128 * PF0) + NT)
    if PFN - PF0 > 8:
        a("buffer_load_dword v63, v15, s[8:11], 0 offen offset:%d" % (128 * PF0 + 1024) + NT)
    a("s_waitcnt vmcnt(0)")
    stamp(a, 1)
    a("s_cmp_ge_u32 s16, 4")
    a("s_cbranch_scc1 kx_loader2")
    setup2("p")
    a("s_barrier")
    a("s_branch kx_cons2")

    a.label("kx_loader2")
    if "lprio" in EXP:
        a("s_setprio 2")
    a("s_lshl_b32 s19, s89, 2")
    a("s_add_u32 s19, s19, s62")
    a("s_lshl_b32 s24, s19, 11")
    a("s_lshl_b32 s19, s19, 19")
    a("s_lshl_b32 s20, s88, 18")
    a("s_add_u32 s19, s19, s20")
    a("s_add_u32 s22, s56, s19")
    a("s_addc_u32 s23, s57, 0")
    srd(a, 4, 22, 23, 16 * 16384)
    a("s_cmp_eq_u32 s89, 0")
    a("s_cselect_b32 s22, s34, s36")
    a("s_cselect_b32 s23, s35, s37")
    a("s_lshl_b32 s19, s63, 19")
    a("s_lshl_b32 s21, s88, 11")
    a("s_add_u32 s19, s19, s21")
    add64(a, 22, 23, "s19")
    srd(a, 8, 22, 23, 127 * 4096 + 2048)
    a("s_lshl_b32 s20, s88, 10")
    a("s_add_u32 s24, s24, s20")
    a("s_add_u32 s24, s24, %d" % FLAG0)
    a("s_sub_u32 s17, s16, 4")
    a("v_lshrrev_b32 v1, 3, v0")
    a("v_lshrrev_b32 v2, 4, v0")
    a("v_and_b32 v3, 7, v0")
    a("s_lshl_b32 s18, s17, 5")
    a("v_add_u32 v1, s18, v1")
    a("v_lshlrev_b32 v6, 7, v1")
    for j in range(4):
        a("v_add_u32 v4, %d, v1" % (8 * j))
        a("v_lshlrev_b32 v4, 12, v4")
        a("v_add_u32 v5, %d, v2" % (4 * j))
        a("v_and_b32 v5, 7, v5")
        a("v_xor_b32 v5, v5, v3")
        a("v_lshlrev_b32 v5, 4, v5")
        a("v_add_u32 v4, v4, v5")
        a("v_subrev_u32 v%d, %d, v4" % (8 + j, 1024 * j))
        if j == 0:
            a("v_lshlrev_b32 v12, 4, v0")
            a("s_lshl_b32 s19, s17, 12")
            a("v_add_u32 v12, s19, v12")
    a("s_lshl_b32 s21, s17, 12")
    a("s_lshl_b32 s31, s17, 6")
    a("v_add_u32 v199, s31, v0")
    a("s_and_b32 s66, s59, 7")
    a("s_lshl_b32 s31, s65, 3")
    a("s_add_u32 s66, s66, s31")
    a("s_sub_u32 s31, s58, 4")
    a("s_lshl_b32 s31, s31, 3")
    a("s_add_u32 s31, s31, s59")
    a("s_sub_u32 s31, s31, 24")
    a("s_lshl_b32 s31, s31, 1")
    a("s_add_u32 s31, s31, s17")
    a("s_cmp_lt_u32 s65, 28")
    a("s_cselect_b32 s66, s66, s31")
    a("s_cselect_b32 s30, %d, 99" % FFNST)
    a("s_barrier")
    a("s_mov_b32 s20, 0")
    a("s_add_u32 s19, s21, 16384")
    a.label("kx_l2q")
    a("s_mov_b32 m0, s19")
    a("s_add_u32 s19, s19, %d" % SLOT)
    for j in range(4):
        a("buffer_load_dwordx4 v%d, s[8:11], s20 offen offset:%d%s lds" % (8 + j, 1024 * j, NTQ))
    a("s_add_u32 s20, s20, 128")
    a("s_cmp_lt_u32 s20, 512")
    a("s_cbranch_scc1 kx_l2q")
    a("s_cmp_lg_u32 s16, 4")
    a("s_cbranch_scc1 kx_poll0_done")
    a("v_lshlrev_b32 v20, 7, v3")

    def f0cond():
        a("v_xor_b32 v24, s84, v24")
        a("v_xor_b32 v25, s84, v25")
        a("v_xor_b32 v26, s84, v26")
        a("v_xor_b32 v27, s84, v27")
        a("v_or3_b32 v24, v24, v25, v26")
        a("v_or_b32 v24, v24, v27")
        a("v_cmp_ne_u32 vcc, 0, v24")
    a("s_mov_b64 exec, 0xff")
    poll(a, "kx_poll0", ["buffer_load_dwordx4 v[24:27], v20, s[68:71], s24 offen%s" % SC], f0cond)
    a("s_mov_b64 exec, -1")
    stamp(a, 2)
    a("s_barrier")
    a("s_mov_b32 s26, 0")
    a("s_mov_b32 s19, s21")
    a.label("kx_l2p")
    a("s_mov_b32 m0, s19")
    a("s_add_u32 s19, s19, %d" % SLOT)
    for j in range(4):
        a("buffer_load_dwordx4 v12, s[4:7], s26 offen offset:%d%s lds" % (1024 * j, SC))
    a("s_add_u32 s26, s26, 16384")
    if "early2" in EXP:
        a("s_cmp_lg_u32 s26, 32768")
        a("s_cbranch_scc1 kx_l2pn")
        a("s_waitcnt vmcnt(0)")
        a("s_barrier")
        a.label("kx_l2pn")
    a("s_cmp_lt_u32 s26, 65536")
    a("s_cbranch_scc1 kx_l2p")
    if "early2" not in EXP:
        a("s_waitcnt vmcnt(8)")
        a("s_barrier")
    a("s_add_u32 s21, s21, %d" % (4 * SLOT))
    a("s_mov_b32 s25, 4")
    a("s_mov_b32 s22, 4")
    a.label("kx_l2loop")
    a("s_mov_b32 m0, s21")
    a("s_add_u32 s19, s21, 16384")
    for j in range(4):
        a("buffer_load_dwordx4 v12, s[4:7], s26 offen offset:%d%s lds" % (1024 * j, SC))
    a("s_mov_b32 m0, s19")
    a("s_add_u32 s25, s25, 1")
    for j in range(4):
        a("buffer_load_dwordx4 v%d, s[8:11], s20 offen offset:%d%s lds" % (8 + j, 1024 * j, NTQ))
    a("s_add_u32 s20, s20, 128")
    a("s_add_u32 s26, s26, 16384")
    a("s_add_u32 s21, s21, %d" % SLOT)
    a("s_cmp_eq_u32 s25, %d" % NSLOT)
    a("s_cselect_b32 s19, %d, 0" % (SLOT * NSLOT))
    a("s_cselect_b32 s27, %d, 0" % NSLOT)
    a("s_sub_u32 s21, s21, s19")
    a("s_sub_u32 s25, s25, s27")
    a("s_add_u32 s22, s22, 1")
    a("s_sub_u32 s31, s22, s30")
    a("s_sub_u32 s31, s31, 1")
    a("s_cmp_lt_u32 s31, 1")
    a("s_cbranch_scc1 kx_l2w28")
    a("s_cmp_lg_u32 s22, 5")
    a("s_cbranch_scc1 kx_l2w16")
    a("s_waitcnt vmcnt(12)")
    a.label("kx_l2w16")
    a("s_waitcnt vmcnt(16)")
    a.label("kx_l2w28")
    a("s_waitcnt vmcnt(28)")
    a("s_barrier")
    if FFNST <= 16:
        a("s_cmp_lg_u32 s22, s30")
        a("s_cbranch_scc1 kx_l2noffn")
        ffnloads()
        a.label("kx_l2noffn")
    a("s_cmp_lt_u32 s22, 16")
    a("s_cbranch_scc1 kx_l2loop")
    if "ffn12" in EXP:
        a("s_cmp_ge_u32 s65, 28")
        a("s_cbranch_scc1 kx_l2tail")
        ffnloads()
        a("s_waitcnt vmcnt(20)")
        a("s_barrier")
        a("s_waitcnt vmcnt(12)")
        a("s_barrier")
        a("s_branch kx_rows")
        a.label("kx_l2tail")
    a("s_waitcnt vmcnt(8)")
    a("s_barrier")
    a("s_waitcnt vmcnt(0)")
    a("s_barrier")
    if "ffn12" not in EXP:
        a("s_cmp_ge_u32 s65, 28")
        a("s_cbranch_scc1 kx_rows")
        ffnloads()

    a.label("kx_rows")
    stamp(a, 12)
    srd(a, 72, 32, 33, 2 << 20)
    srd(a, 76, 44, 45, 1024)
    srd(a, 80, 52, 53, 2 << 20)
    a("v_lshlrev_b32 v2, 4, v0")
    a("v_and_b32 v1, 7, v0")
    a("v_lshrrev_b32 v3, 3, v0")
    a("v_lshlrev_b32 v5, 8, v3")
    a("v_lshl_add_u32 v5, v1, 4, v5")
    a("v_and_b32 v6, 4, v3")
    a("v_lshlrev_b32 v6, 4, v6")
    a("v_and_b32 v7, 1, v3")
    a("v_lshl_add_u32 v6, v7, 5, v6")
    a("v_and_b32 v7, 2, v3")
    a("v_lshl_add_u32 v6, v7, 3, v6")
    a("s_lshl_b32 s18, s16, 7")
    a("v_add_u32 v6, s18, v6")
    a("v_lshl_add_u32 v7, v1, 10, v6")
    a("s_lshl_b32 s19, s64, 13")
    a("buffer_load_dwordx4 v[24:27], v7, s[72:75], s19 offen")
    a("buffer_load_dwordx4 v[28:31], v6, s[76:79], 0 offen")
    a("buffer_load_dwordx4 v[8:11], v2, s[76:79], 0 offen")
    a("s_lshl_b32 s21, s63, 19")
    a("s_lshr_b32 s22, s16, 1")
    a("s_lshl_b32 s22, s22, 17")
    a("s_add_u32 s21, s21, s22")
    a("s_and_b32 s22, s16, 1")
    a("s_lshl_b32 s22, s22, 14")
    a("s_add_u32 s21, s21, s22")
    a("s_and_b32 s22, s64, 14")
    a("s_lshl_b32 s22, s22, 10")
    a("s_add_u32 s21, s21, s22")
    a("s_and_b32 s22, s64, 1")
    a("s_lshl_b32 s22, s22, 7")
    a("s_add_u32 s21, s21, s22")
    a("s_add_u32 s21, s21, %d" % PART_OFF)
    a("v_and_b32 v3, 15, v0")
    a("v_lshlrev_b32 v3, 7, v3")
    a("s_lshl_b32 s20, s63, 11")
    a("s_add_u32 s20, s20, %d" % FLAG1)
    a("v_lshlrev_b32 v74, 5, v1")
    a("v_add_u32 v74, 98304, v74")
    a("s_lshl_b32 s22, s16, 2")
    a("v_add_u32 v73, s22, v74")
    a("s_lshl_b32 s22, s64, 3")
    a("s_sub_u32 s22, 0xffff, s22")
    a("v_sub_u32 v75, s22, v1")
    a("s_waitcnt vmcnt(0)")
    for i in range(4):
        unpack(a, 64 + 2 * i, 65 + 2 * i, 28 + i)
        unpack(a, 76 + 2 * i, 77 + 2 * i, 24 + i)
        unpack(a, 48 + 2 * i, 49 + 2 * i, 8 + i)
    a("v_pk_add_f32 v[48:49], v[48:49], v[50:51]")
    a("v_pk_add_f32 v[52:53], v[52:53], v[54:55]")
    a("v_pk_add_f32 v[48:49], v[48:49], v[52:53]")
    a("v_add_f32 v72, v48, v49")
    allreduce64(a, "add_f32", 72, 49)
    a("s_cmp_lg_u32 s16, 0")
    a("s_cbranch_scc1 kx_poll1_done")

    def f1cond():
        a("v_xor_b32 v8, s84, v8")
        a("v_xor_b32 v9, s84, v9")
        a("v_xor_b32 v10, s84, v10")
        a("v_xor_b32 v11, s84, v11")
        a("v_or3_b32 v8, v8, v9, v10")
        a("v_or_b32 v8, v8, v11")
        a("v_cmp_ne_u32 vcc, 0, v8")
    a("s_mov_b64 exec, 0xffff")
    poll(a, "kx_poll1", ["buffer_load_dwordx4 v[8:11], v3, s[68:71], s20 offen%s" % SC], f1cond)
    a("s_mov_b64 exec, -1")
    a("s_barrier")
    stamp(a, 4)
    for ks in range(4):
        a("s_add_u32 s20, s21, %d" % (ks * 32768))
        a("buffer_load_dwordx4 v[%d:%d], v5, s[68:71], s20 offen%s" % (8 + 4 * ks, 11 + 4 * ks, SC))
    a("s_lshl_b32 s20, s64, 11")
    a("s_add_u32 s20, s20, %d" % SELROW)
    a("s_lshr_b32 s21, s64, 2")
    a("s_lshl_b32 s21, s21, 7")
    a("s_and_b32 s22, s64, 3")
    a("s_lshl_b32 s22, s22, 3")
    a("s_add_u32 s21, s21, s22")
    a("s_add_u32 s21, s21, %d" % KEYS)
    a("v_lshlrev_b32 v5, 13, v0")
    a("s_waitcnt vmcnt(0)")
    stamp(a, 13)
    for i in range(4):
        unpack(a, 48, 49, 8 + i)
        unpack(a, 50, 51, 12 + i)
        unpack(a, 52, 53, 16 + i)
        unpack(a, 54, 55, 20 + i)
        a("v_pk_add_f32 v[48:49], v[48:49], v[50:51]")
        a("v_pk_add_f32 v[52:53], v[52:53], v[54:55]")
        a("v_pk_add_f32 v[48:49], v[48:49], v[%d:%d]" % (76 + 2 * i, 77 + 2 * i))
        a("v_pk_add_f32 v[48:49], v[48:49], v[52:53] neg_lo:[0,1] neg_hi:[0,1]")
        a("v_cvt_pk_bf16_f32 v%d, v48, v49" % (32 + i))
        unpack(a, 40 + 2 * i, 41 + 2 * i, 32 + i)
    a("v_pk_add_f32 v[48:49], v[40:41], v[42:43]")
    a("v_pk_mul_f32 v[50:51], v[40:41], v[40:41]")
    a("v_pk_mul_f32 v[52:53], v[40:41], v[64:65]")
    a("v_pk_add_f32 v[54:55], v[44:45], v[46:47]")
    for i in range(1, 4):
        a("v_pk_fma_f32 v[50:51], v[%d:%d], v[%d:%d], v[50:51]" % (40 + 2 * i, 41 + 2 * i, 40 + 2 * i, 41 + 2 * i))
        a("v_pk_fma_f32 v[52:53], v[%d:%d], v[%d:%d], v[52:53]" % (40 + 2 * i, 41 + 2 * i, 64 + 2 * i, 65 + 2 * i))
    a("v_pk_add_f32 v[48:49], v[48:49], v[54:55]")
    a("v_add_f32 v50, v50, v51")
    a("v_add_f32 v52, v52, v53")
    a("v_add_f32 v48, v48, v49")
    for v in (50, 52, 48):
        a("v_add_f32_dpp v%d, v%d, v%d row_ror:8 row_mask:0xf bank_mask:0xf" % (v, v, v))
    for op in ("v_permlane16_swap_b32", "v_permlane32_swap_b32"):
        for v in (50, 52, 48):
            a("v_mov_b32 v%d, v%d" % (v + 1, v))
        a("s_nop 0")
        for v in (50, 52, 48):
            a("%s v%d, v%d" % (op, v, v + 1))
        a("s_nop 0")
        for v in (50, 52, 48):
            a("v_add_f32 v%d, v%d, v%d" % (v, v, v + 1))
    a("s_mov_b64 exec, 0xff")
    a("ds_write_b32 v73, v48")
    a("ds_write_b32 v73, v50 offset:256")
    a("ds_write_b32 v73, v52 offset:512")
    a("s_mov_b64 exec, -1")
    a("s_waitcnt lgkmcnt(0)")
    a("s_barrier")
    for k in range(3):
        a("ds_read_b128 v[%d:%d], v74 offset:%d" % (8 + 8 * k, 11 + 8 * k, 256 * k))
        a("ds_read_b128 v[%d:%d], v74 offset:%d" % (12 + 8 * k, 15 + 8 * k, 256 * k + 16))
    for k in range(3):
        b = 8 + 8 * k
        a("s_waitcnt lgkmcnt(%d)" % (4 - 2 * k))
        a("v_pk_add_f32 v[%d:%d], v[%d:%d], v[%d:%d]" % (b, b + 1, b, b + 1, b + 2, b + 3))
        a("v_pk_add_f32 v[%d:%d], v[%d:%d], v[%d:%d]" % (b + 4, b + 5, b + 4, b + 5, b + 6, b + 7))
        a("v_pk_add_f32 v[%d:%d], v[%d:%d], v[%d:%d]" % (b, b + 1, b, b + 1, b + 4, b + 5))
        a("v_add_f32 v%d, v%d, v%d" % (48 + 2 * k, b, b + 1))
    a("v_mul_f32 v58, 0x3b000000, v48")
    a("v_mul_f32 v50, 0x3b000000, v50")
    a("v_fma_f32 v50, -v58, v58, v50")
    a("v_max_f32 v50, 0, v50")
    bf16r(a, 60, 58)
    bf16r(a, 50, 50)
    a("v_add_f32 v50, 0x3727c5ac, v50")
    bf16r(a, 50, 50)
    a("v_sqrt_f32 v50, v50")
    a("v_fma_f32 v52, -v60, v72, v52")
    bf16r(a, 50, 50)
    a("v_rcp_f32 v58, v50")
    a("v_mov_b32 v57, s84")
    a("v_mul_f32 v48, v52, v58")
    a("v_cvt_pk_bf16_f32 v48, v48, v48")
    a("v_and_b32 v48, 0xffff0000, v48")
    a("v_ashrrev_i32 v49, 31, v48")
    a("v_and_b32 v49, 0x7fff0000, v49")
    a("v_or_b32 v49, 0x80000000, v49")
    a("v_xor_b32 v48, v48, v49")
    a("v_or_b32 v48, v75, v48")
    a("v_mul_f32 v62, v60, v58")
    a("v_sub_f32 v62, 0, v62")
    a("v_max_u32_dpp v56, v48, v48 quad_perm:[1,0,3,2] row_mask:0xf bank_mask:0xf")
    a("s_nop 1")
    a("v_max_u32_dpp v56, v56, v56 quad_perm:[2,3,0,1] row_mask:0xf bank_mask:0xf")
    a("s_nop 1")
    a("v_max_u32_dpp v56, v56, v56 row_half_mirror row_mask:0xf bank_mask:0xf")
    a("s_cmp_lg_u32 s16, 0")
    a("s_cbranch_scc1 kx_nokey")
    a("s_mov_b64 exec, %d" % ((1 << NREP) - 1))
    a("buffer_store_dwordx2 v[56:57], v5, s[68:71], s21 offen%s" % SC)
    a("s_mov_b64 exec, -1")
    a.label("kx_nokey")
    stamp(a, 14)
    a("v_mov_b32 v63, v56")
    a("v_cmp_eq_u32 s[22:23], v56, v48")
    for i in range(4):
        a("v_pk_fma_f32 v[50:51], v[%d:%d], v[58:59], v[62:63] op_sel_hi:[1,0,0]" % (40 + 2 * i, 41 + 2 * i))
        a("v_cvt_pk_bf16_f32 v%d, v50, v51" % (36 + i))
        unpack(a, 50, 51, 36 + i)
        a("v_pk_add_f32 v[50:51], v[%d:%d], v[50:51]" % (40 + 2 * i, 41 + 2 * i))
        a("v_cvt_pk_bf16_f32 v%d, v50, v51" % (24 + i))
    a("s_mov_b64 exec, s[22:23]")
    a("buffer_store_dwordx4 v[36:39], v6, s[68:71], s20 offen%s" % SC)
    a("buffer_store_dwordx4 v[32:35], v6, s[68:71], s20 offen offset:1024%s" % SC)
    a("ds_write_b128 v6, v[24:27] offset:32768")
    a("s_not_b64 exec, exec")
    a("buffer_store_dwordx4 v[24:27], v7, s[80:83], s19 offen" + OUTF)
    a("s_mov_b64 exec, -1")
    a("s_waitcnt lgkmcnt(0)")
    a.label("kx_notbest")
    a("s_cmp_lt_u32 s16, 4")
    a("s_cbranch_scc1 kx_exit")

    a("s_cmp_lt_u32 s65, 28")
    a("s_cbranch_scc1 kx_keys")
    a("s_cmp_ge_u32 s16, 6")
    a("s_cbranch_scc1 kx_exit")
    a.label("kx_keys")
    a("s_and_b32 s20, s64, %d" % (NREP - 1))
    a("s_lshl_b32 s20, s20, 13")
    a("s_add_u32 s20, s20, %d" % KEYS)
    a("v_lshlrev_b32 v3, 7, v0")
    a("v_mov_b32 v5, 98816")
    a("s_cmp_lg_u32 s16, 4")
    a("s_cbranch_scc1 kx_keywait")

    def keycond():
        a("v_xor_b32 v9, s84, v9")
        a("v_xor_b32 v11, s84, v11")
        a("v_xor_b32 v13, s84, v13")
        a("v_xor_b32 v15, s84, v15")
        a("v_or3_b32 v4, v9, v11, v13")
        a("v_or_b32 v4, v4, v15")
        a("v_cmp_ne_u32 vcc, 0, v4")
    poll(a, "kx_poll2", ["buffer_load_dwordx4 v[8:11], v3, s[68:71], s20 offen%s" % SC,
                         "buffer_load_dwordx4 v[12:15], v3, s[68:71], s20 offen offset:16%s" % SC], keycond)
    a("v_max_u32 v64, v8, v10")
    a("v_max3_u32 v64, v64, v12, v14")
    allreduce64(a, "max_u32", 64, 65)
    a("ds_write_b32 v5, v64")
    a("s_waitcnt lgkmcnt(0)")
    a.label("kx_keywait")
    a("s_barrier")
    a("ds_read_b32 v64, v5")
    a("ds_read_b128 v[24:27], v2 offset:32768")
    a("s_waitcnt lgkmcnt(0)")
    stamp(a, 5)
    a("v_and_b32 v66, 0xffff, v64")
    a("v_sub_u32 v66, 0xffff, v66")
    a("v_lshrrev_b32 v67, 3, v66")
    a("v_lshlrev_b32 v67, 11, v67")
    a("s_cmp_lg_u32 s16, 5")
    a("s_cbranch_scc1 kx_noparked")
    a("v_and_b32 v4, 0xffff, v63")
    a("v_sub_u32 v4, 0xffff, v4")
    a("v_lshlrev_b32 v4, 10, v4")
    a("v_add_u32 v4, v4, v2")
    a("v_cmp_ne_u32 vcc, v63, v64")
    a("s_and_saveexec_b64 s[22:23], vcc")
    a("s_cbranch_execz kx_parkskip")
    a("buffer_store_dwordx4 v[24:27], v4, s[80:83], 0 offen" + OUTF)
    a.label("kx_parkskip")
    a("s_mov_b64 exec, -1")
    a.label("kx_noparked")
    a("s_mov_b32 s20, %d" % SELROW)
    a("s_cmp_ge_u32 s65, 28")
    a("s_cbranch_scc1 kx_final")
    a("v_lshlrev_b32 v4, 2, v199")
    a("v_add_u32 v68, v67, v4")
    poll(a, "kx_poll4", ["buffer_load_dword v75, v68, s[68:71], s20 offen%s" % SC],
         lambda: a("v_cmp_eq_u32 vcc, -1, v75"))
    a("s_mov_b32 s22, 0x05040100")
    a("s_mov_b32 s23, 0x07060302")
    for m in range(2):
        for i in range(4):
            a("v_perm_b32 v%d, v%d, v%d, s22" % (32 + 8 * m + 2 * i, 204 + 8 * m + i, 200 + 8 * m + i))
            a("v_perm_b32 v%d, v%d, v%d, s23" % (33 + 8 * m + 2 * i, 204 + 8 * m + i, 200 + 8 * m + i))
    for i in range(16):
        a("v_dot2_f32_bf16 v%d, v%d, v75, 0" % (48 + i, 32 + i))
    a("s_nop 2")
    for i in range(8):
        a("v_permlane32_swap_b32 v%d, v%d" % (48 + i, 56 + i))
    a("s_nop 1")
    for i in range(8):
        a("v_add_f32 v%d, v%d, v%d" % (48 + i, 48 + i, 56 + i))
    a("s_nop 1")
    for i in range(4):
        a("v_permlane16_swap_b32 v%d, v%d" % (48 + i, 52 + i))
    a("s_nop 1")
    for i in range(4):
        a("v_add_f32 v%d, v%d, v%d" % (48 + i, 48 + i, 52 + i))
    for r in (8, 4, 2, 1):
        a("s_nop 0")
        for i in range(4):
            a("v_add_f32_dpp v%d, v%d, v%d row_ror:%d row_mask:0xf bank_mask:0xf" % (48 + i, 48 + i, 48 + i, r))
    a("s_lshl_b32 s21, s17, 6")
    a("s_add_u32 s21, s21, 98560")
    a("v_lshrrev_b32 v7, 4, v0")
    a("v_lshlrev_b32 v7, 4, v7")
    a("v_add_u32 v6, s21, v7")
    a("ds_write_b128 v6, v[48:51]")
    a("v_and_b32 v7, 7, v0")
    a("v_lshlrev_b32 v7, 2, v7")
    a("v_add_u32 v7, 98560, v7")
    a("s_waitcnt lgkmcnt(0)")
    a("s_barrier")
    for w in range(4):
        a("ds_read_b32 v%d, v7 offset:%d" % (48 + w, 64 * w))
        a("ds_read_b32 v%d, v7 offset:%d" % (52 + w, 64 * w + 32))
    a("s_waitcnt lgkmcnt(0)")
    a("v_add_f32 v48, v48, v49")
    a("v_add_f32 v50, v50, v51")
    a("v_add_f32 v52, v52, v53")
    a("v_add_f32 v54, v54, v55")
    a("v_add_f32 v48, v48, v50")
    a("v_add_f32 v52, v52, v54")
    bf16r(a, 48, 48)
    bf16r(a, 52, 52)
    a("v_mul_f32 v49, 0xbfb8aa3b, v48")
    a("v_exp_f32 v49, v49")
    a("s_nop 0")
    a("v_add_f32 v49, 1.0, v49")
    a("v_rcp_f32 v49, v49")
    a("s_nop 0")
    a("v_mul_f32 v48, v48, v49")
    bf16r(a, 48, 48)
    a("v_mul_f32 v48, v48, v52")
    bf16r(a, 48, 48)
    a("s_nop 0")
    for j in range(8):
        a("v_readlane_b32 s%d, v48, %d" % (4 + j, j))
    a("v_mov_b32 v50, 0")
    a("v_mov_b32 v51, 0")
    for j in range(8):
        unpack(a, 52, 53, 216 + j)
        a("v_fmac_f32 v50, s%d, v52" % (4 + j))
        a("v_fmac_f32 v51, s%d, v53" % (4 + j))
    a("v_lshlrev_b32 v6, 3, v199")
    a("s_lshl_b32 s20, s66, 11")
    a("s_add_u32 s20, s20, %d" % YP_OFF)
    a("buffer_store_dwordx2 v[50:51], v6, s[68:71], s20 offen%s" % SC)
    stamp(a, 7)
    a("s_endpgm")

    a.label("kx_final")
    a("v_lshrrev_b32 v5, 4, v0")
    a("v_lshlrev_b32 v3, 2, v5")
    a("s_lshl_b32 s19, s66, 4")
    a("v_add_u32 v3, s19, v3")
    a("v_add_u32 v68, v67, v3")

    def hcond():
        a("v_max_u32 v4, v69, v75")
        a("v_cmp_eq_u32 vcc, -1, v4")
    poll(a, "kx_poll5", ["buffer_load_dword v75, v68, s[68:71], s20 offen%s" % SC,
                         "buffer_load_dword v69, v68, s[68:71], s20 offen offset:1024%s" % SC], hcond)
    a("v_and_b32 v52, 0xffff0000, v64")
    a("v_ashrrev_i32 v53, 31, v52")
    a("v_not_b32 v53, v53")
    a("v_and_b32 v53, 0x7fff0000, v53")
    a("v_or_b32 v53, 0x80000000, v53")
    a("v_xor_b32 v52, v52, v53")
    a("v_mul_f32 v53, 0xbfb8aa3b, v52")
    a("v_exp_f32 v53, v53")
    a("s_nop 0")
    a("v_add_f32 v53, 1.0, v53")
    a("v_rcp_f32 v53, v53")
    a("s_nop 0")
    bf16r(a, 44, 53)
    unpack(a, 40, 41, 69)
    unpack(a, 42, 43, 75)
    a("v_lshlrev_b32 v45, 10, v66")
    a("v_add_u32 v45, v45, v3")
    a("v_lshlrev_b32 v1, 11, v0")
    a("s_lshl_b32 s19, s66, 5")
    a("v_add_u32 v1, s19, v1")
    a("v_cmp_gt_u32 vcc, 32, v0")
    a("v_mov_b32 v6, 0x40000000")
    a("v_cndmask_b32 v6, v6, v1, vcc")
    for i in range(4):
        a("s_mov_b32 s%d, %d" % (24 + i, YP_OFF + 131072 * i))
    loads = []
    for i in range(4):
        vo = 1 if i < 3 else 6
        loads.append("buffer_load_dwordx4 v[%d:%d], v%d, s[68:71], s%d offen%s" % (8 + 8 * i, 11 + 8 * i, vo, 24 + i, SC))
        loads.append("buffer_load_dwordx4 v[%d:%d], v%d, s[68:71], s%d offen offset:16%s" % (12 + 8 * i, 15 + 8 * i, vo, 24 + i, SC))

    def ycond():
        a("v_max3_u32 v4, v8, v9, v10")
        for i in range(11, 39, 2):
            a("v_max3_u32 v4, v4, v%d, v%d" % (i, i + 1))
        a("v_max_u32 v4, v4, v39")
        a("v_cmp_eq_u32 vcc, -1, v4")
    poll(a, "kx_poll3", loads, ycond)
    for i in range(4):
        a("v_pk_add_f32 v[%d:%d], v[%d:%d], v[%d:%d]" % (8 + 2 * i, 9 + 2 * i, 8 + 2 * i, 9 + 2 * i, 16 + 2 * i, 17 + 2 * i))
        a("v_pk_add_f32 v[%d:%d], v[%d:%d], v[%d:%d]" % (24 + 2 * i, 25 + 2 * i, 24 + 2 * i, 25 + 2 * i, 32 + 2 * i, 33 + 2 * i))
    for i in range(4):
        a("v_pk_add_f32 v[%d:%d], v[%d:%d], v[%d:%d]" % (8 + 2 * i, 9 + 2 * i, 8 + 2 * i, 9 + 2 * i, 24 + 2 * i, 25 + 2 * i))
    a("s_nop 1")
    for i in range(4):
        a("v_permlane32_swap_b32 v%d, v%d" % (8 + i, 12 + i))
    a("s_nop 1")
    for i in range(4):
        a("v_add_f32 v%d, v%d, v%d" % (8 + i, 8 + i, 12 + i))
    a("s_nop 1")
    for i in range(2):
        a("v_permlane16_swap_b32 v%d, v%d" % (8 + i, 10 + i))
    a("s_nop 1")
    for i in range(2):
        a("v_add_f32 v%d, v%d, v%d" % (8 + i, 8 + i, 10 + i))
    for r in (8, 4, 2, 1):
        a("s_nop 1")
        for i in range(2):
            a("v_add_f32_dpp v%d, v%d, v%d row_ror:%d row_mask:0xf bank_mask:0xf" % (8 + i, 8 + i, 8 + i, r))
    for i in range(2):
        bf16r(a, 8 + i, 8 + i)
        a("v_mul_f32 v%d, v%d, v44" % (8 + i, 8 + i))
        bf16r(a, 8 + i, 8 + i)
        a("v_add_f32 v%d, v%d, v%d" % (8 + i, 8 + i, 42 + i))
        bf16r(a, 8 + i, 8 + i)
        a("v_add_f32 v%d, v%d, v%d" % (8 + i, 8 + i, 40 + i))
    a("v_cvt_pk_bf16_f32 v8, v8, v9")
    a("v_and_b32 v6, 15, v0")
    a("v_cmp_eq_u32 vcc, 0, v6")
    a("s_and_saveexec_b64 s[30:31], vcc")
    a("buffer_store_dword v8, v45, s[80:83], 0 offen" + OUTF)
    a("s_mov_b64 exec, -1")
    if gen.STAMPS:
        a("s_waitcnt vmcnt(0)")
    stamp(a, 7)
    a.label("kx_exit")
    a("s_endpgm")
    a.label("kx_end")
    return name, 224


def main(out):
    head = open("cdna_kernels/%s.s.ref" % NAME).read().split("\n")
    a = A()
    for line in head:
        if line.startswith(";") and "@launch" not in line:
            a.raw(line)
    for line in (
        "; Design: ONE persistent launch, 256 workgroups x 8 waves (1 per CU), phases chained through d_ws hand-offs",
        ";  P1  WGs q<16 : GEMM1  Dt = W' x^T (128x128 tiles, LDS-DMA ring, 4 MFMA waves + 4 loader waves), LayerNorm1 applied",
        ";                 algebraically in the epilogue:  (D - mean*sum(W)) / sqrt(var+eps)  -> ABT (bf16, fragment order)",
        ";      WGs q>=16: row statistics of x / row sums of W, cache prefetch of the DFT matrices and FFN weights",
        ";  P2  all WGs  : GEMM2  Cr@a, Ci@b  (128x128 tiles, split-K 4) -> bf16 partials",
        ";  P3  all WGs  : 8 rows each: h = x + y, LayerNorm2, router score, out = h + hn, per-WG best key",
        ";  P4  224 WGs  : global argmax, SwiGLU slice (8 hidden units each) and its down-projection partial",
        ";  P5  32 WGs   : reduce the partials, write the routed row",
        "; Hand-offs: write-through (sc1) stores, then flags tagged with a per-launch nonce published in d_debug[0];",
        "; small payloads use self-initialised sentinels. No assumption on workgroup placement is needed for correctness.",
    ):
        a.raw(line)
    if "--plain" in sys.argv:
        kname = NAME + "_kernel"
        a.raw("; @launch grid=(256,1,1) block=(512,1,1) lds=163840")
    else:
        kname = "kx_kernel"
        a.raw("; @launch kernel=%s grid=(256,1,1) block=(512,1,1) lds=163840" % kname)
    a.raw('.amdgcn_target "amdgcn-amd-amdhsa--gfx950"')
    name, vg = kx(a, kname)
    if DBGSTAMP:
        kernel_desc(a, name, 256, 102)
    else:
        kernel_desc(a, name, vg, 96)
    open(out, "w").write(a.text())


if __name__ == "__main__":
    args = [x for x in sys.argv[1:] if not x.startswith("--")]
    if "--stamps" in sys.argv:
        gen.STAMPS = True
    for x in sys.argv:
        if x.startswith("--exp="):
            gen.EXP = set(x[6:].split(","))
        if x.startswith("--sleep="):
            SLEEP = int(x[8:])
        if x.startswith("--ffnst="):
            FFNST = int(x[8:])
        if x.startswith("--pf0="):
            PF0 = int(x[6:])
        if x.startswith("--pfn="):
            PFN = int(x[6:])
        if x.startswith("--nrep="):
            NREP = int(x[7:])
        if x == "--dbg":
            DBGSTAMP = True
        if x.startswith("--outf="):
            OUTF = " " + x[7:].replace(",", " ")
        if x == "--noq":
            NTQ = ""
        if x == "--nont":
            NT = ""
    main(args[0] if args else "cdna_kernels/%s.s" % NAME)
```

```python
import sys
import gen
from gen import (A, NAME, kernel_head, kernel_desc, srd, add64, bf16r, unpack, allreduce64, wave_split,
                 stamp, stampc, stamp_init, SLOT, NSLOT, ACC, FR, AP, AQ, KA_WS)

ABT_OFF = 0
PART_OFF = 4 << 20
FLAG0 = 12 << 20
FLAG1 = FLAG0 + 16384
KEYS = FLAG1 + 32768
STAT = 13 << 20
YP_OFF = 15 << 20
SELROW = 16 << 20
WS_SRD_SIZE = 32 << 20
NREP = 4
SC = " sc1"
SPIN_MAX = 1 << 20
SLEEP = 4
NT = ""
NTQ = ""
PFN = 12
PF0 = 4
HOLD = 0
FFNST = 99
OUTF = ""
STATS_LDS = 4 * SLOT
SUMW_LDS = STATS_LDS + 1024
NONCE_LDS = STATS_LDS + 2048


def poll(a, lbl, loads, cond):
    a("s_mov_b32 s31, 0")
    a.label(lbl)
    for l in loads:
        a(l)
    a("s_waitcnt vmcnt(0)")
    cond()
    a("s_add_u32 s31, s31, 1")
    a("s_nop 1")
    a("s_cmp_eq_u64 vcc, 0")
    a("s_cbranch_scc1 %s_done" % lbl)
    a("s_cmp_ge_u32 s31, %d" % SPIN_MAX)
    a("s_cbranch_scc1 %s_done" % lbl)
    a("s_sleep %d" % SLEEP)
    a("s_branch %s" % lbl)
    a.label(lbl + "_done")


DBGSTAMP = False
DBGWG = 0
_dbgn = [0]


def dstamp(a, slot):
    _dbgn[0] += 1
    lbl = "kx_ds%d" % _dbgn[0]
    a("s_cmp_lg_u32 s2, %d" % (255 if slot == 7 else DBGWG))
    a("s_cbranch_scc1 %s" % lbl)
    a("s_cmp_lg_u32 s16, 0")
    a("s_cbranch_scc1 %s" % lbl)
    a("s_memrealtime s[98:99]")
    a("s_waitcnt lgkmcnt(0)")
    a("v_mov_b32 v254, s98")
    a("v_mov_b32 v255, %d" % (4 * (slot + 1)))
    a("s_mov_b64 s[100:101], exec")
    a("s_mov_b64 exec, 1")
    a("buffer_store_dword v254, v255, s[92:95], 0 offen")
    a("s_mov_b64 exec, s[100:101]")
    a.label(lbl)


def kx(a, name):
    global stamp, stamp_init
    gen.STV = 254
    EXP = gen.EXP
    if DBGSTAMP:
        stamp = dstamp
        stamp_init = lambda a, k, lo, hi: srd(a, 92, 54, 55, 256)
    def setup2(sfx):
        a("s_lshl_b32 s31, s16, 6")
        a("v_add_u32 v199, s31, v0")
        for r in range(4):
            a("v_mov_b32 v%d, -1" % (16 + r))
        a("v_lshlrev_b32 v4, 4, v0")
        a("s_and_b32 s21, s16, 1")
        a("s_lshl_b32 s21, s21, 10")
        a("s_cmp_lt_u32 s16, 2")
        a("s_cbranch_scc1 kx_c2a" + sfx)
        a("s_lshl_b32 s20, s64, 11")
        a("s_add_u32 s20, s20, s21")
        a("s_add_u32 s20, s20, %d" % SELROW)
        a("buffer_store_dwordx4 v[16:19], v4, s[68:71], s20 offen%s" % SC)
        a.label("kx_c2a" + sfx)
        a("s_cmp_ge_u32 s65, 28")
        a("s_cbranch_scc1 kx_c2final" + sfx)
        a("s_and_b32 s66, s59, 7")
        a("s_lshl_b32 s26, s65, 3")
        a("s_add_u32 s66, s66, s26")
        a("s_cmp_ge_u32 s16, 2")
        a("s_cbranch_scc1 kx_c2b" + sfx)
        a("s_lshl_b32 s20, s66, 11")
        a("s_add_u32 s20, s20, s21")
        a("s_add_u32 s20, s20, %d" % YP_OFF)
        a("buffer_store_dwordx4 v[16:19], v4, s[68:71], s20 offen%s" % SC)
        a.label("kx_c2b" + sfx)
        a("s_branch kx_c2done" + sfx)
        a.label("kx_c2final" + sfx)
        a("s_sub_u32 s66, s58, 4")
        a("s_lshl_b32 s66, s66, 3")
        a("s_add_u32 s66, s66, s59")
        a("s_sub_u32 s66, s66, 24")
        a("s_lshl_b32 s66, s66, 1")
        a("s_add_u32 s66, s66, s16")
        a.label("kx_c2done" + sfx)

    def ffnloads():
        srd(a, 12, 46, 47, 512 * 3584)
        srd(a, 72, 48, 49, 512 * 3584)
        srd(a, 76, 50, 51, 1792 * 1024)
        a("s_movk_i32 s31, 7168")
        a("v_mul_lo_u32 v5, v199, s31")
        a("s_lshl_b32 s31, s66, 4")
        a("v_add_u32 v5, s31, v5")
        a("v_lshlrev_b32 v4, 2, v199")
        a("s_lshl_b32 s28, s66, 13")
        a("s_add_u32 s29, s28, 4096")
        a("buffer_load_dwordx4 v[200:203], v5, s[12:15], 0 offen")
        a("buffer_load_dwordx4 v[204:207], v5, s[12:15], 0 offen offset:3584")
        a("buffer_load_dwordx4 v[208:211], v5, s[72:75], 0 offen")
        a("buffer_load_dwordx4 v[212:215], v5, s[72:75], 0 offen offset:3584")
        for j in range(4):
            a("buffer_load_dword v%d, v4, s[76:79], s28 offen offset:%d" % (216 + j, 1024 * j))
        for j in range(4):
            a("buffer_load_dword v%d, v4, s[76:79], s29 offen offset:%d" % (220 + j, 1024 * j))

    kernel_head(a, name)
    a("s_cmp_ge_u32 s2, 256")
    a("s_cbranch_scc1 kx_exit")
    a("s_load_dwordx16 s[32:47], s[0:1], 0")
    a("s_load_dwordx8 s[48:55], s[0:1], 64")
    a("s_load_dwordx2 s[56:57], s[0:1], %d" % KA_WS)
    wave_split(a)
    a("s_and_b32 s58, s2, 7")
    a("s_lshr_b32 s59, s2, 3")
    a("s_and_b32 s60, s58, 1")
    a("s_lshr_b32 s61, s58, 1")
    a("s_and_b32 s62, s59, 3")
    a("s_lshr_b32 s63, s59, 2")
    a("s_lshl_b32 s67, s60, 3")
    a("s_add_u32 s63, s63, s67")
    a("s_lshl_b32 s64, s63, 4")
    a("s_lshl_b32 s67, s62, 2")
    a("s_add_u32 s64, s64, s67")
    a("s_add_u32 s64, s64, s61")
    a("s_lshr_b32 s65, s59, 3")
    a("s_lshl_b32 s65, s65, 3")
    a("s_add_u32 s65, s65, s58")
    a("s_and_b32 s88, s61, 1")
    a("s_lshr_b32 s89, s61, 1")
    a("s_lshl_b32 s85, s88, 3")
    a("s_lshl_b32 s67, s60, 2")
    a("s_add_u32 s85, s85, s67")
    a("s_waitcnt lgkmcnt(0)")
    stamp_init(a, 0, 56, 57)
    stamp(a, 0)
    srd(a, 68, 56, 57, WS_SRD_SIZE)
    srd(a, 72, 54, 55, 256)
    a("v_mov_b32 v197, 0")
    a("s_cmp_lg_u32 s2, %d" % (0 if ("ilv" in EXP or "hfirst" in EXP or "n0" in EXP) else 128))
    a("s_cbranch_scc1 kx_nononce")
    a("s_cmp_lg_u32 s16, 0")
    a("s_cbranch_scc1 kx_nononce")
    a("s_memrealtime s[18:19]")
    a("s_waitcnt lgkmcnt(0)")
    a("s_or_b32 s84, s18, 1")
    a("v_mov_b32 v194, s84")
    a("s_mov_b64 exec, 1")
    a("buffer_store_dword v194, v197, s[72:75], 0 offen%s" % SC)
    a("s_mov_b64 exec, -1")
    a.label("kx_nononce")
    if "ilv" in EXP:
        a("s_lshr_b32 s86, s59, 1")
        a("s_bitcmp1_b32 s59, 0")
        a("s_cbranch_scc1 kx_pref")
    elif "hfirst" in EXP:
        a("s_and_b32 s86, s59, 15")
        a("s_cmp_lt_u32 s59, 16")
        a("s_cbranch_scc1 kx_pref")
    else:
        a("s_and_b32 s86, s59, 15")
        a("s_cmp_ge_u32 s59, 16")
        a("s_cbranch_scc1 kx_pref")
    a("s_and_b32 s3, s86, 3")
    a("s_add_u32 s85, s85, s3")
    a("s_lshr_b32 s86, s86, 2")
    a("s_lshl_b32 s87, s89, 2")
    a("s_add_u32 s87, s87, s86")
    a("s_cmp_ge_u32 s16, 4")
    a("s_cbranch_scc1 kx_loader1")
    a("s_mov_b32 s30, 0")
    a("s_mov_b32 s22, 8")

    a.label("kx_cons")
    if "cprio" in EXP:
        a("s_setprio 2")
    a("s_lshr_b32 s17, s16, 1")
    a("s_and_b32 s18, s16, 1")
    a("v_and_b32 v1, 15, v0")
    a("v_lshrrev_b32 v2, 4, v0")
    a("v_lshrrev_b32 v3, 1, v1")
    a("v_lshlrev_b32 v4, 7, v1")
    a("s_lshl_b32 s19, s17, 13")
    a("s_lshl_b32 s20, s18, 13")
    a("s_add_u32 s20, s20, 16384")
    for j in range(2):
        a("v_add_u32 v5, %d, v2" % (4 * j))
        a("v_xor_b32 v5, v5, v3")
        a("v_lshlrev_b32 v5, 4, v5")
        a("v_add_u32 v5, v5, v4")
        a("v_add_u32 v%d, s19, v5" % (AP + j))
        a("v_add_u32 v%d, s20, v5" % (AQ + j))
    a("s_cmp_eq_u32 s30, 0")
    a("s_cbranch_scc1 kx_apdone")
    a("v_and_b32 v5, 1, v2")
    a("v_lshlrev_b32 v5, 9, v5")
    a("v_lshrrev_b32 v6, 1, v2")
    a("v_lshlrev_b32 v6, 8, v6")
    a("v_lshlrev_b32 v7, 4, v1")
    a("v_add3_u32 v5, v5, v6, v7")
    a("v_add_u32 v%d, s19, v5" % AP)
    a("v_add_u32 v%d, 1024, v%d" % (AP + 1, AP))
    a.label("kx_apdone")
    for r in range(32):
        a("v_mov_b64 v[%d:%d], 0" % (ACC + 2 * r, ACC + 2 * r + 1))
    a("s_mov_b32 s23, %d" % SLOT)
    a("s_mov_b32 s24, %d" % SLOT)
    a("s_mov_b32 s25, 1")
    a("s_mov_b32 s27, %d" % (-(NSLOT - 1) * SLOT))
    a("s_mov_b32 s28, %d" % SLOT)

    def rdlist(j):
        f = FR + 32 * j
        l = []
        for t in range(4):
            l.append("ds_read_b128 v[%d:%d], v%d offset:%d" % (f + 4 * t, f + 4 * t + 3, AP + j, 2048 * t))
            l.append("ds_read_b128 v[%d:%d], v%d offset:%d" % (f + 16 + 4 * t, f + 16 + 4 * t + 3, AQ + j, 2048 * t))
        return l

    book = ["s_mov_b32 s23, s24",
            "s_add_u32 s25, s25, 1",
            "s_cmp_eq_u32 s25, %d" % NSLOT,
            "s_cselect_b32 s26, %d, 0" % NSLOT,
            "s_sub_u32 s25, s25, s26",
            "s_cmp_eq_u32 s25, %d" % (NSLOT - 1),
            "s_cselect_b32 s24, s27, s28",
            "s_sub_u32 s22, s22, 1",
            "s_cmp_lt_u32 s22, 2"]
    a("s_barrier")
    if gen.STAMPS or DBGSTAMP:
        a("s_cmp_lg_u32 s30, 0")
        a("s_cbranch_scc1 kx_st9")
        stamp(a, 8)
        a("s_branch kx_st9d")
        a.label("kx_st9")
        stamp(a, 9)
        a.label("kx_st9d")
    for r in rdlist(0):
        a(r)
    a("v_add_u32 v%d, s23, v%d" % (AP, AP))
    a("v_add_u32 v%d, s23, v%d" % (AQ, AQ))
    a.label("kx_cloop")
    for j in range(2):
        jn = 1 - j
        sd = 23 if j == 0 else 24
        f = FR + 32 * j
        rd = rdlist(jn)
        a("s_waitcnt lgkmcnt(0)")
        k = 0
        for ti in range(4):
            for tj in range(4):
                c = ACC + 4 * (4 * ti + tj)
                a("v_mfma_f32_16x16x32_bf16 v[%d:%d], v[%d:%d], v[%d:%d], v[%d:%d]" % (
                    c, c + 3, f + 4 * ti, f + 4 * ti + 3, f + 16 + 4 * tj, f + 16 + 4 * tj + 3, c, c + 3))
                if k < 8:
                    a(rd[k])
                if k == 8:
                    a("v_add_u32 v%d, s%d, v%d" % (AP + jn, sd, AP + jn))
                if k == 9:
                    a("v_add_u32 v%d, s%d, v%d" % (AQ + jn, sd, AQ + jn))
                if j == 1 and 10 <= k < 15:
                    for b in book[2 * (k - 10):2 * (k - 10) + 2]:
                        a(b)
                k += 1
    a("s_cbranch_scc1 kx_nobar")
    a("s_barrier")
    a.label("kx_nobar")
    a("s_cmp_lg_u32 s22, 0")
    a("s_cbranch_scc1 kx_cloop")
    a("s_waitcnt lgkmcnt(0)")
    a("s_cmp_lg_u32 s30, 0")
    a("s_cbranch_scc1 kx_epi2")

    stamp(a, 1)
    a("s_lshl_b32 s19, s17, 8")
    a("s_add_u32 s19, s19, %d" % STATS_LDS)
    a("v_lshlrev_b32 v7, 4, v2")
    a("v_add_u32 v7, s19, v7")
    a("s_lshl_b32 s19, s18, 8")
    a("s_add_u32 s19, s19, %d" % SUMW_LDS)
    a("v_lshlrev_b32 v6, 2, v1")
    a("v_add_u32 v6, s19, v6")
    a("v_mov_b32 v5, %d" % NONCE_LDS)
    a("s_barrier")
    a("ds_read_b32 v16, v5")
    for tj in range(4):
        a("ds_read_b32 v%d, v6 offset:%d" % (20 + 2 * tj, 64 * tj))
    for ti in range(4):
        a("ds_read_b128 v[%d:%d], v7 offset:%d" % (32 + 8 * ti, 35 + 8 * ti, 64 * ti))
        a("ds_read_b128 v[%d:%d], v7 offset:%d" % (36 + 8 * ti, 39 + 8 * ti, 64 * ti + 512))
    a("s_lshl_b32 s19, s87, 5")
    a("s_lshl_b32 s20, s85, 1")
    a("s_add_u32 s19, s19, s20")
    a("s_add_u32 s19, s19, s17")
    a("s_lshl_b32 s19, s19, 14")
    a("s_lshl_b32 s20, s18, 13")
    a("s_add_u32 s19, s19, s20")
    a("s_add_u32 s20, s19, 4096")
    a("s_lshl_b32 s29, s87, 4")
    a("s_add_u32 s29, s29, s85")
    a("s_lshl_b32 s29, s29, 7")
    a("s_lshl_b32 s21, s16, 2")
    a("s_add_u32 s29, s29, s21")
    a("s_add_u32 s29, s29, %d" % FLAG0)
    a("v_lshlrev_b32 v6, 4, v0")
    a("s_waitcnt lgkmcnt(0)")
    a("v_readfirstlane_b32 s84, v16")
    n = 0
    for tj in range(4):
        for tp in range(2):
            d = FR + 4 * n
            for k in range(2):
                ti = 2 * tp + k
                c = ACC + 4 * (4 * ti + tj)
                for h in range(2):
                    a("v_pk_fma_f32 v[%d:%d], v[%d:%d], v[%d:%d], v[%d:%d] op_sel_hi:[1,0,1] neg_lo:[1,0,0] neg_hi:[1,0,0]" % (
                        c + 2 * h, c + 2 * h + 1, 32 + 8 * ti + 2 * h, 33 + 8 * ti + 2 * h, 20 + 2 * tj, 21 + 2 * tj, c + 2 * h, c + 2 * h + 1))
                for h in range(2):
                    a("v_pk_mul_f32 v[%d:%d], v[%d:%d], v[%d:%d]" % (
                        c + 2 * h, c + 2 * h + 1, c + 2 * h, c + 2 * h + 1, 36 + 8 * ti + 2 * h, 37 + 8 * ti + 2 * h))
                for h in range(2):
                    a("v_cvt_pk_bf16_f32 v%d, v%d, v%d" % (d + 2 * k + h, c + 2 * h, c + 2 * h + 1))
            a("s_nop 1")
            a("v_permlane16_swap_b32 v%d, v%d" % (d, d + 2))
            a("v_permlane16_swap_b32 v%d, v%d" % (d + 1, d + 3))
            a("s_nop 0")
            a("buffer_store_dwordx4 v[%d:%d], v6, s[68:71], s%d offen offset:%d%s" % (d, d + 3, 19 + (n >> 2), 1024 * (n & 3), SC))
            n += 1
    a("v_mov_b32 v4, 0")
    a("v_mov_b32 v5, s84")
    stamp(a, 10)
    a("s_barrier")
    a("s_waitcnt vmcnt(0)")
    a("s_mov_b64 exec, 1")
    a("buffer_store_dword v5, v4, s[68:71], s29 offen%s" % SC)
    a("s_mov_b64 exec, -1")
    stamp(a, 2)
    setup2("g")
    a("s_branch kx_cons2")
    a.label("kx_epi2")
    stamp(a, 3)
    a("s_lshl_b32 s19, s64, 15")
    a("s_lshl_b32 s20, s16, 13")
    a("s_add_u32 s19, s19, s20")
    a("s_add_u32 s19, s19, %d" % PART_OFF)
    a("s_add_u32 s20, s19, 4096")
    a("s_lshl_b32 s29, s64, 7")
    a("s_lshl_b32 s21, s16, 2")
    a("s_add_u32 s29, s29, s21")
    a("s_add_u32 s29, s29, %d" % FLAG1)
    a("v_lshlrev_b32 v6, 4, v0")
    n = 0
    for tj in range(4):
        for tp in range(2):
            d = FR + 4 * n
            for k in range(2):
                c = ACC + 4 * (4 * (2 * tp + k) + tj)
                a("v_cvt_pk_bf16_f32 v%d, v%d, v%d" % (d + 2 * k, c, c + 1))
                a("v_cvt_pk_bf16_f32 v%d, v%d, v%d" % (d + 2 * k + 1, c + 2, c + 3))
            a("s_nop 1")
            a("v_permlane16_swap_b32 v%d, v%d" % (d, d + 2))
            a("v_permlane16_swap_b32 v%d, v%d" % (d + 1, d + 3))
            a("s_nop 0")
            a("buffer_store_dwordx4 v[%d:%d], v6, s[68:71], s%d offen offset:%d%s" % (d, d + 3, 19 + (n >> 2), 1024 * (n & 3), SC))
            n += 1
    a("v_mov_b32 v4, 0")
    a("v_mov_b32 v5, s84")
    stamp(a, 11)
    a("s_waitcnt vmcnt(0)")
    a("s_mov_b64 exec, 1")
    a("buffer_store_dword v5, v4, s[68:71], s29 offen%s" % SC)
    a("s_mov_b64 exec, -1")
    a("s_branch kx_rows")

    a.label("kx_cons2")
    a("s_mov_b32 s30, 1")
    a("s_mov_b32 s22, 16")
    a("s_barrier")
    a("s_branch kx_cons")

    a.label("kx_loader1")
    if "lprio" in EXP:
        a("s_setprio 2")
    a("s_lshl_b32 s19, s85, 17")
    a("s_add_u32 s22, s32, s19")
    a("s_addc_u32 s23, s33, 0")
    srd(a, 4, 22, 23, 131072)
    a("s_cmp_eq_u32 s89, 0")
    a("s_cselect_b32 s22, s38, s40")
    a("s_cselect_b32 s23, s39, s41")
    a("s_lshl_b32 s19, s86, 17")
    add64(a, 22, 23, "s19")
    srd(a, 8, 22, 23, 131072)
    a("s_sub_u32 s17, s16, 4")
    a("v_lshrrev_b32 v6, 3, v0")
    a("v_lshrrev_b32 v7, 4, v0")
    a("v_and_b32 v16, 7, v0")
    a("s_lshl_b32 s18, s17, 5")
    for j in range(4):
        a("v_add_u32 v18, %d, v7" % (4 * j))
        a("v_and_b32 v18, 7, v18")
        a("v_xor_b32 v18, v18, v16")
        a("v_lshlrev_b32 v18, 4, v18")
        a("v_add3_u32 v17, v6, s18, %d" % (8 * j))
        a("v_lshlrev_b32 v17, 10, v17")
        a("v_add_u32 v17, v17, v18")
        a("v_subrev_u32 v%d, %d, v17" % (8 + j, 1024 * j))
    a("s_lshl_b32 s21, s17, 12")
    a("s_mov_b32 s20, 0")
    a("s_mov_b32 s22, 0")
    a.label("kx_l1loop")
    a("s_mov_b32 m0, s21")
    a("s_add_u32 s19, s21, 16384")
    for j in range(4):
        a("buffer_load_dwordx4 v%d, s[4:7], s20 offen offset:%d%s lds" % (8 + j, 1024 * j, NT))
    a("s_mov_b32 m0, s19")
    a("s_add_u32 s22, s22, 1")
    for j in range(4):
        a("buffer_load_dwordx4 v%d, s[8:11], s20 offen offset:%d%s lds" % (8 + j, 1024 * j, NT))
    a("s_add_u32 s20, s20, 128")
    a("s_add_u32 s21, s21, %d" % SLOT)
    a("s_cmp_eq_u32 s22, %d" % NSLOT)
    a("s_cselect_b32 s19, %d, 0" % (SLOT * NSLOT))
    a("s_sub_u32 s21, s21, s19")
    if "early1" in EXP:
        a("s_cmp_lt_u32 s22, 2")
        a("s_cbranch_scc1 kx_l1loop")
        a("s_cmp_lg_u32 s22, 2")
        a("s_cbranch_scc1 kx_l1n2")
        a("s_waitcnt vmcnt(0)")
        a("s_barrier")
        a("s_branch kx_l1loop")
        a.label("kx_l1n2")
        a("s_cmp_lt_u32 s22, 5")
        a("s_cbranch_scc1 kx_l1loop")
    else:
        a("s_cmp_lt_u32 s22, 4")
        a("s_cbranch_scc1 kx_l1loop")
    a("s_waitcnt vmcnt(16)")
    a("s_barrier")
    a("s_cmp_lt_u32 s22, 8")
    a("s_cbranch_scc1 kx_l1loop")
    a("s_lshl_b32 s19, s3, 7")
    a("s_lshl_b32 s24, s86, 7")
    a("s_add_u32 s24, s24, 480")
    a("v_mov_b32 v20, s19")
    a("v_mov_b32 v21, s24")
    a("v_cmp_gt_u32 vcc, 32, v0")
    a("v_add_u32 v22, s18, v0")
    a("v_cndmask_b32 v20, v21, v20, vcc")
    a("v_add_lshl_u32 v20, v20, v22, 3")
    a("s_lshl_b32 s24, s58, 13")
    a("s_add_u32 s24, s24, %d" % STAT)
    a("buffer_load_dword v194, v197, s[72:75], 0 offen%s" % SC)
    a("buffer_load_dwordx2 v[24:25], v20, s[68:71], s24 offen%s" % SC)
    a("s_waitcnt vmcnt(10)")
    a("s_barrier")
    a("s_waitcnt vmcnt(2)")
    a("s_barrier")
    a("v_lshlrev_b32 v22, 2, v22")
    a("v_add_u32 v22, %d, v22" % STATS_LDS)
    a("s_waitcnt vmcnt(0)")

    def stcond():
        a("v_cmp_ne_u32 vcc, v25, v194")
        a("v_cmp_eq_u32 s[26:27], 0, v194")
        a("s_nop 2")
        a("s_or_b64 vcc, vcc, s[26:27]")
    stcond()
    a("s_cmp_eq_u64 vcc, 0")
    a("s_cbranch_scc1 kx_polln_done")
    poll(a, "kx_polln", ["buffer_load_dword v194, v197, s[72:75], 0 offen%s" % SC,
                         "buffer_load_dwordx2 v[24:25], v20, s[68:71], s24 offen%s" % SC], stcond)
    a("v_readfirstlane_b32 s84, v194")
    a("v_lshlrev_b32 v26, 16, v24")
    a("v_rcp_f32 v26, v26")
    a("v_and_b32 v27, 0xffff0000, v24")
    a("v_mov_b32 v195, %d" % NONCE_LDS)
    a("s_mov_b32 exec_hi, 0")
    a("ds_write_b32 v22, v27 offset:%d" % 0)
    a("ds_write_b32 v22, v26 offset:%d" % 512)
    a("s_not_b64 exec, exec")
    a("ds_write_b32 v22, v24 offset:%d" % (1024 - 128))
    a("s_mov_b64 exec, -1")
    a("ds_write_b32 v195, v194")
    a("s_waitcnt lgkmcnt(0)")
    a("s_barrier")
    a("s_branch kx_loader2")

    a.label("kx_pref")
    if "codepf" in EXP:
        a("s_cmp_lg_u32 s86, 0")
        a("s_cbranch_scc1 kx_nocode")
        a("s_cmp_ge_u32 s16, (kx_end - %s + 8191) / 8192" % name)
        a("s_cbranch_scc1 kx_nocode")
        a("s_getpc_b64 s[22:23]")
        a.label("kx_pc")
        a("s_sub_u32 s22, s22, kx_pc - %s" % name)
        a("s_subb_u32 s23, s23, 0")
        a("v_lshlrev_b32 v11, 7, v0")
        a("s_lshl_b32 s19, s16, 13")
        a("v_add_u32 v11, s19, v11")
        a("v_min_u32 v11, kx_end - %s - 4, v11" % name)
        a("global_load_dword v59, v11, s[22:23]")
        a.label("kx_nocode")
    a("v_lshrrev_b32 v6, 3, v0")
    a("v_and_b32 v7, 7, v0")
    a("v_lshlrev_b32 v8, 12, v6")
    a("v_lshlrev_b32 v6, 10, v6")
    a("v_lshlrev_b32 v9, 7, v7")
    a("v_add_u32 v6, v6, v9")
    a("v_add_u32 v14, v8, v9")
    a("s_cmp_eq_u32 s89, 0")
    a("s_cselect_b32 s24, s38, s40")
    a("s_cselect_b32 s25, s39, s41")
    a("s_cselect_b32 s26, s34, s36")
    a("s_cselect_b32 s27, s35, s37")
    a("s_lshl_b32 s19, s85, 17")
    a("s_add_u32 s22, s32, s19")
    a("s_addc_u32 s23, s33, 0")
    a("s_cmp_lt_u32 s86, 8")
    a("s_cselect_b32 s22, s22, s24")
    a("s_cselect_b32 s23, s23, s25")
    srd(a, 4, 22, 23, 524288)
    a("s_and_b32 s19, s86, 7")
    a("s_lshl_b32 s19, s19, 16")
    a("s_lshl_b32 s20, s16, 13")
    a("s_add_u32 s19, s19, s20")
    a("v_lshlrev_b32 v11, 4, v0")
    a("s_add_u32 s29, s19, 4096")
    for i in range(8):
        a("buffer_load_dwordx4 v[%d:%d], v11, s[4:7], s%d offen offset:%d" % (64 + 4 * i, 67 + 4 * i, 19 if i < 4 else 29, 1024 * (i & 3)))
    a("s_lshl_b32 s19, s60, 22")
    a("s_lshl_b32 s20, s86, 18")
    a("s_add_u32 s19, s19, s20")
    a("s_lshl_b32 s20, s88, 11")
    a("s_add_u32 s19, s19, s20")
    a("s_lshl_b32 s20, s16, 15")
    a("s_add_u32 s19, s19, s20")
    add64(a, 26, 27, "s19")
    srd(a, 8, 26, 27, 7 * 4096 + 2048)
    if PFN - PF0 < 16:
        a("v_cmp_gt_u32 vcc, %d, v7" % max(PFN - PF0 - 8, 0))
        a("v_mov_b32 v15, 0x40000000")
        a("v_cndmask_b32 v15, v15, v14, vcc")
    else:
        a("v_mov_b32 v15, v14")
    a("s_lshl_b32 s19, s86, 3")
    a("s_add_u32 s19, s19, s16")
    a("s_mul_i32 s20, s19, 2731")
    a("s_lshr_b32 s20, s20, 16")
    a("s_mul_i32 s21, s20, 24")
    a("s_sub_u32 s21, s19, s21")
    a("s_lshl_b32 s20, s20, 3")
    a("s_add_u32 s20, s20, s58")
    a("s_movk_i32 s19, 3584")
    a("v_mul_lo_u32 v10, v0, s19")
    poll(a, "kx_pollp", ["buffer_load_dword v194, v197, s[72:75], 0 offen%s" % SC], lambda: a("v_cmp_eq_u32 vcc, 0, v194"))
    a("v_readfirstlane_b32 s84, v194")
    for i in range(8):
        for d in range(4):
            unpack(a, 16 + 2 * d, 17 + 2 * d, 64 + 4 * i + d)
        a("v_pk_add_f32 v[24:25], v[16:17], v[18:19]")
        a("v_pk_mul_f32 v[28:29], v[16:17], v[16:17]")
        a("v_pk_add_f32 v[26:27], v[20:21], v[22:23]")
        a("v_pk_fma_f32 v[28:29], v[18:19], v[18:19], v[28:29]")
        a("v_pk_add_f32 v[24:25], v[24:25], v[26:27]")
        a("v_pk_fma_f32 v[28:29], v[20:21], v[20:21], v[28:29]")
        a("v_add_f32 v%d, v24, v25" % (32 + i))
        a("v_pk_fma_f32 v[28:29], v[22:23], v[22:23], v[28:29]")
        a("v_add_f32 v%d, v28, v29" % (40 + i))
    a("s_nop 1")
    for i in range(8):
        a("v_permlane32_swap_b32 v%d, v%d" % (32 + i, 40 + i))
    a("s_nop 1")
    for i in range(8):
        a("v_add_f32 v%d, v%d, v%d" % (32 + i, 32 + i, 40 + i))
    a("s_nop 1")
    for i in range(4):
        a("v_permlane16_swap_b32 v%d, v%d" % (32 + i, 36 + i))
    a("s_nop 1")
    for i in range(4):
        a("v_add_f32 v%d, v%d, v%d" % (32 + i, 32 + i, 36 + i))
    for r in (8, 4, 2, 1):
        a("s_nop 0")
        for i in range(4):
            a("v_add_f32_dpp v%d, v%d, v%d row_ror:%d row_mask:0xf bank_mask:0xf" % (32 + i, 32 + i, 32 + i, r))
    a("v_and_b32 v16, 3, v0")
    a("v_cmp_eq_u32 s[22:23], 1, v16")
    a("v_cmp_eq_u32 s[24:25], 2, v16")
    a("v_cmp_eq_u32 s[26:27], 3, v16")
    a("v_lshrrev_b32 v17, 4, v0")
    a("v_cndmask_b32 v32, v32, v33, s[22:23]")
    a("v_cndmask_b32 v32, v32, v34, s[24:25]")
    a("v_cndmask_b32 v32, v32, v35, s[26:27]")
    a("v_mov_b32 v33, v32")
    a("v_lshl_add_u32 v16, v17, 2, v16")
    a("s_nop 0")
    a("v_permlane32_swap_b32 v32, v33")
    a("s_lshl_b32 s22, s86, 6")
    a("s_lshl_b32 s23, s16, 3")
    a("s_add_u32 s22, s22, s23")
    a("v_add_lshl_u32 v16, v16, s22, 3")
    a("v_mul_f32 v28, 0x3b000000, v32")
    a("v_mul_f32 v29, 0x3b000000, v33")
    a("v_fma_f32 v29, -v28, v28, v29")
    a("v_max_f32 v29, 0, v29")
    bf16r(a, 30, 28)
    bf16r(a, 29, 29)
    a("v_add_f32 v29, 0x3727c5ac, v29")
    bf16r(a, 29, 29)
    a("v_sqrt_f32 v29, v29")
    a("s_lshl_b32 s22, s58, 13")
    a("v_cvt_pk_bf16_f32 v29, v29, v29")
    a("v_and_b32 v29, 0xffff, v29")
    a("v_or_b32 v30, v30, v29")
    a("s_add_u32 s22, s22, %d" % STAT)
    a("s_cmp_lt_u32 s86, 8")
    a("s_cbranch_scc1 kx_pf_x")
    a("v_mov_b32 v30, v32")
    a.label("kx_pf_x")
    a("v_mov_b32 v31, s84")
    a("s_mov_b64 exec, 0x000f000f")
    a("buffer_store_dwordx2 v[30:31], v16, s[68:71], s22 offen%s" % SC)
    a("s_mov_b64 exec, -1")
    stamp(a, 8)
    a("s_cmp_ge_u32 s20, %d" % (0 if "noffnpf" in EXP else 28))
    a("s_cbranch_scc1 kx_pf_done")
    a("s_cmp_ge_u32 s21, 16")
    a("s_cbranch_scc1 kx_pf_wd")
    a("s_cmp_lt_u32 s21, 8")
    a("s_cselect_b32 s22, s46, s48")
    a("s_cselect_b32 s23, s47, s49")
    srd(a, 12, 22, 23, 512 * 3584)
    a("s_and_b32 s21, s21, 7")
    a("s_mul_i32 s19, s21, %d" % (64 * 3584))
    a("s_lshl_b32 s20, s20, 7")
    a("s_add_u32 s19, s19, s20")
    a("buffer_load_dword v61, v10, s[12:15], s19 offen" + NT)
    a("s_branch kx_pf_done")
    a.label("kx_pf_wd")
    srd(a, 12, 50, 51, 1792 * 1024)
    a("s_sub_u32 s21, s21, 16")
    a("s_lshl_b32 s19, s20, 16")
    a("s_lshl_b32 s21, s21, 13")
    a("s_add_u32 s19, s19, s21")
    a("buffer_load_dword v61, v6, s[12:15], s19 offen" + NT)
    a.label("kx_pf_done")
    if PFN - PF0 < 8:
        a("v_cmp_gt_u32 vcc, %d, v7" % (PFN - PF0))
        a("v_mov_b32 v15, 0x40000000")
        a("v_cndmask_b32 v14, v15, v14, vcc")
    a("buffer_load_dword v62, v14, s[8:11], 0 offen offset:%d" % (128 * PF0) + NT)
    if PFN - PF0 > 8:
        a("buffer_load_dword v63, v15, s[8:11], 0 offen offset:%d" % (128 * PF0 + 1024) + NT)
    a("s_waitcnt vmcnt(0)")
    stamp(a, 1)
    a("s_cmp_ge_u32 s16, 4")
    a("s_cbranch_scc1 kx_loader2")
    setup2("p")
    a("s_barrier")
    a("s_branch kx_cons2")

    a.label("kx_loader2")
    if "lprio" in EXP:
        a("s_setprio 2")
    a("s_lshl_b32 s19, s89, 2")
    a("s_add_u32 s19, s19, s62")
    a("s_lshl_b32 s24, s19, 11")
    a("s_lshl_b32 s19, s19, 19")
    a("s_lshl_b32 s20, s88, 18")
    a("s_add_u32 s19, s19, s20")
    a("s_add_u32 s22, s56, s19")
    a("s_addc_u32 s23, s57, 0")
    srd(a, 4, 22, 23, 16 * 16384)
    a("s_cmp_eq_u32 s89, 0")
    a("s_cselect_b32 s22, s34, s36")
    a("s_cselect_b32 s23, s35, s37")
    a("s_lshl_b32 s19, s63, 19")
    a("s_lshl_b32 s21, s88, 11")
    a("s_add_u32 s19, s19, s21")
    add64(a, 22, 23, "s19")
    srd(a, 8, 22, 23, 127 * 4096 + 2048)
    a("s_lshl_b32 s20, s88, 10")
    a("s_add_u32 s24, s24, s20")
    a("s_add_u32 s24, s24, %d" % FLAG0)
    a("s_sub_u32 s17, s16, 4")
    a("v_lshrrev_b32 v1, 3, v0")
    a("v_lshrrev_b32 v2, 4, v0")
    a("v_and_b32 v3, 7, v0")
    a("s_lshl_b32 s18, s17, 5")
    a("v_add_u32 v1, s18, v1")
    a("v_lshlrev_b32 v6, 7, v1")
    for j in range(4):
        a("v_add_u32 v4, %d, v1" % (8 * j))
        a("v_lshlrev_b32 v4, 12, v4")
        a("v_add_u32 v5, %d, v2" % (4 * j))
        a("v_and_b32 v5, 7, v5")
        a("v_xor_b32 v5, v5, v3")
        a("v_lshlrev_b32 v5, 4, v5")
        a("v_add_u32 v4, v4, v5")
        a("v_subrev_u32 v%d, %d, v4" % (8 + j, 1024 * j))
        if j == 0:
            a("v_lshlrev_b32 v12, 4, v0")
            a("s_lshl_b32 s19, s17, 12")
            a("v_add_u32 v12, s19, v12")
    a("s_lshl_b32 s21, s17, 12")
    a("s_lshl_b32 s31, s17, 6")
    a("v_add_u32 v199, s31, v0")
    a("s_and_b32 s66, s59, 7")
    a("s_lshl_b32 s31, s65, 3")
    a("s_add_u32 s66, s66, s31")
    a("s_sub_u32 s31, s58, 4")
    a("s_lshl_b32 s31, s31, 3")
    a("s_add_u32 s31, s31, s59")
    a("s_sub_u32 s31, s31, 24")
    a("s_lshl_b32 s31, s31, 1")
    a("s_add_u32 s31, s31, s17")
    a("s_cmp_lt_u32 s65, 28")
    a("s_cselect_b32 s66, s66, s31")
    a("s_cselect_b32 s30, %d, 99" % FFNST)
    a("s_barrier")
    a("s_mov_b32 s20, 0")
    a("s_add_u32 s19, s21, 16384")
    a.label("kx_l2q")
    a("s_mov_b32 m0, s19")
    a("s_add_u32 s19, s19, %d" % SLOT)
    for j in range(4):
        a("buffer_load_dwordx4 v%d, s[8:11], s20 offen offset:%d%s lds" % (8 + j, 1024 * j, NTQ))
    a("s_add_u32 s20, s20, 128")
    a("s_cmp_lt_u32 s20, 512")
    a("s_cbranch_scc1 kx_l2q")
    a("s_cmp_lg_u32 s16, 4")
    a("s_cbranch_scc1 kx_poll0_done")
    a("v_lshlrev_b32 v20, 7, v3")

    def f0cond():
        a("v_xor_b32 v24, s84, v24")
        a("v_xor_b32 v25, s84, v25")
        a("v_xor_b32 v26, s84, v26")
        a("v_xor_b32 v27, s84, v27")
        a("v_or3_b32 v24, v24, v25, v26")
        a("v_or_b32 v24, v24, v27")
        a("v_cmp_ne_u32 vcc, 0, v24")
    a("s_mov_b64 exec, 0xff")
    poll(a, "kx_poll0", ["buffer_load_dwordx4 v[24:27], v20, s[68:71], s24 offen%s" % SC], f0cond)
    a("s_mov_b64 exec, -1")
    stamp(a, 2)
    a("s_barrier")
    a("s_mov_b32 s26, 0")
    a("s_mov_b32 s19, s21")
    a.label("kx_l2p")
    a("s_mov_b32 m0, s19")
    a("s_add_u32 s19, s19, %d" % SLOT)
    for j in range(4):
        a("buffer_load_dwordx4 v12, s[4:7], s26 offen offset:%d%s lds" % (1024 * j, SC))
    a("s_add_u32 s26, s26, 16384")
    if "early2" in EXP:
        a("s_cmp_lg_u32 s26, 32768")
        a("s_cbranch_scc1 kx_l2pn")
        a("s_waitcnt vmcnt(0)")
        a("s_barrier")
        a.label("kx_l2pn")
    a("s_cmp_lt_u32 s26, 65536")
    a("s_cbranch_scc1 kx_l2p")
    if "early2" not in EXP:
        a("s_waitcnt vmcnt(8)")
        a("s_barrier")
    a("s_add_u32 s21, s21, %d" % (4 * SLOT))
    a("s_mov_b32 s25, 4")
    a("s_mov_b32 s22, 4")
    a.label("kx_l2loop")
    a("s_mov_b32 m0, s21")
    a("s_add_u32 s19, s21, 16384")
    for j in range(4):
        a("buffer_load_dwordx4 v12, s[4:7], s26 offen offset:%d%s lds" % (1024 * j, SC))
    a("s_mov_b32 m0, s19")
    a("s_add_u32 s25, s25, 1")
    for j in range(4):
        a("buffer_load_dwordx4 v%d, s[8:11], s20 offen offset:%d%s lds" % (8 + j, 1024 * j, NTQ))
    a("s_add_u32 s20, s20, 128")
    a("s_add_u32 s26, s26, 16384")
    a("s_add_u32 s21, s21, %d" % SLOT)
    a("s_cmp_eq_u32 s25, %d" % NSLOT)
    a("s_cselect_b32 s19, %d, 0" % (SLOT * NSLOT))
    a("s_cselect_b32 s27, %d, 0" % NSLOT)
    a("s_sub_u32 s21, s21, s19")
    a("s_sub_u32 s25, s25, s27")
    a("s_add_u32 s22, s22, 1")
    a("s_sub_u32 s31, s22, s30")
    a("s_sub_u32 s31, s31, 1")
    a("s_cmp_lt_u32 s31, 1")
    a("s_cbranch_scc1 kx_l2w28")
    a("s_cmp_lg_u32 s22, 5")
    a("s_cbranch_scc1 kx_l2w16")
    a("s_waitcnt vmcnt(12)")
    a.label("kx_l2w16")
    a("s_waitcnt vmcnt(16)")
    a.label("kx_l2w28")
    a("s_waitcnt vmcnt(28)")
    a("s_barrier")
    if FFNST <= 16:
        a("s_cmp_lg_u32 s22, s30")
        a("s_cbranch_scc1 kx_l2noffn")
        ffnloads()
        a.label("kx_l2noffn")
    a("s_cmp_lt_u32 s22, 16")
    a("s_cbranch_scc1 kx_l2loop")
    if "ffn12" in EXP:
        a("s_cmp_ge_u32 s65, 28")
        a("s_cbranch_scc1 kx_l2tail")
        ffnloads()
        a("s_waitcnt vmcnt(20)")
        a("s_barrier")
        a("s_waitcnt vmcnt(12)")
        a("s_barrier")
        a("s_branch kx_rows")
        a.label("kx_l2tail")
    a("s_waitcnt vmcnt(8)")
    a("s_barrier")
    a("s_waitcnt vmcnt(0)")
    a("s_barrier")
    if "ffn12" not in EXP:
        a("s_cmp_ge_u32 s65, 28")
        a("s_cbranch_scc1 kx_rows")
        ffnloads()

    a.label("kx_rows")
    stamp(a, 12)
    srd(a, 72, 32, 33, 2 << 20)
    srd(a, 76, 44, 45, 1024)
    srd(a, 80, 52, 53, 2 << 20)
    a("v_lshlrev_b32 v2, 4, v0")
    a("v_and_b32 v1, 7, v0")
    a("v_lshrrev_b32 v3, 3, v0")
    a("v_lshlrev_b32 v5, 8, v3")
    a("v_lshl_add_u32 v5, v1, 4, v5")
    a("v_and_b32 v6, 4, v3")
    a("v_lshlrev_b32 v6, 4, v6")
    a("v_and_b32 v7, 1, v3")
    a("v_lshl_add_u32 v6, v7, 5, v6")
    a("v_and_b32 v7, 2, v3")
    a("v_lshl_add_u32 v6, v7, 3, v6")
    a("s_lshl_b32 s18, s16, 7")
    a("v_add_u32 v6, s18, v6")
    a("v_lshl_add_u32 v7, v1, 10, v6")
    a("s_lshl_b32 s19, s64, 13")
    a("buffer_load_dwordx4 v[24:27], v7, s[72:75], s19 offen")
    a("buffer_load_dwordx4 v[28:31], v6, s[76:79], 0 offen")
    a("buffer_load_dwordx4 v[8:11], v2, s[76:79], 0 offen")
    a("s_lshl_b32 s21, s63, 19")
    a("s_lshr_b32 s22, s16, 1")
    a("s_lshl_b32 s22, s22, 17")
    a("s_add_u32 s21, s21, s22")
    a("s_and_b32 s22, s16, 1")
    a("s_lshl_b32 s22, s22, 14")
    a("s_add_u32 s21, s21, s22")
    a("s_and_b32 s22, s64, 14")
    a("s_lshl_b32 s22, s22, 10")
    a("s_add_u32 s21, s21, s22")
    a("s_and_b32 s22, s64, 1")
    a("s_lshl_b32 s22, s22, 7")
    a("s_add_u32 s21, s21, s22")
    a("s_add_u32 s21, s21, %d" % PART_OFF)
    a("v_and_b32 v3, 15, v0")
    a("v_lshlrev_b32 v3, 7, v3")
    a("s_lshl_b32 s20, s63, 11")
    a("s_add_u32 s20, s20, %d" % FLAG1)
    a("v_lshlrev_b32 v74, 5, v1")
    a("v_add_u32 v74, 98304, v74")
    a("s_lshl_b32 s22, s16, 2")
    a("v_add_u32 v73, s22, v74")
    a("s_lshl_b32 s22, s64, 3")
    a("s_sub_u32 s22, 0xffff, s22")
    a("v_sub_u32 v75, s22, v1")
    a("s_waitcnt vmcnt(0)")
    for i in range(4):
        unpack(a, 64 + 2 * i, 65 + 2 * i, 28 + i)
        unpack(a, 76 + 2 * i, 77 + 2 * i, 24 + i)
        unpack(a, 48 + 2 * i, 49 + 2 * i, 8 + i)
    a("v_pk_add_f32 v[48:49], v[48:49], v[50:51]")
    a("v_pk_add_f32 v[52:53], v[52:53], v[54:55]")
    a("v_pk_add_f32 v[48:49], v[48:49], v[52:53]")
    a("v_add_f32 v72, v48, v49")
    allreduce64(a, "add_f32", 72, 49)
    a("s_cmp_lg_u32 s16, 0")
    a("s_cbranch_scc1 kx_poll1_done")

    def f1cond():
        a("v_xor_b32 v8, s84, v8")
        a("v_xor_b32 v9, s84, v9")
        a("v_xor_b32 v10, s84, v10")
        a("v_xor_b32 v11, s84, v11")
        a("v_or3_b32 v8, v8, v9, v10")
        a("v_or_b32 v8, v8, v11")
        a("v_cmp_ne_u32 vcc, 0, v8")
    a("s_mov_b64 exec, 0xffff")
    poll(a, "kx_poll1", ["buffer_load_dwordx4 v[8:11], v3, s[68:71], s20 offen%s" % SC], f1cond)
    a("s_mov_b64 exec, -1")
    a("s_barrier")
    stamp(a, 4)
    for ks in range(4):
        a("s_add_u32 s20, s21, %d" % (ks * 32768))
        a("buffer_load_dwordx4 v[%d:%d], v5, s[68:71], s20 offen%s" % (8 + 4 * ks, 11 + 4 * ks, SC))
    a("s_lshl_b32 s20, s64, 11")
    a("s_add_u32 s20, s20, %d" % SELROW)
    a("s_lshr_b32 s21, s64, 2")
    a("s_lshl_b32 s21, s21, 7")
    a("s_and_b32 s22, s64, 3")
    a("s_lshl_b32 s22, s22, 3")
    a("s_add_u32 s21, s21, s22")
    a("s_add_u32 s21, s21, %d" % KEYS)
    a("v_lshlrev_b32 v5, 13, v0")
    a("s_waitcnt vmcnt(0)")
    stamp(a, 13)
    for i in range(4):
        unpack(a, 48, 49, 8 + i)
        unpack(a, 50, 51, 12 + i)
        unpack(a, 52, 53, 16 + i)
        unpack(a, 54, 55, 20 + i)
        a("v_pk_add_f32 v[48:49], v[48:49], v[50:51]")
        a("v_pk_add_f32 v[52:53], v[52:53], v[54:55]")
        a("v_pk_add_f32 v[48:49], v[48:49], v[%d:%d]" % (76 + 2 * i, 77 + 2 * i))
        a("v_pk_add_f32 v[48:49], v[48:49], v[52:53] neg_lo:[0,1] neg_hi:[0,1]")
        a("v_cvt_pk_bf16_f32 v%d, v48, v49" % (32 + i))
        unpack(a, 40 + 2 * i, 41 + 2 * i, 32 + i)
    a("v_pk_add_f32 v[48:49], v[40:41], v[42:43]")
    a("v_pk_mul_f32 v[50:51], v[40:41], v[40:41]")
    a("v_pk_mul_f32 v[52:53], v[40:41], v[64:65]")
    a("v_pk_add_f32 v[54:55], v[44:45], v[46:47]")
    for i in range(1, 4):
        a("v_pk_fma_f32 v[50:51], v[%d:%d], v[%d:%d], v[50:51]" % (40 + 2 * i, 41 + 2 * i, 40 + 2 * i, 41 + 2 * i))
        a("v_pk_fma_f32 v[52:53], v[%d:%d], v[%d:%d], v[52:53]" % (40 + 2 * i, 41 + 2 * i, 64 + 2 * i, 65 + 2 * i))
    a("v_pk_add_f32 v[48:49], v[48:49], v[54:55]")
    a("v_add_f32 v50, v50, v51")
    a("v_add_f32 v52, v52, v53")
    a("v_add_f32 v48, v48, v49")
    for v in (50, 52, 48):
        a("v_add_f32_dpp v%d, v%d, v%d row_ror:8 row_mask:0xf bank_mask:0xf" % (v, v, v))
    for op in ("v_permlane16_swap_b32", "v_permlane32_swap_b32"):
        for v in (50, 52, 48):
            a("v_mov_b32 v%d, v%d" % (v + 1, v))
        a("s_nop 0")
        for v in (50, 52, 48):
            a("%s v%d, v%d" % (op, v, v + 1))
        a("s_nop 0")
        for v in (50, 52, 48):
            a("v_add_f32 v%d, v%d, v%d" % (v, v, v + 1))
    a("s_mov_b64 exec, 0xff")
    a("ds_write_b32 v73, v48")
    a("ds_write_b32 v73, v50 offset:256")
    a("ds_write_b32 v73, v52 offset:512")
    a("s_mov_b64 exec, -1")
    a("s_waitcnt lgkmcnt(0)")
    a("s_barrier")
    for k in range(3):
        a("ds_read_b128 v[%d:%d], v74 offset:%d" % (8 + 8 * k, 11 + 8 * k, 256 * k))
        a("ds_read_b128 v[%d:%d], v74 offset:%d" % (12 + 8 * k, 15 + 8 * k, 256 * k + 16))
    for k in range(3):
        b = 8 + 8 * k
        a("s_waitcnt lgkmcnt(%d)" % (4 - 2 * k))
        a("v_pk_add_f32 v[%d:%d], v[%d:%d], v[%d:%d]" % (b, b + 1, b, b + 1, b + 2, b + 3))
        a("v_pk_add_f32 v[%d:%d], v[%d:%d], v[%d:%d]" % (b + 4, b + 5, b + 4, b + 5, b + 6, b + 7))
        a("v_pk_add_f32 v[%d:%d], v[%d:%d], v[%d:%d]" % (b, b + 1, b, b + 1, b + 4, b + 5))
        a("v_add_f32 v%d, v%d, v%d" % (48 + 2 * k, b, b + 1))
    a("v_mul_f32 v58, 0x3b000000, v48")
    a("v_mul_f32 v50, 0x3b000000, v50")
    a("v_fma_f32 v50, -v58, v58, v50")
    a("v_max_f32 v50, 0, v50")
    bf16r(a, 60, 58)
    bf16r(a, 50, 50)
    a("v_add_f32 v50, 0x3727c5ac, v50")
    bf16r(a, 50, 50)
    a("v_sqrt_f32 v50, v50")
    a("v_fma_f32 v52, -v60, v72, v52")
    bf16r(a, 50, 50)
    a("v_rcp_f32 v58, v50")
    a("v_mov_b32 v57, s84")
    a("v_mul_f32 v48, v52, v58")
    a("v_cvt_pk_bf16_f32 v48, v48, v48")
    a("v_and_b32 v48, 0xffff0000, v48")
    a("v_ashrrev_i32 v49, 31, v48")
    a("v_and_b32 v49, 0x7fff0000, v49")
    a("v_or_b32 v49, 0x80000000, v49")
    a("v_xor_b32 v48, v48, v49")
    a("v_or_b32 v48, v75, v48")
    a("v_mul_f32 v62, v60, v58")
    a("v_sub_f32 v62, 0, v62")
    a("v_max_u32_dpp v56, v48, v48 quad_perm:[1,0,3,2] row_mask:0xf bank_mask:0xf")
    a("s_nop 1")
    a("v_max_u32_dpp v56, v56, v56 quad_perm:[2,3,0,1] row_mask:0xf bank_mask:0xf")
    a("s_nop 1")
    a("v_max_u32_dpp v56, v56, v56 row_half_mirror row_mask:0xf bank_mask:0xf")
    a("s_cmp_lg_u32 s16, 0")
    a("s_cbranch_scc1 kx_nokey")
    a("s_mov_b64 exec, %d" % ((1 << NREP) - 1))
    a("buffer_store_dwordx2 v[56:57], v5, s[68:71], s21 offen%s" % SC)
    a("s_mov_b64 exec, -1")
    a.label("kx_nokey")
    stamp(a, 14)
    a("v_mov_b32 v63, v56")
    a("v_cmp_eq_u32 s[22:23], v56, v48")
    for i in range(4):
        a("v_pk_fma_f32 v[50:51], v[%d:%d], v[58:59], v[62:63] op_sel_hi:[1,0,0]" % (40 + 2 * i, 41 + 2 * i))
        a("v_cvt_pk_bf16_f32 v%d, v50, v51" % (36 + i))
        unpack(a, 50, 51, 36 + i)
        a("v_pk_add_f32 v[50:51], v[%d:%d], v[50:51]" % (40 + 2 * i, 41 + 2 * i))
        a("v_cvt_pk_bf16_f32 v%d, v50, v51" % (24 + i))
    a("s_mov_b64 exec, s[22:23]")
    a("buffer_store_dwordx4 v[36:39], v6, s[68:71], s20 offen%s" % SC)
    a("buffer_store_dwordx4 v[32:35], v6, s[68:71], s20 offen offset:1024%s" % SC)
    a("ds_write_b128 v6, v[24:27] offset:32768")
    a("s_not_b64 exec, exec")
    a("buffer_store_dwordx4 v[24:27], v7, s[80:83], s19 offen" + OUTF)
    a("s_mov_b64 exec, -1")
    a("s_waitcnt lgkmcnt(0)")
    a.label("kx_notbest")
    a("s_cmp_lt_u32 s16, 4")
    a("s_cbranch_scc1 kx_exit")

    a("s_cmp_lt_u32 s65, 28")
    a("s_cbranch_scc1 kx_keys")
    a("s_cmp_ge_u32 s16, 6")
    a("s_cbranch_scc1 kx_exit")
    a.label("kx_keys")
    a("s_and_b32 s20, s64, %d" % (NREP - 1))
    a("s_lshl_b32 s20, s20, 13")
    a("s_add_u32 s20, s20, %d" % KEYS)
    a("v_lshlrev_b32 v3, 7, v0")
    a("v_mov_b32 v5, 98816")
    a("s_cmp_lg_u32 s16, 4")
    a("s_cbranch_scc1 kx_keywait")

    def keycond():
        a("v_xor_b32 v9, s84, v9")
        a("v_xor_b32 v11, s84, v11")
        a("v_xor_b32 v13, s84, v13")
        a("v_xor_b32 v15, s84, v15")
        a("v_or3_b32 v4, v9, v11, v13")
        a("v_or_b32 v4, v4, v15")
        a("v_cmp_ne_u32 vcc, 0, v4")
    poll(a, "kx_poll2", ["buffer_load_dwordx4 v[8:11], v3, s[68:71], s20 offen%s" % SC,
                         "buffer_load_dwordx4 v[12:15], v3, s[68:71], s20 offen offset:16%s" % SC], keycond)
    a("v_max_u32 v64, v8, v10")
    a("v_max3_u32 v64, v64, v12, v14")
    allreduce64(a, "max_u32", 64, 65)
    a("ds_write_b32 v5, v64")
    a("s_waitcnt lgkmcnt(0)")
    a.label("kx_keywait")
    a("s_barrier")
    a("ds_read_b32 v64, v5")
    a("ds_read_b128 v[24:27], v2 offset:32768")
    a("s_waitcnt lgkmcnt(0)")
    stamp(a, 5)
    a("v_and_b32 v66, 0xffff, v64")
    a("v_sub_u32 v66, 0xffff, v66")
    a("v_lshrrev_b32 v67, 3, v66")
    a("v_lshlrev_b32 v67, 11, v67")
    a("s_cmp_lg_u32 s16, 5")
    a("s_cbranch_scc1 kx_noparked")
    a("v_and_b32 v4, 0xffff, v63")
    a("v_sub_u32 v4, 0xffff, v4")
    a("v_lshlrev_b32 v4, 10, v4")
    a("v_add_u32 v4, v4, v2")
    a("v_cmp_ne_u32 vcc, v63, v64")
    a("s_and_saveexec_b64 s[22:23], vcc")
    a("s_cbranch_execz kx_parkskip")
    a("buffer_store_dwordx4 v[24:27], v4, s[80:83], 0 offen" + OUTF)
    a.label("kx_parkskip")
    a("s_mov_b64 exec, -1")
    a.label("kx_noparked")
    a("s_mov_b32 s20, %d" % SELROW)
    a("s_cmp_ge_u32 s65, 28")
    a("s_cbranch_scc1 kx_final")
    a("v_lshlrev_b32 v4, 2, v199")
    a("v_add_u32 v68, v67, v4")
    poll(a, "kx_poll4", ["buffer_load_dword v75, v68, s[68:71], s20 offen%s" % SC],
         lambda: a("v_cmp_eq_u32 vcc, -1, v75"))
    a("s_mov_b32 s22, 0x05040100")
    a("s_mov_b32 s23, 0x07060302")
    for m in range(2):
        for i in range(4):
            a("v_perm_b32 v%d, v%d, v%d, s22" % (32 + 8 * m + 2 * i, 204 + 8 * m + i, 200 + 8 * m + i))
            a("v_perm_b32 v%d, v%d, v%d, s23" % (33 + 8 * m + 2 * i, 204 + 8 * m + i, 200 + 8 * m + i))
    for i in range(16):
        a("v_dot2_f32_bf16 v%d, v%d, v75, 0" % (48 + i, 32 + i))
    a("s_nop 2")
    for i in range(8):
        a("v_permlane32_swap_b32 v%d, v%d" % (48 + i, 56 + i))
    a("s_nop 1")
    for i in range(8):
        a("v_add_f32 v%d, v%d, v%d" % (48 + i, 48 + i, 56 + i))
    a("s_nop 1")
    for i in range(4):
        a("v_permlane16_swap_b32 v%d, v%d" % (48 + i, 52 + i))
    a("s_nop 1")
    for i in range(4):
        a("v_add_f32 v%d, v%d, v%d" % (48 + i, 48 + i, 52 + i))
    for r in (8, 4, 2, 1):
        a("s_nop 0")
        for i in range(4):
            a("v_add_f32_dpp v%d, v%d, v%d row_ror:%d row_mask:0xf bank_mask:0xf" % (48 + i, 48 + i, 48 + i, r))
    a("s_lshl_b32 s21, s17, 6")
    a("s_add_u32 s21, s21, 98560")
    a("v_lshrrev_b32 v7, 4, v0")
    a("v_lshlrev_b32 v7, 4, v7")
    a("v_add_u32 v6, s21, v7")
    a("ds_write_b128 v6, v[48:51]")
    a("v_and_b32 v7, 7, v0")
    a("v_lshlrev_b32 v7, 2, v7")
    a("v_add_u32 v7, 98560, v7")
    a("s_waitcnt lgkmcnt(0)")
    a("s_barrier")
    for w in range(4):
        a("ds_read_b32 v%d, v7 offset:%d" % (48 + w, 64 * w))
        a("ds_read_b32 v%d, v7 offset:%d" % (52 + w, 64 * w + 32))
    a("s_waitcnt lgkmcnt(0)")
    a("v_add_f32 v48, v48, v49")
    a("v_add_f32 v50, v50, v51")
    a("v_add_f32 v52, v52, v53")
    a("v_add_f32 v54, v54, v55")
    a("v_add_f32 v48, v48, v50")
    a("v_add_f32 v52, v52, v54")
    bf16r(a, 48, 48)
    bf16r(a, 52, 52)
    a("v_mul_f32 v49, 0xbfb8aa3b, v48")
    a("v_exp_f32 v49, v49")
    a("s_nop 0")
    a("v_add_f32 v49, 1.0, v49")
    a("v_rcp_f32 v49, v49")
    a("s_nop 0")
    a("v_mul_f32 v48, v48, v49")
    bf16r(a, 48, 48)
    a("v_mul_f32 v48, v48, v52")
    bf16r(a, 48, 48)
    a("s_nop 0")
    for j in range(8):
        a("v_readlane_b32 s%d, v48, %d" % (4 + j, j))
    a("v_mov_b32 v50, 0")
    a("v_mov_b32 v51, 0")
    for j in range(8):
        unpack(a, 52, 53, 216 + j)
        a("v_fmac_f32 v50, s%d, v52" % (4 + j))
        a("v_fmac_f32 v51, s%d, v53" % (4 + j))
    a("v_lshlrev_b32 v6, 3, v199")
    a("s_lshl_b32 s20, s66, 11")
    a("s_add_u32 s20, s20, %d" % YP_OFF)
    a("buffer_store_dwordx2 v[50:51], v6, s[68:71], s20 offen%s" % SC)
    stamp(a, 7)
    a("s_endpgm")

    a.label("kx_final")
    a("v_lshrrev_b32 v5, 4, v0")
    a("v_lshlrev_b32 v3, 2, v5")
    a("s_lshl_b32 s19, s66, 4")
    a("v_add_u32 v3, s19, v3")
    a("v_add_u32 v68, v67, v3")

    def hcond():
        a("v_max_u32 v4, v69, v75")
        a("v_cmp_eq_u32 vcc, -1, v4")
    poll(a, "kx_poll5", ["buffer_load_dword v75, v68, s[68:71], s20 offen%s" % SC,
                         "buffer_load_dword v69, v68, s[68:71], s20 offen offset:1024%s" % SC], hcond)
    a("v_and_b32 v52, 0xffff0000, v64")
    a("v_ashrrev_i32 v53, 31, v52")
    a("v_not_b32 v53, v53")
    a("v_and_b32 v53, 0x7fff0000, v53")
    a("v_or_b32 v53, 0x80000000, v53")
    a("v_xor_b32 v52, v52, v53")
    a("v_mul_f32 v53, 0xbfb8aa3b, v52")
    a("v_exp_f32 v53, v53")
    a("s_nop 0")
    a("v_add_f32 v53, 1.0, v53")
    a("v_rcp_f32 v53, v53")
    a("s_nop 0")
    bf16r(a, 44, 53)
    unpack(a, 40, 41, 69)
    unpack(a, 42, 43, 75)
    a("v_lshlrev_b32 v45, 10, v66")
    a("v_add_u32 v45, v45, v3")
    a("v_lshlrev_b32 v1, 11, v0")
    a("s_lshl_b32 s19, s66, 5")
    a("v_add_u32 v1, s19, v1")
    a("v_cmp_gt_u32 vcc, 32, v0")
    a("v_mov_b32 v6, 0x40000000")
    a("v_cndmask_b32 v6, v6, v1, vcc")
    for i in range(4):
        a("s_mov_b32 s%d, %d" % (24 + i, YP_OFF + 131072 * i))
    loads = []
    for i in range(4):
        vo = 1 if i < 3 else 6
        loads.append("buffer_load_dwordx4 v[%d:%d], v%d, s[68:71], s%d offen%s" % (8 + 8 * i, 11 + 8 * i, vo, 24 + i, SC))
        loads.append("buffer_load_dwordx4 v[%d:%d], v%d, s[68:71], s%d offen offset:16%s" % (12 + 8 * i, 15 + 8 * i, vo, 24 + i, SC))

    def ycond():
        a("v_max3_u32 v4, v8, v9, v10")
        for i in range(11, 39, 2):
            a("v_max3_u32 v4, v4, v%d, v%d" % (i, i + 1))
        a("v_max_u32 v4, v4, v39")
        a("v_cmp_eq_u32 vcc, -1, v4")
    poll(a, "kx_poll3", loads, ycond)
    for i in range(4):
        a("v_pk_add_f32 v[%d:%d], v[%d:%d], v[%d:%d]" % (8 + 2 * i, 9 + 2 * i, 8 + 2 * i, 9 + 2 * i, 16 + 2 * i, 17 + 2 * i))
        a("v_pk_add_f32 v[%d:%d], v[%d:%d], v[%d:%d]" % (24 + 2 * i, 25 + 2 * i, 24 + 2 * i, 25 + 2 * i, 32 + 2 * i, 33 + 2 * i))
    for i in range(4):
        a("v_pk_add_f32 v[%d:%d], v[%d:%d], v[%d:%d]" % (8 + 2 * i, 9 + 2 * i, 8 + 2 * i, 9 + 2 * i, 24 + 2 * i, 25 + 2 * i))
    a("s_nop 1")
    for i in range(4):
        a("v_permlane32_swap_b32 v%d, v%d" % (8 + i, 12 + i))
    a("s_nop 1")
    for i in range(4):
        a("v_add_f32 v%d, v%d, v%d" % (8 + i, 8 + i, 12 + i))
    a("s_nop 1")
    for i in range(2):
        a("v_permlane16_swap_b32 v%d, v%d" % (8 + i, 10 + i))
    a("s_nop 1")
    for i in range(2):
        a("v_add_f32 v%d, v%d, v%d" % (8 + i, 8 + i, 10 + i))
    for r in (8, 4, 2, 1):
        a("s_nop 1")
        for i in range(2):
            a("v_add_f32_dpp v%d, v%d, v%d row_ror:%d row_mask:0xf bank_mask:0xf" % (8 + i, 8 + i, 8 + i, r))
    for i in range(2):
        bf16r(a, 8 + i, 8 + i)
        a("v_mul_f32 v%d, v%d, v44" % (8 + i, 8 + i))
        bf16r(a, 8 + i, 8 + i)
        a("v_add_f32 v%d, v%d, v%d" % (8 + i, 8 + i, 42 + i))
        bf16r(a, 8 + i, 8 + i)
        a("v_add_f32 v%d, v%d, v%d" % (8 + i, 8 + i, 40 + i))
    a("v_cvt_pk_bf16_f32 v8, v8, v9")
    a("v_and_b32 v6, 15, v0")
    a("v_cmp_eq_u32 vcc, 0, v6")
    a("s_and_saveexec_b64 s[30:31], vcc")
    a("buffer_store_dword v8, v45, s[80:83], 0 offen" + OUTF)
    a("s_mov_b64 exec, -1")
    if gen.STAMPS:
        a("s_waitcnt vmcnt(0)")
    stamp(a, 7)
    if HOLD:
        a.label("kx_hold")
        a("s_memrealtime s[4:5]")
        a("s_waitcnt lgkmcnt(0)")
        a("s_sub_u32 s4, s4, s84")
        a("s_cmp_lt_u32 s4, %d" % (HOLD * 100))
        a("s_cbranch_scc1 kx_hold")
    a.label("kx_exit")
    a("s_endpgm")
    a.label("kx_end")
    return name, 224


def main(out):
    head = open("cdna_kernels/%s.s.ref" % NAME).read().split("\n")
    a = A()
    for line in head:
        if line.startswith(";") and "@launch" not in line:
            a.raw(line)
    for line in (
        "; Design: ONE persistent launch, 256 workgroups x 8 waves (1 per CU), phases chained through d_ws hand-offs",
        ";  P1  WGs q<16 : GEMM1  Dt = W' x^T (128x128 tiles, LDS-DMA ring, 4 MFMA waves + 4 loader waves), LayerNorm1 applied",
        ";                 algebraically in the epilogue:  (D - mean*sum(W)) / sqrt(var+eps)  -> ABT (bf16, fragment order)",
        ";      WGs q>=16: row statistics of x / row sums of W, cache prefetch of the DFT matrices and FFN weights",
        ";  P2  all WGs  : GEMM2  Cr@a, Ci@b  (128x128 tiles, split-K 4) -> bf16 partials",
        ";  P3  all WGs  : 8 rows each: h = x + y, LayerNorm2, router score, out = h + hn, per-WG best key",
        ";  P4  224 WGs  : global argmax, SwiGLU slice (8 hidden units each) and its down-projection partial",
        ";  P5  32 WGs   : reduce the partials, write the routed row",
        "; Hand-offs: write-through (sc1) stores, then flags tagged with a per-launch nonce published in d_debug[0];",
        "; small payloads use self-initialised sentinels. No assumption on workgroup placement is needed for correctness.",
    ):
        a.raw(line)
    if "--plain" in sys.argv:
        kname = NAME + "_kernel"
        a.raw("; @launch grid=(256,1,1) block=(512,1,1) lds=163840")
    else:
        kname = "kx_kernel"
        a.raw("; @launch kernel=%s grid=(256,1,1) block=(512,1,1) lds=163840" % kname)
    a.raw('.amdgcn_target "amdgcn-amd-amdhsa--gfx950"')
    name, vg = kx(a, kname)
    if DBGSTAMP:
        kernel_desc(a, name, 256, 102)
    else:
        kernel_desc(a, name, vg, 96)
    open(out, "w").write(a.text())


if __name__ == "__main__":
    args = [x for x in sys.argv[1:] if not x.startswith("--")]
    if "--stamps" in sys.argv:
        gen.STAMPS = True
    for x in sys.argv:
        if x.startswith("--exp="):
            gen.EXP = set(x[6:].split(","))
        if x.startswith("--sleep="):
            SLEEP = int(x[8:])
        if x.startswith("--ffnst="):
            FFNST = int(x[8:])
        if x.startswith("--hold="):
            HOLD = int(x[7:])
        if x.startswith("--pf0="):
            PF0 = int(x[6:])
        if x.startswith("--pfn="):
            PFN = int(x[6:])
        if x.startswith("--nrep="):
            NREP = int(x[7:])
        if x == "--dbg":
            DBGSTAMP = True
        if x.startswith("--outf="):
            OUTF = " " + x[7:].replace(",", " ")
        if x == "--noq":
            NTQ = ""
        if x == "--nont":
            NT = ""
    main(args[0] if args else "cdna_kernels/%s.s" % NAME)
```

```python
import sys
import gen
from gen import (A, NAME, kernel_head, kernel_desc, srd, add64, bf16r, unpack, allreduce64, wave_split,
                 stamp, stampc, stamp_init, SLOT, NSLOT, ACC, FR, AP, AQ, KA_WS)

ABT_OFF = 0
PART_OFF = 4 << 20
FLAG0 = 12 << 20
FLAG1 = FLAG0 + 16384
KEYS = FLAG1 + 32768
STAT = 13 << 20
YP_OFF = 15 << 20
SELROW = 16 << 20
WS_SRD_SIZE = 32 << 20
NREP = 4
SC = " sc1"
SPIN_MAX = 1 << 20
SLEEP = 4
NT = ""
NTQ = ""
PFN = 12
PF0 = 4
HOLD = 0
HREF = None
FFNST = 99
OUTF = ""
STATS_LDS = 4 * SLOT
SUMW_LDS = STATS_LDS + 1024
NONCE_LDS = STATS_LDS + 2048


def poll(a, lbl, loads, cond):
    a("s_mov_b32 s31, 0")
    a.label(lbl)
    for l in loads:
        a(l)
    a("s_waitcnt vmcnt(0)")
    cond()
    a("s_add_u32 s31, s31, 1")
    a("s_nop 1")
    a("s_cmp_eq_u64 vcc, 0")
    a("s_cbranch_scc1 %s_done" % lbl)
    a("s_cmp_ge_u32 s31, %d" % SPIN_MAX)
    a("s_cbranch_scc1 %s_done" % lbl)
    a("s_sleep %d" % SLEEP)
    a("s_branch %s" % lbl)
    a.label(lbl + "_done")


DBGSTAMP = False
DBGWG = 0
_dbgn = [0]


def dstamp(a, slot):
    _dbgn[0] += 1
    lbl = "kx_ds%d" % _dbgn[0]
    a("s_cmp_lg_u32 s2, %d" % (255 if slot == 7 else DBGWG))
    a("s_cbranch_scc1 %s" % lbl)
    a("s_cmp_lg_u32 s16, 0")
    a("s_cbranch_scc1 %s" % lbl)
    a("s_memrealtime s[98:99]")
    a("s_waitcnt lgkmcnt(0)")
    a("v_mov_b32 v254, s98")
    a("v_mov_b32 v255, %d" % (4 * (slot + 1)))
    a("s_mov_b64 s[100:101], exec")
    a("s_mov_b64 exec, 1")
    a("buffer_store_dword v254, v255, s[92:95], 0 offen")
    a("s_mov_b64 exec, s[100:101]")
    a.label(lbl)


def kx(a, name):
    global stamp, stamp_init
    gen.STV = 254
    EXP = gen.EXP
    if DBGSTAMP:
        stamp = dstamp
        stamp_init = lambda a, k, lo, hi: srd(a, 92, 54, 55, 256)
    def setup2(sfx):
        a("s_lshl_b32 s31, s16, 6")
        a("v_add_u32 v199, s31, v0")
        for r in range(4):
            a("v_mov_b32 v%d, -1" % (16 + r))
        a("v_lshlrev_b32 v4, 4, v0")
        a("s_and_b32 s21, s16, 1")
        a("s_lshl_b32 s21, s21, 10")
        a("s_cmp_lt_u32 s16, 2")
        a("s_cbranch_scc1 kx_c2a" + sfx)
        a("s_lshl_b32 s20, s64, 11")
        a("s_add_u32 s20, s20, s21")
        a("s_add_u32 s20, s20, %d" % SELROW)
        a("buffer_store_dwordx4 v[16:19], v4, s[68:71], s20 offen%s" % SC)
        a.label("kx_c2a" + sfx)
        a("s_cmp_ge_u32 s65, 28")
        a("s_cbranch_scc1 kx_c2final" + sfx)
        a("s_and_b32 s66, s59, 7")
        a("s_lshl_b32 s26, s65, 3")
        a("s_add_u32 s66, s66, s26")
        a("s_cmp_ge_u32 s16, 2")
        a("s_cbranch_scc1 kx_c2b" + sfx)
        a("s_lshl_b32 s20, s66, 11")
        a("s_add_u32 s20, s20, s21")
        a("s_add_u32 s20, s20, %d" % YP_OFF)
        a("buffer_store_dwordx4 v[16:19], v4, s[68:71], s20 offen%s" % SC)
        a.label("kx_c2b" + sfx)
        a("s_branch kx_c2done" + sfx)
        a.label("kx_c2final" + sfx)
        a("s_sub_u32 s66, s58, 4")
        a("s_lshl_b32 s66, s66, 3")
        a("s_add_u32 s66, s66, s59")
        a("s_sub_u32 s66, s66, 24")
        a("s_lshl_b32 s66, s66, 1")
        a("s_add_u32 s66, s66, s16")
        a.label("kx_c2done" + sfx)

    def ffnloads():
        srd(a, 12, 46, 47, 512 * 3584)
        srd(a, 72, 48, 49, 512 * 3584)
        srd(a, 76, 50, 51, 1792 * 1024)
        a("s_movk_i32 s31, 7168")
        a("v_mul_lo_u32 v5, v199, s31")
        a("s_lshl_b32 s31, s66, 4")
        a("v_add_u32 v5, s31, v5")
        a("v_lshlrev_b32 v4, 2, v199")
        a("s_lshl_b32 s28, s66, 13")
        a("s_add_u32 s29, s28, 4096")
        a("buffer_load_dwordx4 v[200:203], v5, s[12:15], 0 offen")
        a("buffer_load_dwordx4 v[204:207], v5, s[12:15], 0 offen offset:3584")
        a("buffer_load_dwordx4 v[208:211], v5, s[72:75], 0 offen")
        a("buffer_load_dwordx4 v[212:215], v5, s[72:75], 0 offen offset:3584")
        for j in range(4):
            a("buffer_load_dword v%d, v4, s[76:79], s28 offen offset:%d" % (216 + j, 1024 * j))
        for j in range(4):
            a("buffer_load_dword v%d, v4, s[76:79], s29 offen offset:%d" % (220 + j, 1024 * j))

    kernel_head(a, name)
    a("s_cmp_ge_u32 s2, 256")
    a("s_cbranch_scc1 kx_exit")
    a("s_load_dwordx16 s[32:47], s[0:1], 0")
    a("s_load_dwordx8 s[48:55], s[0:1], 64")
    a("s_load_dwordx2 s[56:57], s[0:1], %d" % KA_WS)
    wave_split(a)
    a("s_and_b32 s58, s2, 7")
    a("s_lshr_b32 s59, s2, 3")
    a("s_and_b32 s60, s58, 1")
    a("s_lshr_b32 s61, s58, 1")
    a("s_and_b32 s62, s59, 3")
    a("s_lshr_b32 s63, s59, 2")
    a("s_lshl_b32 s67, s60, 3")
    a("s_add_u32 s63, s63, s67")
    a("s_lshl_b32 s64, s63, 4")
    a("s_lshl_b32 s67, s62, 2")
    a("s_add_u32 s64, s64, s67")
    a("s_add_u32 s64, s64, s61")
    a("s_lshr_b32 s65, s59, 3")
    a("s_lshl_b32 s65, s65, 3")
    a("s_add_u32 s65, s65, s58")
    a("s_and_b32 s88, s61, 1")
    a("s_lshr_b32 s89, s61, 1")
    a("s_lshl_b32 s85, s88, 3")
    a("s_lshl_b32 s67, s60, 2")
    a("s_add_u32 s85, s85, s67")
    a("s_waitcnt lgkmcnt(0)")
    stamp_init(a, 0, 56, 57)
    stamp(a, 0)
    srd(a, 68, 56, 57, WS_SRD_SIZE)
    srd(a, 72, 54, 55, 256)
    a("v_mov_b32 v197, 0")
    if HREF:
        a("s_cmp_lg_u32 s16, 3")
        a("s_cbranch_scc1 kx_nomin")
        a("s_memrealtime s[18:19]")
        a("s_waitcnt lgkmcnt(0)")
        a("s_and_b32 s18, s18, 0x7fffffff")
        if HREF == "min":
            a("s_not_b32 s18, s18")
        a("v_mov_b32 v196, s18")
        a("s_mov_b64 exec, 1")
        a("buffer_atomic_umax v196, v197, s[72:75], 0 offen offset:128 sc1")
        a("s_mov_b64 exec, -1")
        a.label("kx_nomin")
    a("s_cmp_lg_u32 s2, %d" % (0 if ("ilv" in EXP or "hfirst" in EXP or "n0" in EXP) else 128))
    a("s_cbranch_scc1 kx_nononce")
    a("s_cmp_lg_u32 s16, 0")
    a("s_cbranch_scc1 kx_nononce")
    a("s_memrealtime s[18:19]")
    a("s_waitcnt lgkmcnt(0)")
    a("s_or_b32 s84, s18, 1")
    a("v_mov_b32 v194, s84")
    a("s_mov_b64 exec, 1")
    a("buffer_store_dword v194, v197, s[72:75], 0 offen%s" % SC)
    a("s_mov_b64 exec, -1")
    a.label("kx_nononce")
    if "ilv" in EXP:
        a("s_lshr_b32 s86, s59, 1")
        a("s_bitcmp1_b32 s59, 0")
        a("s_cbranch_scc1 kx_pref")
    elif "hfirst" in EXP:
        a("s_and_b32 s86, s59, 15")
        a("s_cmp_lt_u32 s59, 16")
        a("s_cbranch_scc1 kx_pref")
    else:
        a("s_and_b32 s86, s59, 15")
        a("s_cmp_ge_u32 s59, 16")
        a("s_cbranch_scc1 kx_pref")
    a("s_and_b32 s3, s86, 3")
    a("s_add_u32 s85, s85, s3")
    a("s_lshr_b32 s86, s86, 2")
    a("s_lshl_b32 s87, s89, 2")
    a("s_add_u32 s87, s87, s86")
    a("s_cmp_ge_u32 s16, 4")
    a("s_cbranch_scc1 kx_loader1")
    a("s_mov_b32 s30, 0")
    a("s_mov_b32 s22, 8")

    a.label("kx_cons")
    if "cprio" in EXP:
        a("s_setprio 2")
    a("s_lshr_b32 s17, s16, 1")
    a("s_and_b32 s18, s16, 1")
    a("v_and_b32 v1, 15, v0")
    a("v_lshrrev_b32 v2, 4, v0")
    a("v_lshrrev_b32 v3, 1, v1")
    a("v_lshlrev_b32 v4, 7, v1")
    a("s_lshl_b32 s19, s17, 13")
    a("s_lshl_b32 s20, s18, 13")
    a("s_add_u32 s20, s20, 16384")
    for j in range(2):
        a("v_add_u32 v5, %d, v2" % (4 * j))
        a("v_xor_b32 v5, v5, v3")
        a("v_lshlrev_b32 v5, 4, v5")
        a("v_add_u32 v5, v5, v4")
        a("v_add_u32 v%d, s19, v5" % (AP + j))
        a("v_add_u32 v%d, s20, v5" % (AQ + j))
    a("s_cmp_eq_u32 s30, 0")
    a("s_cbranch_scc1 kx_apdone")
    a("v_and_b32 v5, 1, v2")
    a("v_lshlrev_b32 v5, 9, v5")
    a("v_lshrrev_b32 v6, 1, v2")
    a("v_lshlrev_b32 v6, 8, v6")
    a("v_lshlrev_b32 v7, 4, v1")
    a("v_add3_u32 v5, v5, v6, v7")
    a("v_add_u32 v%d, s19, v5" % AP)
    a("v_add_u32 v%d, 1024, v%d" % (AP + 1, AP))
    a.label("kx_apdone")
    for r in range(32):
        a("v_mov_b64 v[%d:%d], 0" % (ACC + 2 * r, ACC + 2 * r + 1))
    a("s_mov_b32 s23, %d" % SLOT)
    a("s_mov_b32 s24, %d" % SLOT)
    a("s_mov_b32 s25, 1")
    a("s_mov_b32 s27, %d" % (-(NSLOT - 1) * SLOT))
    a("s_mov_b32 s28, %d" % SLOT)

    def rdlist(j):
        f = FR + 32 * j
        l = []
        for t in range(4):
            l.append("ds_read_b128 v[%d:%d], v%d offset:%d" % (f + 4 * t, f + 4 * t + 3, AP + j, 2048 * t))
            l.append("ds_read_b128 v[%d:%d], v%d offset:%d" % (f + 16 + 4 * t, f + 16 + 4 * t + 3, AQ + j, 2048 * t))
        return l

    book = ["s_mov_b32 s23, s24",
            "s_add_u32 s25, s25, 1",
            "s_cmp_eq_u32 s25, %d" % NSLOT,
            "s_cselect_b32 s26, %d, 0" % NSLOT,
            "s_sub_u32 s25, s25, s26",
            "s_cmp_eq_u32 s25, %d" % (NSLOT - 1),
            "s_cselect_b32 s24, s27, s28",
            "s_sub_u32 s22, s22, 1",
            "s_cmp_lt_u32 s22, 2"]
    a("s_barrier")
    if gen.STAMPS or DBGSTAMP:
        a("s_cmp_lg_u32 s30, 0")
        a("s_cbranch_scc1 kx_st9")
        stamp(a, 8)
        a("s_branch kx_st9d")
        a.label("kx_st9")
        stamp(a, 9)
        a.label("kx_st9d")
    for r in rdlist(0):
        a(r)
    a("v_add_u32 v%d, s23, v%d" % (AP, AP))
    a("v_add_u32 v%d, s23, v%d" % (AQ, AQ))
    a.label("kx_cloop")
    for j in range(2):
        jn = 1 - j
        sd = 23 if j == 0 else 24
        f = FR + 32 * j
        rd = rdlist(jn)
        a("s_waitcnt lgkmcnt(0)")
        k = 0
        for ti in range(4):
            for tj in range(4):
                c = ACC + 4 * (4 * ti + tj)
                a("v_mfma_f32_16x16x32_bf16 v[%d:%d], v[%d:%d], v[%d:%d], v[%d:%d]" % (
                    c, c + 3, f + 4 * ti, f + 4 * ti + 3, f + 16 + 4 * tj, f + 16 + 4 * tj + 3, c, c + 3))
                if k < 8:
                    a(rd[k])
                if k == 8:
                    a("v_add_u32 v%d, s%d, v%d" % (AP + jn, sd, AP + jn))
                if k == 9:
                    a("v_add_u32 v%d, s%d, v%d" % (AQ + jn, sd, AQ + jn))
                if j == 1 and 10 <= k < 15:
                    for b in book[2 * (k - 10):2 * (k - 10) + 2]:
                        a(b)
                k += 1
    a("s_cbranch_scc1 kx_nobar")
    a("s_barrier")
    a.label("kx_nobar")
    a("s_cmp_lg_u32 s22, 0")
    a("s_cbranch_scc1 kx_cloop")
    a("s_waitcnt lgkmcnt(0)")
    a("s_cmp_lg_u32 s30, 0")
    a("s_cbranch_scc1 kx_epi2")

    stamp(a, 1)
    a("s_lshl_b32 s19, s17, 8")
    a("s_add_u32 s19, s19, %d" % STATS_LDS)
    a("v_lshlrev_b32 v7, 4, v2")
    a("v_add_u32 v7, s19, v7")
    a("s_lshl_b32 s19, s18, 8")
    a("s_add_u32 s19, s19, %d" % SUMW_LDS)
    a("v_lshlrev_b32 v6, 2, v1")
    a("v_add_u32 v6, s19, v6")
    a("v_mov_b32 v5, %d" % NONCE_LDS)
    a("s_barrier")
    a("ds_read_b32 v16, v5")
    for tj in range(4):
        a("ds_read_b32 v%d, v6 offset:%d" % (20 + 2 * tj, 64 * tj))
    for ti in range(4):
        a("ds_read_b128 v[%d:%d], v7 offset:%d" % (32 + 8 * ti, 35 + 8 * ti, 64 * ti))
        a("ds_read_b128 v[%d:%d], v7 offset:%d" % (36 + 8 * ti, 39 + 8 * ti, 64 * ti + 512))
    a("s_lshl_b32 s19, s87, 5")
    a("s_lshl_b32 s20, s85, 1")
    a("s_add_u32 s19, s19, s20")
    a("s_add_u32 s19, s19, s17")
    a("s_lshl_b32 s19, s19, 14")
    a("s_lshl_b32 s20, s18, 13")
    a("s_add_u32 s19, s19, s20")
    a("s_add_u32 s20, s19, 4096")
    a("s_lshl_b32 s29, s87, 4")
    a("s_add_u32 s29, s29, s85")
    a("s_lshl_b32 s29, s29, 7")
    a("s_lshl_b32 s21, s16, 2")
    a("s_add_u32 s29, s29, s21")
    a("s_add_u32 s29, s29, %d" % FLAG0)
    a("v_lshlrev_b32 v6, 4, v0")
    a("s_waitcnt lgkmcnt(0)")
    a("v_readfirstlane_b32 s84, v16")
    n = 0
    for tj in range(4):
        for tp in range(2):
            d = FR + 4 * n
            for k in range(2):
                ti = 2 * tp + k
                c = ACC + 4 * (4 * ti + tj)
                for h in range(2):
                    a("v_pk_fma_f32 v[%d:%d], v[%d:%d], v[%d:%d], v[%d:%d] op_sel_hi:[1,0,1] neg_lo:[1,0,0] neg_hi:[1,0,0]" % (
                        c + 2 * h, c + 2 * h + 1, 32 + 8 * ti + 2 * h, 33 + 8 * ti + 2 * h, 20 + 2 * tj, 21 + 2 * tj, c + 2 * h, c + 2 * h + 1))
                for h in range(2):
                    a("v_pk_mul_f32 v[%d:%d], v[%d:%d], v[%d:%d]" % (
                        c + 2 * h, c + 2 * h + 1, c + 2 * h, c + 2 * h + 1, 36 + 8 * ti + 2 * h, 37 + 8 * ti + 2 * h))
                for h in range(2):
                    a("v_cvt_pk_bf16_f32 v%d, v%d, v%d" % (d + 2 * k + h, c + 2 * h, c + 2 * h + 1))
            a("s_nop 1")
            a("v_permlane16_swap_b32 v%d, v%d" % (d, d + 2))
            a("v_permlane16_swap_b32 v%d, v%d" % (d + 1, d + 3))
            a("s_nop 0")
            a("buffer_store_dwordx4 v[%d:%d], v6, s[68:71], s%d offen offset:%d%s" % (d, d + 3, 19 + (n >> 2), 1024 * (n & 3), SC))
            n += 1
    a("v_mov_b32 v4, 0")
    a("v_mov_b32 v5, s84")
    stamp(a, 10)
    a("s_barrier")
    a("s_waitcnt vmcnt(0)")
    a("s_mov_b64 exec, 1")
    a("buffer_store_dword v5, v4, s[68:71], s29 offen%s" % SC)
    a("s_mov_b64 exec, -1")
    stamp(a, 2)
    setup2("g")
    a("s_branch kx_cons2")
    a.label("kx_epi2")
    stamp(a, 3)
    a("s_lshl_b32 s19, s64, 15")
    a("s_lshl_b32 s20, s16, 13")
    a("s_add_u32 s19, s19, s20")
    a("s_add_u32 s19, s19, %d" % PART_OFF)
    a("s_add_u32 s20, s19, 4096")
    a("s_lshl_b32 s29, s64, 7")
    a("s_lshl_b32 s21, s16, 2")
    a("s_add_u32 s29, s29, s21")
    a("s_add_u32 s29, s29, %d" % FLAG1)
    a("v_lshlrev_b32 v6, 4, v0")
    n = 0
    for tj in range(4):
        for tp in range(2):
            d = FR + 4 * n
            for k in range(2):
                c = ACC + 4 * (4 * (2 * tp + k) + tj)
                a("v_cvt_pk_bf16_f32 v%d, v%d, v%d" % (d + 2 * k, c, c + 1))
                a("v_cvt_pk_bf16_f32 v%d, v%d, v%d" % (d + 2 * k + 1, c + 2, c + 3))
            a("s_nop 1")
            a("v_permlane16_swap_b32 v%d, v%d" % (d, d + 2))
            a("v_permlane16_swap_b32 v%d, v%d" % (d + 1, d + 3))
            a("s_nop 0")
            a("buffer_store_dwordx4 v[%d:%d], v6, s[68:71], s%d offen offset:%d%s" % (d, d + 3, 19 + (n >> 2), 1024 * (n & 3), SC))
            n += 1
    a("v_mov_b32 v4, 0")
    a("v_mov_b32 v5, s84")
    stamp(a, 11)
    a("s_waitcnt vmcnt(0)")
    a("s_mov_b64 exec, 1")
    a("buffer_store_dword v5, v4, s[68:71], s29 offen%s" % SC)
    a("s_mov_b64 exec, -1")
    a("s_branch kx_rows")

    a.label("kx_cons2")
    a("s_mov_b32 s30, 1")
    a("s_mov_b32 s22, 16")
    a("s_barrier")
    a("s_branch kx_cons")

    a.label("kx_loader1")
    if "lprio" in EXP:
        a("s_setprio 2")
    a("s_lshl_b32 s19, s85, 17")
    a("s_add_u32 s22, s32, s19")
    a("s_addc_u32 s23, s33, 0")
    srd(a, 4, 22, 23, 131072)
    a("s_cmp_eq_u32 s89, 0")
    a("s_cselect_b32 s22, s38, s40")
    a("s_cselect_b32 s23, s39, s41")
    a("s_lshl_b32 s19, s86, 17")
    add64(a, 22, 23, "s19")
    srd(a, 8, 22, 23, 131072)
    a("s_sub_u32 s17, s16, 4")
    a("v_lshrrev_b32 v6, 3, v0")
    a("v_lshrrev_b32 v7, 4, v0")
    a("v_and_b32 v16, 7, v0")
    a("s_lshl_b32 s18, s17, 5")
    for j in range(4):
        a("v_add_u32 v18, %d, v7" % (4 * j))
        a("v_and_b32 v18, 7, v18")
        a("v_xor_b32 v18, v18, v16")
        a("v_lshlrev_b32 v18, 4, v18")
        a("v_add3_u32 v17, v6, s18, %d" % (8 * j))
        a("v_lshlrev_b32 v17, 10, v17")
        a("v_add_u32 v17, v17, v18")
        a("v_subrev_u32 v%d, %d, v17" % (8 + j, 1024 * j))
    a("s_lshl_b32 s21, s17, 12")
    a("s_mov_b32 s20, 0")
    a("s_mov_b32 s22, 0")
    a.label("kx_l1loop")
    a("s_mov_b32 m0, s21")
    a("s_add_u32 s19, s21, 16384")
    for j in range(4):
        a("buffer_load_dwordx4 v%d, s[4:7], s20 offen offset:%d%s lds" % (8 + j, 1024 * j, NT))
    a("s_mov_b32 m0, s19")
    a("s_add_u32 s22, s22, 1")
    for j in range(4):
        a("buffer_load_dwordx4 v%d, s[8:11], s20 offen offset:%d%s lds" % (8 + j, 1024 * j, NT))
    a("s_add_u32 s20, s20, 128")
    a("s_add_u32 s21, s21, %d" % SLOT)
    a("s_cmp_eq_u32 s22, %d" % NSLOT)
    a("s_cselect_b32 s19, %d, 0" % (SLOT * NSLOT))
    a("s_sub_u32 s21, s21, s19")
    if "early1" in EXP:
        a("s_cmp_lt_u32 s22, 2")
        a("s_cbranch_scc1 kx_l1loop")
        a("s_cmp_lg_u32 s22, 2")
        a("s_cbranch_scc1 kx_l1n2")
        a("s_waitcnt vmcnt(0)")
        a("s_barrier")
        a("s_branch kx_l1loop")
        a.label("kx_l1n2")
        a("s_cmp_lt_u32 s22, 5")
        a("s_cbranch_scc1 kx_l1loop")
    else:
        a("s_cmp_lt_u32 s22, 4")
        a("s_cbranch_scc1 kx_l1loop")
    a("s_waitcnt vmcnt(16)")
    a("s_barrier")
    a("s_cmp_lt_u32 s22, 8")
    a("s_cbranch_scc1 kx_l1loop")
    a("s_lshl_b32 s19, s3, 7")
    a("s_lshl_b32 s24, s86, 7")
    a("s_add_u32 s24, s24, 480")
    a("v_mov_b32 v20, s19")
    a("v_mov_b32 v21, s24")
    a("v_cmp_gt_u32 vcc, 32, v0")
    a("v_add_u32 v22, s18, v0")
    a("v_cndmask_b32 v20, v21, v20, vcc")
    a("v_add_lshl_u32 v20, v20, v22, 3")
    a("s_lshl_b32 s24, s58, 13")
    a("s_add_u32 s24, s24, %d" % STAT)
    a("buffer_load_dword v194, v197, s[72:75], 0 offen%s" % SC)
    a("buffer_load_dwordx2 v[24:25], v20, s[68:71], s24 offen%s" % SC)
    a("s_waitcnt vmcnt(10)")
    a("s_barrier")
    a("s_waitcnt vmcnt(2)")
    a("s_barrier")
    a("v_lshlrev_b32 v22, 2, v22")
    a("v_add_u32 v22, %d, v22" % STATS_LDS)
    a("s_waitcnt vmcnt(0)")

    def stcond():
        a("v_cmp_ne_u32 vcc, v25, v194")
        a("v_cmp_eq_u32 s[26:27], 0, v194")
        a("s_nop 2")
        a("s_or_b64 vcc, vcc, s[26:27]")
    stcond()
    a("s_cmp_eq_u64 vcc, 0")
    a("s_cbranch_scc1 kx_polln_done")
    poll(a, "kx_polln", ["buffer_load_dword v194, v197, s[72:75], 0 offen%s" % SC,
                         "buffer_load_dwordx2 v[24:25], v20, s[68:71], s24 offen%s" % SC], stcond)
    a("v_readfirstlane_b32 s84, v194")
    a("v_lshlrev_b32 v26, 16, v24")
    a("v_rcp_f32 v26, v26")
    a("v_and_b32 v27, 0xffff0000, v24")
    a("v_mov_b32 v195, %d" % NONCE_LDS)
    a("s_mov_b32 exec_hi, 0")
    a("ds_write_b32 v22, v27 offset:%d" % 0)
    a("ds_write_b32 v22, v26 offset:%d" % 512)
    a("s_not_b64 exec, exec")
    a("ds_write_b32 v22, v24 offset:%d" % (1024 - 128))
    a("s_mov_b64 exec, -1")
    a("ds_write_b32 v195, v194")
    a("s_waitcnt lgkmcnt(0)")
    a("s_barrier")
    a("s_branch kx_loader2")

    a.label("kx_pref")
    if "codepf" in EXP:
        a("s_cmp_lg_u32 s86, 0")
        a("s_cbranch_scc1 kx_nocode")
        a("s_cmp_ge_u32 s16, (kx_end - %s + 8191) / 8192" % name)
        a("s_cbranch_scc1 kx_nocode")
        a("s_getpc_b64 s[22:23]")
        a.label("kx_pc")
        a("s_sub_u32 s22, s22, kx_pc - %s" % name)
        a("s_subb_u32 s23, s23, 0")
        a("v_lshlrev_b32 v11, 7, v0")
        a("s_lshl_b32 s19, s16, 13")
        a("v_add_u32 v11, s19, v11")
        a("v_min_u32 v11, kx_end - %s - 4, v11" % name)
        a("global_load_dword v59, v11, s[22:23]")
        a.label("kx_nocode")
    a("v_lshrrev_b32 v6, 3, v0")
    a("v_and_b32 v7, 7, v0")
    a("v_lshlrev_b32 v8, 12, v6")
    a("v_lshlrev_b32 v6, 10, v6")
    a("v_lshlrev_b32 v9, 7, v7")
    a("v_add_u32 v6, v6, v9")
    a("v_add_u32 v14, v8, v9")
    a("s_cmp_eq_u32 s89, 0")
    a("s_cselect_b32 s24, s38, s40")
    a("s_cselect_b32 s25, s39, s41")
    a("s_cselect_b32 s26, s34, s36")
    a("s_cselect_b32 s27, s35, s37")
    a("s_lshl_b32 s19, s85, 17")
    a("s_add_u32 s22, s32, s19")
    a("s_addc_u32 s23, s33, 0")
    a("s_cmp_lt_u32 s86, 8")
    a("s_cselect_b32 s22, s22, s24")
    a("s_cselect_b32 s23, s23, s25")
    srd(a, 4, 22, 23, 524288)
    a("s_and_b32 s19, s86, 7")
    a("s_lshl_b32 s19, s19, 16")
    a("s_lshl_b32 s20, s16, 13")
    a("s_add_u32 s19, s19, s20")
    a("v_lshlrev_b32 v11, 4, v0")
    a("s_add_u32 s29, s19, 4096")
    for i in range(8):
        a("buffer_load_dwordx4 v[%d:%d], v11, s[4:7], s%d offen offset:%d" % (64 + 4 * i, 67 + 4 * i, 19 if i < 4 else 29, 1024 * (i & 3)))
    a("s_lshl_b32 s19, s60, 22")
    a("s_lshl_b32 s20, s86, 18")
    a("s_add_u32 s19, s19, s20")
    a("s_lshl_b32 s20, s88, 11")
    a("s_add_u32 s19, s19, s20")
    a("s_lshl_b32 s20, s16, 15")
    a("s_add_u32 s19, s19, s20")
    add64(a, 26, 27, "s19")
    srd(a, 8, 26, 27, 7 * 4096 + 2048)
    if PFN - PF0 < 16:
        a("v_cmp_gt_u32 vcc, %d, v7" % max(PFN - PF0 - 8, 0))
        a("v_mov_b32 v15, 0x40000000")
        a("v_cndmask_b32 v15, v15, v14, vcc")
    else:
        a("v_mov_b32 v15, v14")
    a("s_lshl_b32 s19, s86, 3")
    a("s_add_u32 s19, s19, s16")
    a("s_mul_i32 s20, s19, 2731")
    a("s_lshr_b32 s20, s20, 16")
    a("s_mul_i32 s21, s20, 24")
    a("s_sub_u32 s21, s19, s21")
    a("s_lshl_b32 s20, s20, 3")
    a("s_add_u32 s20, s20, s58")
    a("s_movk_i32 s19, 3584")
    a("v_mul_lo_u32 v10, v0, s19")
    poll(a, "kx_pollp", ["buffer_load_dword v194, v197, s[72:75], 0 offen%s" % SC], lambda: a("v_cmp_eq_u32 vcc, 0, v194"))
    a("v_readfirstlane_b32 s84, v194")
    for i in range(8):
        for d in range(4):
            unpack(a, 16 + 2 * d, 17 + 2 * d, 64 + 4 * i + d)
        a("v_pk_add_f32 v[24:25], v[16:17], v[18:19]")
        a("v_pk_mul_f32 v[28:29], v[16:17], v[16:17]")
        a("v_pk_add_f32 v[26:27], v[20:21], v[22:23]")
        a("v_pk_fma_f32 v[28:29], v[18:19], v[18:19], v[28:29]")
        a("v_pk_add_f32 v[24:25], v[24:25], v[26:27]")
        a("v_pk_fma_f32 v[28:29], v[20:21], v[20:21], v[28:29]")
        a("v_add_f32 v%d, v24, v25" % (32 + i))
        a("v_pk_fma_f32 v[28:29], v[22:23], v[22:23], v[28:29]")
        a("v_add_f32 v%d, v28, v29" % (40 + i))
    a("s_nop 1")
    for i in range(8):
        a("v_permlane32_swap_b32 v%d, v%d" % (32 + i, 40 + i))
    a("s_nop 1")
    for i in range(8):
        a("v_add_f32 v%d, v%d, v%d" % (32 + i, 32 + i, 40 + i))
    a("s_nop 1")
    for i in range(4):
        a("v_permlane16_swap_b32 v%d, v%d" % (32 + i, 36 + i))
    a("s_nop 1")
    for i in range(4):
        a("v_add_f32 v%d, v%d, v%d" % (32 + i, 32 + i, 36 + i))
    for r in (8, 4, 2, 1):
        a("s_nop 0")
        for i in range(4):
            a("v_add_f32_dpp v%d, v%d, v%d row_ror:%d row_mask:0xf bank_mask:0xf" % (32 + i, 32 + i, 32 + i, r))
    a("v_and_b32 v16, 3, v0")
    a("v_cmp_eq_u32 s[22:23], 1, v16")
    a("v_cmp_eq_u32 s[24:25], 2, v16")
    a("v_cmp_eq_u32 s[26:27], 3, v16")
    a("v_lshrrev_b32 v17, 4, v0")
    a("v_cndmask_b32 v32, v32, v33, s[22:23]")
    a("v_cndmask_b32 v32, v32, v34, s[24:25]")
    a("v_cndmask_b32 v32, v32, v35, s[26:27]")
    a("v_mov_b32 v33, v32")
    a("v_lshl_add_u32 v16, v17, 2, v16")
    a("s_nop 0")
    a("v_permlane32_swap_b32 v32, v33")
    a("s_lshl_b32 s22, s86, 6")
    a("s_lshl_b32 s23, s16, 3")
    a("s_add_u32 s22, s22, s23")
    a("v_add_lshl_u32 v16, v16, s22, 3")
    a("v_mul_f32 v28, 0x3b000000, v32")
    a("v_mul_f32 v29, 0x3b000000, v33")
    a("v_fma_f32 v29, -v28, v28, v29")
    a("v_max_f32 v29, 0, v29")
    bf16r(a, 30, 28)
    bf16r(a, 29, 29)
    a("v_add_f32 v29, 0x3727c5ac, v29")
    bf16r(a, 29, 29)
    a("v_sqrt_f32 v29, v29")
    a("s_lshl_b32 s22, s58, 13")
    a("v_cvt_pk_bf16_f32 v29, v29, v29")
    a("v_and_b32 v29, 0xffff, v29")
    a("v_or_b32 v30, v30, v29")
    a("s_add_u32 s22, s22, %d" % STAT)
    a("s_cmp_lt_u32 s86, 8")
    a("s_cbranch_scc1 kx_pf_x")
    a("v_mov_b32 v30, v32")
    a.label("kx_pf_x")
    a("v_mov_b32 v31, s84")
    a("s_mov_b64 exec, 0x000f000f")
    a("buffer_store_dwordx2 v[30:31], v16, s[68:71], s22 offen%s" % SC)
    a("s_mov_b64 exec, -1")
    stamp(a, 8)
    a("s_cmp_ge_u32 s20, %d" % (0 if "noffnpf" in EXP else 28))
    a("s_cbranch_scc1 kx_pf_done")
    a("s_cmp_ge_u32 s21, 16")
    a("s_cbranch_scc1 kx_pf_wd")
    a("s_cmp_lt_u32 s21, 8")
    a("s_cselect_b32 s22, s46, s48")
    a("s_cselect_b32 s23, s47, s49")
    srd(a, 12, 22, 23, 512 * 3584)
    a("s_and_b32 s21, s21, 7")
    a("s_mul_i32 s19, s21, %d" % (64 * 3584))
    a("s_lshl_b32 s20, s20, 7")
    a("s_add_u32 s19, s19, s20")
    a("buffer_load_dword v61, v10, s[12:15], s19 offen" + NT)
    a("s_branch kx_pf_done")
    a.label("kx_pf_wd")
    srd(a, 12, 50, 51, 1792 * 1024)
    a("s_sub_u32 s21, s21, 16")
    a("s_lshl_b32 s19, s20, 16")
    a("s_lshl_b32 s21, s21, 13")
    a("s_add_u32 s19, s19, s21")
    a("buffer_load_dword v61, v6, s[12:15], s19 offen" + NT)
    a.label("kx_pf_done")
    if PFN - PF0 < 8:
        a("v_cmp_gt_u32 vcc, %d, v7" % (PFN - PF0))
        a("v_mov_b32 v15, 0x40000000")
        a("v_cndmask_b32 v14, v15, v14, vcc")
    a("buffer_load_dword v62, v14, s[8:11], 0 offen offset:%d" % (128 * PF0) + NT)
    if PFN - PF0 > 8:
        a("buffer_load_dword v63, v15, s[8:11], 0 offen offset:%d" % (128 * PF0 + 1024) + NT)
    a("s_waitcnt vmcnt(0)")
    stamp(a, 1)
    a("s_cmp_ge_u32 s16, 4")
    a("s_cbranch_scc1 kx_loader2")
    setup2("p")
    a("s_barrier")
    a("s_branch kx_cons2")

    a.label("kx_loader2")
    if "lprio" in EXP:
        a("s_setprio 2")
    a("s_lshl_b32 s19, s89, 2")
    a("s_add_u32 s19, s19, s62")
    a("s_lshl_b32 s24, s19, 11")
    a("s_lshl_b32 s19, s19, 19")
    a("s_lshl_b32 s20, s88, 18")
    a("s_add_u32 s19, s19, s20")
    a("s_add_u32 s22, s56, s19")
    a("s_addc_u32 s23, s57, 0")
    srd(a, 4, 22, 23, 16 * 16384)
    a("s_cmp_eq_u32 s89, 0")
    a("s_cselect_b32 s22, s34, s36")
    a("s_cselect_b32 s23, s35, s37")
    a("s_lshl_b32 s19, s63, 19")
    a("s_lshl_b32 s21, s88, 11")
    a("s_add_u32 s19, s19, s21")
    add64(a, 22, 23, "s19")
    srd(a, 8, 22, 23, 127 * 4096 + 2048)
    a("s_lshl_b32 s20, s88, 10")
    a("s_add_u32 s24, s24, s20")
    a("s_add_u32 s24, s24, %d" % FLAG0)
    a("s_sub_u32 s17, s16, 4")
    a("v_lshrrev_b32 v1, 3, v0")
    a("v_lshrrev_b32 v2, 4, v0")
    a("v_and_b32 v3, 7, v0")
    a("s_lshl_b32 s18, s17, 5")
    a("v_add_u32 v1, s18, v1")
    a("v_lshlrev_b32 v6, 7, v1")
    for j in range(4):
        a("v_add_u32 v4, %d, v1" % (8 * j))
        a("v_lshlrev_b32 v4, 12, v4")
        a("v_add_u32 v5, %d, v2" % (4 * j))
        a("v_and_b32 v5, 7, v5")
        a("v_xor_b32 v5, v5, v3")
        a("v_lshlrev_b32 v5, 4, v5")
        a("v_add_u32 v4, v4, v5")
        a("v_subrev_u32 v%d, %d, v4" % (8 + j, 1024 * j))
        if j == 0:
            a("v_lshlrev_b32 v12, 4, v0")
            a("s_lshl_b32 s19, s17, 12")
            a("v_add_u32 v12, s19, v12")
    a("s_lshl_b32 s21, s17, 12")
    a("s_lshl_b32 s31, s17, 6")
    a("v_add_u32 v199, s31, v0")
    a("s_and_b32 s66, s59, 7")
    a("s_lshl_b32 s31, s65, 3")
    a("s_add_u32 s66, s66, s31")
    a("s_sub_u32 s31, s58, 4")
    a("s_lshl_b32 s31, s31, 3")
    a("s_add_u32 s31, s31, s59")
    a("s_sub_u32 s31, s31, 24")
    a("s_lshl_b32 s31, s31, 1")
    a("s_add_u32 s31, s31, s17")
    a("s_cmp_lt_u32 s65, 28")
    a("s_cselect_b32 s66, s66, s31")
    a("s_cselect_b32 s30, %d, 99" % FFNST)
    a("s_barrier")
    a("s_mov_b32 s20, 0")
    a("s_add_u32 s19, s21, 16384")
    a.label("kx_l2q")
    a("s_mov_b32 m0, s19")
    a("s_add_u32 s19, s19, %d" % SLOT)
    for j in range(4):
        a("buffer_load_dwordx4 v%d, s[8:11], s20 offen offset:%d%s lds" % (8 + j, 1024 * j, NTQ))
    a("s_add_u32 s20, s20, 128")
    a("s_cmp_lt_u32 s20, 512")
    a("s_cbranch_scc1 kx_l2q")
    a("s_cmp_lg_u32 s16, 4")
    a("s_cbranch_scc1 kx_poll0_done")
    a("v_lshlrev_b32 v20, 7, v3")

    def f0cond():
        a("v_xor_b32 v24, s84, v24")
        a("v_xor_b32 v25, s84, v25")
        a("v_xor_b32 v26, s84, v26")
        a("v_xor_b32 v27, s84, v27")
        a("v_or3_b32 v24, v24, v25, v26")
        a("v_or_b32 v24, v24, v27")
        a("v_cmp_ne_u32 vcc, 0, v24")
    a("s_mov_b64 exec, 0xff")
    poll(a, "kx_poll0", ["buffer_load_dwordx4 v[24:27], v20, s[68:71], s24 offen%s" % SC], f0cond)
    a("s_mov_b64 exec, -1")
    stamp(a, 2)
    a("s_barrier")
    a("s_mov_b32 s26, 0")
    a("s_mov_b32 s19, s21")
    a.label("kx_l2p")
    a("s_mov_b32 m0, s19")
    a("s_add_u32 s19, s19, %d" % SLOT)
    for j in range(4):
        a("buffer_load_dwordx4 v12, s[4:7], s26 offen offset:%d%s lds" % (1024 * j, SC))
    a("s_add_u32 s26, s26, 16384")
    if "early2" in EXP:
        a("s_cmp_lg_u32 s26, 32768")
        a("s_cbranch_scc1 kx_l2pn")
        a("s_waitcnt vmcnt(0)")
        a("s_barrier")
        a.label("kx_l2pn")
    a("s_cmp_lt_u32 s26, 65536")
    a("s_cbranch_scc1 kx_l2p")
    if "early2" not in EXP:
        a("s_waitcnt vmcnt(8)")
        a("s_barrier")
    a("s_add_u32 s21, s21, %d" % (4 * SLOT))
    a("s_mov_b32 s25, 4")
    a("s_mov_b32 s22, 4")
    a.label("kx_l2loop")
    a("s_mov_b32 m0, s21")
    a("s_add_u32 s19, s21, 16384")
    for j in range(4):
        a("buffer_load_dwordx4 v12, s[4:7], s26 offen offset:%d%s lds" % (1024 * j, SC))
    a("s_mov_b32 m0, s19")
    a("s_add_u32 s25, s25, 1")
    for j in range(4):
        a("buffer_load_dwordx4 v%d, s[8:11], s20 offen offset:%d%s lds" % (8 + j, 1024 * j, NTQ))
    a("s_add_u32 s20, s20, 128")
    a("s_add_u32 s26, s26, 16384")
    a("s_add_u32 s21, s21, %d" % SLOT)
    a("s_cmp_eq_u32 s25, %d" % NSLOT)
    a("s_cselect_b32 s19, %d, 0" % (SLOT * NSLOT))
    a("s_cselect_b32 s27, %d, 0" % NSLOT)
    a("s_sub_u32 s21, s21, s19")
    a("s_sub_u32 s25, s25, s27")
    a("s_add_u32 s22, s22, 1")
    a("s_sub_u32 s31, s22, s30")
    a("s_sub_u32 s31, s31, 1")
    a("s_cmp_lt_u32 s31, 1")
    a("s_cbranch_scc1 kx_l2w28")
    a("s_cmp_lg_u32 s22, 5")
    a("s_cbranch_scc1 kx_l2w16")
    a("s_waitcnt vmcnt(12)")
    a.label("kx_l2w16")
    a("s_waitcnt vmcnt(16)")
    a.label("kx_l2w28")
    a("s_waitcnt vmcnt(28)")
    a("s_barrier")
    if FFNST <= 16:
        a("s_cmp_lg_u32 s22, s30")
        a("s_cbranch_scc1 kx_l2noffn")
        ffnloads()
        a.label("kx_l2noffn")
    a("s_cmp_lt_u32 s22, 16")
    a("s_cbranch_scc1 kx_l2loop")
    if "ffn12" in EXP:
        a("s_cmp_ge_u32 s65, 28")
        a("s_cbranch_scc1 kx_l2tail")
        ffnloads()
        a("s_waitcnt vmcnt(20)")
        a("s_barrier")
        a("s_waitcnt vmcnt(12)")
        a("s_barrier")
        a("s_branch kx_rows")
        a.label("kx_l2tail")
    a("s_waitcnt vmcnt(8)")
    a("s_barrier")
    a("s_waitcnt vmcnt(0)")
    a("s_barrier")
    if "ffn12" not in EXP:
        a("s_cmp_ge_u32 s65, 28")
        a("s_cbranch_scc1 kx_rows")
        ffnloads()

    a.label("kx_rows")
    stamp(a, 12)
    srd(a, 72, 32, 33, 2 << 20)
    srd(a, 76, 44, 45, 1024)
    srd(a, 80, 52, 53, 2 << 20)
    a("v_lshlrev_b32 v2, 4, v0")
    a("v_and_b32 v1, 7, v0")
    a("v_lshrrev_b32 v3, 3, v0")
    a("v_lshlrev_b32 v5, 8, v3")
    a("v_lshl_add_u32 v5, v1, 4, v5")
    a("v_and_b32 v6, 4, v3")
    a("v_lshlrev_b32 v6, 4, v6")
    a("v_and_b32 v7, 1, v3")
    a("v_lshl_add_u32 v6, v7, 5, v6")
    a("v_and_b32 v7, 2, v3")
    a("v_lshl_add_u32 v6, v7, 3, v6")
    a("s_lshl_b32 s18, s16, 7")
    a("v_add_u32 v6, s18, v6")
    a("v_lshl_add_u32 v7, v1, 10, v6")
    a("s_lshl_b32 s19, s64, 13")
    a("buffer_load_dwordx4 v[24:27], v7, s[72:75], s19 offen")
    a("buffer_load_dwordx4 v[28:31], v6, s[76:79], 0 offen")
    a("buffer_load_dwordx4 v[8:11], v2, s[76:79], 0 offen")
    a("s_lshl_b32 s21, s63, 19")
    a("s_lshr_b32 s22, s16, 1")
    a("s_lshl_b32 s22, s22, 17")
    a("s_add_u32 s21, s21, s22")
    a("s_and_b32 s22, s16, 1")
    a("s_lshl_b32 s22, s22, 14")
    a("s_add_u32 s21, s21, s22")
    a("s_and_b32 s22, s64, 14")
    a("s_lshl_b32 s22, s22, 10")
    a("s_add_u32 s21, s21, s22")
    a("s_and_b32 s22, s64, 1")
    a("s_lshl_b32 s22, s22, 7")
    a("s_add_u32 s21, s21, s22")
    a("s_add_u32 s21, s21, %d" % PART_OFF)
    a("v_and_b32 v3, 15, v0")
    a("v_lshlrev_b32 v3, 7, v3")
    a("s_lshl_b32 s20, s63, 11")
    a("s_add_u32 s20, s20, %d" % FLAG1)
    a("v_lshlrev_b32 v74, 5, v1")
    a("v_add_u32 v74, 98304, v74")
    a("s_lshl_b32 s22, s16, 2")
    a("v_add_u32 v73, s22, v74")
    a("s_lshl_b32 s22, s64, 3")
    a("s_sub_u32 s22, 0xffff, s22")
    a("v_sub_u32 v75, s22, v1")
    a("s_waitcnt vmcnt(0)")
    for i in range(4):
        unpack(a, 64 + 2 * i, 65 + 2 * i, 28 + i)
        unpack(a, 76 + 2 * i, 77 + 2 * i, 24 + i)
        unpack(a, 48 + 2 * i, 49 + 2 * i, 8 + i)
    a("v_pk_add_f32 v[48:49], v[48:49], v[50:51]")
    a("v_pk_add_f32 v[52:53], v[52:53], v[54:55]")
    a("v_pk_add_f32 v[48:49], v[48:49], v[52:53]")
    a("v_add_f32 v72, v48, v49")
    allreduce64(a, "add_f32", 72, 49)
    a("s_cmp_lg_u32 s16, 0")
    a("s_cbranch_scc1 kx_poll1_done")

    def f1cond():
        a("v_xor_b32 v8, s84, v8")
        a("v_xor_b32 v9, s84, v9")
        a("v_xor_b32 v10, s84, v10")
        a("v_xor_b32 v11, s84, v11")
        a("v_or3_b32 v8, v8, v9, v10")
        a("v_or_b32 v8, v8, v11")
        a("v_cmp_ne_u32 vcc, 0, v8")
    a("s_mov_b64 exec, 0xffff")
    poll(a, "kx_poll1", ["buffer_load_dwordx4 v[8:11], v3, s[68:71], s20 offen%s" % SC], f1cond)
    a("s_mov_b64 exec, -1")
    a("s_barrier")
    stamp(a, 4)
    for ks in range(4):
        a("s_add_u32 s20, s21, %d" % (ks * 32768))
        a("buffer_load_dwordx4 v[%d:%d], v5, s[68:71], s20 offen%s" % (8 + 4 * ks, 11 + 4 * ks, SC))
    a("s_lshl_b32 s20, s64, 11")
    a("s_add_u32 s20, s20, %d" % SELROW)
    a("s_lshr_b32 s21, s64, 2")
    a("s_lshl_b32 s21, s21, 7")
    a("s_and_b32 s22, s64, 3")
    a("s_lshl_b32 s22, s22, 3")
    a("s_add_u32 s21, s21, s22")
    a("s_add_u32 s21, s21, %d" % KEYS)
    a("v_lshlrev_b32 v5, 13, v0")
    a("s_waitcnt vmcnt(0)")
    stamp(a, 13)
    for i in range(4):
        unpack(a, 48, 49, 8 + i)
        unpack(a, 50, 51, 12 + i)
        unpack(a, 52, 53, 16 + i)
        unpack(a, 54, 55, 20 + i)
        a("v_pk_add_f32 v[48:49], v[48:49], v[50:51]")
        a("v_pk_add_f32 v[52:53], v[52:53], v[54:55]")
        a("v_pk_add_f32 v[48:49], v[48:49], v[%d:%d]" % (76 + 2 * i, 77 + 2 * i))
        a("v_pk_add_f32 v[48:49], v[48:49], v[52:53] neg_lo:[0,1] neg_hi:[0,1]")
        a("v_cvt_pk_bf16_f32 v%d, v48, v49" % (32 + i))
        unpack(a, 40 + 2 * i, 41 + 2 * i, 32 + i)
    a("v_pk_add_f32 v[48:49], v[40:41], v[42:43]")
    a("v_pk_mul_f32 v[50:51], v[40:41], v[40:41]")
    a("v_pk_mul_f32 v[52:53], v[40:41], v[64:65]")
    a("v_pk_add_f32 v[54:55], v[44:45], v[46:47]")
    for i in range(1, 4):
        a("v_pk_fma_f32 v[50:51], v[%d:%d], v[%d:%d], v[50:51]" % (40 + 2 * i, 41 + 2 * i, 40 + 2 * i, 41 + 2 * i))
        a("v_pk_fma_f32 v[52:53], v[%d:%d], v[%d:%d], v[52:53]" % (40 + 2 * i, 41 + 2 * i, 64 + 2 * i, 65 + 2 * i))
    a("v_pk_add_f32 v[48:49], v[48:49], v[54:55]")
    a("v_add_f32 v50, v50, v51")
    a("v_add_f32 v52, v52, v53")
    a("v_add_f32 v48, v48, v49")
    for v in (50, 52, 48):
        a("v_add_f32_dpp v%d, v%d, v%d row_ror:8 row_mask:0xf bank_mask:0xf" % (v, v, v))
    for op in ("v_permlane16_swap_b32", "v_permlane32_swap_b32"):
        for v in (50, 52, 48):
            a("v_mov_b32 v%d, v%d" % (v + 1, v))
        a("s_nop 0")
        for v in (50, 52, 48):
            a("%s v%d, v%d" % (op, v, v + 1))
        a("s_nop 0")
        for v in (50, 52, 48):
            a("v_add_f32 v%d, v%d, v%d" % (v, v, v + 1))
    a("s_mov_b64 exec, 0xff")
    a("ds_write_b32 v73, v48")
    a("ds_write_b32 v73, v50 offset:256")
    a("ds_write_b32 v73, v52 offset:512")
    a("s_mov_b64 exec, -1")
    a("s_waitcnt lgkmcnt(0)")
    a("s_barrier")
    for k in range(3):
        a("ds_read_b128 v[%d:%d], v74 offset:%d" % (8 + 8 * k, 11 + 8 * k, 256 * k))
        a("ds_read_b128 v[%d:%d], v74 offset:%d" % (12 + 8 * k, 15 + 8 * k, 256 * k + 16))
    for k in range(3):
        b = 8 + 8 * k
        a("s_waitcnt lgkmcnt(%d)" % (4 - 2 * k))
        a("v_pk_add_f32 v[%d:%d], v[%d:%d], v[%d:%d]" % (b, b + 1, b, b + 1, b + 2, b + 3))
        a("v_pk_add_f32 v[%d:%d], v[%d:%d], v[%d:%d]" % (b + 4, b + 5, b + 4, b + 5, b + 6, b + 7))
        a("v_pk_add_f32 v[%d:%d], v[%d:%d], v[%d:%d]" % (b, b + 1, b, b + 1, b + 4, b + 5))
        a("v_add_f32 v%d, v%d, v%d" % (48 + 2 * k, b, b + 1))
    a("v_mul_f32 v58, 0x3b000000, v48")
    a("v_mul_f32 v50, 0x3b000000, v50")
    a("v_fma_f32 v50, -v58, v58, v50")
    a("v_max_f32 v50, 0, v50")
    bf16r(a, 60, 58)
    bf16r(a, 50, 50)
    a("v_add_f32 v50, 0x3727c5ac, v50")
    bf16r(a, 50, 50)
    a("v_sqrt_f32 v50, v50")
    a("v_fma_f32 v52, -v60, v72, v52")
    bf16r(a, 50, 50)
    a("v_rcp_f32 v58, v50")
    a("v_mov_b32 v57, s84")
    a("v_mul_f32 v48, v52, v58")
    a("v_cvt_pk_bf16_f32 v48, v48, v48")
    a("v_and_b32 v48, 0xffff0000, v48")
    a("v_ashrrev_i32 v49, 31, v48")
    a("v_and_b32 v49, 0x7fff0000, v49")
    a("v_or_b32 v49, 0x80000000, v49")
    a("v_xor_b32 v48, v48, v49")
    a("v_or_b32 v48, v75, v48")
    a("v_mul_f32 v62, v60, v58")
    a("v_sub_f32 v62, 0, v62")
    a("v_max_u32_dpp v56, v48, v48 quad_perm:[1,0,3,2] row_mask:0xf bank_mask:0xf")
    a("s_nop 1")
    a("v_max_u32_dpp v56, v56, v56 quad_perm:[2,3,0,1] row_mask:0xf bank_mask:0xf")
    a("s_nop 1")
    a("v_max_u32_dpp v56, v56, v56 row_half_mirror row_mask:0xf bank_mask:0xf")
    a("s_cmp_lg_u32 s16, 0")
    a("s_cbranch_scc1 kx_nokey")
    a("s_mov_b64 exec, %d" % ((1 << NREP) - 1))
    a("buffer_store_dwordx2 v[56:57], v5, s[68:71], s21 offen%s" % SC)
    a("s_mov_b64 exec, -1")
    a.label("kx_nokey")
    stamp(a, 14)
    a("v_mov_b32 v63, v56")
    a("v_cmp_eq_u32 s[22:23], v56, v48")
    for i in range(4):
        a("v_pk_fma_f32 v[50:51], v[%d:%d], v[58:59], v[62:63] op_sel_hi:[1,0,0]" % (40 + 2 * i, 41 + 2 * i))
        a("v_cvt_pk_bf16_f32 v%d, v50, v51" % (36 + i))
        unpack(a, 50, 51, 36 + i)
        a("v_pk_add_f32 v[50:51], v[%d:%d], v[50:51]" % (40 + 2 * i, 41 + 2 * i))
        a("v_cvt_pk_bf16_f32 v%d, v50, v51" % (24 + i))
    a("s_mov_b64 exec, s[22:23]")
    a("buffer_store_dwordx4 v[36:39], v6, s[68:71], s20 offen%s" % SC)
    a("buffer_store_dwordx4 v[32:35], v6, s[68:71], s20 offen offset:1024%s" % SC)
    a("ds_write_b128 v6, v[24:27] offset:32768")
    a("s_not_b64 exec, exec")
    a("buffer_store_dwordx4 v[24:27], v7, s[80:83], s19 offen" + OUTF)
    a("s_mov_b64 exec, -1")
    a("s_waitcnt lgkmcnt(0)")
    a.label("kx_notbest")
    a("s_cmp_lt_u32 s16, 4")
    a("s_cbranch_scc1 kx_exit")

    a("s_cmp_lt_u32 s65, 28")
    a("s_cbranch_scc1 kx_keys")
    a("s_cmp_ge_u32 s16, 6")
    a("s_cbranch_scc1 kx_exit")
    a.label("kx_keys")
    a("s_and_b32 s20, s64, %d" % (NREP - 1))
    a("s_lshl_b32 s20, s20, 13")
    a("s_add_u32 s20, s20, %d" % KEYS)
    a("v_lshlrev_b32 v3, 7, v0")
    a("v_mov_b32 v5, 98816")
    a("s_cmp_lg_u32 s16, 4")
    a("s_cbranch_scc1 kx_keywait")

    def keycond():
        a("v_xor_b32 v9, s84, v9")
        a("v_xor_b32 v11, s84, v11")
        a("v_xor_b32 v13, s84, v13")
        a("v_xor_b32 v15, s84, v15")
        a("v_or3_b32 v4, v9, v11, v13")
        a("v_or_b32 v4, v4, v15")
        a("v_cmp_ne_u32 vcc, 0, v4")
    poll(a, "kx_poll2", ["buffer_load_dwordx4 v[8:11], v3, s[68:71], s20 offen%s" % SC,
                         "buffer_load_dwordx4 v[12:15], v3, s[68:71], s20 offen offset:16%s" % SC], keycond)
    a("v_max_u32 v64, v8, v10")
    a("v_max3_u32 v64, v64, v12, v14")
    allreduce64(a, "max_u32", 64, 65)
    a("ds_write_b32 v5, v64")
    a("s_waitcnt lgkmcnt(0)")
    a.label("kx_keywait")
    a("s_barrier")
    a("ds_read_b32 v64, v5")
    a("ds_read_b128 v[24:27], v2 offset:32768")
    a("s_waitcnt lgkmcnt(0)")
    stamp(a, 5)
    a("v_and_b32 v66, 0xffff, v64")
    a("v_sub_u32 v66, 0xffff, v66")
    a("v_lshrrev_b32 v67, 3, v66")
    a("v_lshlrev_b32 v67, 11, v67")
    a("s_cmp_lg_u32 s16, 5")
    a("s_cbranch_scc1 kx_noparked")
    a("v_and_b32 v4, 0xffff, v63")
    a("v_sub_u32 v4, 0xffff, v4")
    a("v_lshlrev_b32 v4, 10, v4")
    a("v_add_u32 v4, v4, v2")
    a("v_cmp_ne_u32 vcc, v63, v64")
    a("s_and_saveexec_b64 s[22:23], vcc")
    a("s_cbranch_execz kx_parkskip")
    a("buffer_store_dwordx4 v[24:27], v4, s[80:83], 0 offen" + OUTF)
    a.label("kx_parkskip")
    a("s_mov_b64 exec, -1")
    a.label("kx_noparked")
    a("s_mov_b32 s20, %d" % SELROW)
    a("s_cmp_ge_u32 s65, 28")
    a("s_cbranch_scc1 kx_final")
    a("v_lshlrev_b32 v4, 2, v199")
    a("v_add_u32 v68, v67, v4")
    poll(a, "kx_poll4", ["buffer_load_dword v75, v68, s[68:71], s20 offen%s" % SC],
         lambda: a("v_cmp_eq_u32 vcc, -1, v75"))
    a("s_mov_b32 s22, 0x05040100")
    a("s_mov_b32 s23, 0x07060302")
    for m in range(2):
        for i in range(4):
            a("v_perm_b32 v%d, v%d, v%d, s22" % (32 + 8 * m + 2 * i, 204 + 8 * m + i, 200 + 8 * m + i))
            a("v_perm_b32 v%d, v%d, v%d, s23" % (33 + 8 * m + 2 * i, 204 + 8 * m + i, 200 + 8 * m + i))
    for i in range(16):
        a("v_dot2_f32_bf16 v%d, v%d, v75, 0" % (48 + i, 32 + i))
    a("s_nop 2")
    for i in range(8):
        a("v_permlane32_swap_b32 v%d, v%d" % (48 + i, 56 + i))
    a("s_nop 1")
    for i in range(8):
        a("v_add_f32 v%d, v%d, v%d" % (48 + i, 48 + i, 56 + i))
    a("s_nop 1")
    for i in range(4):
        a("v_permlane16_swap_b32 v%d, v%d" % (48 + i, 52 + i))
    a("s_nop 1")
    for i in range(4):
        a("v_add_f32 v%d, v%d, v%d" % (48 + i, 48 + i, 52 + i))
    for r in (8, 4, 2, 1):
        a("s_nop 0")
        for i in range(4):
            a("v_add_f32_dpp v%d, v%d, v%d row_ror:%d row_mask:0xf bank_mask:0xf" % (48 + i, 48 + i, 48 + i, r))
    a("s_lshl_b32 s21, s17, 6")
    a("s_add_u32 s21, s21, 98560")
    a("v_lshrrev_b32 v7, 4, v0")
    a("v_lshlrev_b32 v7, 4, v7")
    a("v_add_u32 v6, s21, v7")
    a("ds_write_b128 v6, v[48:51]")
    a("v_and_b32 v7, 7, v0")
    a("v_lshlrev_b32 v7, 2, v7")
    a("v_add_u32 v7, 98560, v7")
    a("s_waitcnt lgkmcnt(0)")
    a("s_barrier")
    for w in range(4):
        a("ds_read_b32 v%d, v7 offset:%d" % (48 + w, 64 * w))
        a("ds_read_b32 v%d, v7 offset:%d" % (52 + w, 64 * w + 32))
    a("s_waitcnt lgkmcnt(0)")
    a("v_add_f32 v48, v48, v49")
    a("v_add_f32 v50, v50, v51")
    a("v_add_f32 v52, v52, v53")
    a("v_add_f32 v54, v54, v55")
    a("v_add_f32 v48, v48, v50")
    a("v_add_f32 v52, v52, v54")
    bf16r(a, 48, 48)
    bf16r(a, 52, 52)
    a("v_mul_f32 v49, 0xbfb8aa3b, v48")
    a("v_exp_f32 v49, v49")
    a("s_nop 0")
    a("v_add_f32 v49, 1.0, v49")
    a("v_rcp_f32 v49, v49")
    a("s_nop 0")
    a("v_mul_f32 v48, v48, v49")
    bf16r(a, 48, 48)
    a("v_mul_f32 v48, v48, v52")
    bf16r(a, 48, 48)
    a("s_nop 0")
    for j in range(8):
        a("v_readlane_b32 s%d, v48, %d" % (4 + j, j))
    a("v_mov_b32 v50, 0")
    a("v_mov_b32 v51, 0")
    for j in range(8):
        unpack(a, 52, 53, 216 + j)
        a("v_fmac_f32 v50, s%d, v52" % (4 + j))
        a("v_fmac_f32 v51, s%d, v53" % (4 + j))
    a("v_lshlrev_b32 v6, 3, v199")
    a("s_lshl_b32 s20, s66, 11")
    a("s_add_u32 s20, s20, %d" % YP_OFF)
    a("buffer_store_dwordx2 v[50:51], v6, s[68:71], s20 offen%s" % SC)
    stamp(a, 7)
    a("s_endpgm")

    a.label("kx_final")
    a("v_lshrrev_b32 v5, 4, v0")
    a("v_lshlrev_b32 v3, 2, v5")
    a("s_lshl_b32 s19, s66, 4")
    a("v_add_u32 v3, s19, v3")
    a("v_add_u32 v68, v67, v3")

    def hcond():
        a("v_max_u32 v4, v69, v75")
        a("v_cmp_eq_u32 vcc, -1, v4")
    poll(a, "kx_poll5", ["buffer_load_dword v75, v68, s[68:71], s20 offen%s" % SC,
                         "buffer_load_dword v69, v68, s[68:71], s20 offen offset:1024%s" % SC], hcond)
    a("v_and_b32 v52, 0xffff0000, v64")
    a("v_ashrrev_i32 v53, 31, v52")
    a("v_not_b32 v53, v53")
    a("v_and_b32 v53, 0x7fff0000, v53")
    a("v_or_b32 v53, 0x80000000, v53")
    a("v_xor_b32 v52, v52, v53")
    a("v_mul_f32 v53, 0xbfb8aa3b, v52")
    a("v_exp_f32 v53, v53")
    a("s_nop 0")
    a("v_add_f32 v53, 1.0, v53")
    a("v_rcp_f32 v53, v53")
    a("s_nop 0")
    bf16r(a, 44, 53)
    unpack(a, 40, 41, 69)
    unpack(a, 42, 43, 75)
    a("v_lshlrev_b32 v45, 10, v66")
    a("v_add_u32 v45, v45, v3")
    a("v_lshlrev_b32 v1, 11, v0")
    a("s_lshl_b32 s19, s66, 5")
    a("v_add_u32 v1, s19, v1")
    a("v_cmp_gt_u32 vcc, 32, v0")
    a("v_mov_b32 v6, 0x40000000")
    a("v_cndmask_b32 v6, v6, v1, vcc")
    for i in range(4):
        a("s_mov_b32 s%d, %d" % (24 + i, YP_OFF + 131072 * i))
    loads = []
    for i in range(4):
        vo = 1 if i < 3 else 6
        loads.append("buffer_load_dwordx4 v[%d:%d], v%d, s[68:71], s%d offen%s" % (8 + 8 * i, 11 + 8 * i, vo, 24 + i, SC))
        loads.append("buffer_load_dwordx4 v[%d:%d], v%d, s[68:71], s%d offen offset:16%s" % (12 + 8 * i, 15 + 8 * i, vo, 24 + i, SC))

    def ycond():
        a("v_max3_u32 v4, v8, v9, v10")
        for i in range(11, 39, 2):
            a("v_max3_u32 v4, v4, v%d, v%d" % (i, i + 1))
        a("v_max_u32 v4, v4, v39")
        a("v_cmp_eq_u32 vcc, -1, v4")
    poll(a, "kx_poll3", loads, ycond)
    for i in range(4):
        a("v_pk_add_f32 v[%d:%d], v[%d:%d], v[%d:%d]" % (8 + 2 * i, 9 + 2 * i, 8 + 2 * i, 9 + 2 * i, 16 + 2 * i, 17 + 2 * i))
        a("v_pk_add_f32 v[%d:%d], v[%d:%d], v[%d:%d]" % (24 + 2 * i, 25 + 2 * i, 24 + 2 * i, 25 + 2 * i, 32 + 2 * i, 33 + 2 * i))
    for i in range(4):
        a("v_pk_add_f32 v[%d:%d], v[%d:%d], v[%d:%d]" % (8 + 2 * i, 9 + 2 * i, 8 + 2 * i, 9 + 2 * i, 24 + 2 * i, 25 + 2 * i))
    a("s_nop 1")
    for i in range(4):
        a("v_permlane32_swap_b32 v%d, v%d" % (8 + i, 12 + i))
    a("s_nop 1")
    for i in range(4):
        a("v_add_f32 v%d, v%d, v%d" % (8 + i, 8 + i, 12 + i))
    a("s_nop 1")
    for i in range(2):
        a("v_permlane16_swap_b32 v%d, v%d" % (8 + i, 10 + i))
    a("s_nop 1")
    for i in range(2):
        a("v_add_f32 v%d, v%d, v%d" % (8 + i, 8 + i, 10 + i))
    for r in (8, 4, 2, 1):
        a("s_nop 1")
        for i in range(2):
            a("v_add_f32_dpp v%d, v%d, v%d row_ror:%d row_mask:0xf bank_mask:0xf" % (8 + i, 8 + i, 8 + i, r))
    for i in range(2):
        bf16r(a, 8 + i, 8 + i)
        a("v_mul_f32 v%d, v%d, v44" % (8 + i, 8 + i))
        bf16r(a, 8 + i, 8 + i)
        a("v_add_f32 v%d, v%d, v%d" % (8 + i, 8 + i, 42 + i))
        bf16r(a, 8 + i, 8 + i)
        a("v_add_f32 v%d, v%d, v%d" % (8 + i, 8 + i, 40 + i))
    a("v_cvt_pk_bf16_f32 v8, v8, v9")
    a("v_and_b32 v6, 15, v0")
    a("v_cmp_eq_u32 vcc, 0, v6")
    a("s_and_saveexec_b64 s[30:31], vcc")
    a("buffer_store_dword v8, v45, s[80:83], 0 offen" + OUTF)
    a("s_mov_b64 exec, -1")
    if gen.STAMPS:
        a("s_waitcnt vmcnt(0)")
    stamp(a, 7)
    if HOLD:
        if HREF:
            srd(a, 72, 54, 55, 256)
            a("v_mov_b32 v197, 0")
            a("buffer_load_dword v196, v197, s[72:75], 0 offen offset:128 sc1")
            a("s_waitcnt vmcnt(0)")
            a("v_readfirstlane_b32 s84, v196")
            if HREF == "min":
                a("s_nop 3")
                a("s_not_b32 s84, s84")
        a.label("kx_hold")
        a("s_memrealtime s[4:5]")
        a("s_waitcnt lgkmcnt(0)")
        if HREF:
            a("s_and_b32 s4, s4, 0x7fffffff")
        a("s_sub_u32 s4, s4, s84")
        a("s_cmp_lt_u32 s4, %d" % (HOLD * 100))
        a("s_cbranch_scc1 kx_hold")
    a.label("kx_exit")
    a("s_endpgm")
    a.label("kx_end")
    return name, 224


def main(out):
    head = open("cdna_kernels/%s.s.ref" % NAME).read().split("\n")
    a = A()
    for line in head:
        if line.startswith(";") and "@launch" not in line:
            a.raw(line)
    for line in (
        "; Design: ONE persistent launch, 256 workgroups x 8 waves (1 per CU), phases chained through d_ws hand-offs",
        ";  P1  WGs q<16 : GEMM1  Dt = W' x^T (128x128 tiles, LDS-DMA ring, 4 MFMA waves + 4 loader waves), LayerNorm1 applied",
        ";                 algebraically in the epilogue:  (D - mean*sum(W)) / sqrt(var+eps)  -> ABT (bf16, fragment order)",
        ";      WGs q>=16: row statistics of x / row sums of W, cache prefetch of the DFT matrices and FFN weights",
        ";  P2  all WGs  : GEMM2  Cr@a, Ci@b  (128x128 tiles, split-K 4) -> bf16 partials",
        ";  P3  all WGs  : 8 rows each: h = x + y, LayerNorm2, router score, out = h + hn, per-WG best key",
        ";  P4  224 WGs  : global argmax, SwiGLU slice (8 hidden units each) and its down-projection partial",
        ";  P5  32 WGs   : reduce the partials, write the routed row",
        "; Hand-offs: write-through (sc1) stores, then flags tagged with a per-launch nonce published in d_debug[0];",
        "; small payloads use self-initialised sentinels. No assumption on workgroup placement is needed for correctness.",
    ):
        a.raw(line)
    if "--plain" in sys.argv:
        kname = NAME + "_kernel"
        a.raw("; @launch grid=(256,1,1) block=(512,1,1) lds=163840")
    else:
        kname = "kx_kernel"
        a.raw("; @launch kernel=%s grid=(256,1,1) block=(512,1,1) lds=163840" % kname)
    a.raw('.amdgcn_target "amdgcn-amd-amdhsa--gfx950"')
    name, vg = kx(a, kname)
    if DBGSTAMP:
        kernel_desc(a, name, 256, 102)
    else:
        kernel_desc(a, name, vg, 96)
    open(out, "w").write(a.text())


if __name__ == "__main__":
    args = [x for x in sys.argv[1:] if not x.startswith("--")]
    if "--stamps" in sys.argv:
        gen.STAMPS = True
    for x in sys.argv:
        if x.startswith("--exp="):
            gen.EXP = set(x[6:].split(","))
        if x.startswith("--sleep="):
            SLEEP = int(x[8:])
        if x.startswith("--ffnst="):
            FFNST = int(x[8:])
        if x.startswith("--href="):
            HREF = x[7:]
        if x.startswith("--hold="):
            HOLD = int(x[7:])
        if x.startswith("--pf0="):
            PF0 = int(x[6:])
        if x.startswith("--pfn="):
            PFN = int(x[6:])
        if x.startswith("--nrep="):
            NREP = int(x[7:])
        if x == "--dbg":
            DBGSTAMP = True
        if x.startswith("--outf="):
            OUTF = " " + x[7:].replace(",", " ")
        if x == "--noq":
            NTQ = ""
        if x == "--nont":
            NT = ""
    main(args[0] if args else "cdna_kernels/%s.s" % NAME)
```
